```python
import torch

def _softmax(x, axis=-1):
    return torch.softmax(x, dim=axis)
def _gelu(x):
    return torch.nn.functional.gelu(x, approximate="tanh")
def _silu(x):
    return torch.nn.functional.silu(x)
def _sigmoid(x):
    return torch.sigmoid(x)
def _layernorm(x, axis=-1, eps=1e-5):
    m = x.mean(dim=axis, keepdim=True)
    v = x.var(dim=axis, keepdim=True, unbiased=False)
    return (x - m) / torch.sqrt(v + eps)
def _scatter_add(tgt, idx, src, axis=0):
    return tgt.clone().index_add_(axis, idx, src)
def _segment_sum(src, seg, n):
    out = torch.zeros((n,) + src.shape[1:], dtype=src.dtype)
    return out.index_add_(0, seg, src)
def _pad(x, pw):
    flat = tuple(v for pair in reversed(pw) for v in pair)
    return torch.nn.functional.pad(x, flat)

kernel_name = 'sequential_preLN__sliding_local_dilated__glu_gated_geglu__prompt'

def setup_inputs():

    _w = (lambda a: (lambda t: t.to(torch.bfloat16) if t.is_floating_point() else t)(torch.as_tensor(a)))
    def _A_setup():
        B, S, D = 1, 2048, 576
        return {
            "x": _w((lambda *s: torch.randn(*s, dtype=torch.bfloat16) * 0.05)(B, S, D)),
            "wqkv": _w((lambda *s: torch.randn(*s, dtype=torch.bfloat16) * 0.05)(D, 3 * D)),
            "wo": _w((lambda *s: torch.randn(*s, dtype=torch.bfloat16) * 0.05)(D, D)),
        }
    _A_in = _A_setup()

    def _B_setup():
        B, S, Dm, Df = 1, 2048, 576, 4608
        return {
            "x": _w((lambda *s: torch.randn(*s, dtype=torch.bfloat16) * 0.05)(B, S, Dm)),
            "w_gate": _w((lambda *s: torch.randn(*s, dtype=torch.bfloat16) * 0.8)(Dm, Df) * (Dm ** -0.5)),
            "w_up": _w((lambda *s: torch.randn(*s, dtype=torch.bfloat16) * 0.8)(Dm, Df) * (Dm ** -0.5)),
            "w_down": _w((lambda *s: torch.randn(*s, dtype=torch.bfloat16) * 0.8)(Df, Dm) * (Df ** -0.5)),
        }
    _B_in = _B_setup()

    return {
        "A_x": _A_in["x"],
        "A_wqkv": _A_in["wqkv"],
        "A_wo": _A_in["wo"],
        "B_x": _B_in["x"],
        "B_w_gate": _B_in["w_gate"],
        "B_w_up": _B_in["w_up"],
        "B_w_down": _B_in["w_down"],
    }

def reference(A_x, A_wqkv, A_wo, B_x, B_w_gate, B_w_up, B_w_down):
    def _A_ref(x, wqkv, wo):
        B, S, D = x.shape
        H = 32; Dh = D // H
        W, dil = 8, 2
        qkv = (lambda x, *d: x.permute(*d))((x @ wqkv).reshape(B, S, 3, H, Dh), 2, 0, 3, 1, 4)
        q, k, v = qkv[0], qkv[1], qkv[2]
        scale = Dh ** -0.5
        pos = torch.arange(S)
        off = torch.arange(W) * dil
        idx = pos[:, None] - off[None, :]
        mask = idx >= 0
        idx_c = torch.where(mask, idx, 0).reshape(-1)
        kg = k[:, :, idx_c, :].reshape(B, H, S, W, Dh)
        vg = v[:, :, idx_c, :].reshape(B, H, S, W, Dh)
        logits = torch.einsum("bhsd,bhswd->bhsw", q, kg) * scale
        logits = torch.where(mask[None, None, :, :], logits, -1e9)
        attn = _softmax(logits, axis=-1)
        o = torch.einsum("bhsw,bhswd->bhsd", attn, vg)
        return (lambda x, *d: x.permute(*d))(o, 0, 2, 1, 3).reshape(B, S, D) @ wo

    def _B_ref(x, w_gate, w_up, w_down):
        g = torch.einsum("bsd,df->bsf", x, w_gate)
        u = torch.einsum("bsd,df->bsf", x, w_up)
        h = _gelu(g) * u
        return torch.einsum("bsf,fd->bsd", h, w_down)

    x = A_x
    h = x + _A_ref(_layernorm(x, axis=-1), A_wqkv, A_wo)
    h2 = h + _B_ref(_layernorm(h, axis=-1), B_w_gate, B_w_up, B_w_down)
    return h2
```

```python
import struct
KA_X, KA_WQKV, KA_WO, KA_BX, KA_WG, KA_WU, KA_WD, KA_OUT, KA_DBG, KA_WS = [8*i for i in range(10)]
WS_O    = 0x0
WS_HF   = 0x240000
WS_ST   = 0x480000
WS_FLAG = 0x4B0000
WS_HX   = 0x500000
WS_P    = 0x1700000
WS_END  = 0x2900000
SRD3 = 0x20000
S_, D_, F_ = 2048, 576, 4608
def f2u(x): return struct.unpack('<I', struct.pack('<f', x))[0]
```

```python
import re

REG_RE = re.compile(r'^(v|a|s)(\d+)$')
RNG_RE = re.compile(r'^(v|a|s)\[(\d+):(\d+)\]$')

def regs_of(tok):
    tok = tok.strip()
    neg = tok.lstrip('-')
    if neg.startswith('abs(') and neg.endswith(')'): neg = neg[4:-1]
    if neg.startswith('|') and neg.endswith('|'): neg = neg[1:-1]
    m = REG_RE.match(neg)
    if m: return [(m.group(1), int(m.group(2)))]
    m = RNG_RE.match(neg)
    if m: return [(m.group(1), i) for i in range(int(m.group(2)), int(m.group(3)) + 1)]
    if neg == 'vcc': return [('s', 'vcc')]
    if neg == 'exec': return [('s', 'exec')]
    if neg == 'm0': return [('s', 'm0')]
    return []

TRANS = ('v_exp_f32', 'v_log_f32', 'v_rcp_f32', 'v_rsq_f32', 'v_sqrt_f32', 'v_sin_f32', 'v_cos_f32')

class Ins:
    __slots__ = ('text', 'op', 'kind', 'rd', 'wr', 'tag', 'cost', 'meta')
    def __init__(self, text, tag=None, meta=None):
        self.text = text; self.tag = tag; self.meta = meta
        t = text.split(';')[0].strip()
        self.rd = []; self.wr = []
        if t.endswith(':') or t.startswith('.') or t == '':
            self.op = ''; self.kind = 'label'; self.cost = 0; return
        parts = t.split(None, 1)
        op = parts[0]; self.op = op
        rest = parts[1] if len(parts) > 1 else ''
        ops = [o.strip() for o in rest.split(',')] if rest else []
        mods = ''
        if ops:
            last = ops[-1].split()
            if last:
                ops[-1] = last[0]; mods = ' '.join(last[1:])
        R = lambda lst: [r for o in lst for r in regs_of(o)]
        base = op
        for suf in ('_e32', '_e64', '_sdwa', '_dpp'):
            if base.endswith(suf): base = base[:-len(suf)]
        self.cost = 1
        if op.startswith('v_mfma'):
            self.kind = 'mfma'; self.wr = R(ops[:1]); self.rd = R(ops[1:4])
            self.meta = dict(meta or {}); self.meta.update(A=R(ops[1:2]), B=R(ops[2:3]), C=R(ops[3:4]),
                              passes=8 if '32x32x16' in op else 4)
        elif op.startswith('ds_read') or op.startswith('ds_bpermute') or op.startswith('ds_swizzle'):
            self.kind = 'ds'; self.wr = R(ops[:1]); self.rd = R(ops[1:])
        elif op.startswith('ds_write'):
            self.kind = 'ds'; self.rd = R(ops)
        elif op.startswith('buffer_load') or op.startswith('global_load'):
            self.kind = 'vmem'
            if ' lds' in (' ' + mods) or op.startswith('global_load_lds'):
                self.rd = R(ops) + [('s', 'm0')]; self.meta = dict(meta or {}); self.meta['dma'] = True
            else:
                self.wr = R(ops[:1]); self.rd = R(ops[1:])
        elif op.startswith('buffer_store') or op.startswith('global_store'):
            self.kind = 'vmem'; self.rd = R(ops); self.meta = dict(meta or {}); self.meta['store'] = True
            self.meta['data'] = R(ops[:1]) if op.startswith('buffer') else R(ops[1:2])
        elif op.startswith('buffer_atomic') or op.startswith('global_atomic'):
            self.kind = 'vmem'; self.rd = R(ops); self.meta = dict(meta or {}); self.meta['store'] = True; self.meta['data'] = R(ops[:1])
            if 'sc0' in mods: self.wr = R(ops[:1])
        elif op.startswith('s_load') or op.startswith('s_buffer_load') or op.startswith('s_memtime') or op.startswith('s_memrealtime'):
            self.kind = 'smem'; self.wr = R(ops[:1]); self.rd = R(ops[1:])
        elif op == 's_waitcnt':
            self.kind = 'wait'
            allt = rest
            m = re.search(r'vmcnt\((\d+)\)', allt); vm = int(m.group(1)) if m else None
            m = re.search(r'lgkmcnt\((\d+)\)', allt); lg = int(m.group(1)) if m else None
            self.meta = dict(vm=vm, lg=lg)
        elif op == 's_nop':
            self.kind = 'nop'; self.cost = int(rest.strip(), 0) + 1
        elif op in ('s_barrier',):
            self.kind = 'barrier'
        elif op.startswith('s_cbranch') or op == 's_branch' or op == 's_endpgm':
            self.kind = 'branch'
            if 'scc' in op: self.rd = [('s', 'scc')]
            if 'vcc' in op: self.rd = [('s', 'vcc')]
            if 'exec' in op: self.rd = [('s', 'exec')]
        elif op.startswith('s_'):
            self.kind = 'salu'
            if op.startswith('s_cmp') or op.startswith('s_bitcmp'):
                self.rd = R(ops); self.wr = [('s', 'scc')]
            elif op in ('s_setprio', 's_sleep', 's_sethalt', 's_setreg_b32', 's_setreg_imm32_b32'):
                self.rd = R(ops)
            else:
                self.wr = R(ops[:1]); self.rd = R(ops[1:])
                if op.startswith('s_cselect') or op.startswith('s_addc') or op.startswith('s_subb'): self.rd += [('s', 'scc')]
                if op.startswith('s_and_saveexec') or op.startswith('s_or_saveexec'):
                    self.rd += [('s', 'exec')]; self.wr += [('s', 'exec')]
                if op in ('s_addk_i32', 's_mulk_i32'): self.rd += R(ops[:1])
                if not (op.startswith('s_mov') or op.startswith('s_cselect') or op.startswith('s_mul') or op.startswith('s_getpc') or op.startswith('s_getreg')):
                    self.wr += [('s', 'scc')]
        elif op.startswith('v_'):
            self.kind = 'trans' if base in TRANS else 'valu'
            if self.kind == 'trans': self.cost = 2
            if base.startswith('v_cmp'):
                self.wr = R(ops[:1]); self.rd = R(ops[1:])
                if base.startswith('v_cmpx'): self.wr += [('s', 'exec')]
            elif base.startswith('v_permlane') and 'swap' in base:
                self.wr = R(ops[:2]); self.rd = R(ops[:2])
            elif base in ('v_add_co_u32', 'v_sub_co_u32', 'v_subrev_co_u32'):
                self.wr = R(ops[:2]); self.rd = R(ops[2:])
            elif base in ('v_addc_co_u32', 'v_subb_co_u32'):
                self.wr = R(ops[:2]); self.rd = R(ops[2:])
            elif base in ('v_fmac_f32', 'v_dot2c_f32_bf16', 'v_pk_fmac_f16', 'v_mac_f32', 'v_writelane_b32'):
                self.wr = R(ops[:1]); self.rd = R(ops)
            else:
                self.wr = R(ops[:1]); self.rd = R(ops[1:])
            if 'dpp' in op or 'row_' in mods or 'quad_perm' in mods:
                self.meta = dict(meta or {}); self.meta['dpp'] = True
                if 'bound_ctrl' not in mods: self.rd += R(ops[:1])
        else:
            raise ValueError('unknown instruction: ' + text)
    def __repr__(self): return self.text


class Prog:
    def __init__(self):
        self.ins = []
        self.lgq = []
        self.vmq = []
        self.track = True
    def raw(self, text):
        self.ins.append(Ins(text)); return self.ins[-1]
    def e(self, text, tag=None):
        i = Ins(text, tag=tag)
        self._account(i)
        self.ins.append(i)
        return i
    def lines(self, *texts):
        for t in texts: self.e(t)
    def _account(self, i):
        if i.kind == 'ds' or i.kind == 'smem':
            self.lgq.append(i)
        elif i.kind == 'vmem':
            self.vmq.append(i)
        elif i.kind == 'wait':
            vm, lg = i.meta['vm'], i.meta['lg']
            if vm is not None and len(self.vmq) > vm: self.vmq = self.vmq[len(self.vmq) - vm:] if vm else []
            if lg is not None:
                if any(x.kind == 'smem' for x in self.lgq):
                    if lg == 0: self.lgq = []
                elif len(self.lgq) > lg: self.lgq = self.lgq[len(self.lgq) - lg:] if lg else []
    def wait_lg_regs(self, regs):
        rs = set(regs); last = -1
        for k, x in enumerate(self.lgq):
            if rs & set(x.wr): last = k
        if last < 0: return None
        n = len(self.lgq) - 1 - last
        assert n <= 15, n
        return self.e('s_waitcnt lgkmcnt(%d)' % n)
    def n_vm_after(self, pred):
        last = -1
        for k, x in enumerate(self.vmq):
            if pred(x): last = k
        if last < 0: return None
        return len(self.vmq) - 1 - last
    def wait_vm(self, pred, cap=63):
        n = self.n_vm_after(pred)
        if n is None: return None
        n = min(n, cap)
        return self.e('s_waitcnt vmcnt(%d)' % n)
    def wait_vm_tag(self, tag, cap=63):
        return self.wait_vm(lambda x: x.tag == tag, cap)
    def wait_vm_regs(self, regs):
        rs = set(regs)
        return self.wait_vm(lambda x: bool(rs & set(x.wr)))
    def text(self):
        return '\n'.join(i.text for i in self.ins)


def vr(a, n=1):
    return 'v%d' % a if n == 1 else 'v[%d:%d]' % (a, a + n - 1)
def ar(a, n=1):
    return 'a%d' % a if n == 1 else 'a[%d:%d]' % (a, a + n - 1)
def sr(a, n=1):
    return 's%d' % a if n == 1 else 's[%d:%d]' % (a, a + n - 1)
def rset(kind, a, n): return [(kind, i) for i in range(a, a + n)]


def check(seq, name='', verbose=True):
    errs = []
    seq = [i for i in seq if i.kind != 'label']
    pos = []; p = 0
    for i in seq:
        pos.append(p); p += (i.cost if i.kind == 'nop' else 1)
    lastw = {}
    lastCread = {}
    laststore = {}
    lgq = []; vmq = []
    pend = {}
    def dist(a, b):
        return pos[b] - pos[a] - 1 + 0 if seq[a].kind != 'nop' else pos[b] - pos[a] - seq[a].cost
    for k, i in enumerate(seq):
        rd = set(i.rd); wr = set(i.wr)
        for r in rd | wr:
            if r in pend:
                errs.append('%s: [%d] %s touches %s with load outstanding: %s' % (name, k, i.text, r, pend[r].text))
        need = []
        for r in rd:
            if r in lastw:
                j, w = lastw[r]; d = dist(j, k)
                req = 0
                if w.kind == 'mfma':
                    ps = w.meta['passes']
                    if i.kind == 'mfma':
                        if r in set(i.meta['A']) | set(i.meta['B']): req = {4: 8, 8: 12}[ps]
                        elif r in set(i.meta['C']):
                            if set(i.meta['C']) == set(w.wr) and i.meta['passes'] == ps: req = 0
                            else: req = {4: 6, 8: 10}[ps]
                    else: req = {4: 8, 8: 12}[ps]
                elif w.kind in ('valu', 'trans'):
                    if w.op.startswith('v_dot') and r[0] == 'v':
                        srcC = i.op == w.op and (i.rd[-1] == r if not i.op.startswith('v_dot2c') else i.wr[0] == r) and sum(1 for x in i.rd if x == r) == (1)
                        req = 0 if srcC else 3
                    elif i.kind == 'mfma': req = 2
                    elif r[0] == 's':
                        if i.kind == 'vmem': req = 5
                        elif i.kind in ('valu', 'trans'):
                            req = 2
                            if 'readlane' in i.op or 'writelane' in i.op: req = 4
                        elif i.kind in ('salu', 'branch'):
                            req = 1 if r[1] not in ('exec',) else 0
                            if r[1] == 'vcc' and i.kind == 'branch': req = 5 if False else 1
                    else:
                        if w.kind == 'trans' and i.kind == 'valu': req = 1
                        if 'readfirstlane' in i.op or 'v_readlane' in i.op: req = max(req, 1)
                        if 'permlane' in i.op: req = max(req, 2)
                        if i.meta and isinstance(i.meta, dict) and i.meta.get('dpp'): req = max(req, 2)
                    if r == ('s', 'exec') and i.kind == 'mfma': req = 4
                elif w.kind == 'salu':
                    if r == ('s', 'm0') and i.kind == 'vmem' and i.meta and i.meta.get('dma'): req = 1
                if d < req: errs.append('%s: [%d] RAW %s <- %s on %s: dist %d < %d' % (name, k, i.text, w.text, r, d, req))
        for r in wr:
            if r in lastw:
                j, w = lastw[r]; d = dist(j, k)
                if w.kind == 'mfma' and i.kind != 'mfma':
                    req = {4: 8, 8: 12}[w.meta['passes']]
                    if d < req: errs.append('%s: [%d] WAW %s over mfma %s on %s: %d < %d' % (name, k, i.text, w.text, r, d, req))
                if w.op.startswith('v_dot') and i.op != w.op and i.kind in ('valu', 'trans', 'mfma') and d < 3:
                    errs.append('%s: [%d] WAW %s over dot %s: %d < 3' % (name, k, i.text, w.text, d))
                if w.kind == 'mfma' and i.kind == 'mfma' and not (set(i.wr) == set(w.wr)):
                    req = {4: 6, 8: 10}[w.meta['passes']]
                    if d < req: errs.append('%s: [%d] WAW mfma partial %s over %s: %d < %d' % (name, k, i.text, w.text, d, req))
            if r in lastCread and i.kind in ('valu', 'trans'):
                j = lastCread[r]; d = dist(j, k); req = {4: 3, 8: 7}[seq[j].meta['passes']]
                if d < req: errs.append('%s: [%d] WAR SrcC %s after %s: %d < %d' % (name, k, i.text, seq[j].text, d, req))
            if r in laststore:
                j = laststore[r]; d = dist(j, k); req = 2 if i.kind in ('valu', 'trans') else 1
                if d < req: errs.append('%s: [%d] store-data WAR %s after %s: %d < %d' % (name, k, i.text, seq[j].text, d, req))
        for r in wr: lastw[r] = (k, i)
        if i.kind == 'mfma':
            for r in i.meta['C']: lastCread[r] = k
        if i.kind == 'vmem' and i.meta and i.meta.get('store') and len(i.meta['data']) >= 3:
            for r in i.meta['data']: laststore[r] = k
        if i.kind in ('ds', 'smem'):
            lgq.append(i)
            if len([x for x in lgq if x.kind == 'ds']) > 15 and False: errs.append('%s: [%d] >15 lgkm outstanding' % (name, k))
            for r in i.wr: pend[r] = i
        elif i.kind == 'vmem':
            vmq.append(i)
            if len(vmq) > 63: errs.append('%s: [%d] >63 vm outstanding' % (name, k))
            for r in i.wr: pend[r] = i
        elif i.kind == 'wait':
            vm, lg = i.meta['vm'], i.meta['lg']
            done = []
            if vm is not None and len(vmq) > vm:
                done += vmq[:len(vmq) - vm]; vmq = vmq[len(vmq) - vm:]
            if lg is not None:
                if any(x.kind == 'smem' for x in lgq):
                    if lg == 0: done += lgq; lgq = []
                elif len(lgq) > lg:
                    done += lgq[:len(lgq) - lg]; lgq = lgq[len(lgq) - lg:]
            for x in done:
                for r in x.wr:
                    if pend.get(r) is x: del pend[r]
    if verbose:
        for x in errs[:40]: print('HAZARD', x)
        print('check %s: %d instrs, %d problems' % (name, len(seq), len(errs)))
    return errs
```

```python
from core import *
from common import *

XR_END = 92160
WSLOT = 16384
PITCH = 516
LDS_BYTES = XR_END + 4*WSLOT

def build(name='k1_kernel', prefetch=None):
    P = Prog(); e = P.e
    VB = [2, 3]; VBH = [4, 5]; VAE, VAO, PAE, PAO = 6, 7, 8, 9
    VW, VX, VONE = 10, 14, 16
    VS, VQ, T = 17, 22, 27
    BB = [40, 60]; AB = [80, 96]; ACC = 112
    S_X, S_WQ, S_WS = 8, 12, 16
    S_W, S_HG, S_MI, S_C, S_RA, S_WA, S_WB, S_SO, S_T0, S_T1, S_CNT = 20, 21, 22, 23, 24, 25, 26, 27, 28, 29, 30
    S_MASK = 32
    S_OD = 40
    def acc(i, mt): return ACC + 20*i + 4*mt
    e('s_cmp_ge_u32 s2, 256'); e('s_cbranch_scc1 L_%s_end' % name)
    e('s_load_dwordx4 s[4:7], s[0:1], %d' % KA_X)
    e('s_load_dwordx2 s[34:35], s[0:1], %d' % KA_WS)
    e('v_lshrrev_b32 v1, 6, v0'); e('v_and_b32 v0, 63, v0')
    e('v_readfirstlane_b32 %s, v1' % sr(S_W))
    e('s_and_b32 %s, s2, 1' % sr(S_HG)); e('s_lshl_b32 %s, %s, 2' % (sr(S_HG), sr(S_HG)))
    e('s_bfe_u32 %s, s2, 0x20003' % sr(S_T0)); e('s_add_u32 %s, %s, %s' % (sr(S_HG), sr(S_HG), sr(S_T0)))
    e('s_bfe_u32 %s, s2, 0x20001' % sr(S_MI)); e('s_lshl_b32 %s, %s, 3' % (sr(S_MI), sr(S_MI)))
    e('s_lshr_b32 %s, s2, 5' % sr(S_T0)); e('s_add_u32 %s, %s, %s' % (sr(S_MI), sr(S_MI), sr(S_T0)))
    e('v_lshrrev_b32 v1, 3, v0'); e('v_and_b32 %s, 7, v0' % vr(T))
    for par in range(2):
        e('v_lshrrev_b32 %s, 1, v1' % vr(T+1))
        if par: e('v_add_u32 %s, 4, %s' % (vr(T+1), vr(T+1)))
        e('v_xor_b32 %s, %s, %s' % (vr(T+1), vr(T+1), vr(T))); e('v_lshlrev_b32 %s, 4, %s' % (vr(T+1), vr(T+1)))
        e('v_mul_u32_u24 %s, 1152, v1' % vr(T+2)); e('v_add_u32 %s, %s, %s' % (vr(VX+par), vr(T+1), vr(T+2)))
    for t in range(4):
        d = vr(VW+t)
        e('s_lshl_b32 %s, %s, 3' % (sr(S_T0), sr(S_W))); e('s_add_u32 %s, %s, %d' % (sr(S_T0), sr(S_T0), 32*t))
        e('v_add_u32 %s, %s, v1' % (vr(T), sr(S_T0)))
        e('v_mul_u32_u24 %s, 4682, %s' % (vr(T+1), vr(T))); e('v_lshrrev_b32 %s, 16, %s' % (vr(T+1), vr(T+1)))
        e('v_mul_u32_u24 %s, 14, %s' % (vr(T+2), vr(T+1))); e('v_sub_u32 %s, %s, %s' % (vr(T+2), vr(T), vr(T+2)))
        e('v_bfe_u32 %s, %s, 1, 1' % (vr(T+3), vr(T+1))); e('v_xor_b32 %s, %s, %s' % (vr(T+2), vr(T+2), vr(T+3)))
        e('v_and_b32 %s, 1, v0' % vr(T+3)); e('v_lshl_add_u32 %s, %s, 1, %s' % (vr(T+2), vr(T+2), vr(T+3)))
        e('v_min_u32 %s, 26, %s' % (vr(T+2), vr(T+2)))
        e('v_mul_u32_u24 %s, 57, %s' % (vr(T+3), vr(T+2))); e('v_lshrrev_b32 %s, 9, %s' % (vr(T+3), vr(T+3)))
        e('v_mul_u32_u24 %s, 9, %s' % (vr(T+4), vr(T+3))); e('v_sub_u32 %s, %s, %s' % (vr(T+2), vr(T+2), vr(T+4)))
        e('v_mul_u32_u24 %s, 1152, %s' % (vr(T+3), vr(T+3))); e('v_lshl_add_u32 %s, %s, 4, %s' % (vr(T+2), vr(T+2), vr(T+3)))
        e('v_bfe_u32 %s, v0, 1, 2' % vr(T+3)); e('v_lshl_add_u32 %s, %s, 2, %s' % (vr(T+3), vr(T+1), vr(T+3)))
        e('v_mul_u32_u24 %s, 3456, %s' % (vr(T+3), vr(T+3))); e('v_add_u32 %s, %s, %s' % (d, vr(T+2), vr(T+3)))
        e('v_cmp_le_u32 vcc, 112, %s' % vr(T)); e('v_mov_b32 %s, 0x7fff0000' % vr(T+3))
        e('s_nop 0')
        e('v_cndmask_b32 %s, %s, %s, vcc' % (d, d, vr(T+3)))
    e('s_waitcnt lgkmcnt(0)')
    for srd, lo, hi, size in ((S_X, 4, 5, S_*D_*2), (S_WQ, 6, 7, D_*3*D_*2), (S_WS, 34, 35, WS_END)):
        e('s_mov_b32 %s, s%d' % (sr(srd), lo)); e('s_mov_b32 %s, s%d' % (sr(srd+1), hi))
        e('s_mov_b32 %s, 0x%x' % (sr(srd+2), size)); e('s_mov_b32 %s, 0x%x' % (sr(srd+3), SRD3))
    for bi in range(3):
        if bi == 2:
            e('s_cmp_ge_u32 %s, 2' % sr(S_W)); e('s_cbranch_scc1 L_%s_nox' % name)
        e('s_add_u32 %s, %s, %d' % (sr(S_T0), sr(S_W), 4*bi))
        e('s_lshl_b32 %s, %s, 3' % (sr(S_T1), sr(S_MI))); e('s_add_u32 %s, %s, %s' % (sr(S_T1), sr(S_T1), sr(S_T0)))
        e('s_sub_u32 %s, %s, 2' % (sr(S_T1), sr(S_T1))); e('s_max_i32 %s, %s, 0' % (sr(S_T1), sr(S_T1)))
        e('s_mul_i32 %s, %s, %d' % (sr(S_T1), sr(S_T1), 8*1152))
        e('s_mul_i32 %s, %s, 9216' % (sr(S_T0), sr(S_T0)))
        if bi == 0:
            e('s_and_b32 s31, %s, 1' % sr(S_W)); e('s_cmp_eq_u32 s31, 1'); e('s_cselect_b64 vcc, -1, 0')
            e('v_cndmask_b32 %s, %s, %s, vcc' % (vr(VX), vr(VX), vr(VX+1)))
        for lam in range(9):
            P.raw('s_add_u32 m0, %s, %d' % (sr(S_T0), lam*1024))
            P.raw('s_add_u32 s36, %s, %d' % (sr(S_T1), lam*128))
            P.raw('buffer_load_dwordx4 %s, %s, s36 offen lds' % (vr(VX), sr(S_X,4)))
    P.raw('L_%s_nox:' % name)
    e('s_mul_i32 %s, %s, 144' % (sr(S_SO), sr(S_HG)))
    e('s_lshl_b32 %s, %s, 10' % (sr(S_WB), sr(S_W))); e('s_add_u32 %s, %s, %d' % (sr(S_WB), sr(S_WB), XR_END))
    for ks in range(4):
        for t in range(4):
            e('s_add_u32 m0, %s, %d' % (sr(S_WB), ks*WSLOT + t*4096))
            if t == 0: e('s_add_u32 %s, %s, %d' % (sr(S_T0), sr(S_SO), ks*32*3456))
            else: e('s_nop 0')
            e('buffer_load_dwordx4 %s, %s, %s offen lds' % (vr(VW+t), sr(S_WQ,4), sr(S_T0)), tag='w%d' % ks)
    e('s_add_u32 %s, %s, %d' % (sr(S_SO), sr(S_SO), 4*32*3456))
    if prefetch: prefetch(P)
    e('v_and_b32 v1, 15, v0'); e('v_lshrrev_b32 %s, 4, v0' % vr(T))
    e('v_lshrrev_b32 %s, 3, v1' % vr(T+1)); e('v_mul_u32_u24 %s, 9216, %s' % (vr(T+1), vr(T+1)))
    e('v_and_b32 %s, 7, v1' % vr(T+2)); e('v_lshl_add_u32 %s, %s, 7, %s' % (vr(T+1), vr(T+2), vr(T+1)))
    e('v_lshrrev_b32 %s, 1, v1' % vr(T+2))
    for kp in range(2):
        e('v_add_u32 %s, %d, %s' % (vr(T+3), 4*kp, vr(T))); e('v_xor_b32 %s, %s, %s' % (vr(T+3), vr(T+3), vr(T+2)))
        e('v_lshl_add_u32 %s, %s, 4, %s' % (vr(VB[kp]), vr(T+3), vr(T+1))); e('v_add_u32 %s, %d, %s' % (vr(VBH[kp]), 4*18432, vr(VB[kp])))
    e('v_mul_u32_u24 %s, 3584, %s' % (vr(T+1), vr(T)))
    e('v_bfe_u32 %s, v0, 2, 2' % vr(T+2)); e('v_lshl_add_u32 %s, %s, 5, %s' % (vr(T+1), vr(T+2), vr(T+1)))
    e('v_and_b32 %s, 3, v0' % vr(T+2)); e('v_lshl_add_u32 %s, %s, 3, %s' % (vr(T+1), vr(T+2), vr(T+1)))
    e('s_lshl_b32 %s, %s, 9' % (sr(S_T0), sr(S_W))); e('s_add_u32 %s, %s, %d' % (sr(S_T0), sr(S_T0), XR_END))
    e('v_add_u32 %s, %s, %s' % (vr(T+1), sr(S_T0), vr(T+1)))
    e('v_and_b32 %s, 1, %s' % (vr(T+2), vr(T))); e('v_lshlrev_b32 %s, 7, %s' % (vr(T+2), vr(T+2)))
    e('v_add_u32 %s, %s, %s' % (vr(PAE), vr(T+1), vr(T+2))); e('v_sub_u32 %s, %s, %s' % (vr(PAO), vr(T+1), vr(T+2)))
    e('v_mov_b32 %s, 0x3f803f80' % vr(VONE))
    e('v_cmp_eq_u32 %s, 0, v1' % sr(S_MASK, 2))
    for k in range(5): e('v_mov_b32 %s, 0' % vr(VS+k)); e('v_mov_b32 %s, 0' % vr(VQ+k))
    for i in range(4):
        for mt in range(5):
            for r in range(4): e('v_mov_b32 %s, 0' % vr(acc(i, mt)+r))
    e('s_mul_i32 %s, %s, 72' % (sr(S_T0), sr(S_HG))); e('s_mul_i32 %s, %s, 18' % (sr(S_T1), sr(S_W))); e('s_add_u32 s37, %s, %s' % (sr(S_T0), sr(S_T1)))
    for d in range(9):
        o = sr(S_OD+d)
        e('s_add_u32 s38, s37, %d' % (2*d))
        e('s_lshr_b32 %s, s38, 5' % o); e('s_lshl_b32 %s, %s, 10' % (o, o))
        e('s_bfe_u32 s39, s38, 0x20002'); e('s_lshl_b32 s39, s39, 8'); e('s_add_u32 %s, %s, s39' % (o, o))
        e('s_bfe_u32 s39, s38, 0x10004'); e('s_lshl_b32 s39, s39, 3'); e('s_add_u32 %s, %s, s39' % (o, o))
        e('s_bfe_u32 s39, s38, 0x10001'); e('s_lshl_b32 s39, s39, 2'); e('s_add_u32 %s, %s, s39' % (o, o))
    def reads(st, kp):
        l = []
        for mt in range(5):
            rd = VB[kp] if mt < 4 else VBH[kp]
            l.append('ds_read_b128 %s, %s offset:%d' % (vr(BB[st]+4*mt, 4), vr(rd), mt*18432 if mt < 4 else 0))
        for i in range(4):
            for u in range(2):
                l.append('ds_read_b64_tr_b16 %s, %s offset:%d' % (vr(AB[st]+4*i+2*u, 2), vr(VAE if i % 2 == 0 else VAO), u*1792 + i*128))
        return l
    def ones_fix(st):
        for d in range(4): e('v_cndmask_b32 %s, %s, %s, %s' % (vr(BB[st]+d), vr(BB[st]+d), vr(VONE), sr(S_MASK, 2)))
    P.wait_vm_tag('w0'); e('s_barrier')
    e('v_mov_b32 %s, %s' % (vr(VAE), vr(PAE))); e('v_mov_b32 %s, %s' % (vr(VAO), vr(PAO)))
    for t in reads(0, 0): e(t)
    e('s_mov_b32 %s, 0' % sr(S_C)); e('s_mov_b32 %s, 9' % sr(S_CNT))
    e('s_waitcnt lgkmcnt(0)')
    ones_fix(0)
    P.raw('.p2align 6'); P.raw('L_%s_loop:' % name)
    loop_start = len(P.ins)
    for kp in range(2):
        cur, nxt = kp, 1-kp
        e('s_waitcnt vmcnt(8)'); e('s_barrier')
        e('s_lshl_b32 %s, %s, 14' % (sr(S_T0), sr(S_C))); e('s_add_u32 %s, %s, %s' % (sr(S_WA), sr(S_WB), sr(S_T0)))
        e('s_add_u32 %s, %s, 1' % (sr(S_C), sr(S_C))); e('s_and_b32 %s, %s, 3' % (sr(S_C), sr(S_C))); e('s_lshl_b32 %s, %s, 14' % (sr(S_RA), sr(S_C)))
        e('v_add_u32 %s, %s, %s' % (vr(VAE), sr(S_RA), vr(PAE))); e('v_add_u32 %s, %s, %s' % (vr(VAO), sr(S_RA), vr(PAO)))
        if kp == 1:
            e('v_add_u32 %s, 1024, %s' % (vr(VB[0]), vr(VB[0]))); e('v_add_u32 %s, 1024, %s' % (vr(VBH[0]), vr(VBH[0])))
        rd = reads(nxt, 1-kp)
        dma = []
        for t in range(4):
            dma.append(['s_add_u32 m0, %s, %d' % (sr(S_WA), t*4096)])
            dma.append(['buffer_load_dwordx4 %s, %s, %s offen lds' % (vr(VW+t), sr(S_WQ,4), sr(S_SO))])
        stats = []
        for d in range(4):
            for mt in range(5):
                b = vr(BB[cur]+4*mt+d)
                stats.append('v_dot2_f32_bf16 %s, %s, %s, %s' % (vr(VS+mt), b, vr(VONE), vr(VS+mt)))
                stats.append('v_dot2_f32_bf16 %s, %s, %s, %s' % (vr(VQ+mt), b, b, vr(VQ+mt)))
        n = 0
        for i in range(4):
            for mt in range(5):
                e('v_mfma_f32_16x16x32_bf16 %s, %s, %s, %s' % (vr(acc(i, mt), 4), vr(AB[cur]+4*i, 4), vr(BB[cur]+4*mt, 4), vr(acc(i, mt), 4)))
                if n < 13: e(rd[n])
                elif n - 13 < 7: pass
                if n >= 12 and dma and n < 20:
                    for t in dma.pop(0): e(t)
                for _ in range(2):
                    if stats: e(stats.pop(0))
                n += 1
        assert not stats and not dma, (len(stats), len(dma))
        e('s_add_u32 %s, %s, %d' % (sr(S_SO), sr(S_SO), 32*3456))
        if kp == 0:
            e('v_add_u32 %s, 1024, %s' % (vr(VB[1]), vr(VB[1]))); e('v_add_u32 %s, 1024, %s' % (vr(VBH[1]), vr(VBH[1])))
        e('s_waitcnt lgkmcnt(0)')
        ones_fix(nxt)
        if kp == 0: e('s_nop 0')
    e('s_sub_u32 %s, %s, 1' % (sr(S_CNT), sr(S_CNT))); e('s_cmp_lg_u32 %s, 0' % sr(S_CNT)); e('s_cbranch_scc1 L_%s_loop' % name)
    loop_end = len(P.ins)
    for k0, n in ((VS, 5), (VQ, 5)):
        for swap in ('v_permlane32_swap_b32', 'v_permlane16_swap_b32'):
            for k in range(n): e('v_mov_b32 %s, %s' % (vr(T+k), vr(k0+k)))
            e('s_nop 1')
            for k in range(n): e('%s %s, %s' % (swap, vr(k0+k), vr(T+k)))
            e('s_nop 1')
            for k in range(n): e('v_add_f32 %s, %s, %s' % (vr(k0+k), vr(k0+k), vr(T+k)))
    e('s_mov_b32 %s, 0x%08x' % (sr(S_T0), f2u(1.0/576)))
    for k in range(5): e('v_mul_f32 %s, %s, %s' % (vr(VS+k), sr(S_T0), vr(VS+k)))
    for k in range(5): e('v_mul_f32 %s, %s, %s' % (vr(VQ+k), sr(S_T0), vr(VQ+k)))
    for k in range(5): e('v_fma_f32 %s, -%s, %s, %s' % (vr(VQ+k), vr(VS+k), vr(VS+k), vr(VQ+k)))
    for k in range(5): e('v_max_f32 %s, 0, %s' % (vr(VQ+k), vr(VQ+k)))
    for k in range(5): e('v_add_f32 %s, 0x%08x, %s' % (vr(VQ+k), f2u(1e-5), vr(VQ+k)))
    for k in range(5): e('v_rsq_f32 %s, %s' % (vr(VQ+k), vr(VQ+k)))
    e('s_nop 0')
    for k in range(5): e('v_mul_f32 %s, -%s, %s' % (vr(VS+k), vr(VS+k), vr(VQ+k)))
    CS = BB[0]
    for i in range(4):
        for r in range(4):
            e('v_mov_b32_dpp %s, %s row_newbcast:0 row_mask:0xf bank_mask:0xf' % (vr(CS+4*i+r), vr(acc(i, 0)+r)))
    e('s_barrier')
    WA = VB[0]
    e('v_and_b32 v1, 15, v0'); e('v_mul_u32_u24 %s, %d, v1' % (vr(WA), PITCH)); e('v_lshrrev_b32 %s, 4, v0' % vr(T)); e('v_lshl_add_u32 %s, %s, 3, %s' % (vr(WA), vr(T), vr(WA)))
    e('s_lshl_b32 %s, %s, 7' % (sr(S_T0), sr(S_W))); e('v_add_u32 %s, %s, %s' % (vr(WA), sr(S_T0), vr(WA)))
    for mt in range(5):
        for i in range(4):
            a = acc(i, mt); t0 = T + 4*(i % 2)
            for r in range(4): e('v_mul_f32 %s, %s, %s' % (vr(t0+r), vr(VS+mt), vr(CS+4*i+r)))
            for r in range(4): e('v_fma_f32 %s, %s, %s, %s' % (vr(a+r), vr(a+r), vr(VQ+mt), vr(t0+r)))
            e('v_cvt_pk_bf16_f32 %s, %s, %s' % (vr(a), vr(a), vr(a+1))); e('v_cvt_pk_bf16_f32 %s, %s, %s' % (vr(a+1), vr(a+2), vr(a+3)))
            e('ds_write2_b32 %s, %s, %s offset0:%d offset1:%d' % (vr(WA), vr(a), vr(a+1), 8*i, 8*i+1))
        if mt < 4: e('v_add_u32 %s, %d, %s' % (vr(WA), 16*PITCH, vr(WA)))
    e('s_waitcnt lgkmcnt(0)'); e('s_barrier')
    AD = 2
    e('v_add_u32 v1, 16, v0'); e('v_mul_u32_u24 %s, %d, v1' % (vr(AD), PITCH))
    e('s_mul_i32 %s, %s, 36' % (sr(S_T0), sr(S_W))); e('v_add_u32 %s, %s, %s' % (vr(AD), sr(S_T0), vr(AD)))
    for w in range(1, 8): e('v_subrev_u32 %s, %d, %s' % (vr(AD+w), 2*PITCH*w, vr(AD)))
    QR = 40; KR = 112; L = 50
    def rdvec(dst, ad, off):
        for d in range(0, 8, 2): e('ds_read2_b32 %s, %s offset0:%d offset1:%d' % (vr(dst+d, 2), vr(ad), off+d, off+d+1))
        e('ds_read_b32 %s, %s offset:%d' % (vr(dst+8), vr(ad), 4*(off+8)))
    def kreg(w): return KR + 10*w
    rdvec(QR, AD, 0); rdvec(kreg(0), AD, 36); rdvec(kreg(1), AD+1, 36)
    for w in range(0, 8, 2):
        P.wait_lg_regs(rset('v', QR, 9) + rset('v', kreg(w), 9) + rset('v', kreg(w+1), 9))
        if w + 2 < 8: rdvec(kreg(w+2), AD+w+2, 36); rdvec(kreg(w+3), AD+w+3, 36)
        for d in range(9):
            for ww in (w, w+1):
                e('v_dot2_f32_bf16 %s, %s, %s, %s' % (vr(L+ww), vr(QR+d), vr(kreg(ww)+d), '0' if d == 0 else vr(L+ww)))
    rdvec(kreg(0), AD, 72); rdvec(kreg(1), AD+1, 72); rdvec(kreg(2), AD+2, 72)
    e('s_lshl_b32 %s, %s, 6' % (sr(S_T0), sr(S_MI))); e('v_add_u32 %s, %s, v0' % (vr(T), sr(S_T0))); e('v_mov_b32 %s, 0x%08x' % (vr(T+1), f2u(-1e9)))
    for w in range(1, 8):
        e('v_cmp_gt_u32 vcc, %d, %s' % (2*w, vr(T))); e('s_nop 1'); e('v_cndmask_b32 %s, %s, %s, vcc' % (vr(L+w), vr(L+w), vr(T+1)))
    e('v_max3_f32 %s, %s, %s, %s' % (vr(T+2), vr(L), vr(L+1), vr(L+2))); e('v_max3_f32 %s, %s, %s, %s' % (vr(T+3), vr(L+3), vr(L+4), vr(L+5)))
    e('v_max3_f32 %s, %s, %s, %s' % (vr(T+2), vr(T+2), vr(L+6), vr(L+7))); e('v_max_f32 %s, %s, %s' % (vr(T+2), vr(T+2), vr(T+3)))
    CSC = 18**-0.5 * 1.4426950408889634
    e('s_mov_b32 %s, 0x%08x' % (sr(S_T1), f2u(CSC)))
    e('v_mul_f32 %s, %s, %s' % (vr(T+2), sr(S_T1), vr(T+2)))
    for w in range(8): e('v_fma_f32 %s, %s, %s, -%s' % (vr(L+w), vr(L+w), sr(S_T1), vr(T+2)))
    for w in range(8): e('v_exp_f32 %s, %s' % (vr(L+w), vr(L+w)))
    P.wait_lg_regs(rset('v', kreg(2), 9))
    rdvec(kreg(3), AD+3, 72); rdvec(kreg(4), AD+4, 72); rdvec(kreg(5), AD+5, 72)
    e('v_add_f32 %s, %s, %s' % (vr(T+2), vr(L), vr(L+1))); e('v_add_f32 %s, %s, %s' % (vr(T+3), vr(L+2), vr(L+3)))
    e('v_add_f32 %s, %s, %s' % (vr(T+4), vr(L+4), vr(L+5))); e('v_add_f32 %s, %s, %s' % (vr(T+5), vr(L+6), vr(L+7)))
    e('v_add_f32 %s, %s, %s' % (vr(T+2), vr(T+2), vr(T+3))); e('v_add_f32 %s, %s, %s' % (vr(T+4), vr(T+4), vr(T+5))); e('v_add_f32 %s, %s, %s' % (vr(T+2), vr(T+2), vr(T+4)))
    e('v_rcp_f32 %s, %s' % (vr(T+2), vr(T+2))); e('s_nop 0')
    for w in range(8): e('v_mul_f32 %s, %s, %s' % (vr(L+w), vr(L+w), vr(T+2)))
    PL, PH = 60, 68
    for w in range(8):
        e('v_cvt_pk_bf16_f32 %s, %s, 0' % (vr(PL+w), vr(L+w))); e('v_cvt_pk_bf16_f32 %s, 0, %s' % (vr(PH+w), vr(L+w)))
    OL, OH = 80, 90
    def pv(w):
        for d in range(9):
            e('v_dot2_f32_bf16 %s, %s, %s, %s' % (vr(OL+d), vr(kreg(w)+d), vr(PL+w), '0' if w == 0 else vr(OL+d)))
            e('v_dot2_f32_bf16 %s, %s, %s, %s' % (vr(OH+d), vr(kreg(w)+d), vr(PH+w), '0' if w == 0 else vr(OH+d)))
    pv(0); pv(1); pv(2)
    P.wait_lg_regs(rset('v', kreg(5), 9))
    rdvec(kreg(6), AD+6, 72); rdvec(kreg(7), AD+7, 72)
    pv(3); pv(4); pv(5)
    P.wait_lg_regs(rset('v', kreg(7), 9))
    pv(6); pv(7)
    e('v_lshrrev_b32 %s, 4, v0' % vr(T)); e('s_lshl_b32 %s, %s, 2' % (sr(S_T0), sr(S_MI))); e('v_add_u32 %s, %s, %s' % (vr(T), sr(S_T0), vr(T)))
    e('v_mul_u32_u24 %s, 18432, %s' % (vr(T), vr(T))); e('v_and_b32 %s, 15, v0' % vr(T+1)); e('v_lshl_add_u32 %s, %s, 4, %s' % (vr(T), vr(T+1), vr(T)))
    for d in range(9): e('v_cvt_pk_bf16_f32 %s, %s, %s' % (vr(QR+d), vr(OL+d), vr(OH+d)))
    for d in range(9): e('buffer_store_dword %s, %s, %s, %s offen' % (vr(QR+d), vr(T), sr(S_WS,4), sr(S_OD+d)))
    P.raw('L_%s_end:' % name)
    e('s_endpgm')
    ins = P.ins
    path = ins[:loop_start] + ins[loop_start:loop_end]*3 + ins[loop_end:]
    return P, path, dict(vgpr=200, accum=200, sgpr=56, grid=256, block=256, lds=LDS_BYTES)

if __name__ == '__main__':
    P, path, o = build(); check(path, 'k1'); print(len(P.ins), o)
```

```python
from core import *
from common import *
from sched import *

def build(name='k2_kernel', prefetch=None):
    P = Prog(); e = P.e
    NWG = 216
    V_L16, V_OG, V_RD, V_RD2, V_XO, V_T = 1, 2, 5, 6, 7, 8
    V_B, V_ACC, V_X, V_U = 16, 160, 192, 208
    A_W, NF, LAR = 0, 12, 12
    S_WS, S_WO, S_X = 8, 12, 16
    S_W, S_MG, S_NG, S_MT, S_T0, S_T1, S_OO, S_WOFF = 20, 21, 22, 23, 24, 25, 26, 27
    e('s_cmp_ge_u32 s2, %d' % NWG); e('s_cbranch_scc1 L_%s_end' % name)
    e('s_load_dwordx2 s[4:5], s[0:1], %d' % KA_WS); e('s_load_dwordx2 s[6:7], s[0:1], %d' % KA_WO); e('s_load_dwordx2 s[28:29], s[0:1], %d' % KA_X)
    e('v_mov_b32 %s, v0' % vr(V_T+7))
    e('v_lshrrev_b32 %s, 6, v0' % vr(V_T)); e('v_and_b32 v0, 63, v0')
    e('v_readfirstlane_b32 %s, %s' % (sr(S_W), vr(V_T)))
    e('v_lshlrev_b32 %s, 4, v0' % vr(V_L16))
    e('s_lshr_b32 %s, s2, 3' % sr(S_T0)); e('s_mul_i32 %s, %s, 57' % (sr(S_T1), sr(S_T0))); e('s_lshr_b32 %s, %s, 9' % (sr(S_T1), sr(S_T1)))
    e('s_mul_i32 %s, %s, 9' % (sr(S_NG), sr(S_T1))); e('s_sub_u32 %s, %s, %s' % (sr(S_NG), sr(S_T0), sr(S_NG)))
    e('s_lshl_b32 %s, %s, 3' % (sr(S_MG), sr(S_T1))); e('s_and_b32 %s, s2, 7' % sr(S_T0)); e('s_add_u32 %s, %s, %s' % (sr(S_MG), sr(S_MG), sr(S_T0)))
    e('s_cmp_ge_u32 %s, 22' % sr(S_MG)); e('s_cbranch_scc1 L_%s_end' % name)
    e('s_mul_i32 %s, %s, 6' % (sr(S_MT), sr(S_MG))); e('s_lshl_b32 %s, %s, 1' % (sr(S_T0), sr(S_W))); e('s_add_u32 %s, %s, %s' % (sr(S_MT), sr(S_MT), sr(S_T0)))
    e('s_mul_i32 %s, %s, %d' % (sr(S_OO), sr(S_MT), 18*1024))
    T = V_T
    e('v_bfe_u32 %s, v0, 1, 3' % vr(T)); e('v_mul_u32_u24 %s, 1152, %s' % (vr(T), vr(T)))
    e('v_lshrrev_b32 %s, 4, v0' % vr(T+1)); e('v_lshl_add_u32 %s, %s, 5, %s' % (vr(T), vr(T+1), vr(T)))
    e('v_and_b32 %s, 1, v0' % vr(T+2)); e('v_lshl_add_u32 %s, %s, 4, %s' % (vr(V_OG), vr(T+2), vr(T)))
    e('v_add_u32 %s, %d, %s' % (vr(V_OG+1), 8*1152 - 1024, vr(V_OG))); e('v_add_u32 %s, %d, %s' % (vr(V_OG+2), 2*(8*1152 - 1024), vr(V_OG)))
    e('s_mul_i32 %s, %s, %d' % (sr(S_WOFF), sr(S_W), 64*1152)); e('s_lshl_b32 %s, %s, 7' % (sr(S_T0), sr(S_NG))); e('s_add_u32 %s, %s, %s' % (sr(S_WOFF), sr(S_WOFF), sr(S_T0)))
    e('s_lshl_b32 s30, %s, 13' % sr(S_W))
    e('s_waitcnt lgkmcnt(0)')
    for srd, lo, hi, size in ((S_WS, 4, 5, WS_END), (S_WO, 6, 7, D_*D_*2), (S_X, 28, 29, S_*D_*2)):
        e('s_mov_b32 %s, s%d' % (sr(srd), lo)); e('s_mov_b32 %s, s%d' % (sr(srd+1), hi))
        e('s_mov_b32 %s, 0x%x' % (sr(srd+2), size)); e('s_mov_b32 %s, 0x%x' % (sr(srd+3), SRD3))
    def bfrag(ks, mm): return V_B + 8*ks + 4*mm
    for j in range(3):
        for g, n in ((0, 3), (3, 3), (6, 2)):
            e('s_add_u32 %s, %s, %d' % (sr(S_T0), sr(S_WOFF), (192*j + 8*g)*1152))
            e('s_add_u32 m0, s30, %d' % ((24*j + g)*1024)); e('s_nop 0')
            for q in range(n):
                e('buffer_load_dwordx4 %s, %s, %s offen offset:%d lds' % (vr(V_OG+q), sr(S_WO,4), sr(S_T0), 1024*q), tag='ph%d' % j)
        for ks in range(6*j, 6*j+6):
            for mm in range(2):
                e('s_add_u32 %s, %s, %d' % (sr(S_T1), sr(S_OO), (18*mm + ks)*1024))
                e('buffer_load_dwordx4 %s, %s, %s, %s offen' % (vr(bfrag(ks, mm), 4), vr(V_L16), sr(S_WS,4), sr(S_T1)), tag='ph%d' % j)
        if j == 0:
            e('s_cmp_ge_u32 s2, 8'); e('s_cbranch_scc1 L_%s_noflag' % name)
            e('v_cmp_gt_u32 vcc, 128, %s' % vr(V_T+7)); e('s_lshl_b32 %s, s2, 9' % sr(S_T0)); e('s_add_u32 %s, %s, 0x%x' % (sr(S_T0), sr(S_T0), WS_FLAG))
            e('v_lshlrev_b32 %s, 2, %s' % (vr(V_T+6), vr(V_T+7))); e('v_mov_b32 %s, 0' % vr(V_T+5))
            e('s_and_saveexec_b64 s[34:35], vcc'); e('s_cbranch_execz L_%s_noflag2' % name)
            P.raw('buffer_store_dword %s, %s, %s, %s offen' % (vr(V_T+5), vr(V_T+6), sr(S_WS,4), sr(S_T0)))
            P.raw('L_%s_noflag2:' % name)
            e('s_mov_b64 exec, s[34:35]')
            P.raw('L_%s_noflag:' % name)
    e('v_lshrrev_b32 %s, 4, v0' % vr(T+1))
    e('v_bfe_u32 %s, v0, 2, 2' % vr(T)); e('v_lshlrev_b32 %s, 5, %s' % (vr(T), vr(T)))
    e('v_and_b32 %s, 3, v0' % vr(T+2)); e('v_lshl_add_u32 %s, %s, 3, %s' % (vr(T), vr(T+2), vr(T)))
    e('v_and_b32 %s, 1, %s' % (vr(T+2), vr(T+1))); e('v_lshl_add_u32 %s, %s, 7, %s' % (vr(T), vr(T+2), vr(T)))
    e('v_lshrrev_b32 %s, 1, %s' % (vr(T+2), vr(T+1))); e('v_lshl_add_u32 %s, %s, 10, %s' % (vr(V_RD), vr(T+2), vr(T)))
    e('v_add_u32 %s, 36864, %s' % (vr(V_RD2), vr(V_RD)))
    e('v_and_b32 %s, 15, v0' % vr(T)); e('v_mul_u32_u24 %s, 1152, %s' % (vr(T), vr(T))); e('v_lshl_add_u32 %s, %s, 3, %s' % (vr(V_XO), vr(T+1), vr(T)))
    e('s_mul_i32 s31, %s, %d' % (sr(S_MT), 16*1152)); e('s_lshl_b32 %s, %s, 7' % (sr(S_T0), sr(S_NG))); e('s_add_u32 s31, s31, %s' % sr(S_T0))
    e('s_mov_b32 s32, 0x3f80'); e('s_mov_b32 s33, 0x3f800000')
    if prefetch: prefetch(P, V_U, V_T)
    P.wait_vm_tag('ph0'); i = e('s_barrier'); i.meta = dict(needs='ph0')
    for mm in range(2):
        e('s_add_u32 %s, s31, %d' % (sr(S_T0), 16*1152*mm))
        for nt in range(4):
            e('buffer_load_dwordx2 %s, %s, %s, %s offen offset:%d' % (vr(V_X + 8*mm + 2*nt, 2), vr(V_XO), sr(S_X,4), sr(S_T0), 32*nt), tag='x')
    S = Stream()
    def acc(nt, mm): return vr(V_ACC + 8*nt + 4*mm, 4)
    for j in range(3):
        fr = []; mf = []
        for nt in range(4):
            for g in range(2):
                f0 = len(fr)
                for t in range(3):
                    ks = 6*j + 3*g + t; kl = ks % 9
                    fr.append(Frag(V_RD if ks < 9 else V_RD2, (4*kl)*1024 + nt*256, (4*kl+2)*1024 + nt*256))
                for mm in range(2):
                    for t in range(3):
                        ks = 6*j + 3*g + t
                        mf.append(MF(acc(nt, mm), f0+t, vr(bfrag(ks, mm), 4), '0' if ks == 0 else acc(nt, mm), [f0, f0+1, f0+2] if (mm == 0 and t == 0) else None))
        S.add(fr, mf)
    fx = Fixed()
    for j in (1, 2):
        fx.put(48*j - LAR - 2, 'L', '@waitvm', 'ph%d' % j); fx.put(48*j - LAR - 2, 'B', 's_barrier', 'ph%d' % j)
    emit_stream(P, S, [], fx, [], A_W, NF, LAR, first_reads=True)
    e('s_cmp_ge_u32 %s, 128' % sr(S_MT)); e('s_cbranch_scc1 L_%s_end' % name)
    P.wait_vm_tag('x')
    e('s_nop 4')
    for mm in range(2):
        for nt in range(4):
            for r in range(4):
                a = V_ACC + 8*nt + 4*mm + r
                e('v_dot2_f32_bf16 %s, %s, s%d, %s' % (vr(a), vr(V_X + 8*mm + 2*nt + r//2), 32 + (r % 2), vr(a)))
    e('s_nop 1')
    U = V_U
    for mm in range(2):
        first = True
        for nt in range(4):
            for r in range(4):
                a = vr(V_ACC + 8*nt + 4*mm + r)
                if first:
                    e('v_mov_b32 %s, %s' % (vr(U+2*mm), a)); e('v_mul_f32 %s, %s, %s' % (vr(U+2*mm+1), a, a)); first = False
                else:
                    e('v_add_f32 %s, %s, %s' % (vr(U+2*mm), vr(U+2*mm), a)); e('v_fma_f32 %s, %s, %s, %s' % (vr(U+2*mm+1), a, a, vr(U+2*mm+1)))
    H = V_U + 8
    for mm in range(2):
        e('s_add_u32 %s, %s, %d' % (sr(S_T0), sr(S_MT), mm)); e('s_mul_i32 %s, %s, 18' % (sr(S_T0), sr(S_T0)))
        e('s_lshl_b32 %s, %s, 1' % (sr(S_T1), sr(S_NG))); e('s_add_u32 %s, %s, %s' % (sr(S_T0), sr(S_T0), sr(S_T1)))
        e('s_lshl_b32 %s, %s, 10' % (sr(S_T0), sr(S_T0))); e('s_add_u32 %s, %s, 0x%x' % (sr(S_T0), sr(S_T0), WS_HF))
        for p in range(2):
            hb = H + 8*mm + 4*p
            for k in range(2):
                a = V_ACC + 8*(2*p+k) + 4*mm
                e('v_cvt_pk_bf16_f32 %s, %s, %s' % (vr(hb+2*k), vr(a), vr(a+1))); e('v_cvt_pk_bf16_f32 %s, %s, %s' % (vr(hb+2*k+1), vr(a+2), vr(a+3)))
            e('buffer_store_dwordx4 %s, %s, %s, %s offen offset:%d sc1' % (vr(hb,4), vr(V_L16), sr(S_WS,4), sr(S_T0), 1024*p))
    for swap in ('v_permlane32_swap_b32', 'v_permlane16_swap_b32'):
        for k in range(4): e('v_mov_b32 %s, %s' % (vr(U+4+k), vr(U+k)))
        e('s_nop 1')
        for k in range(4): e('%s %s, %s' % (swap, vr(U+k), vr(U+4+k)))
        e('s_nop 1')
        for k in range(4): e('v_add_f32 %s, %s, %s' % (vr(U+k), vr(U+k), vr(U+4+k)))
    e('v_and_b32 %s, 15, v0' % vr(T)); e('v_lshlrev_b32 %s, 3, %s' % (vr(T), vr(T)))
    e('s_lshl_b32 %s, %s, 11' % (sr(S_T0), sr(S_NG))); e('s_lshl_b32 %s, %s, 4' % (sr(S_T1), sr(S_MT))); e('s_add_u32 %s, %s, %s' % (sr(S_T0), sr(S_T0), sr(S_T1)))
    e('s_lshl_b32 %s, %s, 3' % (sr(S_T0), sr(S_T0))); e('s_add_u32 %s, %s, 0x%x' % (sr(S_T0), sr(S_T0), WS_ST))
    e('s_mov_b64 exec, 0xffff')
    for mm in range(2):
        e('buffer_store_dwordx2 %s, %s, %s, %s offen offset:%d' % (vr(U+2*mm, 2), vr(T), sr(S_WS,4), sr(S_T0), 128*mm))
    P.raw('L_%s_end:' % name)
    e('s_endpgm')
    return P, dict(vgpr=232+48, accum=232, sgpr=40, grid=NWG, block=192, lds=73728)

if __name__ == '__main__':
    P, o = build(); check(P.ins, 'k2'); print(verify_barriers(P.ins))
```

```python
from core import *
from common import *
from sched import *

SLOT = 36864
NF, LAR = 12, 12
V_RD, V_RD2 = 3, 4
V_PG, V_PH, V_PDE, V_PDO = 5, 6, 7, 8
V_OG, V_OH, V_OD = 9, 12, 15
V_C0, V_C1, V_K = 24, 26, 28
V_L16, V_FL = 30, 31
V_T = 32
V_H, V_HH = 40, 56
V_G, V_U = 64, 96
V_X = 128
A_OUT, A_X, A_W, A_HP = 0, 144, 160, 208
S_WG, S_WU, S_WD, S_WS = 8, 12, 16, 20
S_W = 24
S_GCOL, S_HCOL, S_DROW = 25, 26, 27
S_E = 28
S_HXO, S_HXP, S_P = 33, 34, 35
S_WR, S_WRAP, S_WOFF, S_RD = 36, 37, 38, 39
S_CNT, S_T0, S_T1 = 40, 41, 42
S_FLO, S_FLP, S_FVAL = 43, 44, 45
S_LO, S_HI = 46, 47
S_XO = 48
S_A, S_B, S_C, S_D = 50, 51, 52, 53
S_JP, S_S, S_I, S_FB, S_HB = 58, 59, 60, 61, 62
OPT = dict(no_dma=False, no_bar=False, no_valu=False, cap=3)

def xi_reg(ks, mm):
    xi = 2*ks + mm
    return ('v', V_X + 4*xi) if xi < 32 else ('a', A_X + 4*(xi-32))
def xfrag(ks, mm):
    k, b = xi_reg(ks, mm); return vr(b, 4) if k == 'v' else ar(b, 4)
def hpfrag(th, mm):
    x = 2*th + mm
    return ar(A_HP + 4*x, 4) if x < 12 else vr(V_X + 4*(x-12), 4)
def acc(base, ft, mm): return vr(base + 8*ft + 4*mm, 4)
def out(nt, mm): return ar(A_OUT + 8*nt + 4*mm, 4)

def st_GU(base, kh, first, fts=(0,1,2,3), rd=V_RD):
    fr = []; mf = []
    for ft in fts:
        for g in range(3):
            f0 = len(fr)
            for t in range(3):
                kl = 3*g + t
                fr.append(Frag(rd, (4*kl)*1024 + ft*256, (4*kl+2)*1024 + ft*256))
            for mm in range(2):
                for t in range(3):
                    kl = 3*g + t
                    C = '0' if (first and kl == 0) else acc(base, ft, mm)
                    mf.append(MF(acc(base, ft, mm), f0+t, xfrag(9*kh+kl, mm), C, [f0, f0+1, f0+2] if (mm == 0 and t == 0) else None))
    return fr, mf
def st_half(base):
    fr = []; mf = []
    for ft in range(2):
        for g in range(6):
            f0 = len(fr)
            for t in range(3):
                ks = 3*g + t
                fr.append(Frag(V_RD, (2*ks)*1024 + ft*512, (2*ks+1)*1024 + ft*512))
            for mm in range(2):
                for t in range(3):
                    ks = 3*g + t
                    C = '0' if ks == 0 else acc(base, ft, mm)
                    mf.append(MF(acc(base, ft, mm), f0+t, xfrag(ks, mm), C, [f0, f0+1, f0+2] if (mm == 0 and t == 0) else None))
    return fr, mf
def st_D(bf):
    fr = []; mf = []
    for nt in range(18):
        f0 = len(fr); rd = V_RD if nt % 2 == 0 else V_RD2
        for kq in range(2): fr.append(Frag(rd, (2*kq)*9216 + nt*128, (2*kq+1)*9216 + nt*128))
        for mm in range(2):
            for kq in range(2):
                w = [f0, f0+1, f0+2, f0+3] if (nt % 2 == 0 and mm == 0 and kq == 0) else None
                mf.append(MF(out(nt, mm), f0+kq, bf[kq][mm], out(nt, mm), w))
    return fr, mf
def st_final(bf, rdA, rdB):
    fr = []; mf = []
    for nt in range(18):
        f0 = len(fr)
        for k in range(4):
            rd = (rdA if k < 2 else rdB)[nt % 2]; kq = k % 2
            fr.append(Frag(rd, (2*kq)*9216 + nt*128, (2*kq+1)*9216 + nt*128))
        for mm in range(2):
            for k in range(4):
                w = [f0, f0+1, f0+2, f0+3] if (mm == 0 and k == 0) else None
                mf.append(MF(out(nt, mm), f0+k, bf[k][mm], out(nt, mm), w))
    return fr, mf

def gelu_ops(ft, vals, tb):
    ops = []
    for g0 in range(0, len(vals), 4):
        grp = vals[g0:g0+4]
        def G(v): return vr(V_G + 8*ft + 4*v[0] + v[1])
        steps = [lambda v, t: 'v_mul_f32 %s, %s, %s' % (t, G(v), G(v)),
                 lambda v, t: 'v_fma_f32 %s, %s, %s, %s' % (t, t, vr(V_C1+v[0]), vr(V_C0+v[0])),
                 lambda v, t: 'v_mul_f32 %s, %s, %s' % (t, G(v), t),
                 lambda v, t: 'v_exp_f32 %s, %s' % (t, t),
                 lambda v, t: 'v_fma_f32 %s, %s, %s, %s' % (t, t, vr(V_K+v[0]), vr(V_K+v[0])),
                 lambda v, t: 'v_rcp_f32 %s, %s' % (t, t),
                 lambda v, t: 'v_mul_f32 %s, %s, %s' % (G(v), G(v), t)]
        for st in steps:
            for n, v in enumerate(grp): ops.append(Op(st(v, vr(tb+n))))
    return ops
ALLV = [(mm, r) for mm in range(2) for r in range(4)]
def gelu_q(ft, name, tb): return Queue(gelu_ops(ft, ALLV, tb), name)
def prod_q(ft, H, name, store=None):
    ops = []
    for mm in range(2):
        for r in range(4):
            g = vr(V_G + 8*ft + 4*mm + r)
            ops.append(Op('v_mul_f32 %s, %s, %s' % (g, g, vr(V_U + 8*ft + 4*mm + r))))
    for mm in range(2):
        for d in range(2):
            g = V_G + 8*ft + 4*mm + 2*d
            ops.append(Op('v_cvt_pk_bf16_f32 %s, %s, %s' % (vr(H + 4*mm + 2*(ft % 2) + d), vr(g), vr(g+1))))
    if store:
        soff, imm0, tag = store
        for mm in range(2):
            ops.append(Op('buffer_store_dwordx4 %s, %s, %s, %s offen offset:%d sc1' % (vr(H + 4*mm, 4), vr(V_L16), sr(S_WS,4), soff, imm0 + 1024*mm), tag=tag))
    return Queue(ops, name, prio=True)

S_CW, S_CR = 96, 97
def rot_wr(): return ['s_add_u32 %s, %s, 1' % (sr(S_CW), sr(S_CW)), 's_and_b32 %s, %s, 3' % (sr(S_CW), sr(S_CW)),
                      's_mul_i32 %s, %s, %d' % (sr(S_WR), sr(S_CW), SLOT), 's_add_u32 %s, %s, %s' % (sr(S_WR), sr(S_WR), sr(S_WOFF))]
def rot_rd(): return ['s_add_u32 %s, %s, 1' % (sr(S_CR), sr(S_CR)), 's_and_b32 %s, %s, 3' % (sr(S_CR), sr(S_CR)),
                      's_mul_i32 %s, %s, %d' % (sr(S_RD), sr(S_CR), SLOT)]
def dma_G(srd, scol, kh, tag, step_rows=8):
    it = []
    vo = V_OG if step_rows == 8 else V_OH
    for g in range(3):
        const = (288*kh)*9216 + 3*g*step_rows*9216
        it.append(('S', 's_add_u32 %s, %s, 0x%x' % (sr(S_T0), scol, const) if const else 's_mov_b32 %s, %s' % (sr(S_T0), scol), None))
        it.append(('S', 's_add_u32 m0, %s, %d' % (sr(S_WR), 3072*g) if g else 's_mov_b32 m0, %s' % sr(S_WR), None))
        for q in range(3):
            it.append(('D', 'buffer_load_dwordx4 %s, %s, %s offen offset:%d lds' % (vr(vo+q), sr(srd,4), sr(S_T0), 1024*q), tag))
    return it + [('S', t, None) for t in rot_wr()]
def dma_D(srow, tag):
    it = []
    for q in range(9):
        it.append(('S', 's_add_u32 m0, %s, %d' % (sr(S_WR), 1024*q) if q else 's_mov_b32 m0, %s' % sr(S_WR), None))
        it.append(('D', 'buffer_load_dwordx4 %s, %s, %s offen lds' % (vr(V_OD+q), sr(S_WD,4), srow), tag))
    return it + [('S', t, None) for t in rot_wr()]
def put_dma(chain, g0, items, step=None):
    step = step or OPT.get('dma_step', 7)
    k = 0; pend = []
    for kind, text, tag in items:
        if kind == 'S': pend.append(text)
        else:
            due = g0 + step*k; k += 1
            for n, t in enumerate(pend): chain.append((max(0, due - 2*len(pend) + 2*n - 1), 'S', t, None))
            pend = []
            chain.append((due, 'D', text, tag))
    for n, t in enumerate(pend): chain.append((g0 + step*(k-1) + 1, 'S', t, None))
def put_bar(fx, end, tags, pats, rot=True):
    gb = end - LAR - 2
    if rot: fx.chain([(gb - 12, 'S', t, None) for t in rot_rd()])
    fx.put(gb, 'L', '@waitvm', tags if not isinstance(tags, (list, tuple)) else tags[-1])
    fx.put(gb, 'B', 's_barrier', tags)
    for rd, pat in pats: fx.put(gb+1, 'R', 'v_add_u32 %s, %s, %s' % (vr(rd), sr(S_RD), vr(pat)))
PAT_G = [(V_RD, V_PG)]; PAT_H = [(V_RD, V_PH)]; PAT_D = [(V_RD, V_PDE), (V_RD2, V_PDO)]

def build(name='k3_kernel', dbg=False):
    P = Prog(); e = P.e
    stamps = []
    def stamp(label):
        if not dbg: return
        k = len(stamps); stamps.append(label); assert k < 14
        P.raw('s_memtime s[92:93]'); P.raw('s_memrealtime s[90:91]'); P.raw('s_waitcnt lgkmcnt(0)')
        P.raw('s_mov_b32 s%d, s92' % (64+k)); P.raw('s_mov_b32 s%d, s90' % (78+k))
    info = {}
    e('s_cmp_ge_u32 s2, 256'); e('s_cbranch_scc1 L_%s_end' % name)
    stamp('start')
    if dbg: e('s_load_dwordx2 s[94:95], s[0:1], %d' % KA_DBG)
    e('s_load_dwordx4 s[4:7], s[0:1], %d' % KA_WG)
    e('s_load_dwordx2 s[54:55], s[0:1], %d' % KA_WD)
    e('s_load_dwordx2 s[56:57], s[0:1], %d' % KA_WS)
    e('v_lshrrev_b32 v1, 6, v0'); e('v_and_b32 v0, 63, v0')
    e('v_readfirstlane_b32 %s, v1' % sr(S_W))
    e('v_lshlrev_b32 %s, 4, v0' % vr(V_L16))
    e('v_bfe_u32 v1, v0, 1, 3'); e('v_mul_u32_u24 v1, 9216, v1')
    e('v_lshrrev_b32 v2, 4, v0'); e('v_lshl_add_u32 v1, v2, 5, v1')
    e('v_and_b32 %s, 1, v0' % vr(V_T)); e('v_lshl_add_u32 %s, %s, 4, v1' % (vr(V_OG), vr(V_T)))
    e('v_add_u32 %s, %d, %s' % (vr(V_OG+1), 8*9216 - 1024, vr(V_OG))); e('v_add_u32 %s, %d, %s' % (vr(V_OG+2), 2*(8*9216 - 1024), vr(V_OG)))
    e('v_and_b32 v1, 15, v0'); e('v_lshl_add_u32 v1, v2, 11, v1'); e('v_lshlrev_b32 v1, 3, v1')
    e('s_and_b32 %s, s2, 7' % sr(S_JP))
    e('s_lshr_b32 %s, s2, 3' % sr(S_I)); e('s_and_b32 %s, %s, 1' % (sr(S_S), sr(S_I))); e('s_lshr_b32 %s, %s, 1' % (sr(S_I), sr(S_I)))
    e('s_mul_i32 %s, %s, 576' % (sr(S_T0), sr(S_JP)))
    e('s_mul_i32 %s, %s, 320' % (sr(S_T1), sr(S_S))); e('s_add_u32 %s, %s, %s' % (sr(S_FB), sr(S_T0), sr(S_T1)))
    e('s_lshl_b32 %s, %s, 5' % (sr(S_T1), sr(S_S))); e('s_add_u32 %s, %s, %s' % (sr(S_HB), sr(S_T0), sr(S_T1))); e('s_add_u32 %s, %s, 256' % (sr(S_HB), sr(S_HB)))
    e('s_mul_i32 %s, %s, %d' % (sr(S_T0), sr(S_W), 9*8*9216)); e('s_lshl_b32 %s, %s, 1' % (sr(S_T1), sr(S_FB)))
    e('s_add_u32 %s, %s, %s' % (sr(S_GCOL), sr(S_T0), sr(S_T1)))
    e('s_lshl_b32 %s, %s, 2' % (sr(S_T0), sr(S_I))); e('s_add_u32 %s, %s, %s' % (sr(S_T0), sr(S_T0), sr(S_W)))
    e('s_mul_i32 %s, %s, %d' % (sr(S_XO), sr(S_T0), 2*18*1024)); e('s_add_u32 %s, %s, 0x%x' % (sr(S_XO), sr(S_XO), WS_HF))
    e('s_lshl_b32 %s, %s, 8' % (sr(S_D), sr(S_T0)))
    e('s_mul_i32 %s, %s, 9216' % (sr(S_WOFF), sr(S_W))); e('s_mov_b32 %s, 0' % sr(S_CW)); e('s_mov_b32 %s, 1' % sr(S_CR))
    e('s_mov_b32 %s, %s' % (sr(S_WR), sr(S_WOFF)))
    e('s_waitcnt lgkmcnt(0)')
    for srd, lo, hi, size in ((S_WG, 4, 5, D_*F_*2), (S_WU, 6, 7, D_*F_*2), (S_WS, 56, 57, WS_END), (S_WD, 54, 55, D_*F_*2)):
        e('s_mov_b32 %s, s%d' % (sr(srd), lo)); e('s_mov_b32 %s, s%d' % (sr(srd+1), hi))
        e('s_mov_b32 %s, 0x%x' % (sr(srd+2), size)); e('s_mov_b32 %s, 0x%x' % (sr(srd+3), SRD3))
    e('s_add_u32 s4, s56, 0x%x' % WS_ST); e('s_addc_u32 s5, s57, 0'); e('s_mov_b32 s6, %d' % (9*2048*8)); e('s_mov_b32 s7, 0x%x' % SRD3)
    for t in range(3):
        e('s_add_u32 %s, %s, %d' % (sr(S_T0), sr(S_D), t*4*2048*8))
        for mm in range(2):
            e('buffer_load_dwordx2 %s, v1, s[4:7], %s offen offset:%d' % (vr(V_G + 4*t + 2*mm, 2), sr(S_T0), 128*mm), tag='st')
    def xdst(ks, mm):
        k, b = xi_reg(ks, mm); return b if k == 'v' else V_U + 4*(2*ks+mm-32)
    def xload(P, ks):
        P.e('s_add_u32 %s, %s, %d' % (sr(S_T1), sr(S_XO), ks*1024))
        P.e('buffer_load_dwordx4 %s, %s, %s, %s offen' % (vr(xdst(ks,0),4), vr(V_L16), sr(S_WS,4), sr(S_T1)), tag='x%d' % ks)
        P.e('s_add_u32 %s, %s, %d' % (sr(S_T1), sr(S_XO), (18+ks)*1024))
        P.e('buffer_load_dwordx4 %s, %s, %s, %s offen' % (vr(xdst(ks,1),4), vr(V_L16), sr(S_WS,4), sr(S_T1)), tag='x%d' % ks)
    def dma_now(items):
        for kind, text, tag in items:
            e(text, tag=tag)
            if text.startswith('s_add_u32 m0') or text.startswith('s_mov_b32 m0'): e('s_nop 0')
    xload(P, 0); xload(P, 1)
    dma_now(dma_G(S_WG, sr(S_GCOL), 0, 'Ga'))
    xload(P, 2); xload(P, 3)
    T = V_T
    e('v_lshrrev_b32 v2, 4, v0')
    e('v_bfe_u32 %s, v0, 2, 2' % vr(T)); e('v_lshlrev_b32 %s, 5, %s' % (vr(T), vr(T)))
    e('v_and_b32 %s, 3, v0' % vr(T+1)); e('v_lshl_add_u32 %s, %s, 3, %s' % (vr(T), vr(T+1), vr(T)))
    e('v_lshl_add_u32 %s, v2, 7, %s' % (vr(V_PH), vr(T)))
    e('v_and_b32 %s, 1, v2' % vr(T+1)); e('v_lshlrev_b32 %s, 7, %s' % (vr(T+1), vr(T+1)))
    e('v_lshrrev_b32 %s, 1, v2' % vr(T+2)); e('v_lshl_add_u32 %s, %s, 10, %s' % (vr(T+2), vr(T+2), vr(T)))
    e('v_add_u32 %s, %s, %s' % (vr(V_PG), vr(T+2), vr(T+1)))
    e('v_mul_u32_u24 %s, 2304, v2' % vr(T+2)); e('v_add_u32 %s, %s, %s' % (vr(T+2), vr(T+2), vr(T)))
    e('v_add_u32 %s, %s, %s' % (vr(V_PDE), vr(T+2), vr(T+1))); e('v_sub_u32 %s, %s, %s' % (vr(V_PDO), vr(T+2), vr(T+1)))
    e('s_mov_b32 %s, 0x3f80' % sr(S_LO)); e('s_mov_b32 %s, 0x3f800000' % sr(S_HI))
    P.wait_vm_tag('st')
    for k in range(4):
        e('v_add_f32 %s, %s, %s' % (vr(V_G+k), vr(V_G+k), vr(V_G+4+k)))
    for k in range(4):
        e('v_add_f32 %s, %s, %s' % (vr(V_G+k), vr(V_G+k), vr(V_G+8+k)))
    for swap in ('v_permlane32_swap_b32', 'v_permlane16_swap_b32'):
        for k in range(4): e('v_mov_b32 %s, %s' % (vr(V_G+4+k), vr(V_G+k)))
        e('s_nop 1')
        for k in range(4): e('%s %s, %s' % (swap, vr(V_G+k), vr(V_G+4+k)))
        e('s_nop 1')
        for k in range(4): e('v_add_f32 %s, %s, %s' % (vr(V_G+k), vr(V_G+k), vr(V_G+4+k)))
    e('s_mov_b32 %s, 0x%08x' % (sr(S_A), f2u(1.0/576)))
    CC = -2.0*0.7978845608028654*1.4426950408889634
    NM = V_HH
    for mm in range(2):
        e('v_mul_f32 %s, %s, %s' % (vr(T+mm), sr(S_A), vr(V_G+2*mm)))
        e('v_mul_f32 %s, %s, %s' % (vr(T+2+mm), sr(S_A), vr(V_G+2*mm+1)))
    for mm in range(2):
        e('v_fma_f32 %s, -%s, %s, %s' % (vr(V_K+mm), vr(T+mm), vr(T+mm), vr(T+2+mm)))
        e('v_sub_f32 %s, 0, %s' % (vr(NM+mm), vr(T+mm)))
    for mm in range(2): e('v_max_f32 %s, 0, %s' % (vr(V_K+mm), vr(V_K+mm)))
    for mm in range(2): e('v_add_f32 %s, 0x%08x, %s' % (vr(V_K+mm), f2u(1e-5), vr(V_K+mm)))
    for mm in range(2): e('v_rsq_f32 %s, %s' % (vr(T+mm), vr(V_K+mm)))
    e('s_nop 0')
    for mm in range(2):
        e('v_mul_f32 %s, 0x%08x, %s' % (vr(V_C0+mm), f2u(CC), vr(T+mm)))
        e('v_mul_f32 %s, %s, %s' % (vr(T+2+mm), vr(T+mm), vr(T+mm)))
    for mm in range(2): e('v_mul_f32 %s, 0x%08x, %s' % (vr(T+2+mm), f2u(0.044715), vr(T+2+mm)))
    for mm in range(2): e('v_mul_f32 %s, %s, %s' % (vr(V_C1+mm), vr(V_C0+mm), vr(T+2+mm)))
    def center_ops(ks):
        ops = [lambda P: P.wait_vm_tag('x%d' % ks)]
        for mm in range(2):
            b = xdst(ks, mm); t = V_H + 8*mm
            for d in range(4):
                ops.append('v_dot2_f32_bf16 %s, %s, %s, %s' % (vr(t+2*d), vr(b+d), sr(S_LO), vr(NM+mm)))
                ops.append('v_dot2_f32_bf16 %s, %s, %s, %s' % (vr(t+2*d+1), vr(b+d), sr(S_HI), vr(NM+mm)))
        for mm in range(2):
            b = xdst(ks, mm); t = V_H + 8*mm
            for d in range(4): ops.append('v_cvt_pk_bf16_f32 %s, %s, %s' % (vr(b+d), vr(t+2*d), vr(t+2*d+1)))
        k, a = xi_reg(ks, 0)
        if k == 'a':
            for mm in range(2):
                for d in range(4): ops.append('v_accvgpr_write_b32 a%d, %s' % (xi_reg(ks, mm)[1]+d, vr(xdst(ks, mm)+d)))
        return ops
    for o in center_ops(0):
        if callable(o): o(P)
        else: e(o)
    e('v_mov_b32 %s, %s' % (vr(V_RD), vr(V_PG))); e('v_add_u32 %s, %d, %s' % (vr(V_RD2), SLOT, vr(V_PG)))
    P.wait_vm_tag('Ga'); i = e('s_barrier'); i.meta = dict(needs='Ga')
    stamp('bar0')
    S = Stream()
    fr = []; mf = []
    for ks in range(18):
        rd = V_RD if ks < 9 else V_RD2; kl = ks % 9
        f0 = len(fr)
        for ft in range(2): fr.append(Frag(rd, (4*kl)*1024 + ft*256, (4*kl+2)*1024 + ft*256))
        for ft in range(2):
            for mm in range(2):
                mf.append(MF(acc(V_G, ft, mm), f0+ft, xfrag(ks, mm), '0' if ks == 0 else acc(V_G, ft, mm), [f0, f0+1] if (ft == 0 and mm == 0) else None))
    S.add(fr, mf)
    fr = []; mf = []
    for ft in (2, 3):
        for g in range(6):
            f0 = len(fr)
            for t in range(3):
                ks = 3*g + t; kl = ks % 9
                fr.append(Frag(V_RD if ks < 9 else V_RD2, (4*kl)*1024 + ft*256, (4*kl+2)*1024 + ft*256))
            for mm in range(2):
                for t in range(3):
                    ks = 3*g + t
                    mf.append(MF(acc(V_G, ft, mm), f0+t, xfrag(ks, mm), '0' if ks == 0 else acc(V_G, ft, mm), [f0, f0+1, f0+2] if (mm == 0 and t == 0) else None))
    S.add(fr, mf)
    fx = Fixed()
    def chunked(lst, gaps):
        n = len(lst); k = 0
        for j, g in enumerate(gaps):
            k2 = (n*(j+1) + len(gaps) - 1)//len(gaps)
            for o in lst[k:k2]:
                if callable(o): fx.put(g, 'X', o)
                else: fx.put(g, 'V', o)
            k = k2
    for ks in range(17):
        if ks + 4 < 18: fx.put(4*ks, 'X', (lambda P, k=ks+4: xload(P, k)), cost=4)
        chunked(center_ops(ks+1), [4*ks, 4*ks+1, 4*ks+2, 4*ks+3])
    ch = []
    gb_items = dma_G(S_WG, sr(S_GCOL), 1, 'Gb')
    def blk(items):
        def f(P):
            for kind, text, tag in items:
                P.e(text, tag=tag)
                if text.startswith('s_add_u32 m0') or text.startswith('s_mov_b32 m0'): P.e('s_nop 0')
        return f
    for g in range(3): fx.put(4*g+1, 'X', blk(gb_items[5*g:5*g+5]), cost=6)
    fx.put(13, 'X', blk(gb_items[15:]), cost=4)
    put_dma(ch, 57, dma_G(S_WU, sr(S_GCOL), 0, 'Ua'), step=2)
    put_dma(ch, 78, dma_G(S_WU, sr(S_GCOL), 1, 'Ub'), step=5)
    ch.append((126, 'S', 's_add_u32 %s, %s, 128' % (sr(S_GCOL), sr(S_GCOL)), None))
    fx.chain(ch)
    fx.put(22, 'L', '@waitvm', 'Gb'); fx.put(22, 'B', 's_barrier', 'Gb')
    rest = []
    a = rest.append
    a('v_and_b32 v1, 1, v0'); a('v_bfe_u32 v2, v0, 1, 4'); a('v_mul_u32_u24 v2, 9216, v2'); a('v_lshl_add_u32 v2, v1, 4, v2')
    a('v_lshrrev_b32 v1, 5, v0'); a('v_lshl_add_u32 %s, v1, 5, v2' % vr(V_OH))
    a('v_add_u32 %s, %d, %s' % (vr(V_OH+1), 16*9216 - 1024, vr(V_OH))); a('v_add_u32 %s, %d, %s' % (vr(V_OH+2), 2*(16*9216 - 1024), vr(V_OH)))
    T2 = V_T + 4
    a('v_bfe_u32 v1, v0, 1, 2'); a('v_mul_u32_u24 v1, 1152, v1'); a('v_and_b32 v2, 1, v0'); a('v_lshl_add_u32 v1, v2, 4, v1'); a('v_lshrrev_b32 v2, 3, v0')
    for p in range(9):
        d = vr(V_OD+p)
        a('v_add_u32 %s, %d, v2' % (d, 8*p))
        a('v_mul_u32_u24 %s, 57, %s' % (vr(T2), d)); a('v_lshrrev_b32 %s, 10, %s' % (vr(T2), vr(T2)))
        a('v_mul_u32_u24 %s, 18, %s' % (vr(T2+1), vr(T2))); a('v_sub_u32 %s, %s, %s' % (d, d, vr(T2+1)))
        a('v_and_b32 %s, 1, %s' % (vr(T2+1), vr(T2))); a('v_xor_b32 %s, %s, %s' % (d, d, vr(T2+1)))
        a('v_mul_u32_u24 %s, 4608, %s' % (vr(T2), vr(T2))); a('v_lshl_add_u32 %s, %s, 5, %s' % (d, d, vr(T2)))
        a('v_add_u32 %s, %s, v1' % (d, d))
    for r in range(144): a('v_accvgpr_write_b32 a%d, 0' % (A_OUT + r))
    s = []
    b = s.append
    b('s_mul_i32 %s, %s, %d' % (sr(S_A), sr(S_W), 9*16*9216)); b('s_lshl_b32 %s, %s, 1' % (sr(S_B), sr(S_HB))); b('s_add_u32 %s, %s, %s' % (sr(S_HCOL), sr(S_A), sr(S_B)))
    b('s_mul_i32 s63, %s, 576' % sr(S_S))
    b('s_lshl_b32 %s, %s, 4' % (sr(S_C), sr(S_W)))
    b('s_add_u32 %s, %s, %s' % (sr(S_A), sr(S_FB), sr(S_C))); b('s_mul_i32 %s, %s, 1152' % (sr(S_A), sr(S_A))); b('s_add_u32 %s, %s, s63' % (sr(S_DROW), sr(S_A)))
    b('s_xor_b32 %s, %s, 1' % (sr(S_B), sr(S_S))); b('s_mul_i32 %s, %s, 576' % (sr(S_A), sr(S_JP)))
    b('s_mul_i32 s54, %s, 320' % sr(S_B)); b('s_add_u32 s54, s54, %s' % sr(S_A))
    b('s_lshl_b32 s55, %s, 5' % sr(S_B)); b('s_add_u32 s55, s55, %s' % sr(S_A)); b('s_add_u32 s55, s55, 256')
    b('s_and_b32 s56, %s, 1' % sr(S_W)); b('s_lshl_b32 s56, s56, 4')
    b('s_lshr_b32 s57, %s, 1' % sr(S_W))
    for ee in range(5):
        d = sr(S_E+ee)
        b('s_lshl_b32 %s, s57, 5' % d); b('s_add_u32 %s, %s, s54' % (d, d))
        b('s_add_u32 %s, %s, %d' % (d, d, 64*ee)); b('s_sub_u32 %s, %s, 32' % (d, d))
        if ee == 0: s.append(['s_cmp_eq_u32 s57, 0', 's_cselect_b32 %s, %s, %s' % (d, sr(S_HB), d)])
        if ee == 4: s.append(['s_cmp_eq_u32 s57, 1', 's_cselect_b32 %s, s55, %s' % (d, d)])
        b('s_add_u32 %s, %s, s56' % (d, d)); b('s_mul_i32 %s, %s, 1152' % (d, d)); b('s_add_u32 %s, %s, s63' % (d, d))
    b('s_lshl_b32 %s, s2, 2' % sr(S_A)); b('s_add_u32 %s, %s, %s' % (sr(S_A), sr(S_A), sr(S_W)))
    b('s_lshl_b32 %s, %s, 2' % (sr(S_FLO), sr(S_A))); b('s_add_u32 %s, %s, 0x%x' % (sr(S_FLO), sr(S_FLO), WS_FLAG))
    b('s_mul_i32 %s, %s, 18432' % (sr(S_HXO), sr(S_A))); b('s_add_u32 %s, %s, 0x%x' % (sr(S_HXO), sr(S_HXO), WS_HX))
    b('s_xor_b32 %s, s2, 8' % sr(S_A)); b('s_lshl_b32 %s, %s, 2' % (sr(S_A), sr(S_A))); b('s_add_u32 %s, %s, %s' % (sr(S_A), sr(S_A), sr(S_W)))
    b('s_lshl_b32 %s, %s, 2' % (sr(S_FLP), sr(S_A))); b('s_add_u32 %s, %s, 0x%x' % (sr(S_FLP), sr(S_FLP), WS_FLAG))
    b('s_mul_i32 %s, %s, 18432' % (sr(S_HXP), sr(S_A))); b('s_add_u32 %s, %s, 0x%x' % (sr(S_HXP), sr(S_HXP), WS_HX))
    b('s_lshr_b32 %s, s2, 3' % sr(S_A)); b('s_lshl_b32 %s, %s, 3' % (sr(S_A), sr(S_A))); b('s_add_u32 %s, %s, %s' % (sr(S_A), sr(S_A), sr(S_JP)))
    b('s_lshl_b32 %s, %s, 2' % (sr(S_A), sr(S_A))); b('s_add_u32 %s, %s, %s' % (sr(S_A), sr(S_A), sr(S_W)))
    b('s_mul_i32 %s, %s, 18432' % (sr(S_P), sr(S_A))); b('s_add_u32 %s, %s, 0x%x' % (sr(S_P), sr(S_P), WS_P))
    b('s_mov_b32 %s, 3' % sr(S_CNT)); b('s_mov_b32 %s, 1' % sr(S_FVAL))
    sops = []
    for x in s:
        if isinstance(x, list): sops.append(Op((lambda P, x=x: [P.e(t) for t in x]), cost=1))
        else: sops.append(Op(x))
    qrest = Queue([Op(x) for x in rest], 'rest').window(0, 0, 70)
    qs = Queue(sops, 'srest').window(0, 0, 70)
    qa = gelu_q(0, 'g0', V_T).window(75, 75, 108).after([qrest]); qb = gelu_q(1, 'g1', V_T+4).window(92, 100, 142).after([qrest])
    put_bar(fx, 144, 'Ua', PAT_G)
    ua = st_GU(V_U, 0, True)
    info['peel'] = emit_stream(P, S, ua[0][:LAR//2], fx, [qrest, qs, qa, qb], A_W, NF, LAR, 0, maxslots=9, opt=OPT, first_reads=True, drain_ok=True)
    stamp('peel')
    P.raw('.p2align 6'); P.raw('L_%s_loop:' % name)
    body_start = len(P.ins)
    def flagstore(tag, val):
        def f(P):
            if not OPT.get('no_flagwait'): P.wait_vm_tag(tag)
            P.e('v_mov_b32 %s, %s' % (vr(V_FL), val))
            P.e('buffer_store_dword %s, off, %s, %s sc1' % (vr(V_FL), sr(S_WS,4), sr(S_FLO)), tag='fl')
        f.cost = 3
        return f
    def front(fx, ch, tail):
        S = Stream().add(*st_GU(V_U, 0, True)).add(*st_GU(V_U, 1, False))
        G0 = OPT.get('dma_g0', 4)
        if not tail:
            put_dma(ch, G0, dma_G(S_WG, sr(S_GCOL), 0, 'Ga')); put_dma(ch, 72+G0, dma_G(S_WG, sr(S_GCOL), 1, 'Gb'))
            put_bar(fx, 72, 'Ub', PAT_G); put_bar(fx, 144, 'Ga', PAT_G)
        else:
            put_dma(ch, G0, dma_G(S_WG, sr(S_HCOL), 0, 'Gh', 16)); put_dma(ch, 72+G0, dma_G(S_WU, sr(S_HCOL), 0, 'Uh', 16))
            put_bar(fx, 72, 'Ub', PAT_G); put_bar(fx, 144, 'Gh', PAT_H)
        g2 = gelu_q(2, 'g2', V_T).window(0, 0, 100); g3 = gelu_q(3, 'g3', V_T+4).window(0, 60, 160)
        p0 = prod_q(0, V_H, 'p0').window(92, 110, 140)
        p1 = prod_q(1, V_H, 'p1', (sr(S_HXO), 0, 'h0')).window(110, 135, 158).after([p0])
        p2 = prod_q(2, V_H+8, 'p2').window(128, 155, 176).after([g2, p1])
        p3 = prod_q(3, V_H+8, 'p3', (sr(S_HXO), 2048, 'h1')).window(146, 175, 194).after([g3, p2])
        return S, [p0, p1, p2, p3, g2, g3]
    G0 = OPT.get('dma_g0', 4)
    Hf = [[vr(V_H + 8*kq + 4*mm, 4) for mm in range(2)] for kq in range(2)]
    fx = Fixed(); ch = []
    S, qs = front(fx, ch, False)
    S.add(*st_GU(V_G, 0, True)).add(*st_GU(V_G, 1, False)).add(*st_D(Hf))
    put_dma(ch, 144+G0, dma_D(sr(S_DROW), 'D')); put_dma(ch, 216+G0, dma_G(S_WU, sr(S_GCOL), 0, 'Ua')); put_dma(ch, 288+G0, dma_G(S_WU, sr(S_GCOL), 1, 'Ub'))
    fx.chain(ch)
    put_bar(fx, 216, 'Gb', PAT_G); put_bar(fx, 288, 'D', PAT_D); put_bar(fx, 360, 'Ua', PAT_G)
    p3 = qs[3]
    n0 = gelu_q(0, 'g0n', V_T).window(237, 237, 300).after([p3]); n1 = gelu_q(1, 'g1n', V_T+4).window(255, 295, 358).after([p3])
    fx.put(262, 'X', flagstore('h1', sr(S_FVAL)), cost=3)
    fx.chain([(270, 'S', 's_add_u32 %s, %s, 1' % (sr(S_FVAL), sr(S_FVAL)), None), (271, 'S', 's_add_u32 %s, %s, 4096' % (sr(S_HXO), sr(S_HXO)), None),
              (272, 'S', 's_add_u32 %s, %s, %d' % (sr(S_DROW), sr(S_DROW), 64*1152), None)])
    info['body'] = emit_stream(P, S, ua[0][:LAR//2], fx, qs + [n0, n1], A_W, NF, LAR, 0, maxslots=OPT['cap'], opt=OPT)
    dl = {q.name: q.finish for q in qs + [n0, n1]}
    assert dl['p0'] <= 143 and dl['p1'] <= 161 and dl['p2'] <= 179 and dl['p3'] <= 197, dl
    info['fb'] = dl
    e('s_add_u32 %s, %s, 128' % (sr(S_GCOL), sr(S_GCOL)))
    e('s_sub_u32 %s, %s, 1' % (sr(S_CNT), sr(S_CNT))); e('s_cmp_lg_u32 %s, 0' % sr(S_CNT))
    e('s_cbranch_scc1 L_%s_loop' % name)
    body_end = len(P.ins)
    stamp('loop')
    fx = Fixed(); ch = []
    S, qs = front(fx, ch, True)
    S.add(*st_half(V_G)).add(*st_half(V_U)).add(*st_D(Hf))
    HHf = [vr(V_HH + 4*mm, 4) for mm in range(2)]
    kb = [HHf] + [[hpfrag(th, mm) for mm in range(2)] for th in range(9)]
    for ee in range(3): S.add(*st_D(kb[2*ee:2*ee+2]))
    RA = (V_RD, V_RD2); RB = (V_T, V_T+1)
    S.add(*st_final(kb[6:10], RA, RB))
    put_dma(ch, 144+G0, dma_D(sr(S_DROW), 'D')); put_dma(ch, 216+G0, dma_D(sr(S_E), 'E0'))
    put_dma(ch, 288+G0, dma_D(sr(S_E+1), 'E1')); put_dma(ch, 360+G0, dma_D(sr(S_E+2), 'E2'))
    put_dma(ch, 432+G0, dma_D(sr(S_E+3), 'E3'), step=6); put_dma(ch, 432+62, dma_D(sr(S_E+4), 'E4'), step=3)
    fx.chain(ch)
    put_bar(fx, 216, 'Uh', PAT_H); put_bar(fx, 288, 'D', PAT_D)
    for k in range(3): put_bar(fx, 360+72*k, 'E%d' % k, PAT_D)
    put_bar(fx, 576, ['E3', 'E4'], PAT_D)
    def second_base(P):
        P.e('s_add_u32 %s, %s, 1' % (sr(S_A), sr(S_CR))); P.e('s_and_b32 %s, %s, 3' % (sr(S_A), sr(S_A))); P.e('s_mul_i32 %s, %s, %d' % (sr(S_A), sr(S_A), SLOT))
        P.e('v_add_u32 %s, %s, %s' % (vr(RB[0]), sr(S_A), vr(V_PDE))); P.e('v_add_u32 %s, %s, %s' % (vr(RB[1]), sr(S_A), vr(V_PDO)))
    fx.put(576-LAR-3, 'X', second_base, cost=5)
    p3 = qs[3]
    h0 = gelu_q(0, 'gh0', V_T).window(183, 185, 245).after([p3]); h1 = gelu_q(1, 'gh1', V_T+4).window(219, 235, 290).after([p3])
    fx.chain([(280, 'S', 's_add_u32 %s, %s, 4096' % (sr(S_T1), sr(S_HXO)), None)])
    ph0 = prod_q(0, V_HH, 'ph0').window(255, 260, 285).after([h0])
    ph1 = prod_q(1, V_HH, 'ph1', (sr(S_T1), 0, 'hh')).window(291, 292, 312).after([h1, ph0])
    def poll_issue(P): P.e('buffer_load_dword %s, off, %s, %s sc1' % (vr(V_FL), sr(S_WS,4), sr(S_FLP)), tag='poll')
    slow = []
    def poll_check(val, lab):
        def f(P):
            P.wait_vm_tag('poll')
            P.e('v_readfirstlane_b32 %s, %s' % (sr(S_A), vr(V_FL)))
            P.e('s_nop 0')
            P.e('s_cmp_ge_u32 %s, %d' % (sr(S_A), val))
            P.e('s_cbranch_scc0 L_%s_slow%s' % (name, lab))
            P.raw('L_%s_back%s:' % (name, lab))
            slow.append((val, lab))
        f.cost = 5
        return f
    def hp_load(x):
        def f(P):
            if x % 4 == 0: P.e('s_add_u32 %s, %s, %d' % (sr(S_B), sr(S_HXP), (x//4)*4096))
            th, mm = divmod(x, 2)
            P.e('buffer_load_dwordx4 %s, %s, %s, %s offen offset:%d sc1' % (hpfrag(th, mm), vr(V_L16), sr(S_WS,4), sr(S_B), (x % 4)*1024), tag='hp%d' % x)
        return f
    if dbg and OPT.get('tail_stamps'):
        for g in OPT['tail_stamps']: fx.put(g, 'X', (lambda P, g=g: stamp('t%d' % g)), cost=0)
    fx.put(20, 'X', poll_issue, cost=2)
    fx.put(61, 'X', poll_check(3, 'a'), cost=5)
    for x in range(12): fx.put(64 + 6*x, 'X', hp_load(x), cost=2)
    fx.put(262, 'X', flagstore('h1', '4'), cost=3)
    fx.put(372, 'X', flagstore('hh', '5'), cost=3)
    fx.put(436, 'X', poll_issue, cost=2)
    fx.put(478, 'X', poll_check(5, 'b'), cost=5)
    for x in range(12, 18): fx.put(480 + 2*(x-12), 'X', hp_load(x), cost=2)
    def hp_wait(xs):
        def f(P): P.wait_vm(lambda i: i.tag in ['hp%d' % t for t in xs])
        return f
    fx.put(360+36-4, 'X', hp_wait(range(12)))
    fx.put(576-4, 'X', hp_wait(range(12, 18)))
    ep = []
    for np_ in range(9):
        ear = 576 + 16*(np_+1) + 2
        for mm in range(2):
            tb = V_G + 16*((2*np_+mm) % 4); hb = V_H + 4*((2*np_+mm) % 4)
            for k in range(2):
                for r in range(4): ep.append(Op('v_accvgpr_read_b32 %s, a%d' % (vr(tb+4*k+r), A_OUT + 8*(2*np_+k) + 4*mm + r), ear))
            for d in range(4): ep.append(Op('v_cvt_pk_bf16_f32 %s, %s, %s' % (vr(hb+d), vr(tb+2*d), vr(tb+2*d+1)), ear))
            fr_ = mm*9 + np_
            def st(P, fr_=fr_, hb=hb):
                P.e('s_add_u32 %s, %s, %d' % (sr(S_T0), sr(S_P), fr_*1024))
                P.e('buffer_store_dwordx4 %s, %s, %s, %s offen sc1' % (vr(hb,4), vr(V_L16), sr(S_WS,4), sr(S_T0)), tag='p')
            ep.append(Op(st, ear, cost=2))
    qe = Queue(ep, 'ep', prio=True)
    allq = qs + [ph0, ph1, h0, h1, qe]
    info['tail'] = emit_stream(P, S, [], fx, allq, A_W, NF, LAR, 0, maxslots=OPT['cap'], opt=OPT, drain_ok=True, drain_pre='s_nop 7')
    dl = {q.name: q.finish for q in allq}
    assert dl['p0'] <= 143 and dl['p1'] <= 179 and dl['ph0'] < 350 and dl['ph1'] < 350 and dl['p3'] < 240 and dl['gh0'] < 300, dl
    info['ft'] = dl
    stamp('tail')
    if dbg:
        e('s_waitcnt vmcnt(0)')
        stamp('end')
        e('s_mov_b32 s4, s94'); e('s_mov_b32 s5, s95'); e('s_mov_b32 s6, 0x100000'); e('s_mov_b32 s7, 0x20000')
        e('s_lshl_b32 s41, s2, 2'); e('s_add_u32 s41, s41, %s' % sr(S_W)); e('s_lshl_b32 s41, s41, 7')
        for k in range(len(stamps)):
            e('s_sub_u32 s42, s%d, s64' % (64+k)); e('v_mov_b32 v1, s42')
            e('buffer_store_dword v1, off, s[4:7], s41 offset:%d' % (4*k))
            e('s_sub_u32 s42, s%d, s78' % (78+k)); e('v_mov_b32 v1, s42')
            e('buffer_store_dword v1, off, s[4:7], s41 offset:%d' % (64+4*k))
        e('v_mov_b32 v1, s78'); e('buffer_store_dword v1, off, s[4:7], s41 offset:60')
    P.raw('L_%s_end:' % name)
    e('s_endpgm')
    main_end = len(P.ins)
    for val, lab in slow:
        P.raw('L_%s_slow%s:' % (name, lab))
        P.raw('s_mov_b32 %s, 0x40000' % sr(S_C))
        P.raw('L_%s_spin%s:' % (name, lab))
        P.raw('s_sleep 2')
        P.raw('buffer_load_dword %s, off, %s, %s sc1' % (vr(V_FL), sr(S_WS,4), sr(S_FLP)))
        P.raw('s_waitcnt vmcnt(0)')
        P.raw('v_readfirstlane_b32 %s, %s' % (sr(S_A), vr(V_FL)))
        P.raw('s_sub_u32 %s, %s, 1' % (sr(S_C), sr(S_C)))
        P.raw('s_cmp_eq_u32 %s, 0' % sr(S_C))
        P.raw('s_cbranch_scc1 L_%s_back%s' % (name, lab))
        P.raw('s_cmp_ge_u32 %s, %d' % (sr(S_A), val))
        P.raw('s_cbranch_scc0 L_%s_spin%s' % (name, lab))
        P.raw('s_branch L_%s_back%s' % (name, lab))
    ins = P.ins
    path = ins[:body_start] + ins[body_start:body_end]*3 + ins[body_end:main_end]
    info['stamps'] = stamps
    return P, path, info

if __name__ == '__main__':
    import collections
    P, path, info = build()
    check(path, 'k3b')
    print('barrier problems', verify_barriers(path))
    for k in ('peel', 'body', 'tail'):
        print(k, 'slots/gap hist', sorted(collections.Counter(info[k]).items()), 'est cyc/unit %.2f' % (est_cycles(info[k])/len(info[k])*2))
    print(info['fb']); print(info['ft'])
    print('instrs', len(P.ins))
```

```python
from core import *
from common import *

def build(name='k4_kernel'):
    P = Prog(); e = P.e
    NWG = 288
    S_WS, S_OUT = 8, 12
    e('s_cmp_ge_u32 s2, %d' % NWG); e('s_cbranch_scc1 L_%s_end' % name)
    e('s_load_dwordx2 s[4:5], s[0:1], %d' % KA_WS); e('s_load_dwordx2 s[6:7], s[0:1], %d' % KA_OUT)
    e('v_lshrrev_b32 v1, 6, v0'); e('v_and_b32 v0, 63, v0')
    e('v_readfirstlane_b32 s16, v1')
    e('v_lshlrev_b32 v2, 4, v0')
    e('s_lshl_b32 s17, s2, 2'); e('s_add_u32 s17, s17, s16')
    e('s_mul_i32 s18, s17, 7282'); e('s_lshr_b32 s18, s18, 16')
    e('s_mul_i32 s19, s18, 9'); e('s_sub_u32 s19, s17, s19')
    e('s_lshr_b32 s20, s18, 3'); e('s_and_b32 s21, s18, 7')
    e('s_mul_i32 s22, s18, 18'); e('s_lshl_b32 s23, s19, 1'); e('s_add_u32 s22, s22, s23'); e('s_lshl_b32 s22, s22, 10'); e('s_add_u32 s22, s22, 0x%x' % WS_HF)
    for k in range(2):
        e('s_lshl_b32 s24, s19, 1'); e('s_add_u32 s24, s24, %d' % k)
        e('s_cmp_ge_u32 s24, 9'); e('s_cselect_b32 s25, 1, 0'); e('s_cselect_b32 s26, 9, 0'); e('s_sub_u32 s24, s24, s26')
        e('s_lshl_b32 s26, s20, 1'); e('s_add_u32 s26, s26, s25'); e('s_lshl_b32 s26, s26, 6')
        e('s_add_u32 s26, s26, s21'); e('s_mul_i32 s26, s26, 9'); e('s_add_u32 s26, s26, s24'); e('s_lshl_b32 s26, s26, 10')
        e('s_add_u32 s%d, s26, 0x%x' % (28+k, WS_P))
    e('s_waitcnt lgkmcnt(0)')
    e('s_mov_b32 s8, s4'); e('s_mov_b32 s9, s5'); e('s_mov_b32 s10, 0x%x' % WS_END); e('s_mov_b32 s11, 0x%x' % SRD3)
    e('s_mov_b32 s12, s6'); e('s_mov_b32 s13, s7'); e('s_mov_b32 s14, %d' % (S_*D_*2)); e('s_mov_b32 s15, 0x%x' % SRD3)
    for k in range(2):
        e('buffer_load_dwordx4 %s, v2, s[8:11], s22 offen offset:%d' % (vr(16+36*k, 4), 1024*k), tag='l%d_0' % k)
        for jp in range(8):
            if jp: e('s_add_u32 s%d, s%d, %d' % (28+k, 28+k, 8*9*1024))
            e('buffer_load_dwordx4 %s, v2, s[8:11], s%d offen' % (vr(16+36*k+4*(jp+1), 4), 28+k), tag='l%d_%d' % (k, jp+1))
    e('v_and_b32 v3, 15, v0'); e('s_lshl_b32 s30, s18, 4'); e('v_add_u32 v3, s30, v3'); e('v_mul_u32_u24 v3, 1152, v3')
    e('v_bfe_u32 v4, v0, 4, 1'); e('v_lshl_add_u32 v3, v4, 5, v3')
    e('v_bfe_u32 v4, v0, 5, 1'); e('v_lshl_add_u32 v3, v4, 4, v3')
    e('s_lshl_b32 s31, s19, 7')
    e('s_mov_b32 s32, 0x3f80'); e('s_mov_b32 s33, 0x3f800000')
    for k in range(2):
        acc = 88 + 8*k
        for src in range(9):
            P.wait_vm_tag('l%d_%d' % (k, src))
            b = 16 + 36*k + 4*src
            for d in range(4):
                for hi in range(2):
                    c = '0' if src == 0 else vr(acc+2*d+hi)
                    e('v_dot2_f32_bf16 %s, %s, s%d, %s' % (vr(acc+2*d+hi), vr(b+d), 32+hi, c))
    for k in range(2):
        acc = 88 + 8*k; o = 104 + 4*k
        if k == 1: e('s_nop 1')
        for d in range(4): e('v_cvt_pk_bf16_f32 %s, %s, %s' % (vr(o+d), vr(acc+2*d), vr(acc+2*d+1)))
    e('s_nop 1')
    for k in range(2):
        o = 104 + 4*k
        e('v_permlane16_swap_b32 %s, %s' % (vr(o), vr(o+2)))
        e('v_permlane16_swap_b32 %s, %s' % (vr(o+1), vr(o+3)))
    e('s_nop 1')
    for k in range(2):
        o = 104 + 4*k
        e('buffer_store_dwordx4 %s, v3, s[12:15], s31 offen offset:%d' % (vr(o, 4), 64*k))
    P.raw('L_%s_end:' % name)
    e('s_endpgm')
    return P, dict(vgpr=112, sgpr=40, grid=NWG, block=256, lds=0)

if __name__ == '__main__':
    P, o = build(); check(P.ins, 'k4')
```

```python
from core import *

class Op:
    def __init__(self, text, ready=0, after=None, tag=None, cost=None):
        self.text, self.ready, self.after, self.tag = text, ready, after, tag
        self.due = ready
        self.cost = cost if cost is not None else (1 if callable(text) else Ins(text).cost)
        if not callable(text) and text.startswith('buffer_'): self.cost = 2

class Queue:
    def __init__(self, ops, name='', prio=False):
        self.ops = list(ops); self.name = name; self.k = 0; self.prio = prio; self.finish = -1
    def done(self): return self.k >= len(self.ops)
    def peek(self): return None if self.done() else self.ops[self.k]
    def window(self, ready, a, b):
        tot = sum(o.cost for o in self.ops); acc = 0
        for o in self.ops:
            o.ready = max(o.ready, ready); o.due = max(o.ready, int(a + (b - a) * acc / tot)); acc += o.cost
        return self
    def after(self, qs):
        for o in self.ops: o.after = list(qs)
        return self

class Frag:
    def __init__(self, rd, imm0, imm1): self.rd, self.imm = rd, (imm0, imm1)
class MF:
    def __init__(self, D, fi, B, C, wait=None): self.D, self.fi, self.B, self.C, self.wait = D, fi, B, C, wait
class Stream:
    def __init__(self): self.frags = []; self.mf = []
    def add(self, frags, mfs):
        o = len(self.frags)
        self.frags += frags
        for m in mfs:
            self.mf.append(MF(m.D, m.fi + o, m.B, m.C, None if m.wait is None else [x + o for x in m.wait]))
        return self

class Fixed:
    def __init__(self): self.chains = []; self.at = {}
    def chain(self, items): self.chains.append(list(items))
    def put(self, gap, kind, text, tag=None, cost=1): self.at.setdefault(gap, []).append((kind, text, tag, cost))

def emit_stream(P, S, nxt_frags, fx, queues, A_W, NF, LAR, phase=0, maxslots=3, opt=None, drain_ok=False, first_reads=False, drain_pre=None):
    opt = opt or {}
    allf = S.frags + nxt_frags
    nreads = 2*len(allf)
    def areg(fi, n=4, off=0): return ar(A_W + 4*((phase + fi) % NF) + off, n)
    def aregs(fi): return rset('a', A_W + 4*((phase + fi) % NF), 4)
    last_use = {}
    for mu, m in enumerate(S.mf): last_use[m.fi] = mu
    st = dict(rho=0)
    def read():
        fi, u = divmod(st['rho'], 2); f = allf[fi]
        P.e('ds_read_b64_tr_b16 %s, %s offset:%d' % (areg(fi, 2, 2*u), vr(f.rd), f.imm[u])); st['rho'] += 1
    if first_reads:
        while st['rho'] < LAR: read()
    else: st['rho'] = LAR
    chains = [list(c) for c in fx.chains]
    hist = []
    def wait_for(m):
        regs = []
        for w in m.wait: regs += aregs(w)
        return P.wait_lg_regs(regs)
    if S.mf and S.mf[0].wait is not None: wait_for(S.mf[0])
    for mu, m in enumerate(S.mf):
        P.e('v_mfma_f32_16x16x32_bf16 %s, %s, %s, %s' % (m.D, areg(m.fi), m.B, m.C))
        free_scalar = True; used = 0
        here = fx.at.get(mu, [])
        nxt = S.mf[mu+1] if mu + 1 < len(S.mf) else None
        lead = [x for x in here if x[0] == 'L']
        if nxt is not None and nxt.wait is not None:
            assert st['rho'] >= 2*(max(nxt.wait)+1), (mu, st['rho'], nxt.wait)
            if wait_for(nxt) is not None: free_scalar = False
        for kind, text, tag, cost in lead:
            if text == '@waitvm':
                if not opt.get('no_vmwait') and P.wait_vm_tag(tag) is None: continue
            else: P.e(text, tag=tag)
            if free_scalar: free_scalar = False
            else: used += 1
        emitted_chain = set()
        def chain_scalar():
            for ci, c in enumerate(chains):
                if c and c[0][1] == 'S' and c[0][0] <= mu:
                    P.e(c[0][2]); c.pop(0); emitted_chain.add(ci); return True
            return False
        if free_scalar and chain_scalar(): free_scalar = False
        dma = None
        for ci, c in enumerate(chains):
            if c and c[0][1] == 'D' and c[0][0] <= mu and ci not in emitted_chain: dma = ci; break
        nominal = min(nreads, mu + 1 + LAR)
        must_read = any(x[0] == 'R' for x in here)
        if dma is not None and not must_read and nominal - st['rho'] <= 1:
            c = chains[dma]; it = c.pop(0)
            if not (opt.get('no_dma') and ' lds' in it[2]): P.e(it[2], tag=it[3]); used += 2
        else:
            n = min(2 if not must_read else 99, nominal - st['rho'])
            for _ in range(n):
                fi = st['rho'] // 2
                assert fi - NF < 0 or last_use.get(fi - NF, -1) <= mu, ('ring', mu, fi)
                read(); used += 1
        for kind, text, tag, cost in here:
            if kind in ('L',): continue
            if kind == 'R':
                assert st['rho'] == nominal
                P.e(text); used += 1
            elif kind == 'B':
                if not opt.get('no_bar'):
                    i = P.e('s_barrier'); i.meta = dict(needs=tag)
                used += 1
            elif kind == 'X': text(P); used += cost
            else: P.e(text, tag=tag); used += cost
        while True:
            cands = []
            for q in queues:
                o = q.peek()
                if o is None or o.ready > mu: continue
                if o.after is not None and not all(x.done() for x in o.after): continue
                if used + o.cost <= 2: cands.append((0, o.due, q))
                elif o.due <= mu and used + o.cost <= maxslots + (1 if o.cost == 2 and used <= 2 and maxslots == 3 and used == 2 and o.due + 6 <= mu else 0): cands.append((1, o.due, q))
            if not cands: break
            cands.sort(key=lambda t: (t[0], 0 if t[2].prio else 1, t[1]))
            q = cands[0][2]; o = q.peek()
            if callable(o.text): o.text(P)
            elif opt.get('no_hst') and o.text.startswith('buffer_store'): pass
            elif not (opt.get('no_valu') and o.text.startswith('v_')): P.e(o.text, tag=o.tag)
            used += o.cost; q.k += 1
            if q.done(): q.finish = mu
        for ci, c in enumerate(chains):
            while c and c[0][1] == 'S' and c[0][0] + 2 <= mu and used < 4:
                P.e(c[0][2]); c.pop(0); used += 1
        hist.append(used)
    for c in chains: assert not c, ('chain left', c[:2])
    assert st['rho'] == nreads, (st['rho'], nreads)
    for q in queues:
        if not q.done():
            if not drain_ok: raise AssertionError('queue %s not drained: %d left' % (q.name, len(q.ops) - q.k))
            if drain_pre: P.e(drain_pre); drain_pre = None
            while not q.done():
                o = q.peek()
                if callable(o.text): o.text(P)
                else: P.e(o.text, tag=o.tag)
                q.k += 1
            q.finish = len(S.mf)
    return hist

def verify_barriers(path):
    vmq = []; bad = 0
    for i in path:
        if i.kind == 'vmem': vmq.append(i)
        elif i.kind == 'wait' and i.meta['vm'] is not None:
            vm = i.meta['vm']
            if len(vmq) > vm: vmq = vmq[len(vmq)-vm:] if vm else []
        elif i.kind == 'barrier' and i.meta and i.meta.get('needs'):
            ts = i.meta['needs']; ts = ts if isinstance(ts, (list, tuple)) else [ts]
            if any(x.tag in ts for x in vmq): print('BARRIER with outstanding', ts); bad += 1
    return bad
def est_cycles(hist): return sum(16.25 + 4*max(0, u-2) for u in hist)
```

```python
import build_all as B
V = {'vA': None,
     'vB': ['k1_kernel','k1_kernel','k2_kernel','k3_kernel','k4_kernel'],
     'vC': ['k1_kernel','k2_kernel','k3_kernel','k2_kernel','k3_kernel','k4_kernel'],
     'vD': ['k0_kernel','k1_kernel','k2_kernel','k3_kernel','k4_kernel'],
     'vE': ['k1_kernel','k2_kernel','k3_kernel','k4_kernel','k0_kernel','k0_kernel','k0_kernel','k0_kernel'],
     'vF': ['k1_kernel','k2_kernel','k2_kernel','k3_kernel','k4_kernel','k4_kernel']}
import os
os.makedirs('variants', exist_ok=True)
for n, o in V.items():
    t, ks = B.make(order=o)
    open('variants/%s.s' % n, 'w').write(t)
print('ok')
```

```python
from core import *
from common import *
from stamps import Stamper

XR_END = 92160
WSLOT = 16384
PITCH = 516
LDS_BYTES = XR_END + 4*WSLOT

def build(name='k1_kernel', prefetch=None, dbg=False):
    P = Prog(); e = P.e
    VB = [2, 3]; VBH = [4, 5]; VAE, VAO, PAE, PAO = 6, 7, 8, 9
    VW, VX, VONE = 10, 14, 16
    VWA, T = 192, 27
    VS, VQ = 20, 15
    BB = [40, 60]; AB = [80, 96]; ACC = 112
    S_X, S_WQ, S_WS = 8, 12, 16
    S_W, S_HG, S_MI, S_C, S_RA, S_WA, S_WB, S_SO, S_T0, S_T1, S_CNT = 20, 21, 22, 23, 24, 25, 26, 27, 28, 29, 30
    S_MASK = 32
    S_OD = 40
    def acc(i, mt): return ACC + 20*i + 4*mt
    e('s_cmp_ge_u32 s2, 256'); e('s_cbranch_scc1 L_%s_end' % name)
    stamp = Stamper(P, dbg, S_W); stamp('start')
    e('s_load_dwordx4 s[4:7], s[0:1], %d' % KA_X)
    e('s_load_dwordx2 s[34:35], s[0:1], %d' % KA_WS)
    e('v_lshrrev_b32 v1, 6, v0'); e('v_and_b32 v0, 63, v0')
    e('v_readfirstlane_b32 %s, v1' % sr(S_W))
    e('s_and_b32 %s, s2, 1' % sr(S_HG)); e('s_lshl_b32 %s, %s, 2' % (sr(S_HG), sr(S_HG)))
    e('s_bfe_u32 %s, s2, 0x20003' % sr(S_T0)); e('s_add_u32 %s, %s, %s' % (sr(S_HG), sr(S_HG), sr(S_T0)))
    e('s_bfe_u32 %s, s2, 0x20001' % sr(S_MI)); e('s_lshl_b32 %s, %s, 3' % (sr(S_MI), sr(S_MI)))
    e('s_lshr_b32 %s, s2, 5' % sr(S_T0)); e('s_add_u32 %s, %s, %s' % (sr(S_MI), sr(S_MI), sr(S_T0)))
    e('v_lshrrev_b32 v1, 3, v0'); e('v_and_b32 %s, 7, v0' % vr(T))
    e('s_and_b32 %s, %s, 1' % (sr(S_T0), sr(S_W))); e('s_lshl_b32 %s, %s, 2' % (sr(S_T0), sr(S_T0)))
    e('v_lshrrev_b32 %s, 1, v1' % vr(T+1)); e('v_add_u32 %s, %s, %s' % (vr(T+1), sr(S_T0), vr(T+1)))
    e('v_xor_b32 %s, %s, %s' % (vr(T+1), vr(T+1), vr(T))); e('v_lshlrev_b32 %s, 4, %s' % (vr(T+1), vr(T+1)))
    e('v_mul_u32_u24 %s, 1152, v1' % vr(T+2)); e('v_add_u32 %s, %s, %s' % (vr(VX), vr(T+1), vr(T+2)))
    e('s_waitcnt lgkmcnt(0)')
    for srd, lo, hi, size in ((S_X, 4, 5, S_*D_*2), (S_WQ, 6, 7, D_*3*D_*2), (S_WS, 34, 35, WS_END)):
        e('s_mov_b32 %s, s%d' % (sr(srd), lo)); e('s_mov_b32 %s, s%d' % (sr(srd+1), hi))
        e('s_mov_b32 %s, 0x%x' % (sr(srd+2), size)); e('s_mov_b32 %s, 0x%x' % (sr(srd+3), SRD3))
    stamp('setup')
    W1 = []; a = W1.append
    for t in range(4):
        d = vr(VW+t)
        a('s_lshl_b32 s31, %s, 3' % sr(S_W)); a('s_add_u32 s31, s31, %d' % (32*t))
        a('v_add_u32 %s, s31, v1' % vr(T))
        a('v_mul_u32_u24 %s, 4682, %s' % (vr(T+1), vr(T))); a('v_lshrrev_b32 %s, 16, %s' % (vr(T+1), vr(T+1)))
        a('v_mul_u32_u24 %s, 14, %s' % (vr(T+2), vr(T+1))); a('v_sub_u32 %s, %s, %s' % (vr(T+2), vr(T), vr(T+2)))
        a('v_bfe_u32 %s, %s, 1, 1' % (vr(T+3), vr(T+1))); a('v_xor_b32 %s, %s, %s' % (vr(T+2), vr(T+2), vr(T+3)))
        a('v_and_b32 %s, 1, v0' % vr(T+3)); a('v_lshl_add_u32 %s, %s, 1, %s' % (vr(T+2), vr(T+2), vr(T+3)))
        a('v_min_u32 %s, 26, %s' % (vr(T+2), vr(T+2)))
        a('v_mul_u32_u24 %s, 57, %s' % (vr(T+3), vr(T+2))); a('v_lshrrev_b32 %s, 9, %s' % (vr(T+3), vr(T+3)))
        a('v_mul_u32_u24 %s, 9, %s' % (vr(T+4), vr(T+3))); a('v_sub_u32 %s, %s, %s' % (vr(T+2), vr(T+2), vr(T+4)))
        a('v_mul_u32_u24 %s, 1152, %s' % (vr(T+3), vr(T+3))); a('v_lshl_add_u32 %s, %s, 4, %s' % (vr(T+2), vr(T+2), vr(T+3)))
        a('v_bfe_u32 %s, v0, 1, 2' % vr(T+3)); a('v_lshl_add_u32 %s, %s, 2, %s' % (vr(T+3), vr(T+1), vr(T+3)))
        a('v_mul_u32_u24 %s, 3456, %s' % (vr(T+3), vr(T+3))); a('v_add_u32 %s, %s, %s' % (d, vr(T+2), vr(T+3)))
        a(['v_cmp_le_u32 vcc, 112, %s' % vr(T), 'v_mov_b32 %s, 0x7fff0000' % vr(T+3), 's_nop 0', 'v_cndmask_b32 %s, %s, %s, vcc' % (d, d, vr(T+3))])
    W2 = []; a = W2.append
    M = T+5; Q_ = T+6
    a('v_and_b32 %s, 15, v0' % vr(M)); a('v_lshrrev_b32 %s, 4, v0' % vr(Q_))
    a('v_lshrrev_b32 %s, 3, %s' % (vr(T+1), vr(M))); a('v_mul_u32_u24 %s, 9216, %s' % (vr(T+1), vr(T+1)))
    a('v_and_b32 %s, 7, %s' % (vr(T+2), vr(M))); a('v_lshl_add_u32 %s, %s, 7, %s' % (vr(T+1), vr(T+2), vr(T+1)))
    a('v_lshrrev_b32 %s, 1, %s' % (vr(T+2), vr(M)))
    for kp in range(2):
        a('v_add_u32 %s, %d, %s' % (vr(T+3), 4*kp, vr(Q_))); a('v_xor_b32 %s, %s, %s' % (vr(T+3), vr(T+3), vr(T+2)))
        a('v_lshl_add_u32 %s, %s, 4, %s' % (vr(VB[kp]), vr(T+3), vr(T+1))); a('v_add_u32 %s, %d, %s' % (vr(VBH[kp]), 4*18432, vr(VB[kp])))
    a('v_mul_u32_u24 %s, 3584, %s' % (vr(T+1), vr(Q_)))
    a('v_bfe_u32 %s, v0, 2, 2' % vr(T+2)); a('v_lshl_add_u32 %s, %s, 5, %s' % (vr(T+1), vr(T+2), vr(T+1)))
    a('v_and_b32 %s, 3, v0' % vr(T+2)); a('v_lshl_add_u32 %s, %s, 3, %s' % (vr(T+1), vr(T+2), vr(T+1)))
    a('s_lshl_b32 s31, %s, 9' % sr(S_W)); a('s_add_u32 s31, s31, %d' % XR_END)
    a('v_add_u32 %s, s31, %s' % (vr(T+1), vr(T+1)))
    a('v_and_b32 %s, 1, %s' % (vr(T+2), vr(Q_))); a('v_lshlrev_b32 %s, 7, %s' % (vr(T+2), vr(T+2)))
    a('v_add_u32 %s, %s, %s' % (vr(PAE), vr(T+1), vr(T+2))); a('v_sub_u32 %s, %s, %s' % (vr(PAO), vr(T+1), vr(T+2)))
    for k in range(4): a('v_mov_b32 %s, 0x3f803f80' % vr(VONE+k))
    a('v_cmp_eq_u32 %s, 0, %s' % (sr(S_MASK, 2), vr(M)))
    for i4 in range(4):
        for d2 in range(2):
            d = vr(VWA + 2*i4 + d2)
            a('s_lshl_b32 s31, %s, 6' % sr(S_W)); a('s_add_u32 s31, s31, %d' % (16*i4 + 2*d2))
            a('v_lshl_add_u32 %s, %s, 2, s31' % (vr(T+1), vr(Q_)))
            a('v_mul_u32_u24 %s, 3641, %s' % (vr(T+2), vr(T+1))); a('v_lshrrev_b32 %s, 16, %s' % (vr(T+2), vr(T+2)))
            a('v_mul_u32_u24 %s, 18, %s' % (vr(T+3), vr(T+2))); a('v_sub_u32 %s, %s, %s' % (vr(T+3), vr(T+1), vr(T+3)))
            a('v_min_u32 %s, 12, %s' % (vr(T+2), vr(T+2)))
            a('v_mul_u32_u24 %s, 3200, %s' % (vr(T+2), vr(T+2))); a('v_lshl_add_u32 %s, %s, 1, %s' % (vr(T+2), vr(T+3), vr(T+2)))
            a('v_mul_u32_u24 %s, 40, %s' % (vr(T+3), vr(M))); a('v_add_u32 %s, %s, %s' % (d, vr(T+2), vr(T+3)))
    for i4 in range(4):
        for mt in range(5):
            for r in range(4): a('v_mov_b32 %s, 0' % vr(acc(i4, mt)+r))
    a('s_mul_i32 s37, %s, 72' % sr(S_HG)); a('s_mul_i32 s38, %s, 18' % sr(S_W)); a('s_add_u32 s37, s37, s38')
    for d in range(9):
        o = sr(S_OD+d)
        a('s_add_u32 s38, s37, %d' % (2*d))
        a('s_lshr_b32 %s, s38, 5' % o); a('s_lshl_b32 %s, %s, 10' % (o, o))
        a('s_bfe_u32 s39, s38, 0x20002'); a('s_lshl_b32 s39, s39, 8'); a('s_add_u32 %s, %s, s39' % (o, o))
        a('s_bfe_u32 s39, s38, 0x10004'); a('s_lshl_b32 s39, s39, 3'); a('s_add_u32 %s, %s, s39' % (o, o))
        a('s_bfe_u32 s39, s38, 0x10001'); a('s_lshl_b32 s39, s39, 2'); a('s_add_u32 %s, %s, s39' % (o, o))
    def work(lst, n):
        for _ in range(n):
            if not lst: return
            x = lst.pop(0)
            for t in (x if isinstance(x, list) else [x]): e(t)
    n1 = len(W1)
    for bi in range(3):
        if bi == 2:
            work(W1, 999)
            e('s_cmp_ge_u32 %s, 2' % sr(S_W)); e('s_cbranch_scc1 L_%s_nox' % name)
        e('s_add_u32 %s, %s, %d' % (sr(S_T0), sr(S_W), 4*bi))
        e('s_lshl_b32 %s, %s, 3' % (sr(S_T1), sr(S_MI))); e('s_add_u32 %s, %s, %s' % (sr(S_T1), sr(S_T1), sr(S_T0)))
        e('s_sub_u32 %s, %s, 2' % (sr(S_T1), sr(S_T1))); e('s_max_i32 %s, %s, 0' % (sr(S_T1), sr(S_T1)))
        e('s_mul_i32 %s, %s, %d' % (sr(S_T1), sr(S_T1), 8*1152))
        e('s_mul_i32 %s, %s, 9216' % (sr(S_T0), sr(S_T0)))
        for lam in range(9):
            P.raw('s_add_u32 m0, %s, %d' % (sr(S_T0), lam*1024))
            P.raw('s_add_u32 s36, %s, %d' % (sr(S_T1), lam*128))
            P.raw('buffer_load_dwordx4 %s, %s, s36 offen lds' % (vr(VX), sr(S_X,4)))
            if bi < 2: work(W1, (n1 + 17)//18)
    P.raw('L_%s_nox:' % name)
    e('s_mul_i32 %s, %s, 144' % (sr(S_SO), sr(S_HG)))
    e('s_lshl_b32 %s, %s, 10' % (sr(S_WB), sr(S_W))); e('s_add_u32 %s, %s, %d' % (sr(S_WB), sr(S_WB), XR_END))
    n2 = len(W2)
    for ks in range(4):
        for t in range(4):
            e('s_add_u32 m0, %s, %d' % (sr(S_WB), ks*WSLOT + t*4096))
            if t == 0: e('s_add_u32 %s, %s, %d' % (sr(S_T0), sr(S_SO), ks*32*3456))
            else: e('s_nop 0')
            e('buffer_load_dwordx4 %s, %s, %s offen lds' % (vr(VW+t), sr(S_WQ,4), sr(S_T0)), tag='w%d' % ks)
            work(W2, (n2 + 15)//16)
    work(W2, 999)
    e('s_add_u32 %s, %s, %d' % (sr(S_SO), sr(S_SO), 4*32*3456))
    stamp('issued')
    if prefetch: prefetch(P)
    def reads(st, kp, ni):
        l = []
        for mt in range(5):
            rd = VB[kp] if mt < 4 else VBH[kp]
            l.append('ds_read_b128 %s, %s offset:%d' % (vr(BB[st]+4*mt, 4), vr(rd), mt*18432 if mt < 4 else 0))
        for i in range(ni):
            for u in range(2):
                l.append('ds_read_b64_tr_b16 %s, %s offset:%d' % (vr(AB[st]+4*i+2*u, 2), vr(VAE if i % 2 == 0 else VAO), u*1792 + i*128))
        return l
    def ones_fix(st):
        for d in range(4): e('v_cndmask_b32 %s, %s, %s, %s' % (vr(BB[st]+d), vr(BB[st]+d), vr(VONE), sr(S_MASK, 2)))
    P.wait_vm_tag('w0'); e('s_barrier')
    stamp('w0')
    e('v_mov_b32 %s, %s' % (vr(VAE), vr(PAE))); e('v_mov_b32 %s, %s' % (vr(VAO), vr(PAO)))
    for t in reads(0, 0, 4): e(t)
    e('s_mov_b32 %s, 0' % sr(S_C)); e('s_mov_b32 %s, 9' % sr(S_CNT))
    e('s_waitcnt lgkmcnt(0)')
    ones_fix(0)
    e('s_cmp_eq_u32 %s, 3' % sr(S_W)); e('s_cbranch_scc1 L_%s_loop3' % name)
    spans = {}
    def loop(lab, stats_wave):
        P.raw('.p2align 6'); P.raw('L_%s_%s:' % (name, lab))
        a0 = len(P.ins)
        for kp in range(2):
            cur, nxt = kp, 1-kp
            e('s_waitcnt vmcnt(8)'); e('s_barrier')
            e('s_lshl_b32 %s, %s, 14' % (sr(S_T0), sr(S_C))); e('s_add_u32 %s, %s, %s' % (sr(S_WA), sr(S_WB), sr(S_T0)))
            e('s_add_u32 %s, %s, 1' % (sr(S_C), sr(S_C))); e('s_and_b32 %s, %s, 3' % (sr(S_C), sr(S_C))); e('s_lshl_b32 %s, %s, 14' % (sr(S_RA), sr(S_C)))
            e('v_add_u32 %s, %s, %s' % (vr(VAE), sr(S_RA), vr(PAE))); e('v_add_u32 %s, %s, %s' % (vr(VAO), sr(S_RA), vr(PAO)))
            if kp == 1:
                e('v_add_u32 %s, 1024, %s' % (vr(VB[0]), vr(VB[0]))); e('v_add_u32 %s, 1024, %s' % (vr(VBH[0]), vr(VBH[0])))
            rd = reads(nxt, 1-kp, 2 if stats_wave else 4)
            n = 0; dq = 0
            for i in range(4):
                for mt in range(5):
                    A = vr(AB[cur]+4*i, 4)
                    if stats_wave and i == 2: A = vr(VONE, 4)
                    if stats_wave and i == 3: A = vr(BB[cur]+4*mt, 4)
                    e('v_mfma_f32_16x16x32_bf16 %s, %s, %s, %s' % (vr(acc(i, mt), 4), A, vr(BB[cur]+4*mt, 4), vr(acc(i, mt), 4)))
                    if n in (0, 2, 4, 6):
                        e('s_add_u32 m0, %s, %d' % (sr(S_WA), dq*4096))
                    if n in (1, 3, 5, 7):
                        e('buffer_load_dwordx4 %s, %s, %s offen lds' % (vr(VW+dq), sr(S_WQ,4), sr(S_SO))); dq += 1
                    elif rd: e(rd.pop(0))
                    n += 1
            assert not rd and dq == 4
            e('s_add_u32 %s, %s, %d' % (sr(S_SO), sr(S_SO), 32*3456))
            if kp == 0:
                e('v_add_u32 %s, 1024, %s' % (vr(VB[1]), vr(VB[1]))); e('v_add_u32 %s, 1024, %s' % (vr(VBH[1]), vr(VBH[1])))
            e('s_waitcnt lgkmcnt(0)')
            ones_fix(nxt)
            if kp == 0: e('s_nop 0')
        e('s_sub_u32 %s, %s, 1' % (sr(S_CNT), sr(S_CNT))); e('s_cmp_lg_u32 %s, 0' % sr(S_CNT)); e('s_cbranch_scc1 L_%s_%s' % (name, lab))
        spans[lab] = (a0, len(P.ins))
    loop('loop', False)
    e('s_branch L_%s_after' % name)
    b3 = len(P.ins)
    loop('loop3', True)
    STAT = LDS_BYTES - 1024*0
    e('v_and_b32 v1, 15, v0'); e('v_lshrrev_b32 %s, 4, v0' % vr(T)); e('v_lshrrev_b32 %s, 2, v1' % vr(T+1)); e('v_and_b32 %s, 3, v1' % vr(T+2))
    e('v_cmp_eq_u32 s[50:51], %s, %s' % (vr(T), vr(T+1)))
    for r in range(1, 4): e('v_cmp_eq_u32 s[%d:%d], %d, %s' % (50+2*r, 51+2*r, r, vr(T+2)))
    e('v_lshlrev_b32 v1, 3, v1'); e('v_add_u32 v1, %d, v1' % STAT)
    e('s_mov_b32 %s, 0x%08x' % (sr(S_T0), f2u(1.0/576)))
    for mt in range(5):
        g = acc(3, mt)
        for r in range(1, 4): e('v_cndmask_b32 %s, %s, %s, s[%d:%d]' % (vr(g), vr(g), vr(g+r), 50+2*r, 51+2*r))
    for mt in range(5): e('v_mul_f32 %s, %s, %s' % (vr(acc(2, mt)), sr(S_T0), vr(acc(2, mt))))
    for mt in range(5): e('v_mul_f32 %s, %s, %s' % (vr(acc(3, mt)), sr(S_T0), vr(acc(3, mt))))
    for mt in range(5): e('v_fma_f32 %s, -%s, %s, %s' % (vr(acc(3, mt)), vr(acc(2, mt)), vr(acc(2, mt)), vr(acc(3, mt))))
    for mt in range(5): e('v_max_f32 %s, 0, %s' % (vr(acc(3, mt)), vr(acc(3, mt))))
    for mt in range(5): e('v_add_f32 %s, 0x%08x, %s' % (vr(acc(3, mt)), f2u(1e-5), vr(acc(3, mt))))
    for mt in range(5): e('v_rsq_f32 %s, %s' % (vr(acc(3, mt)+1), vr(acc(3, mt))))
    e('s_nop 0')
    for mt in range(5): e('v_mul_f32 %s, -%s, %s' % (vr(acc(3, mt)), vr(acc(2, mt)), vr(acc(3, mt)+1)))
    e('s_mov_b64 exec, s[50:51]')
    for mt in range(5): e('ds_write_b64 v1, %s offset:%d' % (vr(acc(3, mt), 2), 128*mt))
    e('s_mov_b64 exec, -1')
    e3 = len(P.ins)
    P.raw('L_%s_after:' % name)
    after = len(P.ins)
    stamp('loop')
    CS = BB[0]
    e('s_nop 4')
    for i in range(4):
        for r in range(4):
            e('v_mov_b32_dpp %s, %s row_newbcast:0 row_mask:0xf bank_mask:0xf' % (vr(CS+4*i+r), vr(acc(i, 0)+r)))
    e('s_waitcnt lgkmcnt(0)'); e('s_barrier')
    ST = BB[1]
    e('v_and_b32 v1, 15, v0'); e('v_lshlrev_b32 v1, 3, v1'); e('v_add_u32 v1, %d, v1' % STAT)
    for mt in range(5): e('ds_read_b64 %s, v1 offset:%d' % (vr(ST+2*mt, 2), 128*mt))
    e('s_waitcnt lgkmcnt(0)')
    for mt in range(5):
        for i in range(4):
            a = acc(i, mt); t0 = T + 4*(i % 2)
            for r in range(4): e('v_mul_f32 %s, %s, %s' % (vr(t0+r), vr(ST+2*mt), vr(CS+4*i+r)))
            for r in range(4): e('v_fma_f32 %s, %s, %s, %s' % (vr(a+r), vr(a+r), vr(ST+2*mt+1), vr(t0+r)))
            e('v_cvt_pk_bf16_f32 %s, %s, %s' % (vr(a), vr(a), vr(a+1))); e('v_cvt_pk_bf16_f32 %s, %s, %s' % (vr(a+1), vr(a+2), vr(a+3)))
            for d2 in range(2): e('ds_write_b32 %s, %s offset:%d' % (vr(VWA+2*i+d2), vr(a+d2), 640*mt))
    e('s_waitcnt lgkmcnt(0)'); e('s_barrier')
    stamp('fix')
    AD = 2
    e('v_add_u32 v1, 2, v0'); e('v_mul_u32_u24 %s, 40, v1' % vr(AD))
    e('s_mul_i32 %s, %s, 3200' % (sr(S_T0), sr(S_W))); e('v_add_u32 %s, %s, %s' % (vr(AD), sr(S_T0), vr(AD)))
    QR = 40; KR = 112; L = 50
    def rdvec(dst, kind, w):
        for t in range(5): e('ds_read_b64 %s, %s offset:%d' % (vr(dst+2*t, 2), vr(AD), kind*12800 + (14 - 2*w)*40 + 8*t))
    def kreg(w): return KR + 10*w
    rdvec(QR, 0, 0); rdvec(kreg(0), 1, 0); rdvec(kreg(1), 1, 1)
    for w in range(0, 8, 2):
        P.wait_lg_regs(rset('v', QR, 10) + rset('v', kreg(w), 10) + rset('v', kreg(w+1), 10))
        if w + 2 < 8: rdvec(kreg(w+2), 1, w+2); rdvec(kreg(w+3), 1, w+3)
        for d in range(9):
            for ww in (w, w+1):
                e('v_dot2_f32_bf16 %s, %s, %s, %s' % (vr(L+ww), vr(QR+d), vr(kreg(ww)+d), '0' if d == 0 else vr(L+ww)))
    rdvec(kreg(0), 2, 0); rdvec(kreg(1), 2, 1); rdvec(kreg(2), 2, 2)
    e('s_lshl_b32 %s, %s, 6' % (sr(S_T0), sr(S_MI))); e('v_add_u32 %s, %s, v0' % (vr(T), sr(S_T0))); e('v_mov_b32 %s, 0x%08x' % (vr(T+1), f2u(-1e9)))
    for w in range(1, 8):
        e('v_cmp_gt_u32 vcc, %d, %s' % (2*w, vr(T))); e('s_nop 1'); e('v_cndmask_b32 %s, %s, %s, vcc' % (vr(L+w), vr(L+w), vr(T+1)))
    e('v_max3_f32 %s, %s, %s, %s' % (vr(T+2), vr(L), vr(L+1), vr(L+2))); e('v_max3_f32 %s, %s, %s, %s' % (vr(T+3), vr(L+3), vr(L+4), vr(L+5)))
    e('v_max3_f32 %s, %s, %s, %s' % (vr(T+2), vr(T+2), vr(L+6), vr(L+7))); e('v_max_f32 %s, %s, %s' % (vr(T+2), vr(T+2), vr(T+3)))
    CSC = 18**-0.5 * 1.4426950408889634
    e('s_mov_b32 %s, 0x%08x' % (sr(S_T1), f2u(CSC)))
    e('v_mul_f32 %s, %s, %s' % (vr(T+2), sr(S_T1), vr(T+2)))
    for w in range(8): e('v_fma_f32 %s, %s, %s, -%s' % (vr(L+w), vr(L+w), sr(S_T1), vr(T+2)))
    for w in range(8): e('v_exp_f32 %s, %s' % (vr(L+w), vr(L+w)))
    P.wait_lg_regs(rset('v', kreg(2), 10))
    rdvec(kreg(3), 2, 3); rdvec(kreg(4), 2, 4); rdvec(kreg(5), 2, 5)
    e('v_add_f32 %s, %s, %s' % (vr(T+2), vr(L), vr(L+1))); e('v_add_f32 %s, %s, %s' % (vr(T+3), vr(L+2), vr(L+3)))
    e('v_add_f32 %s, %s, %s' % (vr(T+4), vr(L+4), vr(L+5))); e('v_add_f32 %s, %s, %s' % (vr(T+5), vr(L+6), vr(L+7)))
    e('v_add_f32 %s, %s, %s' % (vr(T+2), vr(T+2), vr(T+3))); e('v_add_f32 %s, %s, %s' % (vr(T+4), vr(T+4), vr(T+5))); e('v_add_f32 %s, %s, %s' % (vr(T+2), vr(T+2), vr(T+4)))
    e('v_rcp_f32 %s, %s' % (vr(T+2), vr(T+2))); e('s_nop 0')
    for w in range(8): e('v_mul_f32 %s, %s, %s' % (vr(L+w), vr(L+w), vr(T+2)))
    PL, PH = 60, 68
    for w in range(8):
        e('v_cvt_pk_bf16_f32 %s, %s, 0' % (vr(PL+w), vr(L+w))); e('v_cvt_pk_bf16_f32 %s, 0, %s' % (vr(PH+w), vr(L+w)))
    OL, OH = 80, 90
    def pv(w):
        for d in range(9):
            e('v_dot2_f32_bf16 %s, %s, %s, %s' % (vr(OL+d), vr(kreg(w)+d), vr(PL+w), '0' if w == 0 else vr(OL+d)))
            e('v_dot2_f32_bf16 %s, %s, %s, %s' % (vr(OH+d), vr(kreg(w)+d), vr(PH+w), '0' if w == 0 else vr(OH+d)))
    pv(0); pv(1); pv(2)
    P.wait_lg_regs(rset('v', kreg(5), 10))
    rdvec(kreg(6), 2, 6); rdvec(kreg(7), 2, 7)
    pv(3); pv(4); pv(5)
    P.wait_lg_regs(rset('v', kreg(7), 10))
    pv(6); pv(7)
    e('v_lshrrev_b32 %s, 4, v0' % vr(T)); e('s_lshl_b32 %s, %s, 2' % (sr(S_T0), sr(S_MI))); e('v_add_u32 %s, %s, %s' % (vr(T), sr(S_T0), vr(T)))
    e('v_mul_u32_u24 %s, 18432, %s' % (vr(T), vr(T))); e('v_and_b32 %s, 15, v0' % vr(T+1)); e('v_lshl_add_u32 %s, %s, 4, %s' % (vr(T), vr(T+1), vr(T)))
    for d in range(9): e('v_cvt_pk_bf16_f32 %s, %s, %s' % (vr(QR+d), vr(OL+d), vr(OH+d)))
    for d in range(9): e('buffer_store_dword %s, %s, %s, %s offen' % (vr(QR+d), vr(T), sr(S_WS,4), sr(S_OD+d)))
    stamp('attn'); stamp.finish()
    P.raw('L_%s_end:' % name)
    e('s_endpgm')
    ins = P.ins
    a0, a1 = spans['loop']; c0, c1 = spans['loop3']
    path = ins[:a0] + ins[a0:a1]*3 + ins[after:]
    path3 = ins[:a0] + ins[c0:c1]*3 + ins[c1:]
    return P, (path, path3), dict(vgpr=200, accum=200, sgpr=102 if dbg else 60, grid=256, block=256, lds=LDS_BYTES + 1024, stamps=stamp.names)

if __name__ == '__main__':
    P, paths, o = build()
    for p in paths: check(p, 'k1')
    print(len(P.ins), o)
```

```python
from core import *
from common import *
from sched import *
from stamps import Stamper

def build(name='k2_kernel', prefetch=None, dbg=False, pf=None):
    P = Prog(); e = P.e
    NWG = 216
    V_L16, V_OG, V_RD, V_RD2, V_XO, V_T = 1, 2, 5, 6, 7, 8
    V_B, V_ACC, V_X, V_U = 16, 160, 192, 208
    A_W, NF, LAR = 0, 12, 12
    S_WS, S_WO, S_X = 8, 12, 16
    S_W, S_MG, S_NG, S_MT, S_T0, S_T1, S_OO, S_WOFF = 20, 21, 22, 23, 24, 25, 26, 27
    e('s_cmp_ge_u32 s2, %d' % NWG); e('s_cbranch_scc1 L_%s_end' % name)
    stamp = Stamper(P, dbg, S_W); stamp('start')
    e('s_load_dwordx2 s[4:5], s[0:1], %d' % KA_WS); e('s_load_dwordx2 s[6:7], s[0:1], %d' % KA_WO); e('s_load_dwordx2 s[28:29], s[0:1], %d' % KA_X)
    e('v_mov_b32 %s, v0' % vr(V_T+7))
    e('v_lshrrev_b32 %s, 6, v0' % vr(V_T)); e('v_and_b32 v0, 63, v0')
    e('v_readfirstlane_b32 %s, %s' % (sr(S_W), vr(V_T)))
    e('v_lshlrev_b32 %s, 4, v0' % vr(V_L16))
    e('s_lshr_b32 %s, s2, 3' % sr(S_T0)); e('s_mul_i32 %s, %s, 57' % (sr(S_T1), sr(S_T0))); e('s_lshr_b32 %s, %s, 9' % (sr(S_T1), sr(S_T1)))
    e('s_mul_i32 %s, %s, 9' % (sr(S_NG), sr(S_T1))); e('s_sub_u32 %s, %s, %s' % (sr(S_NG), sr(S_T0), sr(S_NG)))
    e('s_lshl_b32 %s, %s, 3' % (sr(S_MG), sr(S_T1))); e('s_and_b32 %s, s2, 7' % sr(S_T0)); e('s_add_u32 %s, %s, %s' % (sr(S_MG), sr(S_MG), sr(S_T0)))
    if pf:
        e('s_load_dwordx4 s[44:47], s[0:1], %d' % KA_WG); e('s_load_dwordx2 s[48:49], s[0:1], %d' % KA_WD)
        e('s_lshr_b32 s50, s2, 3'); e('s_mul_i32 s50, s50, 192'); e('v_add_u32 %s, s50, %s' % (vr(V_U), vr(V_T+7)))
        e('v_mul_u32_u24 %s, 7282, %s' % (vr(V_U+1), vr(V_U))); e('v_lshrrev_b32 %s, 16, %s' % (vr(V_U+1), vr(V_U+1)))
        e('v_mul_u32_u24 %s, 9, %s' % (vr(V_U+2), vr(V_U+1))); e('v_sub_u32 %s, %s, %s' % (vr(V_U+2), vr(V_U), vr(V_U+2)))
        e('v_mul_u32_u24 %s, 9216, %s' % (vr(V_U+1), vr(V_U+1))); e('v_lshl_add_u32 %s, %s, 7, %s' % (vr(V_U+1), vr(V_U+2), vr(V_U+1)))
        e('v_lshlrev_b32 %s, 7, %s' % (vr(V_U), vr(V_U)))
        e('s_and_b32 s51, s2, 7'); e('s_mul_i32 s52, s51, 1152'); e('s_mul_i32 s53, s51, %d' % (576*1152))
        e('s_waitcnt lgkmcnt(0)')
        for k in range(3):
            b = 56 + 4*k
            e('s_mov_b32 s%d, s%d' % (b, 44+2*k)); e('s_mov_b32 s%d, s%d' % (b+1, 45+2*k)); e('s_mov_b32 s%d, 0x%x' % (b+2, D_*F_*2)); e('s_mov_b32 s%d, 0x%x' % (b+3, SRD3))
        if pf == 'all':
            P.raw('buffer_load_dword %s, %s, s[56:59], s52 offen' % (vr(V_U+4), vr(V_U+1)))
            P.raw('buffer_load_dword %s, %s, s[60:63], s52 offen' % (vr(V_U+5), vr(V_U+1)))
            P.raw('buffer_load_dword %s, %s, s[64:67], s53 offen' % (vr(V_U+6), vr(V_U)))
    e('s_cmp_ge_u32 %s, 22' % sr(S_MG)); e('s_cbranch_scc1 L_%s_end' % name)
    e('s_mul_i32 %s, %s, 6' % (sr(S_MT), sr(S_MG))); e('s_lshl_b32 %s, %s, 1' % (sr(S_T0), sr(S_W))); e('s_add_u32 %s, %s, %s' % (sr(S_MT), sr(S_MT), sr(S_T0)))
    e('s_mul_i32 %s, %s, %d' % (sr(S_OO), sr(S_MT), 18*1024))
    T = V_T
    e('v_bfe_u32 %s, v0, 1, 3' % vr(T)); e('v_mul_u32_u24 %s, 1152, %s' % (vr(T), vr(T)))
    e('v_lshrrev_b32 %s, 4, v0' % vr(T+1)); e('v_lshl_add_u32 %s, %s, 5, %s' % (vr(T), vr(T+1), vr(T)))
    e('v_and_b32 %s, 1, v0' % vr(T+2)); e('v_lshl_add_u32 %s, %s, 4, %s' % (vr(V_OG), vr(T+2), vr(T)))
    e('v_add_u32 %s, %d, %s' % (vr(V_OG+1), 8*1152 - 1024, vr(V_OG))); e('v_add_u32 %s, %d, %s' % (vr(V_OG+2), 2*(8*1152 - 1024), vr(V_OG)))
    e('s_mul_i32 %s, %s, %d' % (sr(S_WOFF), sr(S_W), 64*1152)); e('s_lshl_b32 %s, %s, 7' % (sr(S_T0), sr(S_NG))); e('s_add_u32 %s, %s, %s' % (sr(S_WOFF), sr(S_WOFF), sr(S_T0)))
    e('s_lshl_b32 s30, %s, 13' % sr(S_W))
    e('s_waitcnt lgkmcnt(0)')
    for srd, lo, hi, size in ((S_WS, 4, 5, WS_END), (S_WO, 6, 7, D_*D_*2), (S_X, 28, 29, S_*D_*2)):
        e('s_mov_b32 %s, s%d' % (sr(srd), lo)); e('s_mov_b32 %s, s%d' % (sr(srd+1), hi))
        e('s_mov_b32 %s, 0x%x' % (sr(srd+2), size)); e('s_mov_b32 %s, 0x%x' % (sr(srd+3), SRD3))
    def bfrag(ks, mm): return V_B + 8*ks + 4*mm
    stamp('setup')
    def phase_items(j):
        it = []
        for g, n in ((0, 3), (3, 3), (6, 2)):
            it.append(('S', 's_add_u32 %s, %s, %d' % (sr(S_T0), sr(S_WOFF), (192*j + 8*g)*1152), None))
            it.append(('S', 's_add_u32 m0, s30, %d' % ((24*j + g)*1024), None))
            for q in range(n):
                it.append(('D', 'buffer_load_dwordx4 %s, %s, %s offen offset:%d lds' % (vr(V_OG+q), sr(S_WO,4), sr(S_T0), 1024*q), 'ph%d' % j))
        for ks in range(6*j, 6*j+6):
            for mm in range(2):
                it.append(('S', 's_add_u32 %s, %s, %d' % (sr(S_T1), sr(S_OO), (18*mm + ks)*1024), None))
                it.append(('D', 'buffer_load_dwordx4 %s, %s, %s, %s offen' % (vr(bfrag(ks, mm), 4), vr(V_L16), sr(S_WS,4), sr(S_T1)), 'ph%d' % j))
        return it
    for j in range(2):
        for kind, text, tag in phase_items(j):
            e(text, tag=tag)
            if ' m0,' in text: e('s_nop 0')
    e('s_cmp_ge_u32 s2, 8'); e('s_cbranch_scc1 L_%s_noflag' % name)
    e('v_cmp_gt_u32 vcc, 128, %s' % vr(V_T+7)); e('s_lshl_b32 %s, s2, 9' % sr(S_T0)); e('s_add_u32 %s, %s, 0x%x' % (sr(S_T0), sr(S_T0), WS_FLAG))
    e('v_lshlrev_b32 %s, 2, %s' % (vr(V_T+6), vr(V_T+7))); e('v_mov_b32 %s, 0' % vr(V_T+5))
    e('s_and_saveexec_b64 s[34:35], vcc'); e('s_cbranch_execz L_%s_noflag2' % name)
    P.raw('buffer_store_dword %s, %s, %s, %s offen' % (vr(V_T+5), vr(V_T+6), sr(S_WS,4), sr(S_T0)))
    P.raw('L_%s_noflag2:' % name)
    e('s_mov_b64 exec, s[34:35]')
    P.raw('L_%s_noflag:' % name)
    stamp('issued')
    e('v_lshrrev_b32 %s, 4, v0' % vr(T+1))
    e('v_bfe_u32 %s, v0, 2, 2' % vr(T)); e('v_lshlrev_b32 %s, 5, %s' % (vr(T), vr(T)))
    e('v_and_b32 %s, 3, v0' % vr(T+2)); e('v_lshl_add_u32 %s, %s, 3, %s' % (vr(T), vr(T+2), vr(T)))
    e('v_and_b32 %s, 1, %s' % (vr(T+2), vr(T+1))); e('v_lshl_add_u32 %s, %s, 7, %s' % (vr(T), vr(T+2), vr(T)))
    e('v_lshrrev_b32 %s, 1, %s' % (vr(T+2), vr(T+1))); e('v_lshl_add_u32 %s, %s, 10, %s' % (vr(V_RD), vr(T+2), vr(T)))
    e('v_add_u32 %s, 36864, %s' % (vr(V_RD2), vr(V_RD)))
    e('v_and_b32 %s, 15, v0' % vr(T)); e('v_mul_u32_u24 %s, 1152, %s' % (vr(T), vr(T))); e('v_lshl_add_u32 %s, %s, 3, %s' % (vr(V_XO), vr(T+1), vr(T)))
    e('s_mul_i32 s31, %s, %d' % (sr(S_MT), 16*1152)); e('s_lshl_b32 %s, %s, 7' % (sr(S_T0), sr(S_NG))); e('s_add_u32 s31, s31, %s' % sr(S_T0))
    e('s_mov_b32 s32, 0x3f80'); e('s_mov_b32 s33, 0x3f800000')
    if prefetch: prefetch(P, V_U, V_T)
    P.wait_vm_tag('ph0'); i = e('s_barrier'); i.meta = dict(needs='ph0')
    stamp('ph0')
    S = Stream()
    def acc(nt, mm): return vr(V_ACC + 8*nt + 4*mm, 4)
    for j in range(3):
        fr = []; mf = []
        for nt in range(4):
            for g in range(2):
                f0 = len(fr)
                for t in range(3):
                    ks = 6*j + 3*g + t; kl = ks % 9
                    fr.append(Frag(V_RD if ks < 9 else V_RD2, (4*kl)*1024 + nt*256, (4*kl+2)*1024 + nt*256))
                for mm in range(2):
                    for t in range(3):
                        ks = 6*j + 3*g + t
                        mf.append(MF(acc(nt, mm), f0+t, vr(bfrag(ks, mm), 4), '0' if ks == 0 else acc(nt, mm), [f0, f0+1, f0+2] if (mm == 0 and t == 0) else None))
        S.add(fr, mf)
    fx = Fixed()
    ch = []; g = 0
    for kind, text, tag in phase_items(2):
        ch.append((g, kind, text, tag)); g += 1 if kind == 'S' else 1
    for mm in range(2):
        ch.append((60, 'S', 's_add_u32 s36, s31, %d' % (16*1152*mm), None))
        for nt in range(4):
            ch.append((60, 'D', 'buffer_load_dwordx2 %s, %s, %s, s36 offen offset:%d' % (vr(V_X + 8*mm + 2*nt, 2), vr(V_XO), sr(S_X,4), 32*nt), 'x'))
    fx.chain(ch)
    for j in (1, 2):
        fx.put(48*j - LAR - 2, 'L', '@waitvm', 'ph%d' % j); fx.put(48*j - LAR - 2, 'B', 's_barrier', 'ph%d' % j)
    emit_stream(P, S, [], fx, [], A_W, NF, LAR, first_reads=True)
    stamp('gemm')
    e('s_cmp_ge_u32 %s, 128' % sr(S_MT)); e('s_cbranch_scc1 L_%s_end' % name)
    P.wait_vm_tag('x')
    e('s_nop 4')
    for mm in range(2):
        for nt in range(4):
            for r in range(4):
                a = V_ACC + 8*nt + 4*mm + r
                e('v_dot2_f32_bf16 %s, %s, s%d, %s' % (vr(a), vr(V_X + 8*mm + 2*nt + r//2), 32 + (r % 2), vr(a)))
    e('s_nop 1')
    U = V_U
    for mm in range(2):
        first = True
        for nt in range(4):
            for r in range(4):
                a = vr(V_ACC + 8*nt + 4*mm + r)
                if first:
                    e('v_mov_b32 %s, %s' % (vr(U+2*mm), a)); e('v_mul_f32 %s, %s, %s' % (vr(U+2*mm+1), a, a)); first = False
                else:
                    e('v_add_f32 %s, %s, %s' % (vr(U+2*mm), vr(U+2*mm), a)); e('v_fma_f32 %s, %s, %s, %s' % (vr(U+2*mm+1), a, a, vr(U+2*mm+1)))
    H = V_U + 8
    for mm in range(2):
        e('s_add_u32 %s, %s, %d' % (sr(S_T0), sr(S_MT), mm)); e('s_mul_i32 %s, %s, 18' % (sr(S_T0), sr(S_T0)))
        e('s_lshl_b32 %s, %s, 1' % (sr(S_T1), sr(S_NG))); e('s_add_u32 %s, %s, %s' % (sr(S_T0), sr(S_T0), sr(S_T1)))
        e('s_lshl_b32 %s, %s, 10' % (sr(S_T0), sr(S_T0))); e('s_add_u32 %s, %s, 0x%x' % (sr(S_T0), sr(S_T0), WS_HF))
        for p in range(2):
            hb = H + 8*mm + 4*p
            for k in range(2):
                a = V_ACC + 8*(2*p+k) + 4*mm
                e('v_cvt_pk_bf16_f32 %s, %s, %s' % (vr(hb+2*k), vr(a), vr(a+1))); e('v_cvt_pk_bf16_f32 %s, %s, %s' % (vr(hb+2*k+1), vr(a+2), vr(a+3)))
            e('buffer_store_dwordx4 %s, %s, %s, %s offen offset:%d sc1' % (vr(hb,4), vr(V_L16), sr(S_WS,4), sr(S_T0), 1024*p))
    for swap in ('v_permlane32_swap_b32', 'v_permlane16_swap_b32'):
        for k in range(4): e('v_mov_b32 %s, %s' % (vr(U+4+k), vr(U+k)))
        e('s_nop 1')
        for k in range(4): e('%s %s, %s' % (swap, vr(U+k), vr(U+4+k)))
        e('s_nop 1')
        for k in range(4): e('v_add_f32 %s, %s, %s' % (vr(U+k), vr(U+k), vr(U+4+k)))
    e('v_and_b32 %s, 15, v0' % vr(T)); e('v_lshlrev_b32 %s, 3, %s' % (vr(T), vr(T)))
    e('s_lshl_b32 %s, %s, 11' % (sr(S_T0), sr(S_NG))); e('s_lshl_b32 %s, %s, 4' % (sr(S_T1), sr(S_MT))); e('s_add_u32 %s, %s, %s' % (sr(S_T0), sr(S_T0), sr(S_T1)))
    e('s_lshl_b32 %s, %s, 3' % (sr(S_T0), sr(S_T0))); e('s_add_u32 %s, %s, 0x%x' % (sr(S_T0), sr(S_T0), WS_ST))
    e('s_mov_b64 exec, 0xffff')
    for mm in range(2):
        e('buffer_store_dwordx2 %s, %s, %s, %s offen offset:%d' % (vr(U+2*mm, 2), vr(T), sr(S_WS,4), sr(S_T0), 128*mm))
    stamp('epi'); stamp.finish()
    P.raw('L_%s_end:' % name)
    e('s_endpgm')
    return P, dict(stamps=stamp.names, vgpr=232+48, accum=232, sgpr=102 if dbg else (72 if pf else 40), grid=NWG, block=192, lds=73728)

if __name__ == '__main__':
    P, o = build(); check(P.ins, 'k2'); print(verify_barriers(P.ins))
```

```python
from core import *
from common import *
from sched import *

SLOT = 36864
NF, LAR = 12, 12
def set_lar(x):
    global LAR
    LAR = x
V_RD, V_RD2 = 3, 4
V_PG, V_PH, V_PDE, V_PDO = 5, 6, 7, 8
V_OG, V_OH, V_OD = 9, 12, 15
V_C0, V_C1, V_K = 24, 26, 28
V_L16, V_FL = 30, 31
V_PO = 1
V_T = 32
V_H, V_HH = 40, 56
V_G, V_U = 64, 96
V_X = 128
A_OUT, A_X, A_W, A_HP = 0, 144, 160, 208
S_WG, S_WU, S_WD, S_WS = 8, 12, 16, 20
S_W = 24
S_GCOL, S_HCOL, S_DROW = 25, 26, 27
S_E = 28
S_HXO, S_HXP, S_P = 33, 34, 35
S_WR, S_WRAP, S_WOFF, S_RD = 36, 37, 38, 39
S_CNT, S_T0, S_T1 = 40, 41, 42
S_FLO, S_FLP, S_FVAL = 43, 44, 45
S_LO, S_HI = 46, 47
S_XO = 48
S_A, S_B, S_C, S_D = 50, 51, 52, 53
S_JP, S_S, S_I, S_FB, S_HB = 58, 59, 60, 61, 62
OPT = dict(no_dma=False, no_bar=False, no_valu=False, cap=3)

def xi_reg(ks, mm):
    xi = 2*ks + mm
    return ('v', V_X + 4*xi) if xi < 32 else ('a', A_X + 4*(xi-32))
def xfrag(ks, mm):
    k, b = xi_reg(ks, mm); return vr(b, 4) if k == 'v' else ar(b, 4)
def hpfrag(th, mm):
    x = 2*th + mm
    return ar(A_HP + 4*x, 4) if x < 12 else vr(V_X + 4*(x-12), 4)
def acc(base, ft, mm): return vr(base + 8*ft + 4*mm, 4)
def out(nt, mm): return ar(A_OUT + 8*nt + 4*mm, 4)

def st_GU(base, kh, first, fts=(0,1,2,3), rd=V_RD):
    fr = []; mf = []
    for ft in fts:
        for g in range(3):
            f0 = len(fr)
            for t in range(3):
                kl = 3*g + t
                fr.append(Frag(rd, (4*kl)*1024 + ft*256, (4*kl+2)*1024 + ft*256))
            for mm in range(2):
                for t in range(3):
                    kl = 3*g + t
                    C = '0' if (first and kl == 0) else acc(base, ft, mm)
                    mf.append(MF(acc(base, ft, mm), f0+t, xfrag(9*kh+kl, mm), C, [f0, f0+1, f0+2] if (mm == 0 and t == 0) else None))
    return fr, mf
def st_half(base):
    fr = []; mf = []
    for ft in range(2):
        for g in range(6):
            f0 = len(fr)
            for t in range(3):
                ks = 3*g + t
                fr.append(Frag(V_RD, (2*ks)*1024 + ft*512, (2*ks+1)*1024 + ft*512))
            for mm in range(2):
                for t in range(3):
                    ks = 3*g + t
                    C = '0' if ks == 0 else acc(base, ft, mm)
                    mf.append(MF(acc(base, ft, mm), f0+t, xfrag(ks, mm), C, [f0, f0+1, f0+2] if (mm == 0 and t == 0) else None))
    return fr, mf
def st_D(bf):
    fr = []; mf = []
    for nt in range(18):
        f0 = len(fr); rd = V_RD if nt % 2 == 0 else V_RD2
        for kq in range(2): fr.append(Frag(rd, (2*kq)*9216 + nt*128, (2*kq+1)*9216 + nt*128))
        for mm in range(2):
            for kq in range(2):
                w = [f0, f0+1, f0+2, f0+3] if (nt % 2 == 0 and mm == 0 and kq == 0) else None
                mf.append(MF(out(nt, mm), f0+kq, bf[kq][mm], out(nt, mm), w))
    return fr, mf
def st_final(bf, rdA, rdB):
    fr = []; mf = []
    for nt in range(18):
        f0 = len(fr)
        for k in range(4):
            rd = (rdA if k < 2 else rdB)[nt % 2]; kq = k % 2
            fr.append(Frag(rd, (2*kq)*9216 + nt*128, (2*kq+1)*9216 + nt*128))
        for mm in range(2):
            for k in range(4):
                w = [f0, f0+1, f0+2, f0+3] if (mm == 0 and k == 0) else None
                mf.append(MF(out(nt, mm), f0+k, bf[k][mm], out(nt, mm), w))
    return fr, mf

def gelu_ops(ft, vals, tb):
    ops = []
    for g0 in range(0, len(vals), 4):
        grp = vals[g0:g0+4]
        def G(v): return vr(V_G + 8*ft + 4*v[0] + v[1])
        steps = [lambda v, t: 'v_mul_f32 %s, %s, %s' % (t, G(v), G(v)),
                 lambda v, t: 'v_fma_f32 %s, %s, %s, %s' % (t, t, vr(V_C1+v[0]), vr(V_C0+v[0])),
                 lambda v, t: 'v_mul_f32 %s, %s, %s' % (t, G(v), t),
                 lambda v, t: 'v_exp_f32 %s, %s' % (t, t),
                 lambda v, t: 'v_fma_f32 %s, %s, %s, %s' % (t, t, vr(V_K+v[0]), vr(V_K+v[0])),
                 lambda v, t: 'v_rcp_f32 %s, %s' % (t, t),
                 lambda v, t: 'v_mul_f32 %s, %s, %s' % (G(v), G(v), t)]
        for st in steps:
            for n, v in enumerate(grp): ops.append(Op(st(v, vr(tb+n))))
    return ops
ALLV = [(mm, r) for mm in range(2) for r in range(4)]
def gelu_q(ft, name, tb): return Queue(gelu_ops(ft, ALLV, tb), name)
def prod_q(ft, H, name, store=None):
    ops = []
    for mm in range(2):
        for r in range(4):
            g = vr(V_G + 8*ft + 4*mm + r)
            ops.append(Op('v_mul_f32 %s, %s, %s' % (g, g, vr(V_U + 8*ft + 4*mm + r))))
    for mm in range(2):
        for d in range(2):
            g = V_G + 8*ft + 4*mm + 2*d
            ops.append(Op('v_cvt_pk_bf16_f32 %s, %s, %s' % (vr(H + 4*mm + 2*(ft % 2) + d), vr(g), vr(g+1))))
    if store:
        soff, imm0, tag = store
        for mm in range(2):
            ops.append(Op('buffer_store_dwordx4 %s, %s, %s, %s offen offset:%d sc1' % (vr(H + 4*mm, 4), vr(V_L16), sr(S_WS,4), soff, imm0 + 1024*mm), tag=tag))
    return Queue(ops, name, prio=True)

S_CW, S_CR = 96, 97
def rot_wr(): return ['s_add_u32 %s, %s, 1' % (sr(S_CW), sr(S_CW)), 's_and_b32 %s, %s, 3' % (sr(S_CW), sr(S_CW)),
                      's_mul_i32 %s, %s, %d' % (sr(S_WR), sr(S_CW), SLOT), 's_add_u32 %s, %s, %s' % (sr(S_WR), sr(S_WR), sr(S_WOFF))]
def rot_rd(): return ['s_add_u32 %s, %s, 1' % (sr(S_CR), sr(S_CR)), 's_and_b32 %s, %s, 3' % (sr(S_CR), sr(S_CR)),
                      's_mul_i32 %s, %s, %d' % (sr(S_RD), sr(S_CR), SLOT)]
def dma_G(srd, scol, kh, tag, step_rows=8):
    it = []
    vo = V_OG if step_rows == 8 else V_OH
    for g in range(3):
        const = (288*kh)*9216 + 3*g*step_rows*9216
        it.append(('S', 's_add_u32 %s, %s, 0x%x' % (sr(S_T0), scol, const) if const else 's_mov_b32 %s, %s' % (sr(S_T0), scol), None))
        it.append(('S', 's_add_u32 m0, %s, %d' % (sr(S_WR), 3072*g) if g else 's_mov_b32 m0, %s' % sr(S_WR), None))
        for q in range(3):
            it.append(('D', 'buffer_load_dwordx4 %s, %s, %s offen offset:%d %s lds' % (vr(vo+q), sr(srd,4), sr(S_T0), 1024*q, OPT.get('dma_flags', '')), tag))
    return it + [('S', t, None) for t in rot_wr()]
def dma_D(srow, tag):
    it = []
    for q in range(9):
        it.append(('S', 's_add_u32 m0, %s, %d' % (sr(S_WR), 1024*q) if q else 's_mov_b32 m0, %s' % sr(S_WR), None))
        it.append(('D', 'buffer_load_dwordx4 %s, %s, %s offen %s lds' % (vr(V_OD+q), sr(S_WD,4), srow, OPT.get('dma_flags', '')), tag))
    return it + [('S', t, None) for t in rot_wr()]
def put_dma(chain, g0, items, step=None):
    step = step or OPT.get('dma_step', 7)
    k = 0; pend = []
    for kind, text, tag in items:
        if kind == 'S': pend.append(text)
        else:
            due = g0 + step*k; k += 1
            for n, t in enumerate(pend): chain.append((max(0, due - 2*len(pend) + 2*n - 1), 'S', t, None))
            pend = []
            chain.append((due, 'D', text, tag))
    for n, t in enumerate(pend): chain.append((g0 + step*(k-1) + 1, 'S', t, None))
def put_bar(fx, end, tags, pats, rot=True):
    gb = end - LAR - 2
    if rot: fx.chain([(gb - 12, 'S', t, None) for t in rot_rd()])
    fx.put(gb, 'L', '@waitvm', tags if not isinstance(tags, (list, tuple)) else tags[-1])
    fx.put(gb, 'B', 's_barrier', tags)
    for rd, pat in pats: fx.put(gb+1, 'R', 'v_add_u32 %s, %s, %s' % (vr(rd), sr(S_RD), vr(pat)))
PAT_G = [(V_RD, V_PG)]; PAT_H = [(V_RD, V_PH)]; PAT_D = [(V_RD, V_PDE), (V_RD2, V_PDO)]

def build(name='k3_kernel', dbg=False):
    P = Prog(); e = P.e
    stamps = []
    def stamp(label):
        if not dbg: return
        k = len(stamps); stamps.append(label); assert k < 13
        P.raw('s_memtime s[92:93]'); P.raw('s_memrealtime s[90:91]'); P.raw('s_waitcnt lgkmcnt(0)')
        P.raw('s_mov_b32 s%d, s92' % (64+k)); P.raw('s_mov_b32 s%d, s90' % (77+k))
    info = {}
    e('s_cmp_ge_u32 s2, 256'); e('s_cbranch_scc1 L_%s_end' % name)
    stamp('start')
    if dbg: e('s_load_dwordx2 s[94:95], s[0:1], %d' % KA_DBG)
    e('s_load_dwordx2 s[56:57], s[0:1], %d' % KA_WS)
    e('s_load_dwordx4 s[4:7], s[0:1], %d' % KA_WG)
    e('s_load_dwordx2 s[54:55], s[0:1], %d' % KA_WD)
    e('v_lshrrev_b32 v1, 6, v0'); e('v_and_b32 v0, 63, v0')
    e('v_readfirstlane_b32 %s, v1' % sr(S_W))
    e('v_lshlrev_b32 %s, 4, v0' % vr(V_L16))
    e('v_lshrrev_b32 v2, 4, v0'); e('v_and_b32 v1, 15, v0'); e('v_lshl_add_u32 v1, v2, 11, v1'); e('v_lshlrev_b32 v1, 3, v1')
    if OPT.get('map', 0) == 0:
        e('s_and_b32 %s, s2, 7' % sr(S_JP))
        e('s_lshr_b32 %s, s2, 3' % sr(S_I)); e('s_and_b32 %s, %s, 1' % (sr(S_S), sr(S_I))); e('s_lshr_b32 %s, %s, 1' % (sr(S_I), sr(S_I)))
    else:
        e('s_bfe_u32 %s, s2, 0x20001' % sr(S_JP)); e('s_lshl_b32 %s, %s, 1' % (sr(S_JP), sr(S_JP)))
        e('s_bfe_u32 %s, s2, 0x10004' % sr(S_T0)); e('s_add_u32 %s, %s, %s' % (sr(S_JP), sr(S_JP), sr(S_T0)))
        e('s_bfe_u32 %s, s2, 0x10003' % sr(S_S))
        e('s_and_b32 %s, s2, 1' % sr(S_I)); e('s_lshl_b32 %s, %s, 3' % (sr(S_I), sr(S_I)))
        e('s_lshr_b32 %s, s2, 5' % sr(S_T0)); e('s_add_u32 %s, %s, %s' % (sr(S_I), sr(S_I), sr(S_T0)))
    e('s_lshl_b32 %s, %s, 2' % (sr(S_T0), sr(S_I))); e('s_add_u32 %s, %s, %s' % (sr(S_T0), sr(S_T0), sr(S_W)))
    e('s_mul_i32 %s, %s, %d' % (sr(S_XO), sr(S_T0), 2*18*1024)); e('s_add_u32 %s, %s, 0x%x' % (sr(S_XO), sr(S_XO), WS_HF))
    e('s_lshl_b32 %s, %s, 8' % (sr(S_D), sr(S_T0)))
    e('s_waitcnt lgkmcnt(0)')
    def mksrd(srd, lo, hi, size):
        e('s_mov_b32 %s, s%d' % (sr(srd), lo)); e('s_mov_b32 %s, s%d' % (sr(srd+1), hi))
        e('s_mov_b32 %s, 0x%x' % (sr(srd+2), size)); e('s_mov_b32 %s, 0x%x' % (sr(srd+3), SRD3))
    mksrd(S_WS, 56, 57, WS_END); mksrd(S_WG, 4, 5, D_*F_*2); mksrd(S_WU, 6, 7, D_*F_*2)
    e('s_add_u32 s4, s56, 0x%x' % WS_ST); e('s_addc_u32 s5, s57, 0'); e('s_mov_b32 s6, %d' % (9*2048*8)); e('s_mov_b32 s7, 0x%x' % SRD3)
    for t in range(3):
        e('s_add_u32 %s, %s, %d' % (sr(S_T0), sr(S_D), t*4*2048*8))
        for mm in range(2):
            e('buffer_load_dwordx2 %s, v1, s[4:7], %s offen offset:%d' % (vr(V_G + 4*t + 2*mm, 2), sr(S_T0), 128*mm), tag='st')
    def xdst(ks, mm):
        k, b = xi_reg(ks, mm); return b if k == 'v' else V_U + 4*(2*ks+mm-32)
    def xload(P, ks):
        P.e('s_add_u32 %s, %s, %d' % (sr(S_T1), sr(S_XO), ks*1024))
        P.e('buffer_load_dwordx4 %s, %s, %s, %s offen' % (vr(xdst(ks,0),4), vr(V_L16), sr(S_WS,4), sr(S_T1)), tag='x%d' % ks)
        P.e('s_add_u32 %s, %s, %d' % (sr(S_T1), sr(S_XO), (18+ks)*1024))
        P.e('buffer_load_dwordx4 %s, %s, %s, %s offen' % (vr(xdst(ks,1),4), vr(V_L16), sr(S_WS,4), sr(S_T1)), tag='x%d' % ks)
    def dma_now(items):
        for kind, text, tag in items:
            e(text, tag=tag)
            if text.startswith('s_add_u32 m0') or text.startswith('s_mov_b32 m0'): e('s_nop 0')
    if OPT.get('pro_stamps'): stamp('karg')
    xload(P, 0); xload(P, 1)
    mksrd(S_WD, 54, 55, D_*F_*2)
    e('v_bfe_u32 v1, v0, 1, 3'); e('v_mul_u32_u24 v1, 9216, v1')
    e('v_lshl_add_u32 v1, v2, 5, v1')
    e('v_and_b32 %s, 1, v0' % vr(V_T)); e('v_lshl_add_u32 %s, %s, 4, v1' % (vr(V_OG), vr(V_T)))
    e('v_add_u32 %s, %d, %s' % (vr(V_OG+1), 8*9216 - 1024, vr(V_OG))); e('v_add_u32 %s, %d, %s' % (vr(V_OG+2), 2*(8*9216 - 1024), vr(V_OG)))
    e('s_mul_i32 %s, %s, 576' % (sr(S_T0), sr(S_JP)))
    e('s_mul_i32 %s, %s, 320' % (sr(S_T1), sr(S_S))); e('s_add_u32 %s, %s, %s' % (sr(S_FB), sr(S_T0), sr(S_T1)))
    e('s_lshl_b32 %s, %s, 5' % (sr(S_T1), sr(S_S))); e('s_add_u32 %s, %s, %s' % (sr(S_HB), sr(S_T0), sr(S_T1))); e('s_add_u32 %s, %s, 256' % (sr(S_HB), sr(S_HB)))
    e('s_mul_i32 %s, %s, %d' % (sr(S_T0), sr(S_W), 9*8*9216)); e('s_lshl_b32 %s, %s, 1' % (sr(S_T1), sr(S_FB)))
    e('s_add_u32 %s, %s, %s' % (sr(S_GCOL), sr(S_T0), sr(S_T1)))
    e('s_mul_i32 %s, %s, 9216' % (sr(S_WOFF), sr(S_W))); e('s_mov_b32 %s, 0' % sr(S_CW)); e('s_mov_b32 %s, 1' % sr(S_CR))
    e('s_mov_b32 %s, %s' % (sr(S_WR), sr(S_WOFF)))
    T = V_T
    pat = []; a = pat.append
    a('v_bfe_u32 %s, v0, 2, 2' % vr(T)); a('v_lshlrev_b32 %s, 5, %s' % (vr(T), vr(T)))
    a('v_and_b32 %s, 3, v0' % vr(T+1)); a('v_lshl_add_u32 %s, %s, 3, %s' % (vr(T), vr(T+1), vr(T)))
    a('v_lshl_add_u32 %s, v2, 7, %s' % (vr(V_PH), vr(T)))
    a('v_and_b32 %s, 1, v2' % vr(T+1)); a('v_lshlrev_b32 %s, 7, %s' % (vr(T+1), vr(T+1)))
    a('v_lshrrev_b32 %s, 1, v2' % vr(T+2)); a('v_lshl_add_u32 %s, %s, 10, %s' % (vr(T+2), vr(T+2), vr(T)))
    a('v_add_u32 %s, %s, %s' % (vr(V_PG), vr(T+2), vr(T+1)))
    a('v_mul_u32_u24 %s, 2304, v2' % vr(T+2)); a('v_add_u32 %s, %s, %s' % (vr(T+2), vr(T+2), vr(T)))
    a('v_add_u32 %s, %s, %s' % (vr(V_PDE), vr(T+2), vr(T+1))); a('v_sub_u32 %s, %s, %s' % (vr(V_PDO), vr(T+2), vr(T+1)))
    rest = []
    a = rest.append
    a('v_and_b32 v1, 1, v0'); a('v_bfe_u32 v2, v0, 1, 4'); a('v_mul_u32_u24 v2, 9216, v2'); a('v_lshl_add_u32 v2, v1, 4, v2')
    a('v_lshrrev_b32 v1, 5, v0'); a('v_lshl_add_u32 %s, v1, 5, v2' % vr(V_OH))
    a('v_add_u32 %s, %d, %s' % (vr(V_OH+1), 16*9216 - 1024, vr(V_OH))); a('v_add_u32 %s, %d, %s' % (vr(V_OH+2), 2*(16*9216 - 1024), vr(V_OH)))
    T2 = V_T + 4
    a('v_bfe_u32 v1, v0, 1, 2'); a('v_mul_u32_u24 v1, 1152, v1'); a('v_and_b32 v2, 1, v0'); a('v_lshl_add_u32 v1, v2, 4, v1'); a('v_lshrrev_b32 v2, 3, v0')
    for p in range(9):
        d = vr(V_OD+p)
        a('v_add_u32 %s, %d, v2' % (d, 8*p))
        a('v_mul_u32_u24 %s, 57, %s' % (vr(T2), d)); a('v_lshrrev_b32 %s, 10, %s' % (vr(T2), vr(T2)))
        a('v_mul_u32_u24 %s, 18, %s' % (vr(T2+1), vr(T2))); a('v_sub_u32 %s, %s, %s' % (d, d, vr(T2+1)))
        a('v_and_b32 %s, 1, %s' % (vr(T2+1), vr(T2))); a('v_xor_b32 %s, %s, %s' % (d, d, vr(T2+1)))
        a('v_mul_u32_u24 %s, 4608, %s' % (vr(T2), vr(T2))); a('v_lshl_add_u32 %s, %s, 5, %s' % (d, d, vr(T2)))
        a('v_add_u32 %s, %s, v1' % (d, d))
    for r in range(144): a('v_accvgpr_write_b32 a%d, 0' % (A_OUT + r))
    s_ = []
    b = s_.append
    b('s_mul_i32 %s, %s, %d' % (sr(S_A), sr(S_W), 9*16*9216)); b('s_lshl_b32 %s, %s, 1' % (sr(S_B), sr(S_HB))); b('s_add_u32 %s, %s, %s' % (sr(S_HCOL), sr(S_A), sr(S_B)))
    b('s_mul_i32 s63, %s, 576' % sr(S_S))
    b('s_lshl_b32 %s, %s, 4' % (sr(S_C), sr(S_W)))
    b('s_add_u32 %s, %s, %s' % (sr(S_A), sr(S_FB), sr(S_C))); b('s_mul_i32 %s, %s, 1152' % (sr(S_A), sr(S_A))); b('s_add_u32 %s, %s, s63' % (sr(S_DROW), sr(S_A)))
    b('s_xor_b32 %s, %s, 1' % (sr(S_B), sr(S_S))); b('s_mul_i32 %s, %s, 576' % (sr(S_A), sr(S_JP)))
    b('s_mul_i32 s54, %s, 320' % sr(S_B)); b('s_add_u32 s54, s54, %s' % sr(S_A))
    b('s_lshl_b32 s55, %s, 5' % sr(S_B)); b('s_add_u32 s55, s55, %s' % sr(S_A)); b('s_add_u32 s55, s55, 256')
    b('s_and_b32 s56, %s, 1' % sr(S_W)); b('s_lshl_b32 s56, s56, 4')
    b('s_lshr_b32 s57, %s, 1' % sr(S_W))
    for ee, th0 in enumerate((0, 2, 4, 5, 7)):
        d = sr(S_E+ee)
        b('s_lshl_b32 %s, s57, 5' % d); b('s_add_u32 %s, %s, s54' % (d, d))
        b('s_add_u32 %s, %s, %d' % (d, d, 32*th0))
        if ee == 3: s_.append(['s_cmp_eq_u32 s57, 0', 's_cselect_b32 %s, %s, %s' % (d, sr(S_HB), d)])
        if ee == 4: s_.append(['s_cmp_eq_u32 s57, 1', 's_cselect_b32 %s, s55, %s' % (d, d)])
        b('s_add_u32 %s, %s, s56' % (d, d)); b('s_mul_i32 %s, %s, 1152' % (d, d)); b('s_add_u32 %s, %s, s63' % (d, d))
    b('s_lshl_b32 %s, s2, 2' % sr(S_A)); b('s_add_u32 %s, %s, %s' % (sr(S_A), sr(S_A), sr(S_W)))
    b('s_lshl_b32 %s, %s, 2' % (sr(S_FLO), sr(S_A))); b('s_add_u32 %s, %s, 0x%x' % (sr(S_FLO), sr(S_FLO), WS_FLAG))
    b('s_mul_i32 %s, %s, 18432' % (sr(S_HXO), sr(S_A))); b('s_add_u32 %s, %s, 0x%x' % (sr(S_HXO), sr(S_HXO), WS_HX))
    b('s_xor_b32 %s, s2, 8' % sr(S_A)); b('s_lshl_b32 %s, %s, 2' % (sr(S_A), sr(S_A))); b('s_add_u32 %s, %s, %s' % (sr(S_A), sr(S_A), sr(S_W)))
    b('s_lshl_b32 %s, %s, 2' % (sr(S_FLP), sr(S_A))); b('s_add_u32 %s, %s, 0x%x' % (sr(S_FLP), sr(S_FLP), WS_FLAG))
    b('s_mul_i32 %s, %s, 18432' % (sr(S_HXP), sr(S_A))); b('s_add_u32 %s, %s, 0x%x' % (sr(S_HXP), sr(S_HXP), WS_HX))
    b('s_lshl_b32 %s, %s, 1' % (sr(S_A), sr(S_I))); b('s_add_u32 %s, %s, %s' % (sr(S_A), sr(S_A), sr(S_S)))
    b('s_lshl_b32 %s, %s, 3' % (sr(S_A), sr(S_A))); b('s_add_u32 %s, %s, %s' % (sr(S_A), sr(S_A), sr(S_JP)))
    b('s_lshl_b32 %s, %s, 2' % (sr(S_A), sr(S_A))); b('s_add_u32 %s, %s, %s' % (sr(S_A), sr(S_A), sr(S_W)))
    b('s_mul_i32 %s, %s, 18432' % (sr(S_P), sr(S_A))); b('s_add_u32 %s, %s, 0x%x' % (sr(S_P), sr(S_P), WS_P))
    b('s_mov_b32 %s, 3' % sr(S_CNT)); b('s_mov_b32 %s, 1' % sr(S_FVAL))
    work = pat + rest + s_
    def do_work(n):
        for _ in range(n):
            if not work: return
            x = work.pop(0)
            for t in (x if isinstance(x, list) else [x]): e(t)
    first = dma_G(S_WG, sr(S_GCOL), 0, 'Ga') + [('X', 2, None), ('X', 3, None)] + dma_G(S_WG, sr(S_GCOL), 1, 'Gb')
    nvm = sum(1 for k in first if k[0] in 'DX'); per = (len(work) + nvm - 1)//nvm
    for kind, text, tag in first:
        if kind == 'X': xload(P, text); do_work(per)
        else:
            e(text, tag=tag)
            if ' m0,' in text: e('s_nop 0')
            if kind == 'D': do_work(per)
    do_work(9999)
    if OPT.get('pro_stamps'): stamp('setup')
    P.wait_vm_tag('st')
    for k in range(4):
        e('v_add_f32 %s, %s, %s' % (vr(V_G+k), vr(V_G+k), vr(V_G+4+k)))
    for k in range(4):
        e('v_add_f32 %s, %s, %s' % (vr(V_G+k), vr(V_G+k), vr(V_G+8+k)))
    for swap in ('v_permlane32_swap_b32', 'v_permlane16_swap_b32'):
        for k in range(4): e('v_mov_b32 %s, %s' % (vr(V_G+4+k), vr(V_G+k)))
        e('s_nop 1')
        for k in range(4): e('%s %s, %s' % (swap, vr(V_G+k), vr(V_G+4+k)))
        e('s_nop 1')
        for k in range(4): e('v_add_f32 %s, %s, %s' % (vr(V_G+k), vr(V_G+k), vr(V_G+4+k)))
    e('s_mov_b32 %s, 0x%08x' % (sr(S_A), f2u(1.0/576)))
    CC = -2.0*0.7978845608028654*1.4426950408889634
    NM = V_HH
    for mm in range(2):
        e('v_mul_f32 %s, %s, %s' % (vr(T+mm), sr(S_A), vr(V_G+2*mm)))
        e('v_mul_f32 %s, %s, %s' % (vr(T+2+mm), sr(S_A), vr(V_G+2*mm+1)))
    for mm in range(2):
        e('v_fma_f32 %s, -%s, %s, %s' % (vr(V_K+mm), vr(T+mm), vr(T+mm), vr(T+2+mm)))
        e('v_sub_f32 %s, 0, %s' % (vr(NM+mm), vr(T+mm)))
    for mm in range(2): e('v_max_f32 %s, 0, %s' % (vr(V_K+mm), vr(V_K+mm)))
    for mm in range(2): e('v_add_f32 %s, 0x%08x, %s' % (vr(V_K+mm), f2u(1e-5), vr(V_K+mm)))
    for mm in range(2): e('v_rsq_f32 %s, %s' % (vr(T+mm), vr(V_K+mm)))
    e('s_nop 0')
    for mm in range(2):
        e('v_mul_f32 %s, 0x%08x, %s' % (vr(V_C0+mm), f2u(CC), vr(T+mm)))
        e('v_mul_f32 %s, %s, %s' % (vr(T+2+mm), vr(T+mm), vr(T+mm)))
    for mm in range(2): e('v_mul_f32 %s, 0x%08x, %s' % (vr(T+2+mm), f2u(0.044715), vr(T+2+mm)))
    for mm in range(2): e('v_mul_f32 %s, %s, %s' % (vr(V_C1+mm), vr(V_C0+mm), vr(T+2+mm)))
    def center_ops(ks):
        ops = [lambda P: P.wait_vm_tag('x%d' % ks)]
        for mm in range(2):
            b = xdst(ks, mm); t = V_H + 8*mm
            for d in range(4):
                ops.append('v_lshlrev_b32 %s, 16, %s' % (vr(t+2*d), vr(b+d)))
                ops.append('v_and_b32 %s, 0xffff0000, %s' % (vr(t+2*d+1), vr(b+d)))
            for d in range(8): ops.append('v_add_f32 %s, %s, %s' % (vr(t+d), vr(t+d), vr(NM+mm)))
            for d in range(4): ops.append('v_cvt_pk_bf16_f32 %s, %s, %s' % (vr(b+d), vr(t+2*d), vr(t+2*d+1)))
        k, a = xi_reg(ks, 0)
        if k == 'a':
            for mm in range(2):
                for d in range(4): ops.append('v_accvgpr_write_b32 a%d, %s' % (xi_reg(ks, mm)[1]+d, vr(xdst(ks, mm)+d)))
        return ops
    if OPT.get('pro_stamps'): stamp('stats')
    for o in center_ops(0):
        if callable(o): o(P)
        else: e(o)
    e('v_mov_b32 %s, %s' % (vr(V_RD), vr(V_PG))); e('v_add_u32 %s, %d, %s' % (vr(V_RD2), SLOT, vr(V_PG)))
    P.wait_vm_tag('Ga'); i = e('s_barrier'); i.meta = dict(needs='Ga')
    stamp('bar0')
    S = Stream()
    fr = []; mf = []
    for ks in range(18):
        rd = V_RD if ks < 9 else V_RD2; kl = ks % 9
        f0 = len(fr)
        for ft in range(2): fr.append(Frag(rd, (4*kl)*1024 + ft*256, (4*kl+2)*1024 + ft*256))
        for ft in range(2):
            for mm in range(2):
                mf.append(MF(acc(V_G, ft, mm), f0+ft, xfrag(ks, mm), '0' if ks == 0 else acc(V_G, ft, mm), [f0, f0+1] if (ft == 0 and mm == 0) else None))
    S.add(fr, mf)
    fr = []; mf = []
    for ft in (2, 3):
        for g in range(6):
            f0 = len(fr)
            for t in range(3):
                ks = 3*g + t; kl = ks % 9
                fr.append(Frag(V_RD if ks < 9 else V_RD2, (4*kl)*1024 + ft*256, (4*kl+2)*1024 + ft*256))
            for mm in range(2):
                for t in range(3):
                    ks = 3*g + t
                    mf.append(MF(acc(V_G, ft, mm), f0+t, xfrag(ks, mm), '0' if ks == 0 else acc(V_G, ft, mm), [f0, f0+1, f0+2] if (mm == 0 and t == 0) else None))
    S.add(fr, mf)
    fx = Fixed()
    def chunked(lst, gaps):
        n = len(lst); k = 0
        for j, g in enumerate(gaps):
            k2 = (n*(j+1) + len(gaps) - 1)//len(gaps)
            for o in lst[k:k2]:
                if callable(o): fx.put(g, 'X', o)
                else: fx.put(g, 'V', o)
            k = k2
    for ks in range(17):
        if ks + 4 < 18: fx.put(4*ks, 'X', (lambda P, k=ks+4: xload(P, k)), cost=4)
        chunked(center_ops(ks+1), [4*ks, 4*ks+1, 4*ks+2, 4*ks+3])
    ch = []
    put_dma(ch, 57, dma_G(S_WU, sr(S_GCOL), 0, 'Ua'), step=2)
    put_dma(ch, 78, dma_G(S_WU, sr(S_GCOL), 1, 'Ub'), step=5)
    ch.append((126, 'S', 's_add_u32 %s, %s, 128' % (sr(S_GCOL), sr(S_GCOL)), None))
    fx.chain(ch)
    if dbg and OPT.get('pro_stamps'):
        for g in (23, 47, 71): fx.put(g, 'X', (lambda P, g=g: stamp('p%d' % g)), cost=0)
    fx.put(22, 'L', '@waitvm', 'Gb'); fx.put(22, 'B', 's_barrier', 'Gb')
    qa = gelu_q(0, 'g0', V_T).window(75, 75, 108); qb = gelu_q(1, 'g1', V_T+4).window(92, 100, 142)
    put_bar(fx, 144, 'Ua', PAT_G)
    ua = st_GU(V_U, 0, True)
    info['peel'] = emit_stream(P, S, ua[0][:LAR//2], fx, [qa, qb], A_W, NF, LAR, 0, maxslots=9, opt=OPT, first_reads=True, drain_ok=True)
    stamp('peel')
    P.raw('.p2align 6'); P.raw('L_%s_loop:' % name)
    body_start = len(P.ins)
    def flagstore(tag, val):
        def f(P):
            if not OPT.get('no_flagwait'): P.wait_vm_tag(tag)
            P.e('v_mov_b32 %s, %s' % (vr(V_FL), val))
            P.e('buffer_store_dword %s, off, %s, %s sc1' % (vr(V_FL), sr(S_WS,4), sr(S_FLO)), tag='fl')
        f.cost = 3
        return f
    def front(fx, ch, tail):
        S = Stream().add(*st_GU(V_U, 0, True)).add(*st_GU(V_U, 1, False))
        G0 = OPT.get('dma_g0', 2)
        if not tail:
            put_dma(ch, G0, dma_G(S_WG, sr(S_GCOL), 0, 'Ga')); put_dma(ch, 72+G0, dma_G(S_WG, sr(S_GCOL), 1, 'Gb'))
            put_bar(fx, 72, 'Ub', PAT_G); put_bar(fx, 144, 'Ga', PAT_G)
        else:
            put_dma(ch, G0, dma_G(S_WG, sr(S_HCOL), 0, 'Gh', 16)); put_dma(ch, 72+G0, dma_D(sr(S_DROW), 'D'))
            put_bar(fx, 72, 'Ub', PAT_G); put_bar(fx, 144, 'Gh', PAT_H)
        g2 = gelu_q(2, 'g2', V_T).window(0, 0, 100); g3 = gelu_q(3, 'g3', V_T+4).window(0, 60, 160)
        p0 = prod_q(0, V_H, 'p0').window(92, 110, 140)
        p1 = prod_q(1, V_H, 'p1', (sr(S_HXO), 0, 'h0')).window(110, 135, 158).after([p0])
        p2 = prod_q(2, V_H+8, 'p2').window(128, 155, 176).after([g2, p1])
        p3 = prod_q(3, V_H+8, 'p3', (sr(S_HXO), 2048, 'h1')).window(146, 175, 194).after([g3, p2])
        return S, [p0, p1, p2, p3, g2, g3]
    G0 = OPT.get('dma_g0', 2)
    Hf = [[vr(V_H + 8*kq + 4*mm, 4) for mm in range(2)] for kq in range(2)]
    fx = Fixed(); ch = []
    S, qs = front(fx, ch, False)
    S.add(*st_GU(V_G, 0, True)).add(*st_GU(V_G, 1, False)).add(*st_D(Hf))
    put_dma(ch, 144+G0, dma_D(sr(S_DROW), 'D')); put_dma(ch, 216+G0, dma_G(S_WU, sr(S_GCOL), 0, 'Ua')); put_dma(ch, 288+G0, dma_G(S_WU, sr(S_GCOL), 1, 'Ub'))
    fx.chain(ch)
    put_bar(fx, 216, 'Gb', PAT_G); put_bar(fx, 288, 'D', PAT_D); put_bar(fx, 360, 'Ua', PAT_G)
    p3 = qs[3]
    n0 = gelu_q(0, 'g0n', V_T).window(237, 237, 300).after([p3]); n1 = gelu_q(1, 'g1n', V_T+4).window(255, 295, 358).after([p3])
    fx.put(277, 'X', flagstore('h1', sr(S_FVAL)), cost=3)
    fx.chain([(285, 'S', 's_add_u32 %s, %s, 1' % (sr(S_FVAL), sr(S_FVAL)), None), (286, 'S', 's_add_u32 %s, %s, 4096' % (sr(S_HXO), sr(S_HXO)), None),
              (287, 'S', 's_add_u32 %s, %s, %d' % (sr(S_DROW), sr(S_DROW), 64*1152), None)])
    info['body'] = emit_stream(P, S, ua[0][:LAR//2], fx, qs + [n0, n1], A_W, NF, LAR, 0, maxslots=OPT['cap'], opt=OPT)
    dl = {q.name: q.finish for q in qs + [n0, n1]}
    assert dl['p0'] <= 143 and dl['p1'] <= 161 and dl['p2'] <= 179 and dl['p3'] <= 197, dl
    info['fb'] = dl
    e('s_add_u32 %s, %s, 128' % (sr(S_GCOL), sr(S_GCOL)))
    e('s_sub_u32 %s, %s, 1' % (sr(S_CNT), sr(S_CNT))); e('s_cmp_lg_u32 %s, 0' % sr(S_CNT))
    e('s_cbranch_scc1 L_%s_loop' % name)
    body_end = len(P.ins)
    stamp('loop')
    fx = Fixed(); ch = []
    S, qs = front(fx, ch, True)
    S.add(*st_half(V_G)).add(*st_D(Hf)).add(*st_half(V_U))
    HHf = [vr(V_HH + 4*mm, 4) for mm in range(2)]
    hp = [[hpfrag(th, mm) for mm in range(2)] for th in range(9)]
    for pair in ([hp[0], hp[1]], [hp[2], hp[3]], [hp[4], hp[5]], [HHf, hp[6]], [hp[7], hp[8]]): S.add(*st_D(pair))
    put_dma(ch, 144+G0, dma_G(S_WU, sr(S_HCOL), 0, 'Uh', 16))
    for k in range(5): put_dma(ch, 216+72*k+G0, dma_D(sr(S_E+k), 'E%d' % k))
    fx.chain(ch)
    put_bar(fx, 216, 'D', PAT_D); put_bar(fx, 288, 'Uh', PAT_H)
    for k in range(5): put_bar(fx, 360+72*k, 'E%d' % k, PAT_D)
    p3 = qs[3]
    h0 = gelu_q(0, 'gh0', V_T).window(183, 195, 265).after([p3]); h1 = gelu_q(1, 'gh1', V_T+4).window(219, 255, 330).after([p3])
    fx.chain([(340, 'S', 's_add_u32 %s, %s, 4096' % (sr(S_T1), sr(S_HXO)), None)])
    ph0 = prod_q(0, V_HH, 'ph0').window(327, 330, 350).after([h0])
    ph1 = prod_q(1, V_HH, 'ph1', (sr(S_T1), 0, 'hh')).window(363, 364, 384).after([h1, ph0])
    def poll_issue(P): P.e('buffer_load_dword %s, off, %s, %s sc1' % (vr(V_PO), sr(S_WS,4), sr(S_FLP)), tag='poll')
    slow = []
    def poll_check(val, lab):
        def f(P):
            P.wait_vm_tag('poll')
            P.e('v_readfirstlane_b32 %s, %s' % (sr(S_A), vr(V_PO)))
            P.e('s_nop 0')
            P.e('s_cmp_ge_u32 %s, %d' % (sr(S_A), val))
            P.e('s_cbranch_scc0 L_%s_slow%s' % (name, lab))
            P.raw('L_%s_back%s:' % (name, lab))
            slow.append((val, lab))
        f.cost = 5
        return f
    def hp_load(x):
        def f(P):
            if x % 4 == 0: P.e('s_add_u32 %s, %s, %d' % (sr(S_B), sr(S_HXP), (x//4)*4096))
            th, mm = divmod(x, 2)
            P.e('buffer_load_dwordx4 %s, %s, %s, %s offen offset:%d sc1' % (hpfrag(th, mm), vr(V_L16), sr(S_WS,4), sr(S_B), (x % 4)*1024), tag='hp%d' % x)
        return f
    if dbg and OPT.get('tail_stamps'):
        for g in OPT['tail_stamps']: fx.put(g, 'X', (lambda P, g=g: stamp('t%d' % g)), cost=0)
    fx.put(144, 'X', poll_issue, cost=2); fx.put(277, 'X', poll_check(3, 'a'), cost=5)
    for x in range(4): fx.put(279 + 2*x, 'X', hp_load(x), cost=2)
    for x in range(4, 8): fx.put(350 + 2*(x-4), 'X', hp_load(x), cost=2)
    for x in range(8, 12): fx.put(422 + 2*(x-8), 'X', hp_load(x), cost=2)
    fx.put(279, 'X', flagstore('h1', '4'), cost=3)
    fx.put(440, 'X', flagstore('hh', '5'), cost=3)
    fx.put(360, 'X', poll_issue, cost=2); fx.put(493, 'X', poll_check(4, 'b'), cost=5)
    for x in range(12, 16): fx.put(495 + 2*(x-12), 'X', hp_load(x), cost=2)
    fx.put(504, 'X', poll_issue, cost=2); fx.put(565, 'X', poll_check(5, 'c'), cost=5)
    for x in range(16, 18): fx.put(567 + 2*(x-16), 'X', hp_load(x), cost=2)
    def hp_wait(xs):
        def f(P): P.wait_vm(lambda i: i.tag in ['hp%d' % t for t in xs])
        return f
    fx.put(360-4, 'X', hp_wait(range(4)))
    fx.put(432-4, 'X', hp_wait(range(4, 8)))
    fx.put(504-4, 'X', hp_wait(range(8, 12)))
    fx.put(576-4, 'X', hp_wait(range(12, 14)))
    fx.put(648-4, 'X', hp_wait(range(14, 18)))
    ep = []
    for np_ in range(9):
        ear = 648 + 8*(np_+1) + 2
        for mm in range(2):
            tb = V_G + 16*((2*np_+mm) % 4); hb = V_H + 4*((2*np_+mm) % 4)
            for k in range(2):
                for r in range(4): ep.append(Op('v_accvgpr_read_b32 %s, a%d' % (vr(tb+4*k+r), A_OUT + 8*(2*np_+k) + 4*mm + r), ear))
            for d in range(4): ep.append(Op('v_cvt_pk_bf16_f32 %s, %s, %s' % (vr(hb+d), vr(tb+2*d), vr(tb+2*d+1)), ear))
            fr_ = mm*9 + np_
            def st(P, fr_=fr_, hb=hb):
                P.e('s_add_u32 %s, %s, %d' % (sr(S_T0), sr(S_P), fr_*1024))
                P.e('buffer_store_dwordx4 %s, %s, %s, %s offen sc1' % (vr(hb,4), vr(V_L16), sr(S_WS,4), sr(S_T0)), tag='p')
            ep.append(Op(st, ear, cost=2))
    qe = Queue(ep, 'ep', prio=True)
    allq = qs + [ph0, ph1, h0, h1, qe]
    info['tail'] = emit_stream(P, S, [], fx, allq, A_W, NF, LAR, 0, maxslots=OPT['cap'], opt=OPT, drain_ok=True, drain_pre='s_nop 7')
    dl = {q.name: q.finish for q in allq}
    assert dl['p0'] <= 143 and dl['p1'] <= 179 and dl['p3'] < 212 and dl['ph1'] < 420 and dl['gh0'] < 326, dl
    info['ft'] = dl
    stamp('tail')
    if dbg:
        e('s_waitcnt vmcnt(0)')
        stamp('end')
        e('s_mov_b32 s4, s94'); e('s_mov_b32 s5, s95'); e('s_mov_b32 s6, 0x100000'); e('s_mov_b32 s7, 0x20000')
        e('s_lshl_b32 s41, s2, 2'); e('s_add_u32 s41, s41, %s' % sr(S_W)); e('s_lshl_b32 s41, s41, 7')
        for k in range(len(stamps)):
            e('s_sub_u32 s42, s%d, s64' % (64+k)); e('v_mov_b32 v1, s42')
            e('buffer_store_dword v1, off, s[4:7], s41 offset:%d' % (4*k))
            e('s_sub_u32 s42, s%d, s77' % (77+k)); e('v_mov_b32 v1, s42')
            e('buffer_store_dword v1, off, s[4:7], s41 offset:%d' % (64+4*k))
        e('v_mov_b32 v1, s77'); e('buffer_store_dword v1, off, s[4:7], s41 offset:60')
    P.raw('L_%s_end:' % name)
    e('s_endpgm')
    main_end = len(P.ins)
    for val, lab in slow:
        P.raw('L_%s_slow%s:' % (name, lab))
        P.raw('s_mov_b32 %s, 0x40000' % sr(S_C))
        P.raw('L_%s_spin%s:' % (name, lab))
        P.raw('s_sleep 2')
        P.raw('buffer_load_dword %s, off, %s, %s sc1' % (vr(V_PO), sr(S_WS,4), sr(S_FLP)))
        P.raw('s_waitcnt vmcnt(0)')
        P.raw('v_readfirstlane_b32 %s, %s' % (sr(S_A), vr(V_PO)))
        P.raw('s_sub_u32 %s, %s, 1' % (sr(S_C), sr(S_C)))
        P.raw('s_cmp_eq_u32 %s, 0' % sr(S_C))
        P.raw('s_cbranch_scc1 L_%s_back%s' % (name, lab))
        P.raw('s_cmp_ge_u32 %s, %d' % (sr(S_A), val))
        P.raw('s_cbranch_scc0 L_%s_spin%s' % (name, lab))
        P.raw('s_branch L_%s_back%s' % (name, lab))
    ins = P.ins
    path = ins[:body_start] + ins[body_start:body_end]*3 + ins[body_end:main_end]
    info['stamps'] = stamps
    return P, path, info

if __name__ == '__main__':
    import collections
    P, path, info = build()
    check(path, 'k3b')
    print('barrier problems', verify_barriers(path))
    for k in ('peel', 'body', 'tail'):
        print(k, 'slots/gap hist', sorted(collections.Counter(info[k]).items()), 'est cyc/unit %.2f' % (est_cycles(info[k])/len(info[k])*2))
    print(info['fb']); print(info['ft'])
    print('instrs', len(P.ins))
```

```python
from core import *
from common import *
def build(name='kp_kernel', which=(KA_X, KA_WQKV, KA_WO, KA_WG, KA_WU, KA_WD), code=False, ws=False):
    P = Prog(); e = P.e
    sizes = {KA_X: S_*D_*2, KA_WQKV: D_*3*D_*2, KA_WO: D_*D_*2, KA_WG: D_*F_*2, KA_WU: D_*F_*2, KA_WD: D_*F_*2}
    e('s_cmp_ge_u32 s2, 256'); e('s_cbranch_scc1 L_%s_end' % name)
    for n, ka in enumerate(which): e('s_load_dwordx2 s[%d:%d], s[0:1], %d' % (40+2*n, 41+2*n, ka))
    e('s_lshl_b32 s3, s2, 8'); e('v_add_u32 v1, s3, v0'); e('v_lshlrev_b32 v1, 7, v1')
    e('s_waitcnt lgkmcnt(0)')
    k = 0
    for n, ka in enumerate(which):
        b = 8 + 4*n
        e('s_mov_b32 s%d, s%d' % (b, 40+2*n)); e('s_mov_b32 s%d, s%d' % (b+1, 41+2*n)); e('s_mov_b32 s%d, 0x%x' % (b+2, sizes[ka])); e('s_mov_b32 s%d, 0x%x' % (b+3, SRD3))
        e('buffer_load_dword v%d, v1, s[%d:%d], 0 offen' % (2+k, b, b+3)); k += 1
    if code:
        P.raw('s_getpc_b64 s[36:37]'); P.raw('L_%s_pc:' % name)
        P.raw('s_sub_u32 s36, s36, L_%s_pc - k1_kernel' % name); P.raw('s_subb_u32 s37, s37, 0')
        P.raw('s_mov_b32 s38, L_%s_pc - k1_kernel' % name); e('s_mov_b32 s39, 0x%x' % SRD3)
        e('v_lshlrev_b32 v12, 7, v0')
        for k2 in range(3): e('buffer_load_dword v%d, v12, s[36:39], 0 offen offset:0' % (13+k2) if k2 == 0 else 's_nop 0')
        e('s_mov_b32 s3, 0x8000'); e('buffer_load_dword v14, v12, s[36:39], s3 offen')
        e('s_mov_b32 s3, 0x10000'); e('buffer_load_dword v15, v12, s[36:39], s3 offen')
    if ws:
        e('s_load_dwordx2 s[56:57], s[0:1], %d' % KA_WS); e('s_waitcnt lgkmcnt(0)')
        e('s_mov_b32 s52, s56'); e('s_mov_b32 s53, s57'); e('s_mov_b32 s54, 0x%x' % WS_END); e('s_mov_b32 s55, 0x%x' % SRD3)
        e('v_lshlrev_b32 v11, 3, v1')
        e('buffer_load_dword v10, v11, s[52:55], 0 offen')
    e('s_waitcnt vmcnt(0)')
    P.raw('L_%s_end:' % name); e('s_endpgm')
    return P, dict(vgpr=16, accum=16, sgpr=60, grid=256, block=256, lds=0)
```

```python
from common import *
class Stamper:
    def __init__(self, P, on, wreg):
        self.P, self.on, self.names, self.wreg = P, on, [], wreg
        if on: P.raw('s_load_dwordx2 s[94:95], s[0:1], %d' % KA_DBG)
    def __call__(self, label):
        if not self.on: return
        P = self.P; k = len(self.names); self.names.append(label); assert k < 13
        P.raw('s_memtime s[92:93]'); P.raw('s_memrealtime s[90:91]'); P.raw('s_waitcnt lgkmcnt(0)')
        P.raw('s_mov_b32 s%d, s92' % (64+k)); P.raw('s_mov_b32 s%d, s90' % (77+k))
    def finish(self):
        if not self.on: return
        e = self.P.raw
        e('s_waitcnt vmcnt(0)')
        self('end')
        e('s_mov_b64 exec, -1')
        e('s_mov_b32 s4, s94'); e('s_mov_b32 s5, s95'); e('s_mov_b32 s6, 0x100000'); e('s_mov_b32 s7, 0x20000')
        e('s_lshl_b32 s62, s2, 2'); e('s_add_u32 s62, s62, s%d' % self.wreg); e('s_lshl_b32 s62, s62, 7')
        for k in range(len(self.names)):
            e('s_sub_u32 s63, s%d, s64' % (64+k)); e('v_mov_b32 v1, s63')
            e('buffer_store_dword v1, off, s[4:7], s62 offset:%d' % (4*k))
            e('s_sub_u32 s63, s%d, s77' % (77+k)); e('v_mov_b32 v1, s63')
            e('buffer_store_dword v1, off, s[4:7], s62 offset:%d' % (64+4*k))
        e('v_mov_b32 v1, s77'); e('buffer_store_dword v1, off, s[4:7], s62 offset:60')
```

```python
import build_all as B
from common import *
B4 = ['k1_kernel','k2_kernel','k3_kernel','k4_kernel']
V = {'vA': (None, None), 'vS1': (['spin100_kernel'] + B4, None), 'vS2': (['spin300_kernel'] + B4, None), 'vS3': (['spin600_kernel'] + B4, None),
     'vS4': (B4 + ['spin300_kernel'], None)}
import os
os.makedirs('variants', exist_ok=True)
for n, (o, kp) in V.items():
    t, ks = B.make(order=o, kpopts=kp)
    open('variants/%s.s' % n, 'w').write(t)
print('ok')
```

```python
from core import *
from common import *
from stamps import Stamper

XR_END = 92160
WSLOT = 16384
PITCH = 516
LDS_BYTES = XR_END + 4*WSLOT

def build(name='k1_kernel', prefetch=None, dbg=False, pf=()):
    P = Prog(); e = P.e
    VB = [2, 3]; VBH = [4, 5]; VA, PA = 6, 20
    VW, VX, VONE = 10, 14, 16
    VWA, T = 192, 27
    BB = [40, 60]; AB = [80, 96]; ACC = 112
    S_X, S_WQ, S_WS = 8, 12, 16
    S_W, S_HG, S_MI, S_C, S_RA, S_WA, S_WB, S_SO, S_T0, S_T1, S_CNT = 20, 21, 22, 23, 24, 25, 26, 27, 28, 29, 30
    S_MASK = 32
    S_OD = 40
    def acc(i, mt): return ACC + 20*i + 4*mt
    e('s_cmp_ge_u32 s2, 256'); e('s_cbranch_scc1 L_%s_end' % name)
    stamp = Stamper(P, dbg, S_W); stamp('start')
    if 'scramble' in pf:
        e('s_lshr_b32 s3, s2, 3'); e('s_and_b32 s2, s2, 7'); e('s_lshl_b32 s2, s2, 5'); e('s_or_b32 s2, s2, s3')
    e('s_load_dwordx4 s[4:7], s[0:1], %d' % KA_X)
    e('s_load_dwordx2 s[34:35], s[0:1], %d' % KA_WS)
    e('v_lshrrev_b32 v1, 6, v0'); e('v_and_b32 v0, 63, v0')
    e('v_readfirstlane_b32 %s, v1' % sr(S_W))
    e('s_and_b32 %s, s2, 1' % sr(S_HG)); e('s_lshl_b32 %s, %s, 2' % (sr(S_HG), sr(S_HG)))
    e('s_bfe_u32 %s, s2, 0x20003' % sr(S_T0)); e('s_add_u32 %s, %s, %s' % (sr(S_HG), sr(S_HG), sr(S_T0)))
    e('s_bfe_u32 %s, s2, 0x20001' % sr(S_MI)); e('s_lshl_b32 %s, %s, 3' % (sr(S_MI), sr(S_MI)))
    e('s_lshr_b32 %s, s2, 5' % sr(S_T0)); e('s_add_u32 %s, %s, %s' % (sr(S_MI), sr(S_MI), sr(S_T0)))
    e('v_lshrrev_b32 v1, 3, v0'); e('v_and_b32 %s, 7, v0' % vr(T))
    e('s_and_b32 %s, %s, 1' % (sr(S_T0), sr(S_W))); e('s_lshl_b32 %s, %s, 2' % (sr(S_T0), sr(S_T0)))
    e('v_lshrrev_b32 %s, 1, v1' % vr(T+1)); e('v_add_u32 %s, %s, %s' % (vr(T+1), sr(S_T0), vr(T+1)))
    e('v_xor_b32 %s, %s, %s' % (vr(T+1), vr(T+1), vr(T))); e('v_lshlrev_b32 %s, 4, %s' % (vr(T+1), vr(T+1)))
    e('v_mul_u32_u24 %s, 1152, v1' % vr(T+2)); e('v_add_u32 %s, %s, %s' % (vr(VX), vr(T+1), vr(T+2)))
    e('s_waitcnt lgkmcnt(0)')
    for srd, lo, hi, size in ((S_X, 4, 5, S_*D_*2), (S_WQ, 6, 7, D_*3*D_*2), (S_WS, 34, 35, WS_END)):
        e('s_mov_b32 %s, s%d' % (sr(srd), lo)); e('s_mov_b32 %s, s%d' % (sr(srd+1), hi))
        e('s_mov_b32 %s, 0x%x' % (sr(srd+2), size)); e('s_mov_b32 %s, 0x%x' % (sr(srd+3), SRD3))
    stamp('setup')
    W1 = []; a = W1.append
    for t in range(4):
        d = vr(VW+t)
        a('s_lshl_b32 s31, %s, 6' % sr(S_W)); a('s_add_u32 s31, s31, %d' % (256*t))
        a('v_add_u32 %s, s31, v0' % vr(T))
        a('v_mul_u32_u24 %s, 7282, %s' % (vr(T+1), vr(T))); a('v_lshrrev_b32 %s, 16, %s' % (vr(T+1), vr(T+1)))
        a('v_mul_u32_u24 %s, 9, %s' % (vr(T+2), vr(T+1))); a('v_sub_u32 %s, %s, %s' % (vr(T+2), vr(T), vr(T+2)))
        a('v_lshrrev_b32 %s, 5, %s' % (vr(T+3), vr(T+1))); a('v_and_b32 %s, 31, %s' % (vr(T+1), vr(T+1)))
        a('v_mul_u32_u24 %s, 1152, %s' % (vr(T+3), vr(T+3))); a('v_lshl_add_u32 %s, %s, 4, %s' % (vr(T+2), vr(T+2), vr(T+3)))
        a('v_mul_u32_u24 %s, 3456, %s' % (vr(T+1), vr(T+1))); a('v_add_u32 %s, %s, %s' % (d, vr(T+2), vr(T+1)))
        a(['v_cmp_le_u32 vcc, 864, %s' % vr(T), 'v_mov_b32 %s, 0x7fff0000' % vr(T+3), 's_nop 0', 'v_cndmask_b32 %s, %s, %s, vcc' % (d, d, vr(T+3))])
    W2 = []; a = W2.append
    M = T+5; Q_ = T+6
    a('v_and_b32 %s, 15, v0' % vr(M)); a('v_lshrrev_b32 %s, 4, v0' % vr(Q_))
    a('v_lshrrev_b32 %s, 3, %s' % (vr(T+1), vr(M))); a('v_mul_u32_u24 %s, 9216, %s' % (vr(T+1), vr(T+1)))
    a('v_and_b32 %s, 7, %s' % (vr(T+2), vr(M))); a('v_lshl_add_u32 %s, %s, 7, %s' % (vr(T+1), vr(T+2), vr(T+1)))
    a('v_lshrrev_b32 %s, 1, %s' % (vr(T+2), vr(M)))
    for kp in range(2):
        a('v_add_u32 %s, %d, %s' % (vr(T+3), 4*kp, vr(Q_))); a('v_xor_b32 %s, %s, %s' % (vr(T+3), vr(T+3), vr(T+2)))
        a('v_lshl_add_u32 %s, %s, 4, %s' % (vr(VB[kp]), vr(T+3), vr(T+1))); a('v_add_u32 %s, %d, %s' % (vr(VBH[kp]), 4*18432, vr(VB[kp])))
    a('v_bfe_u32 %s, v0, 2, 2' % vr(T+2)); a('v_lshl_add_u32 %s, %s, 3, %s' % (vr(T+2), vr(Q_), vr(T+2)))
    a('v_mul_u32_u24 %s, 144, %s' % (vr(T+2), vr(T+2))); a('v_add_u32 %s, %d, %s' % (vr(T+2), XR_END, vr(T+2)))
    a('v_and_b32 %s, 3, v0' % vr(T+1)); a('v_lshlrev_b32 %s, 2, %s' % (vr(T+1), vr(T+1)))
    for i4 in range(4):
        a('s_lshl_b32 s31, %s, 6' % sr(S_W)); a('s_add_u32 s31, s31, %d' % (16*i4))
        a('v_add_u32 %s, s31, %s' % (vr(T+3), vr(T+1)))
        a('v_min_u32 %s, 212, %s' % (vr(T+3), vr(T+3)))
        a('v_mul_u32_u24 %s, 911, %s' % (vr(T+4), vr(T+3))); a('v_lshrrev_b32 %s, 16, %s' % (vr(T+4), vr(T+4)))
        a('v_mul_u32_u24 %s, %d, %s' % (vr(T+4), 4608 - 144, vr(T+4)))
        a('v_lshl_add_u32 %s, %s, 1, %s' % (vr(T+3), vr(T+3), vr(T+4))); a('v_add_u32 %s, %s, %s' % (vr(PA+i4), vr(T+3), vr(T+2)))
    for k in range(4): a('v_mov_b32 %s, 0x3f803f80' % vr(VONE+k))
    a('v_cmp_eq_u32 %s, 0, %s' % (sr(S_MASK, 2), vr(M)))
    for i4 in range(4):
        for d2 in range(2):
            d = vr(VWA + 2*i4 + d2)
            a('s_lshl_b32 s31, %s, 6' % sr(S_W)); a('s_add_u32 s31, s31, %d' % (16*i4 + 2*d2))
            a('v_lshl_add_u32 %s, %s, 2, s31' % (vr(T+1), vr(Q_)))
            a('v_mul_u32_u24 %s, 3641, %s' % (vr(T+2), vr(T+1))); a('v_lshrrev_b32 %s, 16, %s' % (vr(T+2), vr(T+2)))
            a('v_mul_u32_u24 %s, 18, %s' % (vr(T+3), vr(T+2))); a('v_sub_u32 %s, %s, %s' % (vr(T+3), vr(T+1), vr(T+3)))
            a('v_min_u32 %s, 12, %s' % (vr(T+2), vr(T+2)))
            a('v_mul_u32_u24 %s, 3200, %s' % (vr(T+2), vr(T+2))); a('v_lshl_add_u32 %s, %s, 1, %s' % (vr(T+2), vr(T+3), vr(T+2)))
            a('v_mul_u32_u24 %s, 40, %s' % (vr(T+3), vr(M))); a('v_add_u32 %s, %s, %s' % (d, vr(T+2), vr(T+3)))
    for i4 in range(4):
        for mt in range(5):
            for r in range(4): a('v_mov_b32 %s, 0' % vr(acc(i4, mt)+r))
    a('s_mul_i32 s37, %s, 72' % sr(S_HG)); a('s_mul_i32 s38, %s, 18' % sr(S_W)); a('s_add_u32 s37, s37, s38')
    for d in range(9):
        o = sr(S_OD+d)
        a('s_add_u32 s38, s37, %d' % (2*d))
        a('s_lshr_b32 %s, s38, 5' % o); a('s_lshl_b32 %s, %s, 10' % (o, o))
        a('s_bfe_u32 s39, s38, 0x20002'); a('s_lshl_b32 s39, s39, 8'); a('s_add_u32 %s, %s, s39' % (o, o))
        a('s_bfe_u32 s39, s38, 0x10004'); a('s_lshl_b32 s39, s39, 3'); a('s_add_u32 %s, %s, s39' % (o, o))
        a('s_bfe_u32 s39, s38, 0x10001'); a('s_lshl_b32 s39, s39, 2'); a('s_add_u32 %s, %s, s39' % (o, o))
    def work(lst, n):
        for _ in range(n):
            if not lst: return
            x = lst.pop(0)
            for t in (x if isinstance(x, list) else [x]): e(t)
    n1 = len(W1)
    for bi in range(3):
        if bi == 2:
            work(W1, 999)
            e('s_cmp_ge_u32 %s, 2' % sr(S_W)); e('s_cbranch_scc1 L_%s_nox' % name)
        e('s_add_u32 %s, %s, %d' % (sr(S_T0), sr(S_W), 4*bi))
        e('s_lshl_b32 %s, %s, 3' % (sr(S_T1), sr(S_MI))); e('s_add_u32 %s, %s, %s' % (sr(S_T1), sr(S_T1), sr(S_T0)))
        e('s_sub_u32 %s, %s, 2' % (sr(S_T1), sr(S_T1))); e('s_max_i32 %s, %s, 0' % (sr(S_T1), sr(S_T1)))
        e('s_mul_i32 %s, %s, %d' % (sr(S_T1), sr(S_T1), 8*1152))
        e('s_mul_i32 %s, %s, 9216' % (sr(S_T0), sr(S_T0)))
        for lam in range(9):
            P.raw('s_add_u32 m0, %s, %d' % (sr(S_T0), lam*1024))
            P.raw('s_add_u32 s36, %s, %d' % (sr(S_T1), lam*128))
            P.raw('buffer_load_dwordx4 %s, %s, s36 offen lds' % (vr(VX), sr(S_X,4)))
            if bi < 2: work(W1, (n1 + 17)//18)
    P.raw('L_%s_nox:' % name)
    VP = 36
    if 'code' in pf or 'wq' in pf or 'wo' in pf or 'wg' in pf:
        e('s_lshr_b32 s58, s2, 3'); e('s_and_b32 s59, s2, 7')
        e('s_lshl_b32 s60, %s, 6' % sr(S_W)); e('v_add_u32 %s, s60, v0' % vr(VP))
    if 'code' in pf:
        P.raw('s_getpc_b64 s[60:61]'); P.raw('L_%s_pc:' % name)
        P.raw('s_sub_u32 s60, s60, L_%s_pc - %s' % (name, name)); P.raw('s_subb_u32 s61, s61, 0')
        P.raw('s_mov_b32 s62, L_text_end - %s' % name); e('s_mov_b32 s63, 0x%x' % SRD3)
        e('s_mul_i32 s64, s58, 14'); e('v_add_u32 %s, s64, %s' % (vr(VP+1), vr(VP))); e('v_lshlrev_b32 %s, 7, %s' % (vr(VP+1), vr(VP+1)))
        e('v_cmp_gt_u32 vcc, 14, %s' % vr(VP)); e('v_mov_b32 %s, 0x7fff0000' % vr(VP+2)); e('s_nop 0'); e('v_cndmask_b32 %s, %s, %s, vcc' % (vr(VP+1), vr(VP+2), vr(VP+1)))
        P.raw('buffer_load_dword %s, %s, s[60:63], 0 offen' % (vr(VP+2), vr(VP+1)))
    if 'wq' in pf:
        e('v_mul_u32_u24 %s, 4370, %s' % (vr(VP+1), vr(VP))); e('v_lshrrev_b32 %s, 16, %s' % (vr(VP+1), vr(VP+1)))
        e('v_mul_u32_u24 %s, 15, %s' % (vr(VP+3), vr(VP+1))); e('v_sub_u32 %s, %s, %s' % (vr(VP+3), vr(VP), vr(VP+3)))
        e('s_mul_i32 s64, s58, 18'); e('v_add_u32 %s, s64, %s' % (vr(VP+1), vr(VP+1))); e('v_mul_u32_u24 %s, 3456, %s' % (vr(VP+1), vr(VP+1)))
        e('v_mul_u32_u24 %s, 52, %s' % (vr(T), vr(VP+3))); e('v_lshrrev_b32 %s, 8, %s' % (vr(T), vr(T)))
        e('v_mul_u32_u24 %s, 5, %s' % (vr(T+1), vr(T))); e('v_sub_u32 %s, %s, %s' % (vr(VP+3), vr(VP+3), vr(T+1)))
        e('v_mul_u32_u24 %s, 1152, %s' % (vr(T), vr(T))); e('v_add_u32 %s, %s, %s' % (vr(VP+1), vr(VP+1), vr(T)))
        e('v_lshl_add_u32 %s, %s, 7, %s' % (vr(VP+1), vr(VP+3), vr(VP+1)))
        e('s_and_b32 s64, s59, 1'); e('s_lshl_b32 s64, s64, 9')
        P.raw('buffer_load_dword %s, %s, %s, s64 offen' % (vr(VP+3), vr(VP+1), sr(S_WQ,4)))
    e('s_mul_i32 %s, %s, 144' % (sr(S_SO), sr(S_HG)))
    e('s_lshl_b32 %s, %s, 10' % (sr(S_WB), sr(S_W))); e('s_add_u32 %s, %s, %d' % (sr(S_WB), sr(S_WB), XR_END))
    n2 = len(W2)
    for ks in range(4):
        for t in range(4):
            e('s_add_u32 m0, %s, %d' % (sr(S_WB), ks*WSLOT + t*4096))
            if t == 0: e('s_add_u32 %s, %s, %d' % (sr(S_T0), sr(S_SO), ks*32*3456))
            else: e('s_nop 0')
            e('buffer_load_dwordx4 %s, %s, %s offen lds' % (vr(VW+t), sr(S_WQ,4), sr(S_T0)), tag='w%d' % ks)
            work(W2, (n2 + 15)//16)
    work(W2, 999)
    e('s_add_u32 %s, %s, %d' % (sr(S_SO), sr(S_SO), 4*32*3456))
    stamp('issued')
    if prefetch: prefetch(P)
    def reads(st, kp, ni):
        l = []
        for mt in range(5):
            rd = VB[kp] if mt < 4 else VBH[kp]
            l.append('ds_read_b128 %s, %s offset:%d' % (vr(BB[st]+4*mt, 4), vr(rd), mt*18432 if mt < 4 else 0))
        for i in range(ni):
            for u in range(2):
                l.append('ds_read_b64_tr_b16 %s, %s offset:%d' % (vr(AB[st]+4*i+2*u, 2), vr(VA+i), u*576))
        return l
    def ones_fix(st):
        for d in range(4): e('v_cndmask_b32 %s, %s, %s, %s' % (vr(BB[st]+d), vr(BB[st]+d), vr(VONE), sr(S_MASK, 2)))
    P.wait_vm_tag('w0'); e('s_barrier')
    stamp('w0')
    for i in range(4): e('v_mov_b32 %s, %s' % (vr(VA+i), vr(PA+i)))
    for t in reads(0, 0, 4): e(t)
    e('s_mov_b32 %s, 0' % sr(S_C)); e('s_mov_b32 %s, 9' % sr(S_CNT))
    e('s_waitcnt lgkmcnt(0)')
    ones_fix(0)
    e('s_cmp_eq_u32 %s, 3' % sr(S_W)); e('s_cbranch_scc1 L_%s_loop3' % name)
    spans = {}
    def loop(lab, stats_wave):
        P.raw('.p2align 6'); P.raw('L_%s_%s:' % (name, lab))
        a0 = len(P.ins)
        for kp in range(2):
            cur, nxt = kp, 1-kp
            e('s_waitcnt vmcnt(8)'); e('s_barrier')
            e('s_lshl_b32 %s, %s, 14' % (sr(S_T0), sr(S_C))); e('s_add_u32 %s, %s, %s' % (sr(S_WA), sr(S_WB), sr(S_T0)))
            e('s_add_u32 %s, %s, 1' % (sr(S_C), sr(S_C))); e('s_and_b32 %s, %s, 3' % (sr(S_C), sr(S_C))); e('s_lshl_b32 %s, %s, 14' % (sr(S_RA), sr(S_C)))
            for i in range(2 if stats_wave else 4): e('v_add_u32 %s, %s, %s' % (vr(VA+i), sr(S_RA), vr(PA+i)))
            if kp == 1:
                e('v_add_u32 %s, 1024, %s' % (vr(VB[0]), vr(VB[0]))); e('v_add_u32 %s, 1024, %s' % (vr(VBH[0]), vr(VBH[0])))
            rd = reads(nxt, 1-kp, 2 if stats_wave else 4)
            n = 0; dq = 0
            for i in range(4):
                for mt in range(5):
                    A = vr(AB[cur]+4*i, 4)
                    if stats_wave and i == 2: A = vr(VONE, 4)
                    if stats_wave and i == 3: A = vr(BB[cur]+4*mt, 4)
                    e('v_mfma_f32_16x16x32_bf16 %s, %s, %s, %s' % (vr(acc(i, mt), 4), A, vr(BB[cur]+4*mt, 4), vr(acc(i, mt), 4)))
                    if n in (12, 14, 16, 18):
                        e('s_add_u32 m0, %s, %d' % (sr(S_WA), dq*4096))
                    if n in (13, 15, 17, 19):
                        e('buffer_load_dwordx4 %s, %s, %s offen lds' % (vr(VW+dq), sr(S_WQ,4), sr(S_SO))); dq += 1
                    elif rd: e(rd.pop(0))
                    n += 1
            assert not rd and dq == 4
            e('s_add_u32 %s, %s, %d' % (sr(S_SO), sr(S_SO), 32*3456))
            if kp == 0:
                e('v_add_u32 %s, 1024, %s' % (vr(VB[1]), vr(VB[1]))); e('v_add_u32 %s, 1024, %s' % (vr(VBH[1]), vr(VBH[1])))
            e('s_waitcnt lgkmcnt(0)')
            ones_fix(nxt)
            if kp == 0: e('s_nop 0')
        e('s_sub_u32 %s, %s, 1' % (sr(S_CNT), sr(S_CNT))); e('s_cmp_lg_u32 %s, 0' % sr(S_CNT)); e('s_cbranch_scc1 L_%s_%s' % (name, lab))
        spans[lab] = (a0, len(P.ins))
    loop('loop', False)
    e('s_branch L_%s_after' % name)
    b3 = len(P.ins)
    loop('loop3', True)
    STAT = LDS_BYTES - 1024*0
    e('v_and_b32 v1, 15, v0'); e('v_lshrrev_b32 %s, 4, v0' % vr(T)); e('v_lshrrev_b32 %s, 2, v1' % vr(T+1)); e('v_and_b32 %s, 3, v1' % vr(T+2))
    e('v_cmp_eq_u32 s[50:51], %s, %s' % (vr(T), vr(T+1)))
    for r in range(1, 4): e('v_cmp_eq_u32 s[%d:%d], %d, %s' % (50+2*r, 51+2*r, r, vr(T+2)))
    e('v_lshlrev_b32 v1, 3, v1'); e('v_add_u32 v1, %d, v1' % STAT)
    e('s_mov_b32 %s, 0x%08x' % (sr(S_T0), f2u(1.0/576)))
    for mt in range(5):
        g = acc(3, mt)
        for r in range(1, 4): e('v_cndmask_b32 %s, %s, %s, s[%d:%d]' % (vr(g), vr(g), vr(g+r), 50+2*r, 51+2*r))
    for mt in range(5): e('v_mul_f32 %s, %s, %s' % (vr(acc(2, mt)), sr(S_T0), vr(acc(2, mt))))
    for mt in range(5): e('v_mul_f32 %s, %s, %s' % (vr(acc(3, mt)), sr(S_T0), vr(acc(3, mt))))
    for mt in range(5): e('v_fma_f32 %s, -%s, %s, %s' % (vr(acc(3, mt)), vr(acc(2, mt)), vr(acc(2, mt)), vr(acc(3, mt))))
    for mt in range(5): e('v_max_f32 %s, 0, %s' % (vr(acc(3, mt)), vr(acc(3, mt))))
    for mt in range(5): e('v_add_f32 %s, 0x%08x, %s' % (vr(acc(3, mt)), f2u(1e-5), vr(acc(3, mt))))
    for mt in range(5): e('v_rsq_f32 %s, %s' % (vr(acc(3, mt)+1), vr(acc(3, mt))))
    e('s_nop 0')
    for mt in range(5): e('v_mul_f32 %s, -%s, %s' % (vr(acc(3, mt)), vr(acc(2, mt)), vr(acc(3, mt)+1)))
    e('s_mov_b64 exec, s[50:51]')
    for mt in range(5): e('ds_write_b64 v1, %s offset:%d' % (vr(acc(3, mt), 2), 128*mt))
    e('s_mov_b64 exec, -1')
    e3 = len(P.ins)
    P.raw('L_%s_after:' % name)
    after = len(P.ins)
    stamp('loop')
    if 'wo' in pf or 'wg' in pf:
        e('s_load_dwordx2 s[64:65], s[0:1], %d' % KA_WO); e('s_load_dwordx2 s[66:67], s[0:1], %d' % KA_WG)
        e('v_mul_u32_u24 %s, 7282, %s' % (vr(VP+1), vr(VP))); e('v_lshrrev_b32 %s, 16, %s' % (vr(VP+1), vr(VP+1)))
        e('v_mul_u32_u24 %s, 9, %s' % (vr(VP+2), vr(VP+1))); e('v_sub_u32 %s, %s, %s' % (vr(VP+2), vr(VP), vr(VP+2)))
        e('s_mul_i32 s68, s58, 18'); e('v_add_u32 %s, s68, %s' % (vr(VP+1), vr(VP+1))); e('v_mul_u32_u24 %s, 9216, %s' % (vr(VP+1), vr(VP+1)))
        e('v_lshl_add_u32 %s, %s, 7, %s' % (vr(VP+1), vr(VP+2), vr(VP+1)))
        e('s_mul_i32 s68, s58, 162'); e('v_add_u32 %s, s68, %s' % (vr(VP+2), vr(VP))); e('v_lshlrev_b32 %s, 7, %s' % (vr(VP+2), vr(VP+2)))
        e('v_cmp_gt_u32 vcc, 162, %s' % vr(VP)); e('v_mov_b32 %s, 0x7fff0000' % vr(VP+3)); e('s_mul_i32 s69, s59, 1152')
        e('v_cndmask_b32 %s, %s, %s, vcc' % (vr(VP+1), vr(VP+3), vr(VP+1))); e('v_cndmask_b32 %s, %s, %s, vcc' % (vr(VP+2), vr(VP+3), vr(VP+2)))
        e('s_waitcnt lgkmcnt(0)')
        e('s_mov_b32 s72, s64'); e('s_mov_b32 s73, s65'); e('s_mov_b32 s74, 0x%x' % (D_*D_*2)); e('s_mov_b32 s75, 0x%x' % SRD3)
        e('s_mov_b32 s76, s66'); e('s_mov_b32 s77, s67'); e('s_mov_b32 s78, 0x%x' % (D_*F_*2)); e('s_mov_b32 s79, 0x%x' % SRD3)
        if 'wo' in pf: P.raw('buffer_load_dword v14, %s, s[72:75], 0 offen' % vr(VP+2))
        if 'wg' in pf: P.raw('buffer_load_dword v15, %s, s[76:79], s69 offen' % vr(VP+1))
    CS = BB[0]
    e('s_nop 4')
    for i in range(4):
        for r in range(4):
            e('v_mov_b32_dpp %s, %s row_newbcast:0 row_mask:0xf bank_mask:0xf' % (vr(CS+4*i+r), vr(acc(i, 0)+r)))
    e('s_waitcnt lgkmcnt(0)'); e('s_barrier')
    ST = BB[1]
    e('v_and_b32 v1, 15, v0'); e('v_lshlrev_b32 v1, 3, v1'); e('v_add_u32 v1, %d, v1' % STAT)
    for mt in range(5): e('ds_read_b64 %s, v1 offset:%d' % (vr(ST+2*mt, 2), 128*mt))
    e('s_waitcnt lgkmcnt(0)')
    for mt in range(5):
        for i in range(4):
            a = acc(i, mt); t0 = T + 4*(i % 2)
            for r in range(4): e('v_mul_f32 %s, %s, %s' % (vr(t0+r), vr(ST+2*mt), vr(CS+4*i+r)))
            for r in range(4): e('v_fma_f32 %s, %s, %s, %s' % (vr(a+r), vr(a+r), vr(ST+2*mt+1), vr(t0+r)))
            e('v_cvt_pk_bf16_f32 %s, %s, %s' % (vr(a), vr(a), vr(a+1))); e('v_cvt_pk_bf16_f32 %s, %s, %s' % (vr(a+1), vr(a+2), vr(a+3)))
            for d2 in range(2): e('ds_write_b32 %s, %s offset:%d' % (vr(VWA+2*i+d2), vr(a+d2), 640*mt))
    e('s_waitcnt lgkmcnt(0)'); e('s_barrier')
    stamp('fix')
    AD = 2
    e('v_add_u32 v1, 2, v0'); e('v_mul_u32_u24 %s, 40, v1' % vr(AD))
    e('s_mul_i32 %s, %s, 3200' % (sr(S_T0), sr(S_W))); e('v_add_u32 %s, %s, %s' % (vr(AD), sr(S_T0), vr(AD)))
    QR = 40; KR = 112; L = 50
    def rdvec(dst, kind, w):
        for t in range(5): e('ds_read_b64 %s, %s offset:%d' % (vr(dst+2*t, 2), vr(AD), kind*12800 + (14 - 2*w)*40 + 8*t))
    def kreg(w): return KR + 10*w
    rdvec(QR, 0, 0); rdvec(kreg(0), 1, 0); rdvec(kreg(1), 1, 1)
    for w in range(0, 8, 2):
        P.wait_lg_regs(rset('v', QR, 10) + rset('v', kreg(w), 10) + rset('v', kreg(w+1), 10))
        if w + 2 < 8: rdvec(kreg(w+2), 1, w+2); rdvec(kreg(w+3), 1, w+3)
        for d in range(9):
            for ww in (w, w+1):
                e('v_dot2_f32_bf16 %s, %s, %s, %s' % (vr(L+ww), vr(QR+d), vr(kreg(ww)+d), '0' if d == 0 else vr(L+ww)))
    rdvec(kreg(0), 2, 0); rdvec(kreg(1), 2, 1); rdvec(kreg(2), 2, 2)
    e('s_lshl_b32 %s, %s, 6' % (sr(S_T0), sr(S_MI))); e('v_add_u32 %s, %s, v0' % (vr(T), sr(S_T0))); e('v_mov_b32 %s, 0x%08x' % (vr(T+1), f2u(-1e9)))
    for w in range(1, 8):
        e('v_cmp_gt_u32 vcc, %d, %s' % (2*w, vr(T))); e('s_nop 1'); e('v_cndmask_b32 %s, %s, %s, vcc' % (vr(L+w), vr(L+w), vr(T+1)))
    e('v_max3_f32 %s, %s, %s, %s' % (vr(T+2), vr(L), vr(L+1), vr(L+2))); e('v_max3_f32 %s, %s, %s, %s' % (vr(T+3), vr(L+3), vr(L+4), vr(L+5)))
    e('v_max3_f32 %s, %s, %s, %s' % (vr(T+2), vr(T+2), vr(L+6), vr(L+7))); e('v_max_f32 %s, %s, %s' % (vr(T+2), vr(T+2), vr(T+3)))
    CSC = 18**-0.5 * 1.4426950408889634
    e('s_mov_b32 %s, 0x%08x' % (sr(S_T1), f2u(CSC)))
    e('v_mul_f32 %s, %s, %s' % (vr(T+2), sr(S_T1), vr(T+2)))
    for w in range(8): e('v_fma_f32 %s, %s, %s, -%s' % (vr(L+w), vr(L+w), sr(S_T1), vr(T+2)))
    for w in range(8): e('v_exp_f32 %s, %s' % (vr(L+w), vr(L+w)))
    P.wait_lg_regs(rset('v', kreg(2), 10))
    rdvec(kreg(3), 2, 3); rdvec(kreg(4), 2, 4); rdvec(kreg(5), 2, 5)
    e('v_add_f32 %s, %s, %s' % (vr(T+2), vr(L), vr(L+1))); e('v_add_f32 %s, %s, %s' % (vr(T+3), vr(L+2), vr(L+3)))
    e('v_add_f32 %s, %s, %s' % (vr(T+4), vr(L+4), vr(L+5))); e('v_add_f32 %s, %s, %s' % (vr(T+5), vr(L+6), vr(L+7)))
    e('v_add_f32 %s, %s, %s' % (vr(T+2), vr(T+2), vr(T+3))); e('v_add_f32 %s, %s, %s' % (vr(T+4), vr(T+4), vr(T+5))); e('v_add_f32 %s, %s, %s' % (vr(T+2), vr(T+2), vr(T+4)))
    e('v_rcp_f32 %s, %s' % (vr(T+2), vr(T+2))); e('s_nop 0')
    for w in range(8): e('v_mul_f32 %s, %s, %s' % (vr(L+w), vr(L+w), vr(T+2)))
    PL, PH = 60, 68
    for w in range(8):
        e('v_cvt_pk_bf16_f32 %s, %s, 0' % (vr(PL+w), vr(L+w))); e('v_cvt_pk_bf16_f32 %s, 0, %s' % (vr(PH+w), vr(L+w)))
    OL, OH = 80, 90
    def pv(w):
        for d in range(9):
            e('v_dot2_f32_bf16 %s, %s, %s, %s' % (vr(OL+d), vr(kreg(w)+d), vr(PL+w), '0' if w == 0 else vr(OL+d)))
            e('v_dot2_f32_bf16 %s, %s, %s, %s' % (vr(OH+d), vr(kreg(w)+d), vr(PH+w), '0' if w == 0 else vr(OH+d)))
    pv(0); pv(1); pv(2)
    P.wait_lg_regs(rset('v', kreg(5), 10))
    rdvec(kreg(6), 2, 6); rdvec(kreg(7), 2, 7)
    pv(3); pv(4); pv(5)
    P.wait_lg_regs(rset('v', kreg(7), 10))
    pv(6); pv(7)
    e('v_lshrrev_b32 %s, 4, v0' % vr(T)); e('s_lshl_b32 %s, %s, 2' % (sr(S_T0), sr(S_MI))); e('v_add_u32 %s, %s, %s' % (vr(T), sr(S_T0), vr(T)))
    e('v_mul_u32_u24 %s, 18432, %s' % (vr(T), vr(T))); e('v_and_b32 %s, 15, v0' % vr(T+1)); e('v_lshl_add_u32 %s, %s, 4, %s' % (vr(T), vr(T+1), vr(T)))
    for d in range(9): e('v_cvt_pk_bf16_f32 %s, %s, %s' % (vr(QR+d), vr(OL+d), vr(OH+d)))
    for d in range(9): e('buffer_store_dword %s, %s, %s, %s offen' % (vr(QR+d), vr(T), sr(S_WS,4), sr(S_OD+d)))
    stamp('attn'); stamp.finish()
    P.raw('L_%s_end:' % name)
    e('s_endpgm')
    ins = P.ins
    a0, a1 = spans['loop']; c0, c1 = spans['loop3']
    path = ins[:a0] + ins[a0:a1]*3 + ins[after:]
    path3 = ins[:a0] + ins[c0:c1]*3 + ins[c1:]
    return P, (path, path3), dict(vgpr=200, accum=200, sgpr=102 if dbg else (84 if pf else 60), grid=256, block=256, lds=LDS_BYTES + 1024, stamps=stamp.names)

if __name__ == '__main__':
    P, paths, o = build()
    for p in paths: check(p, 'k1')
    print(len(P.ins), o)
```

```python
from core import *
from common import *
from sched import *
from stamps import Stamper

def build(name='k2_kernel', prefetch=None, dbg=False, pf=None):
    P = Prog(); e = P.e
    NWG = 256 if pf == 'help' else 216
    V_L16, V_OG, V_RD, V_RD2, V_XO, V_T = 1, 2, 5, 6, 7, 8
    V_B, V_ACC, V_X, V_U = 16, 160, 192, 208
    A_W, NF, LAR = 0, 12, 12
    S_WS, S_WO, S_X = 8, 12, 16
    S_W, S_MG, S_NG, S_MT, S_T0, S_T1, S_OO, S_WOFF = 20, 21, 22, 23, 24, 25, 26, 27
    e('s_cmp_ge_u32 s2, %d' % NWG); e('s_cbranch_scc1 L_%s_end' % name)
    stamp = Stamper(P, dbg, S_W); stamp('start')
    e('s_load_dwordx2 s[4:5], s[0:1], %d' % KA_WS); e('s_load_dwordx2 s[6:7], s[0:1], %d' % KA_WO); e('s_load_dwordx2 s[28:29], s[0:1], %d' % KA_X)
    e('v_mov_b32 %s, v0' % vr(V_T+7))
    e('v_lshrrev_b32 %s, 6, v0' % vr(V_T)); e('v_and_b32 v0, 63, v0')
    e('v_readfirstlane_b32 %s, %s' % (sr(S_W), vr(V_T)))
    e('v_lshlrev_b32 %s, 4, v0' % vr(V_L16))
    e('s_lshr_b32 %s, s2, 3' % sr(S_T0)); e('s_mul_i32 %s, %s, 57' % (sr(S_T1), sr(S_T0))); e('s_lshr_b32 %s, %s, 9' % (sr(S_T1), sr(S_T1)))
    e('s_mul_i32 %s, %s, 9' % (sr(S_NG), sr(S_T1))); e('s_sub_u32 %s, %s, %s' % (sr(S_NG), sr(S_T0), sr(S_NG)))
    e('s_lshl_b32 %s, %s, 3' % (sr(S_MG), sr(S_T1))); e('s_and_b32 %s, s2, 7' % sr(S_T0)); e('s_add_u32 %s, %s, %s' % (sr(S_MG), sr(S_MG), sr(S_T0)))
    skip = (0, 0)
    if pf == 'help':
        e('s_cmp_lt_u32 s2, 216'); e('s_cbranch_scc1 L_%s_tile' % name)
        help0 = len(P.ins)
        e('s_load_dwordx2 s[44:45], s[0:1], %d' % KA_WU); e('s_load_dwordx2 s[46:47], s[0:1], %d' % KA_WD)
        e('s_lshr_b32 s50, s2, 3'); e('s_sub_u32 s50, s50, 27'); e('s_mul_i32 s50, s50, 192'); e('v_add_u32 %s, s50, %s' % (vr(V_U), vr(V_T+7)))
        e('v_mul_u32_u24 %s, 7282, %s' % (vr(V_U+1), vr(V_U))); e('v_lshrrev_b32 %s, 16, %s' % (vr(V_U+1), vr(V_U+1)))
        e('v_mul_u32_u24 %s, 9, %s' % (vr(V_U+2), vr(V_U+1))); e('v_sub_u32 %s, %s, %s' % (vr(V_U+2), vr(V_U), vr(V_U+2)))
        e('v_mul_u32_u24 %s, 9216, %s' % (vr(V_U+1), vr(V_U+1))); e('v_lshl_add_u32 %s, %s, 7, %s' % (vr(V_U+1), vr(V_U+2), vr(V_U+1)))
        e('v_cmp_gt_u32 vcc, 954, %s' % vr(V_U)); e('v_mov_b32 %s, 0x7fff0000' % vr(V_U+3)); e('v_lshlrev_b32 %s, 7, %s' % (vr(V_U), vr(V_U)))
        e('v_cndmask_b32 %s, %s, %s, vcc' % (vr(V_U+1), vr(V_U+3), vr(V_U+1)))
        e('s_and_b32 s51, s2, 7'); e('s_mul_i32 s52, s51, 1152'); e('s_mul_i32 s53, s51, %d' % (576*1152))
        e('s_waitcnt lgkmcnt(0)')
        for k in range(2):
            b = 56 + 4*k
            e('s_mov_b32 s%d, s%d' % (b, 44+2*k)); e('s_mov_b32 s%d, s%d' % (b+1, 45+2*k)); e('s_mov_b32 s%d, 0x%x' % (b+2, D_*F_*2)); e('s_mov_b32 s%d, 0x%x' % (b+3, SRD3))
        for k in range(6):
            P.raw('buffer_load_dword %s, %s, s[56:59], s52 offen' % (vr(V_B+k), vr(V_U+1)))
            P.raw('buffer_load_dword %s, %s, s[60:63], s53 offen' % (vr(V_B+8+k), vr(V_U)))
            e('s_add_u32 s52, s52, %d' % (106*9216)); e('s_add_u32 s53, s53, %d' % (960*128))
        e('s_branch L_%s_end' % name)
        skip = (help0, len(P.ins))
        P.raw('L_%s_tile:' % name)
    e('s_cmp_ge_u32 %s, 22' % sr(S_MG)); e('s_cbranch_scc1 L_%s_end' % name)
    e('s_mul_i32 %s, %s, 6' % (sr(S_MT), sr(S_MG))); e('s_lshl_b32 %s, %s, 1' % (sr(S_T0), sr(S_W))); e('s_add_u32 %s, %s, %s' % (sr(S_MT), sr(S_MT), sr(S_T0)))
    e('s_mul_i32 %s, %s, %d' % (sr(S_OO), sr(S_MT), 18*1024))
    T = V_T
    e('v_bfe_u32 %s, v0, 1, 3' % vr(T)); e('v_mul_u32_u24 %s, 1152, %s' % (vr(T), vr(T)))
    e('v_lshrrev_b32 %s, 4, v0' % vr(T+1)); e('v_lshl_add_u32 %s, %s, 5, %s' % (vr(T), vr(T+1), vr(T)))
    e('v_and_b32 %s, 1, v0' % vr(T+2)); e('v_lshl_add_u32 %s, %s, 4, %s' % (vr(V_OG), vr(T+2), vr(T)))
    e('v_add_u32 %s, %d, %s' % (vr(V_OG+1), 8*1152 - 1024, vr(V_OG))); e('v_add_u32 %s, %d, %s' % (vr(V_OG+2), 2*(8*1152 - 1024), vr(V_OG)))
    e('s_mul_i32 %s, %s, %d' % (sr(S_WOFF), sr(S_W), 64*1152)); e('s_lshl_b32 %s, %s, 7' % (sr(S_T0), sr(S_NG))); e('s_add_u32 %s, %s, %s' % (sr(S_WOFF), sr(S_WOFF), sr(S_T0)))
    e('s_lshl_b32 s30, %s, 13' % sr(S_W))
    e('s_waitcnt lgkmcnt(0)')
    for srd, lo, hi, size in ((S_WS, 4, 5, WS_END), (S_WO, 6, 7, D_*D_*2), (S_X, 28, 29, S_*D_*2)):
        e('s_mov_b32 %s, s%d' % (sr(srd), lo)); e('s_mov_b32 %s, s%d' % (sr(srd+1), hi))
        e('s_mov_b32 %s, 0x%x' % (sr(srd+2), size)); e('s_mov_b32 %s, 0x%x' % (sr(srd+3), SRD3))
    def bfrag(ks, mm): return V_B + 8*ks + 4*mm
    stamp('setup')
    def phase_items(j):
        it = []
        for g, n in ((0, 3), (3, 3), (6, 2)):
            it.append(('S', 's_add_u32 %s, %s, %d' % (sr(S_T0), sr(S_WOFF), (192*j + 8*g)*1152), None))
            it.append(('S', 's_add_u32 m0, s30, %d' % ((24*j + g)*1024), None))
            for q in range(n):
                it.append(('D', 'buffer_load_dwordx4 %s, %s, %s offen offset:%d lds' % (vr(V_OG+q), sr(S_WO,4), sr(S_T0), 1024*q), 'ph%d' % j))
        for ks in range(6*j, 6*j+6):
            for mm in range(2):
                it.append(('S', 's_add_u32 %s, %s, %d' % (sr(S_T1), sr(S_OO), (18*mm + ks)*1024), None))
                it.append(('D', 'buffer_load_dwordx4 %s, %s, %s, %s offen' % (vr(bfrag(ks, mm), 4), vr(V_L16), sr(S_WS,4), sr(S_T1)), 'ph%d' % j))
        return it
    for j in range(2):
        for kind, text, tag in phase_items(j):
            e(text, tag=tag)
            if ' m0,' in text: e('s_nop 0')
    e('s_cmp_ge_u32 s2, 8'); e('s_cbranch_scc1 L_%s_noflag' % name)
    e('v_cmp_gt_u32 vcc, 128, %s' % vr(V_T+7)); e('s_lshl_b32 %s, s2, 9' % sr(S_T0)); e('s_add_u32 %s, %s, 0x%x' % (sr(S_T0), sr(S_T0), WS_FLAG))
    e('v_lshlrev_b32 %s, 2, %s' % (vr(V_T+6), vr(V_T+7))); e('v_mov_b32 %s, 0' % vr(V_T+5))
    e('s_and_saveexec_b64 s[34:35], vcc'); e('s_cbranch_execz L_%s_noflag2' % name)
    P.raw('buffer_store_dword %s, %s, %s, %s offen' % (vr(V_T+5), vr(V_T+6), sr(S_WS,4), sr(S_T0)))
    P.raw('L_%s_noflag2:' % name)
    e('s_mov_b64 exec, s[34:35]')
    P.raw('L_%s_noflag:' % name)
    stamp('issued')
    e('v_lshrrev_b32 %s, 4, v0' % vr(T+1))
    e('v_bfe_u32 %s, v0, 2, 2' % vr(T)); e('v_lshlrev_b32 %s, 5, %s' % (vr(T), vr(T)))
    e('v_and_b32 %s, 3, v0' % vr(T+2)); e('v_lshl_add_u32 %s, %s, 3, %s' % (vr(T), vr(T+2), vr(T)))
    e('v_and_b32 %s, 1, %s' % (vr(T+2), vr(T+1))); e('v_lshl_add_u32 %s, %s, 7, %s' % (vr(T), vr(T+2), vr(T)))
    e('v_lshrrev_b32 %s, 1, %s' % (vr(T+2), vr(T+1))); e('v_lshl_add_u32 %s, %s, 10, %s' % (vr(V_RD), vr(T+2), vr(T)))
    e('v_add_u32 %s, 36864, %s' % (vr(V_RD2), vr(V_RD)))
    e('v_and_b32 %s, 15, v0' % vr(T)); e('v_mul_u32_u24 %s, 1152, %s' % (vr(T), vr(T))); e('v_lshl_add_u32 %s, %s, 3, %s' % (vr(V_XO), vr(T+1), vr(T)))
    e('s_mul_i32 s31, %s, %d' % (sr(S_MT), 16*1152)); e('s_lshl_b32 %s, %s, 7' % (sr(S_T0), sr(S_NG))); e('s_add_u32 s31, s31, %s' % sr(S_T0))
    e('s_mov_b32 s32, 0x3f80'); e('s_mov_b32 s33, 0x3f800000')
    if prefetch: prefetch(P, V_U, V_T)
    P.wait_vm_tag('ph0'); i = e('s_barrier'); i.meta = dict(needs='ph0')
    stamp('ph0')
    S = Stream()
    def acc(nt, mm): return vr(V_ACC + 8*nt + 4*mm, 4)
    for j in range(3):
        fr = []; mf = []
        for nt in range(4):
            for g in range(2):
                f0 = len(fr)
                for t in range(3):
                    ks = 6*j + 3*g + t; kl = ks % 9
                    fr.append(Frag(V_RD if ks < 9 else V_RD2, (4*kl)*1024 + nt*256, (4*kl+2)*1024 + nt*256))
                for mm in range(2):
                    for t in range(3):
                        ks = 6*j + 3*g + t
                        mf.append(MF(acc(nt, mm), f0+t, vr(bfrag(ks, mm), 4), '0' if ks == 0 else acc(nt, mm), [f0, f0+1, f0+2] if (mm == 0 and t == 0) else None))
        S.add(fr, mf)
    fx = Fixed()
    ch = []; g = 0
    for kind, text, tag in phase_items(2):
        ch.append((g, kind, text, tag)); g += 1 if kind == 'S' else 1
    for mm in range(2):
        ch.append((60, 'S', 's_add_u32 s36, s31, %d' % (16*1152*mm), None))
        for nt in range(4):
            ch.append((60, 'D', 'buffer_load_dwordx2 %s, %s, %s, s36 offen offset:%d' % (vr(V_X + 8*mm + 2*nt, 2), vr(V_XO), sr(S_X,4), 32*nt), 'x'))
    fx.chain(ch)
    for j in (1, 2):
        fx.put(48*j - LAR - 2, 'L', '@waitvm', 'ph%d' % j); fx.put(48*j - LAR - 2, 'B', 's_barrier', 'ph%d' % j)
    emit_stream(P, S, [], fx, [], A_W, NF, LAR, first_reads=True)
    stamp('gemm')
    e('s_cmp_ge_u32 %s, 128' % sr(S_MT)); e('s_cbranch_scc1 L_%s_end' % name)
    P.wait_vm_tag('x')
    e('s_nop 4')
    for mm in range(2):
        for nt in range(4):
            for r in range(4):
                a = V_ACC + 8*nt + 4*mm + r
                e('v_dot2_f32_bf16 %s, %s, s%d, %s' % (vr(a), vr(V_X + 8*mm + 2*nt + r//2), 32 + (r % 2), vr(a)))
    e('s_nop 1')
    U = V_U
    for mm in range(2):
        first = True
        for nt in range(4):
            for r in range(4):
                a = vr(V_ACC + 8*nt + 4*mm + r)
                if first:
                    e('v_mov_b32 %s, %s' % (vr(U+2*mm), a)); e('v_mul_f32 %s, %s, %s' % (vr(U+2*mm+1), a, a)); first = False
                else:
                    e('v_add_f32 %s, %s, %s' % (vr(U+2*mm), vr(U+2*mm), a)); e('v_fma_f32 %s, %s, %s, %s' % (vr(U+2*mm+1), a, a, vr(U+2*mm+1)))
    H = V_U + 8
    for mm in range(2):
        e('s_add_u32 %s, %s, %d' % (sr(S_T0), sr(S_MT), mm)); e('s_mul_i32 %s, %s, 18' % (sr(S_T0), sr(S_T0)))
        e('s_lshl_b32 %s, %s, 1' % (sr(S_T1), sr(S_NG))); e('s_add_u32 %s, %s, %s' % (sr(S_T0), sr(S_T0), sr(S_T1)))
        e('s_lshl_b32 %s, %s, 10' % (sr(S_T0), sr(S_T0))); e('s_add_u32 %s, %s, 0x%x' % (sr(S_T0), sr(S_T0), WS_HF))
        for p in range(2):
            hb = H + 8*mm + 4*p
            for k in range(2):
                a = V_ACC + 8*(2*p+k) + 4*mm
                e('v_cvt_pk_bf16_f32 %s, %s, %s' % (vr(hb+2*k), vr(a), vr(a+1))); e('v_cvt_pk_bf16_f32 %s, %s, %s' % (vr(hb+2*k+1), vr(a+2), vr(a+3)))
            e('buffer_store_dwordx4 %s, %s, %s, %s offen offset:%d sc1' % (vr(hb,4), vr(V_L16), sr(S_WS,4), sr(S_T0), 1024*p))
    for swap in ('v_permlane32_swap_b32', 'v_permlane16_swap_b32'):
        for k in range(4): e('v_mov_b32 %s, %s' % (vr(U+4+k), vr(U+k)))
        e('s_nop 1')
        for k in range(4): e('%s %s, %s' % (swap, vr(U+k), vr(U+4+k)))
        e('s_nop 1')
        for k in range(4): e('v_add_f32 %s, %s, %s' % (vr(U+k), vr(U+k), vr(U+4+k)))
    e('v_and_b32 %s, 15, v0' % vr(T)); e('v_lshlrev_b32 %s, 3, %s' % (vr(T), vr(T)))
    e('s_lshl_b32 %s, %s, 11' % (sr(S_T0), sr(S_NG))); e('s_lshl_b32 %s, %s, 4' % (sr(S_T1), sr(S_MT))); e('s_add_u32 %s, %s, %s' % (sr(S_T0), sr(S_T0), sr(S_T1)))
    e('s_lshl_b32 %s, %s, 3' % (sr(S_T0), sr(S_T0))); e('s_add_u32 %s, %s, 0x%x' % (sr(S_T0), sr(S_T0), WS_ST))
    e('s_mov_b64 exec, 0xffff')
    for mm in range(2):
        e('buffer_store_dwordx2 %s, %s, %s, %s offen offset:%d' % (vr(U+2*mm, 2), vr(T), sr(S_WS,4), sr(S_T0), 128*mm))
    stamp('epi'); stamp.finish()
    P.raw('L_%s_end:' % name)
    e('s_endpgm')
    P.path = P.ins[:skip[0]] + P.ins[skip[1]:]
    return P, dict(stamps=stamp.names, vgpr=232+48, accum=232, sgpr=102 if dbg else (72 if pf else 40), grid=NWG, block=192, lds=73728)

if __name__ == '__main__':
    P, o = build(); check(P.ins, 'k2'); print(verify_barriers(P.ins))
```

```python
from core import *
from common import *
from sched import *

SLOT = 36864
NF, LAR = 12, 12
def set_lar(x):
    global LAR
    LAR = x
V_RD, V_RD2 = 3, 4
V_PG, V_PH, V_PDE, V_PDO = 5, 6, 7, 8
V_OG, V_OH, V_OD = 9, 12, 15
V_C0, V_C1, V_K = 24, 26, 28
V_L16, V_FL = 30, 31
V_PO = 1
V_T = 32
V_H, V_HH = 40, 56
V_G, V_U = 64, 96
V_X = 128
A_OUT, A_X, A_W, A_HP = 0, 144, 160, 208
S_WG, S_WU, S_WD, S_WS = 8, 12, 16, 20
S_W = 24
S_GCOL, S_HCOL, S_DROW = 25, 26, 27
S_E = 28
S_HXO, S_HXP, S_P = 33, 34, 35
S_WR, S_WRAP, S_WOFF, S_RD = 36, 37, 38, 39
S_CNT, S_T0, S_T1 = 40, 41, 42
S_FLO, S_FLP, S_FVAL = 43, 44, 45
S_LO, S_HI = 46, 47
S_XO = 48
S_A, S_B, S_C, S_D = 50, 51, 52, 53
S_JP, S_S, S_I, S_FB, S_HB = 58, 59, 60, 61, 62
OPT = dict(no_dma=False, no_bar=False, no_valu=False, cap=3)

def xi_reg(ks, mm):
    xi = 2*ks + mm
    return ('v', V_X + 4*xi) if xi < 32 else ('a', A_X + 4*(xi-32))
def xfrag(ks, mm):
    k, b = xi_reg(ks, mm); return vr(b, 4) if k == 'v' else ar(b, 4)
def hpfrag(th, mm):
    x = 2*th + mm
    return ar(A_HP + 4*x, 4) if x < 12 else vr(V_X + 4*(x-12), 4)
def acc(base, ft, mm): return vr(base + 8*ft + 4*mm, 4)
def out(nt, mm): return ar(A_OUT + 8*nt + 4*mm, 4)

def st_GU(base, kh, first, fts=(0,1,2,3), rd=V_RD):
    fr = []; mf = []
    for ft in fts:
        for g in range(3):
            f0 = len(fr)
            for t in range(3):
                kl = 3*g + t
                fr.append(Frag(rd, (4*kl)*1024 + ft*256, (4*kl+2)*1024 + ft*256))
            for mm in range(2):
                for t in range(3):
                    kl = 3*g + t
                    C = '0' if (first and kl == 0) else acc(base, ft, mm)
                    mf.append(MF(acc(base, ft, mm), f0+t, xfrag(9*kh+kl, mm), C, [f0, f0+1, f0+2] if (mm == 0 and t == 0) else None))
    return fr, mf
def st_half(base):
    fr = []; mf = []
    for ft in range(2):
        for g in range(6):
            f0 = len(fr)
            for t in range(3):
                ks = 3*g + t
                fr.append(Frag(V_RD, (2*ks)*1024 + ft*512, (2*ks+1)*1024 + ft*512))
            for mm in range(2):
                for t in range(3):
                    ks = 3*g + t
                    C = '0' if ks == 0 else acc(base, ft, mm)
                    mf.append(MF(acc(base, ft, mm), f0+t, xfrag(ks, mm), C, [f0, f0+1, f0+2] if (mm == 0 and t == 0) else None))
    return fr, mf
def st_D(bf):
    fr = []; mf = []
    for nt in range(18):
        f0 = len(fr); rd = V_RD if nt % 2 == 0 else V_RD2
        for kq in range(2): fr.append(Frag(rd, (2*kq)*9216 + nt*128, (2*kq+1)*9216 + nt*128))
        for mm in range(2):
            for kq in range(2):
                w = [f0, f0+1, f0+2, f0+3] if (nt % 2 == 0 and mm == 0 and kq == 0) else None
                mf.append(MF(out(nt, mm), f0+kq, bf[kq][mm], out(nt, mm), w))
    return fr, mf
def st_final(bf, rdA, rdB):
    fr = []; mf = []
    for nt in range(18):
        f0 = len(fr)
        for k in range(4):
            rd = (rdA if k < 2 else rdB)[nt % 2]; kq = k % 2
            fr.append(Frag(rd, (2*kq)*9216 + nt*128, (2*kq+1)*9216 + nt*128))
        for mm in range(2):
            for k in range(4):
                w = [f0, f0+1, f0+2, f0+3] if (mm == 0 and k == 0) else None
                mf.append(MF(out(nt, mm), f0+k, bf[k][mm], out(nt, mm), w))
    return fr, mf

def gelu_ops(ft, vals, tb):
    ops = []
    for g0 in range(0, len(vals), 4):
        grp = vals[g0:g0+4]
        def G(v): return vr(V_G + 8*ft + 4*v[0] + v[1])
        steps = [lambda v, t: 'v_mul_f32 %s, %s, %s' % (t, G(v), G(v)),
                 lambda v, t: 'v_fma_f32 %s, %s, %s, %s' % (t, t, vr(V_C1+v[0]), vr(V_C0+v[0])),
                 lambda v, t: 'v_mul_f32 %s, %s, %s' % (t, G(v), t),
                 lambda v, t: 'v_exp_f32 %s, %s' % (t, t),
                 lambda v, t: 'v_fma_f32 %s, %s, %s, %s' % (t, t, vr(V_K+v[0]), vr(V_K+v[0])),
                 lambda v, t: 'v_rcp_f32 %s, %s' % (t, t),
                 lambda v, t: 'v_mul_f32 %s, %s, %s' % (G(v), G(v), t)]
        for st in steps:
            for n, v in enumerate(grp): ops.append(Op(st(v, vr(tb+n))))
    return ops
ALLV = [(mm, r) for mm in range(2) for r in range(4)]
def gelu_q(ft, name, tb): return Queue(gelu_ops(ft, ALLV, tb), name)
def prod_q(ft, H, name, store=None):
    ops = []
    for mm in range(2):
        for r in range(4):
            g = vr(V_G + 8*ft + 4*mm + r)
            ops.append(Op('v_mul_f32 %s, %s, %s' % (g, g, vr(V_U + 8*ft + 4*mm + r))))
    for mm in range(2):
        for d in range(2):
            g = V_G + 8*ft + 4*mm + 2*d
            ops.append(Op('v_cvt_pk_bf16_f32 %s, %s, %s' % (vr(H + 4*mm + 2*(ft % 2) + d), vr(g), vr(g+1))))
    if store:
        soff, imm0, tag = store
        for mm in range(2):
            ops.append(Op('buffer_store_dwordx4 %s, %s, %s, %s offen offset:%d %s' % (vr(H + 4*mm, 4), vr(V_L16), sr(S_WS,4), soff, imm0 + 1024*mm, OPT.get('hst_flags', 'sc1')), tag=tag))
    return Queue(ops, name, prio=True)

S_CW, S_CR = 96, 97
def rot_wr(): return ['s_add_u32 %s, %s, 1' % (sr(S_CW), sr(S_CW)), 's_and_b32 %s, %s, 3' % (sr(S_CW), sr(S_CW)),
                      's_mul_i32 %s, %s, %d' % (sr(S_WR), sr(S_CW), SLOT), 's_add_u32 %s, %s, %s' % (sr(S_WR), sr(S_WR), sr(S_WOFF))]
def rot_rd(): return ['s_add_u32 %s, %s, 1' % (sr(S_CR), sr(S_CR)), 's_and_b32 %s, %s, 3' % (sr(S_CR), sr(S_CR)),
                      's_mul_i32 %s, %s, %d' % (sr(S_RD), sr(S_CR), SLOT)]
def dma_G(srd, scol, kh, tag, step_rows=8):
    it = []
    vo = V_OG if step_rows == 8 else V_OH
    for g in range(3):
        const = (288*kh)*9216 + 3*g*step_rows*9216
        it.append(('S', 's_add_u32 %s, %s, 0x%x' % (sr(S_T0), scol, const) if const else 's_mov_b32 %s, %s' % (sr(S_T0), scol), None))
        it.append(('S', 's_add_u32 m0, %s, %d' % (sr(S_WR), 3072*g) if g else 's_mov_b32 m0, %s' % sr(S_WR), None))
        for q in range(3):
            it.append(('D', 'buffer_load_dwordx4 %s, %s, %s offen offset:%d %s lds' % (vr(vo+q), sr(srd,4), sr(S_T0), 1024*q, OPT.get('dma_flags', '')), tag))
    return it + [('S', t, None) for t in rot_wr()]
def dma_D(srow, tag):
    it = []
    for q in range(9):
        it.append(('S', 's_add_u32 m0, %s, %d' % (sr(S_WR), 1024*q) if q else 's_mov_b32 m0, %s' % sr(S_WR), None))
        it.append(('D', 'buffer_load_dwordx4 %s, %s, %s offen %s lds' % (vr(V_OD+q), sr(S_WD,4), srow, OPT.get('dma_flags', '')), tag))
    return it + [('S', t, None) for t in rot_wr()]
def put_dma(chain, g0, items, step=None):
    step = step or OPT.get('dma_step', 7)
    k = 0; pend = []
    for kind, text, tag in items:
        if kind == 'S': pend.append(text)
        else:
            due = g0 + step*k; k += 1
            for n, t in enumerate(pend): chain.append((max(0, due - 2*len(pend) + 2*n - 1), 'S', t, None))
            pend = []
            chain.append((due, 'D', text, tag))
    for n, t in enumerate(pend): chain.append((g0 + step*(k-1) + 1, 'S', t, None))
def put_bar(fx, end, tags, pats, rot=True):
    gb = end - LAR - 2
    if rot: fx.chain([(gb - 12, 'S', t, None) for t in rot_rd()])
    tag = tags if not isinstance(tags, (list, tuple)) else tags[-1]
    fx.put(gb, 'L', '@waitvm', tag)
    fx.put(gb, 'B', 's_barrier', tags)
    for rd, pat in pats: fx.put(gb+1, 'R', 'v_add_u32 %s, %s, %s' % (vr(rd), sr(S_RD), vr(pat)))
PAT_G = [(V_RD, V_PG)]; PAT_H = [(V_RD, V_PH)]; PAT_D = [(V_RD, V_PDE), (V_RD2, V_PDO)]

def build(name='k3_kernel', dbg=False):
    P = Prog(); e = P.e
    stamps = []
    def stamp(label):
        if not dbg: return
        k = len(stamps); stamps.append(label); assert k < 13
        P.raw('s_memtime s[92:93]'); P.raw('s_memrealtime s[90:91]'); P.raw('s_waitcnt lgkmcnt(0)')
        P.raw('s_mov_b32 s%d, s92' % (64+k)); P.raw('s_mov_b32 s%d, s90' % (77+k))
    info = {}
    e('s_cmp_ge_u32 s2, 256'); e('s_cbranch_scc1 L_%s_end' % name)
    stamp('start')
    if OPT.get('scramble'):
        e('s_lshr_b32 s3, s2, 3'); e('s_and_b32 s2, s2, 7'); e('s_lshl_b32 s2, s2, 5'); e('s_or_b32 s2, s2, s3')
    if dbg: e('s_load_dwordx2 s[94:95], s[0:1], %d' % KA_DBG)
    e('s_load_dwordx2 s[56:57], s[0:1], %d' % KA_WS)
    e('s_load_dwordx4 s[4:7], s[0:1], %d' % KA_WG)
    e('s_load_dwordx2 s[54:55], s[0:1], %d' % KA_WD)
    e('v_lshrrev_b32 v1, 6, v0'); e('v_and_b32 v0, 63, v0')
    e('v_readfirstlane_b32 %s, v1' % sr(S_W))
    e('v_lshlrev_b32 %s, 4, v0' % vr(V_L16))
    e('v_lshrrev_b32 v2, 4, v0'); e('v_and_b32 v1, 15, v0'); e('v_lshl_add_u32 v1, v2, 11, v1'); e('v_lshlrev_b32 v1, 3, v1')
    if OPT.get('map', 0) == 0:
        e('s_and_b32 %s, s2, 7' % sr(S_JP))
        e('s_lshr_b32 %s, s2, 3' % sr(S_I)); e('s_and_b32 %s, %s, 1' % (sr(S_S), sr(S_I))); e('s_lshr_b32 %s, %s, 1' % (sr(S_I), sr(S_I)))
    else:
        e('s_bfe_u32 %s, s2, 0x20001' % sr(S_JP)); e('s_lshl_b32 %s, %s, 1' % (sr(S_JP), sr(S_JP)))
        e('s_bfe_u32 %s, s2, 0x10004' % sr(S_T0)); e('s_add_u32 %s, %s, %s' % (sr(S_JP), sr(S_JP), sr(S_T0)))
        e('s_bfe_u32 %s, s2, 0x10003' % sr(S_S))
        e('s_and_b32 %s, s2, 1' % sr(S_I)); e('s_lshl_b32 %s, %s, 3' % (sr(S_I), sr(S_I)))
        e('s_lshr_b32 %s, s2, 5' % sr(S_T0)); e('s_add_u32 %s, %s, %s' % (sr(S_I), sr(S_I), sr(S_T0)))
    e('s_lshl_b32 %s, %s, 2' % (sr(S_T0), sr(S_I))); e('s_add_u32 %s, %s, %s' % (sr(S_T0), sr(S_T0), sr(S_W)))
    e('s_mul_i32 %s, %s, %d' % (sr(S_XO), sr(S_T0), 2*18*1024)); e('s_add_u32 %s, %s, 0x%x' % (sr(S_XO), sr(S_XO), WS_HF))
    e('s_lshl_b32 %s, %s, 8' % (sr(S_D), sr(S_T0)))
    e('s_waitcnt lgkmcnt(0)')
    def mksrd(srd, lo, hi, size):
        e('s_mov_b32 %s, s%d' % (sr(srd), lo)); e('s_mov_b32 %s, s%d' % (sr(srd+1), hi))
        e('s_mov_b32 %s, 0x%x' % (sr(srd+2), size)); e('s_mov_b32 %s, 0x%x' % (sr(srd+3), SRD3))
    mksrd(S_WS, 56, 57, WS_END); mksrd(S_WG, 4, 5, D_*F_*2); mksrd(S_WU, 6, 7, D_*F_*2)
    e('s_add_u32 s4, s56, 0x%x' % WS_ST); e('s_addc_u32 s5, s57, 0'); e('s_mov_b32 s6, %d' % (9*2048*8)); e('s_mov_b32 s7, 0x%x' % SRD3)
    for t in range(3):
        e('s_add_u32 %s, %s, %d' % (sr(S_T0), sr(S_D), t*4*2048*8))
        for mm in range(2):
            e('buffer_load_dwordx2 %s, v1, s[4:7], %s offen offset:%d' % (vr(V_G + 4*t + 2*mm, 2), sr(S_T0), 128*mm), tag='st')
    def xdst(ks, mm):
        k, b = xi_reg(ks, mm); return b if k == 'v' else V_U + 4*(2*ks+mm-32)
    def xload(P, ks):
        P.e('s_add_u32 %s, %s, %d' % (sr(S_T1), sr(S_XO), ks*1024))
        P.e('buffer_load_dwordx4 %s, %s, %s, %s offen' % (vr(xdst(ks,0),4), vr(V_L16), sr(S_WS,4), sr(S_T1)), tag='x%d' % ks)
        P.e('s_add_u32 %s, %s, %d' % (sr(S_T1), sr(S_XO), (18+ks)*1024))
        P.e('buffer_load_dwordx4 %s, %s, %s, %s offen' % (vr(xdst(ks,1),4), vr(V_L16), sr(S_WS,4), sr(S_T1)), tag='x%d' % ks)
    def dma_now(items):
        for kind, text, tag in items:
            e(text, tag=tag)
            if text.startswith('s_add_u32 m0') or text.startswith('s_mov_b32 m0'): e('s_nop 0')
    if OPT.get('pro_stamps'): stamp('karg')
    xload(P, 0); xload(P, 1)
    mksrd(S_WD, 54, 55, D_*F_*2)
    e('v_bfe_u32 v1, v0, 1, 3'); e('v_mul_u32_u24 v1, 9216, v1')
    e('v_lshl_add_u32 v1, v2, 5, v1')
    e('v_and_b32 %s, 1, v0' % vr(V_T)); e('v_lshl_add_u32 %s, %s, 4, v1' % (vr(V_OG), vr(V_T)))
    e('v_add_u32 %s, %d, %s' % (vr(V_OG+1), 8*9216 - 1024, vr(V_OG))); e('v_add_u32 %s, %d, %s' % (vr(V_OG+2), 2*(8*9216 - 1024), vr(V_OG)))
    e('s_mul_i32 %s, %s, 576' % (sr(S_T0), sr(S_JP)))
    e('s_mul_i32 %s, %s, 320' % (sr(S_T1), sr(S_S))); e('s_add_u32 %s, %s, %s' % (sr(S_FB), sr(S_T0), sr(S_T1)))
    e('s_lshl_b32 %s, %s, 5' % (sr(S_T1), sr(S_S))); e('s_add_u32 %s, %s, %s' % (sr(S_HB), sr(S_T0), sr(S_T1))); e('s_add_u32 %s, %s, 256' % (sr(S_HB), sr(S_HB)))
    e('s_mul_i32 %s, %s, %d' % (sr(S_T0), sr(S_W), 9*8*9216)); e('s_lshl_b32 %s, %s, 1' % (sr(S_T1), sr(S_FB)))
    e('s_add_u32 %s, %s, %s' % (sr(S_GCOL), sr(S_T0), sr(S_T1)))
    e('s_mul_i32 %s, %s, 9216' % (sr(S_WOFF), sr(S_W))); e('s_mov_b32 %s, 0' % sr(S_CW)); e('s_mov_b32 %s, 1' % sr(S_CR))
    e('s_mov_b32 %s, %s' % (sr(S_WR), sr(S_WOFF)))
    T = V_T
    pat = []; a = pat.append
    a('v_bfe_u32 %s, v0, 2, 2' % vr(T)); a('v_lshlrev_b32 %s, 5, %s' % (vr(T), vr(T)))
    a('v_and_b32 %s, 3, v0' % vr(T+1)); a('v_lshl_add_u32 %s, %s, 3, %s' % (vr(T), vr(T+1), vr(T)))
    a('v_lshl_add_u32 %s, v2, 7, %s' % (vr(V_PH), vr(T)))
    a('v_and_b32 %s, 1, v2' % vr(T+1)); a('v_lshlrev_b32 %s, 7, %s' % (vr(T+1), vr(T+1)))
    a('v_lshrrev_b32 %s, 1, v2' % vr(T+2)); a('v_lshl_add_u32 %s, %s, 10, %s' % (vr(T+2), vr(T+2), vr(T)))
    a('v_add_u32 %s, %s, %s' % (vr(V_PG), vr(T+2), vr(T+1)))
    a('v_mul_u32_u24 %s, 2304, v2' % vr(T+2)); a('v_add_u32 %s, %s, %s' % (vr(T+2), vr(T+2), vr(T)))
    a('v_add_u32 %s, %s, %s' % (vr(V_PDE), vr(T+2), vr(T+1))); a('v_sub_u32 %s, %s, %s' % (vr(V_PDO), vr(T+2), vr(T+1)))
    rest = []
    a = rest.append
    a('v_and_b32 v1, 1, v0'); a('v_bfe_u32 v2, v0, 1, 4'); a('v_mul_u32_u24 v2, 9216, v2'); a('v_lshl_add_u32 v2, v1, 4, v2')
    a('v_lshrrev_b32 v1, 5, v0'); a('v_lshl_add_u32 %s, v1, 5, v2' % vr(V_OH))
    a('v_add_u32 %s, %d, %s' % (vr(V_OH+1), 16*9216 - 1024, vr(V_OH))); a('v_add_u32 %s, %d, %s' % (vr(V_OH+2), 2*(16*9216 - 1024), vr(V_OH)))
    T2 = V_T + 4
    a('v_bfe_u32 v1, v0, 1, 2'); a('v_mul_u32_u24 v1, 1152, v1'); a('v_and_b32 v2, 1, v0'); a('v_lshl_add_u32 v1, v2, 4, v1'); a('v_lshrrev_b32 v2, 3, v0')
    for p in range(9):
        d = vr(V_OD+p)
        a('v_add_u32 %s, %d, v2' % (d, 8*p))
        a('v_mul_u32_u24 %s, 57, %s' % (vr(T2), d)); a('v_lshrrev_b32 %s, 10, %s' % (vr(T2), vr(T2)))
        a('v_mul_u32_u24 %s, 18, %s' % (vr(T2+1), vr(T2))); a('v_sub_u32 %s, %s, %s' % (d, d, vr(T2+1)))
        a('v_and_b32 %s, 1, %s' % (vr(T2+1), vr(T2))); a('v_xor_b32 %s, %s, %s' % (d, d, vr(T2+1)))
        a('v_mul_u32_u24 %s, 4608, %s' % (vr(T2), vr(T2))); a('v_lshl_add_u32 %s, %s, 5, %s' % (d, d, vr(T2)))
        a('v_add_u32 %s, %s, v1' % (d, d))
    for r in range(144): a('v_accvgpr_write_b32 a%d, 0' % (A_OUT + r))
    s_ = []
    b = s_.append
    b('s_mul_i32 %s, %s, %d' % (sr(S_A), sr(S_W), 9*16*9216)); b('s_lshl_b32 %s, %s, 1' % (sr(S_B), sr(S_HB))); b('s_add_u32 %s, %s, %s' % (sr(S_HCOL), sr(S_A), sr(S_B)))
    b('s_mul_i32 s63, %s, 576' % sr(S_S))
    b('s_lshl_b32 %s, %s, 4' % (sr(S_C), sr(S_W)))
    b('s_add_u32 %s, %s, %s' % (sr(S_A), sr(S_FB), sr(S_C))); b('s_mul_i32 %s, %s, 1152' % (sr(S_A), sr(S_A))); b('s_add_u32 %s, %s, s63' % (sr(S_DROW), sr(S_A)))
    b('s_xor_b32 %s, %s, 1' % (sr(S_B), sr(S_S))); b('s_mul_i32 %s, %s, 576' % (sr(S_A), sr(S_JP)))
    b('s_mul_i32 s54, %s, 320' % sr(S_B)); b('s_add_u32 s54, s54, %s' % sr(S_A))
    b('s_lshl_b32 s55, %s, 5' % sr(S_B)); b('s_add_u32 s55, s55, %s' % sr(S_A)); b('s_add_u32 s55, s55, 256')
    b('s_and_b32 s56, %s, 1' % sr(S_W)); b('s_lshl_b32 s56, s56, 4')
    b('s_lshr_b32 s57, %s, 1' % sr(S_W))
    for ee, th0 in enumerate((0, 2, 4, 5, 7)):
        d = sr(S_E+ee)
        b('s_lshl_b32 %s, s57, 5' % d); b('s_add_u32 %s, %s, s54' % (d, d))
        b('s_add_u32 %s, %s, %d' % (d, d, 32*th0))
        if ee == 3: s_.append(['s_cmp_eq_u32 s57, 0', 's_cselect_b32 %s, %s, %s' % (d, sr(S_HB), d)])
        if ee == 4: s_.append(['s_cmp_eq_u32 s57, 1', 's_cselect_b32 %s, s55, %s' % (d, d)])
        b('s_add_u32 %s, %s, s56' % (d, d)); b('s_mul_i32 %s, %s, 1152' % (d, d)); b('s_add_u32 %s, %s, s63' % (d, d))
    b('s_lshl_b32 %s, s2, 2' % sr(S_A)); b('s_add_u32 %s, %s, %s' % (sr(S_A), sr(S_A), sr(S_W)))
    b('s_lshl_b32 %s, %s, 2' % (sr(S_FLO), sr(S_A))); b('s_add_u32 %s, %s, 0x%x' % (sr(S_FLO), sr(S_FLO), WS_FLAG))
    b('s_mul_i32 %s, %s, 18432' % (sr(S_HXO), sr(S_A))); b('s_add_u32 %s, %s, 0x%x' % (sr(S_HXO), sr(S_HXO), WS_HX))
    b('s_xor_b32 %s, s2, 8' % sr(S_A)); b('s_lshl_b32 %s, %s, 2' % (sr(S_A), sr(S_A))); b('s_add_u32 %s, %s, %s' % (sr(S_A), sr(S_A), sr(S_W)))
    b('s_lshl_b32 %s, %s, 2' % (sr(S_FLP), sr(S_A))); b('s_add_u32 %s, %s, 0x%x' % (sr(S_FLP), sr(S_FLP), WS_FLAG))
    b('s_mul_i32 %s, %s, 18432' % (sr(S_HXP), sr(S_A))); b('s_add_u32 %s, %s, 0x%x' % (sr(S_HXP), sr(S_HXP), WS_HX))
    b('s_lshl_b32 %s, %s, 1' % (sr(S_A), sr(S_I))); b('s_add_u32 %s, %s, %s' % (sr(S_A), sr(S_A), sr(S_S)))
    b('s_lshl_b32 %s, %s, 3' % (sr(S_A), sr(S_A))); b('s_add_u32 %s, %s, %s' % (sr(S_A), sr(S_A), sr(S_JP)))
    b('s_lshl_b32 %s, %s, 2' % (sr(S_A), sr(S_A))); b('s_add_u32 %s, %s, %s' % (sr(S_A), sr(S_A), sr(S_W)))
    b('s_mul_i32 %s, %s, 18432' % (sr(S_P), sr(S_A))); b('s_add_u32 %s, %s, 0x%x' % (sr(S_P), sr(S_P), WS_P))
    b('s_mov_b32 %s, 0x3f80' % sr(S_LO)); b('s_mov_b32 %s, 0x3f800000' % sr(S_HI))
    b('s_mov_b32 %s, 3' % sr(S_CNT)); b('s_mov_b32 %s, 1' % sr(S_FVAL))
    work = pat + rest + s_
    def do_work(n):
        for _ in range(n):
            if not work: return
            x = work.pop(0)
            for t in (x if isinstance(x, list) else [x]): e(t)
    first = dma_G(S_WG, sr(S_GCOL), 0, 'Ga') + [('X', 2, None), ('X', 3, None)] + dma_G(S_WG, sr(S_GCOL), 1, 'Gb')
    nvm = sum(1 for k in first if k[0] in 'DX'); per = (len(work) + nvm - 1)//nvm
    for kind, text, tag in first:
        if kind == 'X': xload(P, text); do_work(per)
        else:
            e(text, tag=tag)
            if ' m0,' in text: e('s_nop 0')
            if kind == 'D': do_work(per)
    do_work(9999)
    if OPT.get('pro_stamps'): stamp('setup')
    P.wait_vm_tag('st')
    for k in range(4):
        e('v_add_f32 %s, %s, %s' % (vr(V_G+k), vr(V_G+k), vr(V_G+4+k)))
    for k in range(4):
        e('v_add_f32 %s, %s, %s' % (vr(V_G+k), vr(V_G+k), vr(V_G+8+k)))
    for swap in ('v_permlane32_swap_b32', 'v_permlane16_swap_b32'):
        for k in range(4): e('v_mov_b32 %s, %s' % (vr(V_G+4+k), vr(V_G+k)))
        e('s_nop 1')
        for k in range(4): e('%s %s, %s' % (swap, vr(V_G+k), vr(V_G+4+k)))
        e('s_nop 1')
        for k in range(4): e('v_add_f32 %s, %s, %s' % (vr(V_G+k), vr(V_G+k), vr(V_G+4+k)))
    e('s_mov_b32 %s, 0x%08x' % (sr(S_A), f2u(1.0/576)))
    CC = -2.0*0.7978845608028654*1.4426950408889634
    NM = V_HH
    for mm in range(2):
        e('v_mul_f32 %s, %s, %s' % (vr(T+mm), sr(S_A), vr(V_G+2*mm)))
        e('v_mul_f32 %s, %s, %s' % (vr(T+2+mm), sr(S_A), vr(V_G+2*mm+1)))
    for mm in range(2):
        e('v_fma_f32 %s, -%s, %s, %s' % (vr(V_K+mm), vr(T+mm), vr(T+mm), vr(T+2+mm)))
        e('v_sub_f32 %s, 0, %s' % (vr(NM+mm), vr(T+mm)))
    for mm in range(2): e('v_max_f32 %s, 0, %s' % (vr(V_K+mm), vr(V_K+mm)))
    for mm in range(2): e('v_add_f32 %s, 0x%08x, %s' % (vr(V_K+mm), f2u(1e-5), vr(V_K+mm)))
    for mm in range(2): e('v_rsq_f32 %s, %s' % (vr(T+mm), vr(V_K+mm)))
    e('s_nop 0')
    for mm in range(2):
        e('v_mul_f32 %s, 0x%08x, %s' % (vr(V_C0+mm), f2u(CC), vr(T+mm)))
        e('v_mul_f32 %s, %s, %s' % (vr(T+2+mm), vr(T+mm), vr(T+mm)))
    for mm in range(2): e('v_mul_f32 %s, 0x%08x, %s' % (vr(T+2+mm), f2u(0.044715), vr(T+2+mm)))
    for mm in range(2): e('v_mul_f32 %s, %s, %s' % (vr(V_C1+mm), vr(V_C0+mm), vr(T+2+mm)))
    def center_ops(ks):
        ops = [lambda P: P.wait_vm_tag('x%d' % ks)]
        if OPT.get('center') == 'plain':
            for mm in range(2):
                b = xdst(ks, mm); t = V_H + 8*mm
                for d in range(4):
                    ops.append('v_lshlrev_b32 %s, 16, %s' % (vr(t+2*d), vr(b+d)))
                    ops.append('v_and_b32 %s, 0xffff0000, %s' % (vr(t+2*d+1), vr(b+d)))
                for d in range(8): ops.append('v_add_f32 %s, %s, %s' % (vr(t+d), vr(t+d), vr(NM+mm)))
                for d in range(4): ops.append('v_cvt_pk_bf16_f32 %s, %s, %s' % (vr(b+d), vr(t+2*d), vr(t+2*d+1)))
        else:
            for mm in range(2):
                b = xdst(ks, mm); t = V_H + 8*mm
                for d in range(4):
                    ops.append('v_dot2_f32_bf16 %s, %s, %s, %s' % (vr(t+2*d), vr(b+d), sr(S_LO), vr(NM+mm)))
                    ops.append('v_dot2_f32_bf16 %s, %s, %s, %s' % (vr(t+2*d+1), vr(b+d), sr(S_HI), vr(NM+mm)))
            for mm in range(2):
                b = xdst(ks, mm); t = V_H + 8*mm
                for d in range(4): ops.append('v_cvt_pk_bf16_f32 %s, %s, %s' % (vr(b+d), vr(t+2*d), vr(t+2*d+1)))
        k, a = xi_reg(ks, 0)
        if k == 'a':
            for mm in range(2):
                for d in range(4): ops.append('v_accvgpr_write_b32 a%d, %s' % (xi_reg(ks, mm)[1]+d, vr(xdst(ks, mm)+d)))
        return ops
    if OPT.get('pro_stamps'): stamp('stats')
    for o in center_ops(0):
        if callable(o): o(P)
        else: e(o)
    e('v_mov_b32 %s, %s' % (vr(V_RD), vr(V_PG))); e('v_add_u32 %s, %d, %s' % (vr(V_RD2), SLOT, vr(V_PG)))
    P.wait_vm_tag('Ga'); i = e('s_barrier'); i.meta = dict(needs='Ga')
    stamp('bar0')
    S = Stream()
    fr = []; mf = []
    for ks in range(18):
        rd = V_RD if ks < 9 else V_RD2; kl = ks % 9
        f0 = len(fr)
        for ft in range(2): fr.append(Frag(rd, (4*kl)*1024 + ft*256, (4*kl+2)*1024 + ft*256))
        for ft in range(2):
            for mm in range(2):
                mf.append(MF(acc(V_G, ft, mm), f0+ft, xfrag(ks, mm), '0' if ks == 0 else acc(V_G, ft, mm), [f0, f0+1] if (ft == 0 and mm == 0) else None))
    S.add(fr, mf)
    fr = []; mf = []
    for ft in (2, 3):
        for g in range(6):
            f0 = len(fr)
            for t in range(3):
                ks = 3*g + t; kl = ks % 9
                fr.append(Frag(V_RD if ks < 9 else V_RD2, (4*kl)*1024 + ft*256, (4*kl+2)*1024 + ft*256))
            for mm in range(2):
                for t in range(3):
                    ks = 3*g + t
                    mf.append(MF(acc(V_G, ft, mm), f0+t, xfrag(ks, mm), '0' if ks == 0 else acc(V_G, ft, mm), [f0, f0+1, f0+2] if (mm == 0 and t == 0) else None))
    S.add(fr, mf)
    fx = Fixed()
    def chunked(lst, gaps):
        n = len(lst); k = 0
        for j, g in enumerate(gaps):
            k2 = (n*(j+1) + len(gaps) - 1)//len(gaps)
            for o in lst[k:k2]:
                if callable(o): fx.put(g, 'X', o)
                else: fx.put(g, 'V', o)
            k = k2
    for ks in range(17):
        if ks + 4 < 18: fx.put(4*ks, 'X', (lambda P, k=ks+4: xload(P, k)), cost=4)
        chunked(center_ops(ks+1), [4*ks, 4*ks+1, 4*ks+2, 4*ks+3] if OPT.get('center') == 'plain' else [4*ks+3])
    ch = []
    put_dma(ch, 57, dma_G(S_WU, sr(S_GCOL), 0, 'Ua'), step=2)
    put_dma(ch, 78, dma_G(S_WU, sr(S_GCOL), 1, 'Ub'), step=5)
    ch.append((126, 'S', 's_add_u32 %s, %s, 128' % (sr(S_GCOL), sr(S_GCOL)), None))
    fx.chain(ch)
    if dbg and OPT.get('pro_stamps'):
        for g in (23, 47, 71): fx.put(g, 'X', (lambda P, g=g: stamp('p%d' % g)), cost=0)
    fx.put(22, 'L', '@waitvm', 'Gb'); fx.put(22, 'B', 's_barrier', 'Gb')
    qa = gelu_q(0, 'g0', V_T).window(75, 75, 108); qb = gelu_q(1, 'g1', V_T+4).window(92, 100, 142)
    put_bar(fx, 144, 'Ua', PAT_G)
    ua = st_GU(V_U, 0, True)
    info['peel'] = emit_stream(P, S, ua[0][:LAR//2], fx, [qa, qb], A_W, NF, LAR, 0, maxslots=9, opt=OPT, first_reads=True, drain_ok=True)
    stamp('peel')
    P.raw('.p2align 6'); P.raw('L_%s_loop:' % name)
    body_start = len(P.ins)
    def flagstore(tag, val):
        def f(P):
            if not OPT.get('no_flagwait'): P.wait_vm_tag(tag)
            P.e('v_mov_b32 %s, %s' % (vr(V_FL), val))
            P.e('buffer_store_dword %s, off, %s, %s sc1' % (vr(V_FL), sr(S_WS,4), sr(S_FLO)), tag='fl')
        f.cost = 3
        return f
    def front(fx, ch, tail):
        S = Stream().add(*st_GU(V_U, 0, True)).add(*st_GU(V_U, 1, False))
        G0 = OPT.get('dma_g0', 2)
        if not tail:
            put_dma(ch, G0, dma_G(S_WG, sr(S_GCOL), 0, 'Ga')); put_dma(ch, 72+G0, dma_G(S_WG, sr(S_GCOL), 1, 'Gb'))
            put_bar(fx, 72, 'Ub', PAT_G); put_bar(fx, 144, 'Ga', PAT_G)
        else:
            put_dma(ch, G0, dma_G(S_WG, sr(S_HCOL), 0, 'Gh', 16)); put_dma(ch, 72+G0, dma_D(sr(S_DROW), 'D'))
            put_bar(fx, 72, 'Ub', PAT_G); put_bar(fx, 144, 'Gh', PAT_H)
        W = OPT.get('win', dict())
        def win(k, kind): return W.get(k + ('T' if tail else ''), W.get(k, kind))
        g2 = gelu_q(2, 'g2', V_T).window(0, *win('g2', (18, 85))); g3 = gelu_q(3, 'g3', V_T+4).window(0, *win('g3', (51, 148)))
        p0 = prod_q(0, V_H, 'p0').window(92, *win('p0', (130, 143)))
        p1 = prod_q(1, V_H, 'p1', (sr(S_HXO), 0, 'h0')).window(110, *win('p1', (135, 149))).after([p0])
        p2 = prod_q(2, V_H+8, 'p2').window(128, *win('p2', (165, 178))).after([g2, p1])
        p3 = prod_q(3, V_H+8, 'p3', (sr(S_HXO), 2048, 'h1')).window(146, *win('p3', (172, 188))).after([g3, p2])
        return S, [p0, p1, p2, p3, g2, g3]
    G0 = OPT.get('dma_g0', 2)
    Hf = [[vr(V_H + 8*kq + 4*mm, 4) for mm in range(2)] for kq in range(2)]
    fx = Fixed(); ch = []
    S, qs = front(fx, ch, False)
    S.add(*st_GU(V_G, 0, True)).add(*st_GU(V_G, 1, False)).add(*st_D(Hf))
    put_dma(ch, 144+G0, dma_D(sr(S_DROW), 'D')); put_dma(ch, 216+G0, dma_G(S_WU, sr(S_GCOL), 0, 'Ua')); put_dma(ch, 288+G0, dma_G(S_WU, sr(S_GCOL), 1, 'Ub'))
    fx.chain(ch)
    put_bar(fx, 216, 'Gb', PAT_G); put_bar(fx, 288, 'D', PAT_D); put_bar(fx, 360, 'Ua', PAT_G)
    p3 = qs[3]
    W = OPT.get('win', dict())
    n0 = gelu_q(0, 'g0n', V_T).window(237, *W.get('n0', (252, 318))).after([p3]); n1 = gelu_q(1, 'g1n', V_T+4).window(255, *W.get('n1', (295, 359))).after([p3])
    fx.put(277, 'X', flagstore('h1', sr(S_FVAL)), cost=3)
    fx.chain([(285, 'S', 's_add_u32 %s, %s, 1' % (sr(S_FVAL), sr(S_FVAL)), None), (286, 'S', 's_add_u32 %s, %s, 4096' % (sr(S_HXO), sr(S_HXO)), None),
              (287, 'S', 's_add_u32 %s, %s, %d' % (sr(S_DROW), sr(S_DROW), 64*1152), None)])
    info['body'] = emit_stream(P, S, ua[0][:LAR//2], fx, qs + [n0, n1], A_W, NF, LAR, 0, maxslots=OPT['cap'], opt=OPT)
    dl = {q.name: q.finish for q in qs + [n0, n1]}
    assert dl['p0'] <= 143 and dl['p1'] <= 161 and dl['p2'] <= 179 and dl['p3'] <= 197, dl
    info['fb'] = dl
    e('s_add_u32 %s, %s, 128' % (sr(S_GCOL), sr(S_GCOL)))
    e('s_sub_u32 %s, %s, 1' % (sr(S_CNT), sr(S_CNT))); e('s_cmp_lg_u32 %s, 0' % sr(S_CNT))
    e('s_cbranch_scc1 L_%s_loop' % name)
    body_end = len(P.ins)
    stamp('loop')
    fx = Fixed(); ch = []
    S, qs = front(fx, ch, True)
    S.add(*st_half(V_G)).add(*st_D(Hf)).add(*st_half(V_U))
    HHf = [vr(V_HH + 4*mm, 4) for mm in range(2)]
    hp = [[hpfrag(th, mm) for mm in range(2)] for th in range(9)]
    F2 = OPT.get('final2', True)
    RA = (V_RD, V_RD2); RB = (V_T, V_T+1)
    put_dma(ch, 144+G0, dma_G(S_WU, sr(S_HCOL), 0, 'Uh', 16))
    if not F2:
        for pair in ([hp[0], hp[1]], [hp[2], hp[3]], [hp[4], hp[5]], [HHf, hp[6]], [hp[7], hp[8]]): S.add(*st_D(pair))
        for k in range(5): put_dma(ch, 216+72*k+G0, dma_D(sr(S_E+k), 'E%d' % k))
        fx.chain(ch)
        put_bar(fx, 216, 'D', PAT_D); put_bar(fx, 288, 'Uh', PAT_H)
        for k in range(5): put_bar(fx, 360+72*k, 'E%d' % k, PAT_D)
    else:
        for pair in ([hp[0], hp[1]], [hp[2], hp[3]], [hp[4], hp[5]]): S.add(*st_D(pair))
        S.add(*st_final([HHf, hp[6], hp[7], hp[8]], RA, RB))
        for k in range(3): put_dma(ch, 216+72*k+G0, dma_D(sr(S_E+k), 'E%d' % k))
        put_dma(ch, 421, dma_D(sr(S_E+3), 'E3'), step=6); put_dma(ch, 475, dma_D(sr(S_E+4), 'E4'), step=6)
        fx.chain(ch)
        put_bar(fx, 216, 'D', PAT_D); put_bar(fx, 288, 'Uh', PAT_H)
        for k in range(3): put_bar(fx, 360+72*k, 'E%d' % k, PAT_D)
        fx.put(436, 'B', 's_barrier', None)
        put_bar(fx, 576, ['E3', 'E4'], PAT_D)
        def second_base(P):
            P.e('s_add_u32 %s, %s, 1' % (sr(S_A), sr(S_CR))); P.e('s_and_b32 %s, %s, 3' % (sr(S_A), sr(S_A))); P.e('s_mul_i32 %s, %s, %d' % (sr(S_A), sr(S_A), SLOT))
            P.e('v_add_u32 %s, %s, %s' % (vr(RB[0]), sr(S_A), vr(V_PDE))); P.e('v_add_u32 %s, %s, %s' % (vr(RB[1]), sr(S_A), vr(V_PDO)))
        fx.put(576-LAR-3, 'X', second_base, cost=5)
    p3 = qs[3]
    h0 = gelu_q(0, 'gh0', V_T).window(183, 195, 265).after([p3]); h1 = gelu_q(1, 'gh1', V_T+4).window(219, 255, 330).after([p3])
    fx.chain([(340, 'S', 's_add_u32 %s, %s, 4096' % (sr(S_T1), sr(S_HXO)), None)])
    ph0 = prod_q(0, V_HH, 'ph0').window(327, 330, 350).after([h0])
    ph1 = prod_q(1, V_HH, 'ph1', (sr(S_T1), 0, 'hh')).window(363, 364, 384).after([h1, ph0])
    def poll_issue(P): P.e('buffer_load_dword %s, off, %s, %s sc1' % (vr(V_PO), sr(S_WS,4), sr(S_FLP)), tag='poll')
    slow = []
    def poll_check(val, lab):
        def f(P):
            P.wait_vm_tag('poll')
            P.e('v_readfirstlane_b32 %s, %s' % (sr(S_A), vr(V_PO)))
            P.e('s_nop 0')
            P.e('s_cmp_ge_u32 %s, %d' % (sr(S_A), val))
            P.e('s_cbranch_scc0 L_%s_slow%s' % (name, lab))
            P.raw('L_%s_back%s:' % (name, lab))
            slow.append((val, lab))
        f.cost = 5
        return f
    def hp_load(x):
        def f(P):
            if x % 4 == 0: P.e('s_add_u32 %s, %s, %d' % (sr(S_B), sr(S_HXP), (x//4)*4096))
            th, mm = divmod(x, 2)
            P.e('buffer_load_dwordx4 %s, %s, %s, %s offen offset:%d sc1' % (hpfrag(th, mm), vr(V_L16), sr(S_WS,4), sr(S_B), (x % 4)*1024), tag='hp%d' % x)
        return f
    if dbg and OPT.get('tail_stamps'):
        for g in OPT['tail_stamps']: fx.put(g, 'X', (lambda P, g=g: stamp('t%d' % g)), cost=0)
    fx.put(144, 'X', poll_issue, cost=2); fx.put(277, 'X', poll_check(3, 'a'), cost=5)
    for x in range(4): fx.put(279 + 2*x, 'X', hp_load(x), cost=2)
    for x in range(4, 8): fx.put(350 + 2*(x-4), 'X', hp_load(x), cost=2)
    for x in range(8, 12): fx.put(422 + 2*(x-8), 'X', hp_load(x), cost=2)
    fx.put(279, 'X', flagstore('h1', '4'), cost=3)
    fx.put(440, 'X', flagstore('hh', '5'), cost=3)
    if not F2:
        fx.put(360, 'X', poll_issue, cost=2); fx.put(493, 'X', poll_check(4, 'b'), cost=5)
        for x in range(12, 16): fx.put(495 + 2*(x-12), 'X', hp_load(x), cost=2)
        fx.put(504, 'X', poll_issue, cost=2); fx.put(565, 'X', poll_check(5, 'c'), cost=5)
        for x in range(16, 18): fx.put(567 + 2*(x-16), 'X', hp_load(x), cost=2)
    else:
        fx.put(478, 'X', poll_issue, cost=2); fx.put(513, 'X', poll_check(5, 'b'), cost=5)
        for x in range(12, 18): fx.put(515 + 2*(x-12), 'X', hp_load(x), cost=2)
    def hp_wait(xs):
        def f(P): P.wait_vm(lambda i: i.tag in ['hp%d' % t for t in xs])
        return f
    fx.put(360-4, 'X', hp_wait(range(4)))
    fx.put(432-4, 'X', hp_wait(range(4, 8)))
    fx.put(504-4, 'X', hp_wait(range(8, 12)))
    if not F2:
        fx.put(576-4, 'X', hp_wait(range(12, 14)))
        fx.put(648-4, 'X', hp_wait(range(14, 18)))
    else: fx.put(576-2, 'X', hp_wait(range(12, 18)))
    ep = []
    for np_ in range(9):
        ear = (576 + 16*(np_+1) + 2) if F2 else (648 + 8*(np_+1) + 2)
        for mm in range(2):
            tb = V_G + 16*((2*np_+mm) % 4); hb = V_H + 4*((2*np_+mm) % 4)
            for k in range(2):
                for r in range(4): ep.append(Op('v_accvgpr_read_b32 %s, a%d' % (vr(tb+4*k+r), A_OUT + 8*(2*np_+k) + 4*mm + r), ear))
            for d in range(4): ep.append(Op('v_cvt_pk_bf16_f32 %s, %s, %s' % (vr(hb+d), vr(tb+2*d), vr(tb+2*d+1)), ear))
            fr_ = mm*9 + np_
            def st(P, fr_=fr_, hb=hb):
                P.e('s_add_u32 %s, %s, %d' % (sr(S_T0), sr(S_P), fr_*1024))
                P.e('buffer_store_dwordx4 %s, %s, %s, %s offen sc1' % (vr(hb,4), vr(V_L16), sr(S_WS,4), sr(S_T0)), tag='p')
            ep.append(Op(st, ear, cost=2))
    qe = Queue(ep, 'ep', prio=True)
    allq = qs + [ph0, ph1, h0, h1, qe]
    info['tail'] = emit_stream(P, S, [], fx, allq, A_W, NF, LAR, 0, maxslots=OPT['cap'], opt=OPT, drain_ok=True, drain_pre='s_nop 7')
    dl = {q.name: q.finish for q in allq}
    assert dl['p0'] <= 143 and dl['p1'] <= 179 and dl['p3'] < 212 and dl['ph1'] < 420 and dl['gh0'] < 326, dl
    info['ft'] = dl
    stamp('tail')
    if dbg:
        e('s_waitcnt vmcnt(0)')
        stamp('end')
        e('s_mov_b32 s4, s94'); e('s_mov_b32 s5, s95'); e('s_mov_b32 s6, 0x100000'); e('s_mov_b32 s7, 0x20000')
        e('s_lshl_b32 s41, s2, 2'); e('s_add_u32 s41, s41, %s' % sr(S_W)); e('s_lshl_b32 s41, s41, 7')
        for k in range(len(stamps)):
            e('s_sub_u32 s42, s%d, s64' % (64+k)); e('v_mov_b32 v1, s42')
            e('buffer_store_dword v1, off, s[4:7], s41 offset:%d' % (4*k))
            e('s_sub_u32 s42, s%d, s77' % (77+k)); e('v_mov_b32 v1, s42')
            e('buffer_store_dword v1, off, s[4:7], s41 offset:%d' % (64+4*k))
        e('v_mov_b32 v1, s77'); e('buffer_store_dword v1, off, s[4:7], s41 offset:60')
    P.raw('L_%s_end:' % name)
    e('s_endpgm')
    main_end = len(P.ins)
    for val, lab in slow:
        P.raw('L_%s_slow%s:' % (name, lab))
        P.raw('s_mov_b32 %s, 0x8000' % sr(S_C))
        P.raw('L_%s_spin%s:' % (name, lab))
        P.raw('s_sleep 2')
        P.raw('buffer_load_dword %s, off, %s, %s sc1' % (vr(V_PO), sr(S_WS,4), sr(S_FLP)))
        P.raw('s_waitcnt vmcnt(0)')
        P.raw('v_readfirstlane_b32 %s, %s' % (sr(S_A), vr(V_PO)))
        P.raw('s_sub_u32 %s, %s, 1' % (sr(S_C), sr(S_C)))
        P.raw('s_cmp_eq_u32 %s, 0' % sr(S_C))
        P.raw('s_cbranch_scc1 L_%s_back%s' % (name, lab))
        P.raw('s_cmp_ge_u32 %s, %d' % (sr(S_A), val))
        P.raw('s_cbranch_scc0 L_%s_spin%s' % (name, lab))
        P.raw('s_branch L_%s_back%s' % (name, lab))
    ins = P.ins
    path = ins[:body_start] + ins[body_start:body_end]*3 + ins[body_end:main_end]
    info['stamps'] = stamps
    return P, path, info

if __name__ == '__main__':
    import collections
    P, path, info = build()
    check(path, 'k3b')
    print('barrier problems', verify_barriers(path))
    for k in ('peel', 'body', 'tail'):
        print(k, 'slots/gap hist', sorted(collections.Counter(info[k]).items()), 'est cyc/unit %.2f' % (est_cycles(info[k])/len(info[k])*2))
    print(info['fb']); print(info['ft'])
    print('instrs', len(P.ins))
```

```python
from core import *
from common import *

def build(name='k4_kernel', ldf='', stf='', block=256):
    P = Prog(); e = P.e
    WPB = block//64
    NWG = 1152//WPB
    S_WS, S_OUT = 8, 12
    e('s_cmp_ge_u32 s2, %d' % NWG); e('s_cbranch_scc1 L_%s_end' % name)
    e('s_load_dwordx2 s[4:5], s[0:1], %d' % KA_WS); e('s_load_dwordx2 s[6:7], s[0:1], %d' % KA_OUT)
    e('v_lshrrev_b32 v1, 6, v0'); e('v_and_b32 v0, 63, v0')
    e('v_readfirstlane_b32 s16, v1')
    e('v_lshlrev_b32 v2, 4, v0')
    e('s_mul_i32 s17, s2, %d' % WPB); e('s_add_u32 s17, s17, s16')
    e('s_mul_i32 s18, s17, 7282'); e('s_lshr_b32 s18, s18, 16')
    e('s_mul_i32 s19, s18, 9'); e('s_sub_u32 s19, s17, s19')
    e('s_lshr_b32 s20, s18, 3'); e('s_and_b32 s21, s18, 7')
    e('s_mul_i32 s22, s18, 18'); e('s_lshl_b32 s23, s19, 1'); e('s_add_u32 s22, s22, s23'); e('s_lshl_b32 s22, s22, 10'); e('s_add_u32 s22, s22, 0x%x' % WS_HF)
    for k in range(2):
        e('s_lshl_b32 s24, s19, 1'); e('s_add_u32 s24, s24, %d' % k)
        e('s_cmp_ge_u32 s24, 9'); e('s_cselect_b32 s25, 1, 0'); e('s_cselect_b32 s26, 9, 0'); e('s_sub_u32 s24, s24, s26')
        e('s_lshl_b32 s26, s20, 1'); e('s_add_u32 s26, s26, s25'); e('s_lshl_b32 s26, s26, 6')
        e('s_add_u32 s26, s26, s21'); e('s_mul_i32 s26, s26, 9'); e('s_add_u32 s26, s26, s24'); e('s_lshl_b32 s26, s26, 10')
        e('s_add_u32 s%d, s26, 0x%x' % (28+k, WS_P))
    e('s_waitcnt lgkmcnt(0)')
    e('s_mov_b32 s8, s4'); e('s_mov_b32 s9, s5'); e('s_mov_b32 s10, 0x%x' % WS_END); e('s_mov_b32 s11, 0x%x' % SRD3)
    e('s_mov_b32 s12, s6'); e('s_mov_b32 s13, s7'); e('s_mov_b32 s14, %d' % (S_*D_*2)); e('s_mov_b32 s15, 0x%x' % SRD3)
    for k in range(2):
        e('buffer_load_dwordx4 %s, v2, s[8:11], s22 offen offset:%d' % (vr(16+36*k, 4), 1024*k), tag='l%d_0' % k)
        for jp in range(8):
            if jp: e('s_add_u32 s%d, s%d, %d' % (28+k, 28+k, 8*9*1024))
            e('buffer_load_dwordx4 %s, v2, s[8:11], s%d offen %s' % (vr(16+36*k+4*(jp+1), 4), 28+k, ldf), tag='l%d_%d' % (k, jp+1))
    e('v_and_b32 v3, 15, v0'); e('s_lshl_b32 s30, s18, 4'); e('v_add_u32 v3, s30, v3'); e('v_mul_u32_u24 v3, 1152, v3')
    e('v_bfe_u32 v4, v0, 4, 1'); e('v_lshl_add_u32 v3, v4, 5, v3')
    e('v_bfe_u32 v4, v0, 5, 1'); e('v_lshl_add_u32 v3, v4, 4, v3')
    e('s_lshl_b32 s31, s19, 7')
    e('s_mov_b32 s32, 0x3f80'); e('s_mov_b32 s33, 0x3f800000')
    for k in range(2):
        acc = 88 + 8*k
        for src in range(9):
            P.wait_vm_tag('l%d_%d' % (k, src))
            b = 16 + 36*k + 4*src
            for d in range(4):
                for hi in range(2):
                    c = '0' if src == 0 else vr(acc+2*d+hi)
                    e('v_dot2_f32_bf16 %s, %s, s%d, %s' % (vr(acc+2*d+hi), vr(b+d), 32+hi, c))
    for k in range(2):
        acc = 88 + 8*k; o = 104 + 4*k
        if k == 1: e('s_nop 1')
        for d in range(4): e('v_cvt_pk_bf16_f32 %s, %s, %s' % (vr(o+d), vr(acc+2*d), vr(acc+2*d+1)))
    e('s_nop 1')
    for k in range(2):
        o = 104 + 4*k
        e('v_permlane16_swap_b32 %s, %s' % (vr(o), vr(o+2)))
        e('v_permlane16_swap_b32 %s, %s' % (vr(o+1), vr(o+3)))
    e('s_nop 1')
    for k in range(2):
        o = 104 + 4*k
        e('buffer_store_dwordx4 %s, v3, s[12:15], s31 offen offset:%d %s' % (vr(o, 4), 64*k, stf))
    P.raw('L_%s_end:' % name)
    e('s_endpgm')
    return P, dict(vgpr=112, sgpr=40, grid=NWG, block=block, lds=0)

if __name__ == '__main__':
    P, o = build(); check(P.ins, 'k4')
```

```python
from core import *

class Op:
    def __init__(self, text, ready=0, after=None, tag=None, cost=None):
        self.text, self.ready, self.after, self.tag = text, ready, after, tag
        self.due = ready
        self.cost = cost if cost is not None else (1 if callable(text) else Ins(text).cost)
        if not callable(text) and text.startswith('buffer_'): self.cost = 2

class Queue:
    def __init__(self, ops, name='', prio=False):
        self.ops = list(ops); self.name = name; self.k = 0; self.prio = prio; self.finish = -1
    def done(self): return self.k >= len(self.ops)
    def peek(self): return None if self.done() else self.ops[self.k]
    def window(self, ready, a, b):
        tot = sum(o.cost for o in self.ops); acc = 0
        for o in self.ops:
            o.ready = max(o.ready, ready); o.due = max(o.ready, int(a + (b - a) * acc / tot)); acc += o.cost
        return self
    def after(self, qs):
        for o in self.ops: o.after = list(qs)
        return self

class Frag:
    def __init__(self, rd, imm0, imm1): self.rd, self.imm = rd, (imm0, imm1)
class MF:
    def __init__(self, D, fi, B, C, wait=None): self.D, self.fi, self.B, self.C, self.wait = D, fi, B, C, wait
class Stream:
    def __init__(self): self.frags = []; self.mf = []
    def add(self, frags, mfs):
        o = len(self.frags)
        self.frags += frags
        for m in mfs:
            self.mf.append(MF(m.D, m.fi + o, m.B, m.C, None if m.wait is None else [x + o for x in m.wait]))
        return self

class Fixed:
    def __init__(self): self.chains = []; self.at = {}
    def chain(self, items): self.chains.append(list(items))
    def put(self, gap, kind, text, tag=None, cost=1): self.at.setdefault(gap, []).append((kind, text, tag, cost))

def emit_stream(P, S, nxt_frags, fx, queues, A_W, NF, LAR, phase=0, maxslots=3, opt=None, drain_ok=False, first_reads=False, drain_pre=None):
    opt = opt or {}
    allf = S.frags + nxt_frags
    nreads = 2*len(allf)
    def areg(fi, n=4, off=0): return ar(A_W + 4*((phase + fi) % NF) + off, n)
    def aregs(fi): return rset('a', A_W + 4*((phase + fi) % NF), 4)
    last_use = {}
    for mu, m in enumerate(S.mf): last_use[m.fi] = mu
    st = dict(rho=0)
    def read():
        fi, u = divmod(st['rho'], 2); f = allf[fi]
        P.e('ds_read_b64_tr_b16 %s, %s offset:%d' % (areg(fi, 2, 2*u), vr(f.rd), f.imm[u])); st['rho'] += 1
    if first_reads:
        while st['rho'] < LAR: read()
    else: st['rho'] = LAR
    chains = [list(c) for c in fx.chains]
    hist = []
    def wait_for(m):
        regs = []
        for w in m.wait: regs += aregs(w)
        return P.wait_lg_regs(regs)
    if S.mf and S.mf[0].wait is not None: wait_for(S.mf[0])
    for mu, m in enumerate(S.mf):
        P.e('v_mfma_f32_16x16x32_bf16 %s, %s, %s, %s' % (m.D, areg(m.fi), m.B, m.C))
        free_scalar = True; used = 0
        here = fx.at.get(mu, [])
        nxt = S.mf[mu+1] if mu + 1 < len(S.mf) else None
        lead = [x for x in here if x[0] == 'L']
        if nxt is not None and nxt.wait is not None:
            assert st['rho'] >= 2*(max(nxt.wait)+1), (mu, st['rho'], nxt.wait)
            if wait_for(nxt) is not None: free_scalar = False
        for kind, text, tag, cost in lead:
            if text == '@waitvm':
                if not opt.get('no_vmwait') and P.wait_vm_tag(tag) is None: continue
            else: P.e(text, tag=tag)
            if free_scalar: free_scalar = False
            else: used += 1
        emitted_chain = set()
        def chain_scalar():
            for ci, c in enumerate(chains):
                if c and c[0][1] == 'S' and c[0][0] <= mu:
                    P.e(c[0][2]); c.pop(0); emitted_chain.add(ci); return True
            return False
        if free_scalar and chain_scalar(): free_scalar = False
        dma = None
        for ci, c in enumerate(chains):
            if c and c[0][1] == 'D' and c[0][0] <= mu and ci not in emitted_chain: dma = ci; break
        nominal = min(nreads, mu + 1 + LAR)
        must_read = any(x[0] == 'R' for x in here)
        if dma is not None and not must_read and nominal - st['rho'] <= 1:
            c = chains[dma]; it = c.pop(0)
            if not (opt.get('no_dma') and ' lds' in it[2]): P.e(it[2], tag=it[3]); used += 2
        else:
            n = min(2 if not must_read else 99, nominal - st['rho'])
            for _ in range(n):
                fi = st['rho'] // 2
                assert fi - NF < 0 or last_use.get(fi - NF, -1) <= mu, ('ring', mu, fi)
                read(); used += 1
        for kind, text, tag, cost in here:
            if kind == 'M': text(P); used += 1
        for kind, text, tag, cost in here:
            if kind in ('L', 'M'): continue
            if kind == 'R':
                assert st['rho'] == nominal
                P.e(text); used += 1
            elif kind == 'B':
                if not opt.get('no_bar'):
                    i = P.e('s_barrier'); i.meta = dict(needs=tag)
                used += 1
            elif kind == 'X': text(P); used += cost
            else: P.e(text, tag=tag); used += cost
        while True:
            cands = []
            for q in queues:
                o = q.peek()
                if o is None or o.ready > mu: continue
                if o.after is not None and not all(x.done() for x in o.after): continue
                if used + o.cost <= 2: cands.append((0, o.due, q))
                elif o.due <= mu and used + o.cost <= maxslots + (1 if o.cost == 2 and used <= 2 and maxslots == 3 and used == 2 and o.due + 6 <= mu else 0): cands.append((1, o.due, q))
            if not cands: break
            cands.sort(key=lambda t: (t[0], 0 if t[2].prio else 1, t[1]))
            q = cands[0][2]; o = q.peek()
            if callable(o.text): o.text(P)
            elif opt.get('no_hst') and o.text.startswith('buffer_store'): pass
            elif not (opt.get('no_valu') and o.text.startswith('v_')): P.e(o.text, tag=o.tag)
            used += o.cost; q.k += 1
            if q.done(): q.finish = mu
        for ci, c in enumerate(chains):
            while c and c[0][1] == 'S' and c[0][0] + 2 <= mu and used < 4:
                P.e(c[0][2]); c.pop(0); used += 1
        hist.append(used)
    for c in chains: assert not c, ('chain left', c[:2])
    assert st['rho'] == nreads, (st['rho'], nreads)
    for q in queues:
        if not q.done():
            if not drain_ok: raise AssertionError('queue %s not drained: %d left' % (q.name, len(q.ops) - q.k))
            if drain_pre: P.e(drain_pre); drain_pre = None
            while not q.done():
                o = q.peek()
                if callable(o.text): o.text(P)
                else: P.e(o.text, tag=o.tag)
                q.k += 1
            q.finish = len(S.mf)
    return hist

def verify_barriers(path):
    vmq = []; bad = 0
    for i in path:
        if i.kind == 'vmem': vmq.append(i)
        elif i.kind == 'wait' and i.meta['vm'] is not None:
            vm = i.meta['vm']
            if len(vmq) > vm: vmq = vmq[len(vmq)-vm:] if vm else []
        elif (i.kind == 'barrier' or (i.kind == 'ds' and i.meta and i.meta.get('arrive'))) and i.meta and i.meta.get('needs'):
            ts = i.meta['needs']; ts = ts if isinstance(ts, (list, tuple)) else [ts]
            if any(x.tag in ts for x in vmq): print('BARRIER with outstanding', ts); bad += 1
    return bad
def est_cycles(hist): return sum(16.25 + 4*max(0, u-2) for u in hist)
```

```python
import build_all as B
from common import *
B4 = ['k1_kernel','k2_kernel','k3_kernel','k4_kernel']
B4 = ['k1_kernel','k2_kernel','k3_kernel','k4_kernel']
V = {'vA': (None, None), 'vB': (None, ['k1_kernel'] + B4), 'vC': (None, ['k1_kernel', 'k1_kernel'] + B4), 'vD': (None, ['k1_kernel', 'k2_kernel', 'k2_kernel', 'k3_kernel', 'k4_kernel']),
     'vE': (dict(k1pf=[]), ['k1_kernel'] + B4), 'vF': (dict(k1pf=[]), None)}
import os
os.makedirs('variants', exist_ok=True)
for n, (o, order) in V.items():
    t, ks = B.make(opts=o, order=order)
    open('variants/%s.s' % n, 'w').write(t)
print('ok')
```

```python
import struct
KA_X, KA_WQKV, KA_WO, KA_BX, KA_WG, KA_WU, KA_WD, KA_OUT, KA_DBG, KA_WS = [8*i for i in range(10)]
WS_O    = 0x0
WS_HF   = 0x240000
WS_ST   = 0x480000
WS_MX   = 0x4A4000
WS_WB   = 0x4A6000
WS_FLAG = 0x4B0000
WS_CNT  = 0x4B2000
WS_CNT4 = 0x4B4000
WS_CNT1 = 0x4B6000
WS_CNTW = 0x4B8000
WS_CNT4A = 0x4BA000
WS_HX   = 0x500000
WS_P    = 0x1700000
WS_HC   = 0x2900000
WS_END  = 0x2B40000
SRD3 = 0x20000
S_, D_, F_ = 2048, 576, 4608
def f2u(x): return struct.unpack('<I', struct.pack('<f', x))[0]
```

```python
from core import *
from common import *
from stamps import Stamper

XR_END = 92160
WSLOT = 16384
PITCH = 516
LDS_BYTES = XR_END + 4*WSLOT

def build(name='k1_kernel', prefetch=None, dbg=False, pf=()):
    P = Prog(); e = P.e
    VB = [2, 3]; VBH = [4, 5]; VA, PA = 6, 20
    VW, VX, VONE = 10, 14, 16
    VWA, T = 192, 27
    BB = [40, 60]; AB = [80, 96]; ACC = 112
    S_X, S_WQ, S_WS = 8, 12, 16
    S_W, S_HG, S_MI, S_C, S_RA, S_WA, S_WB, S_SO, S_T0, S_T1, S_CNT = 20, 21, 22, 23, 24, 25, 26, 27, 28, 29, 30
    S_MASK = 32
    S_OD = 40
    def acc(i, mt): return ACC + 20*i + 4*mt
    e('s_cmp_ge_u32 s2, 256'); e('s_cbranch_scc1 L_%s_end' % name)
    stamp = Stamper(P, dbg, S_W); stamp('start')
    if 'scramble' in pf:
        e('s_lshr_b32 s3, s2, 3'); e('s_and_b32 s2, s2, 7'); e('s_lshl_b32 s2, s2, 5'); e('s_or_b32 s2, s2, s3')
    e('s_load_dwordx4 s[4:7], s[0:1], %d' % KA_X)
    e('s_load_dwordx2 s[34:35], s[0:1], %d' % KA_WS)
    e('v_lshrrev_b32 v1, 6, v0'); e('v_and_b32 v0, 63, v0')
    e('v_readfirstlane_b32 %s, v1' % sr(S_W))
    e('s_and_b32 %s, s2, 1' % sr(S_HG)); e('s_lshl_b32 %s, %s, 2' % (sr(S_HG), sr(S_HG)))
    e('s_bfe_u32 %s, s2, 0x20003' % sr(S_T0)); e('s_add_u32 %s, %s, %s' % (sr(S_HG), sr(S_HG), sr(S_T0)))
    e('s_bfe_u32 %s, s2, 0x20001' % sr(S_MI)); e('s_lshl_b32 %s, %s, 3' % (sr(S_MI), sr(S_MI)))
    e('s_lshr_b32 %s, s2, 5' % sr(S_T0)); e('s_add_u32 %s, %s, %s' % (sr(S_MI), sr(S_MI), sr(S_T0)))
    e('v_lshrrev_b32 v1, 3, v0'); e('v_and_b32 %s, 7, v0' % vr(T))
    e('s_and_b32 %s, %s, 1' % (sr(S_T0), sr(S_W))); e('s_lshl_b32 %s, %s, 2' % (sr(S_T0), sr(S_T0)))
    e('v_lshrrev_b32 %s, 1, v1' % vr(T+1)); e('v_add_u32 %s, %s, %s' % (vr(T+1), sr(S_T0), vr(T+1)))
    e('v_xor_b32 %s, %s, %s' % (vr(T+1), vr(T+1), vr(T))); e('v_lshlrev_b32 %s, 4, %s' % (vr(T+1), vr(T+1)))
    e('v_mul_u32_u24 %s, 1152, v1' % vr(T+2)); e('v_add_u32 %s, %s, %s' % (vr(VX), vr(T+1), vr(T+2)))
    e('s_waitcnt lgkmcnt(0)')
    for srd, lo, hi, size in ((S_X, 4, 5, S_*D_*2), (S_WQ, 6, 7, D_*3*D_*2), (S_WS, 34, 35, WS_END)):
        e('s_mov_b32 %s, s%d' % (sr(srd), lo)); e('s_mov_b32 %s, s%d' % (sr(srd+1), hi))
        e('s_mov_b32 %s, 0x%x' % (sr(srd+2), size)); e('s_mov_b32 %s, 0x%x' % (sr(srd+3), SRD3))
    stamp('setup')
    W1 = []; a = W1.append
    for t in range(4):
        d = vr(VW+t)
        a('s_lshl_b32 s31, %s, 6' % sr(S_W)); a('s_add_u32 s31, s31, %d' % (256*t))
        a('v_add_u32 %s, s31, v0' % vr(T))
        a('v_mul_u32_u24 %s, 7282, %s' % (vr(T+1), vr(T))); a('v_lshrrev_b32 %s, 16, %s' % (vr(T+1), vr(T+1)))
        a('v_mul_u32_u24 %s, 9, %s' % (vr(T+2), vr(T+1))); a('v_sub_u32 %s, %s, %s' % (vr(T+2), vr(T), vr(T+2)))
        a('v_lshrrev_b32 %s, 5, %s' % (vr(T+3), vr(T+1))); a('v_and_b32 %s, 31, %s' % (vr(T+1), vr(T+1)))
        a('v_mul_u32_u24 %s, 1152, %s' % (vr(T+3), vr(T+3))); a('v_lshl_add_u32 %s, %s, 4, %s' % (vr(T+2), vr(T+2), vr(T+3)))
        a('v_mul_u32_u24 %s, 3456, %s' % (vr(T+1), vr(T+1))); a('v_add_u32 %s, %s, %s' % (d, vr(T+2), vr(T+1)))
        a(['v_cmp_le_u32 vcc, 864, %s' % vr(T), 'v_mov_b32 %s, 0x7fff0000' % vr(T+3), 's_nop 0', 'v_cndmask_b32 %s, %s, %s, vcc' % (d, d, vr(T+3))])
    W2 = []; a = W2.append
    M = T+5; Q_ = T+6
    a('v_and_b32 %s, 15, v0' % vr(M)); a('v_lshrrev_b32 %s, 4, v0' % vr(Q_))
    a('v_lshrrev_b32 %s, 3, %s' % (vr(T+1), vr(M))); a('v_mul_u32_u24 %s, 9216, %s' % (vr(T+1), vr(T+1)))
    a('v_and_b32 %s, 7, %s' % (vr(T+2), vr(M))); a('v_lshl_add_u32 %s, %s, 7, %s' % (vr(T+1), vr(T+2), vr(T+1)))
    a('v_lshrrev_b32 %s, 1, %s' % (vr(T+2), vr(M)))
    for kp in range(2):
        a('v_add_u32 %s, %d, %s' % (vr(T+3), 4*kp, vr(Q_))); a('v_xor_b32 %s, %s, %s' % (vr(T+3), vr(T+3), vr(T+2)))
        a('v_lshl_add_u32 %s, %s, 4, %s' % (vr(VB[kp]), vr(T+3), vr(T+1))); a('v_add_u32 %s, %d, %s' % (vr(VBH[kp]), 4*18432, vr(VB[kp])))
    a('v_bfe_u32 %s, v0, 2, 2' % vr(T+2)); a('v_lshl_add_u32 %s, %s, 3, %s' % (vr(T+2), vr(Q_), vr(T+2)))
    a('v_mul_u32_u24 %s, 144, %s' % (vr(T+2), vr(T+2))); a('v_add_u32 %s, %d, %s' % (vr(T+2), XR_END, vr(T+2)))
    a('v_and_b32 %s, 3, v0' % vr(T+1)); a('v_lshlrev_b32 %s, 2, %s' % (vr(T+1), vr(T+1)))
    for i4 in range(4):
        a('s_lshl_b32 s31, %s, 6' % sr(S_W)); a('s_add_u32 s31, s31, %d' % (16*i4))
        a('v_add_u32 %s, s31, %s' % (vr(T+3), vr(T+1)))
        a('v_min_u32 %s, 212, %s' % (vr(T+3), vr(T+3)))
        a('v_mul_u32_u24 %s, 911, %s' % (vr(T+4), vr(T+3))); a('v_lshrrev_b32 %s, 16, %s' % (vr(T+4), vr(T+4)))
        a('v_mul_u32_u24 %s, %d, %s' % (vr(T+4), 4608 - 144, vr(T+4)))
        a('v_lshl_add_u32 %s, %s, 1, %s' % (vr(T+3), vr(T+3), vr(T+4))); a('v_add_u32 %s, %s, %s' % (vr(PA+i4), vr(T+3), vr(T+2)))
    for k in range(4): a('v_mov_b32 %s, 0x3f803f80' % vr(VONE+k))
    a('v_cmp_eq_u32 %s, 0, %s' % (sr(S_MASK, 2), vr(M)))
    for i4 in range(4):
        for d2 in range(2):
            d = vr(VWA + 2*i4 + d2)
            a('s_lshl_b32 s31, %s, 6' % sr(S_W)); a('s_add_u32 s31, s31, %d' % (16*i4 + 2*d2))
            a('v_lshl_add_u32 %s, %s, 2, s31' % (vr(T+1), vr(Q_)))
            a('v_mul_u32_u24 %s, 3641, %s' % (vr(T+2), vr(T+1))); a('v_lshrrev_b32 %s, 16, %s' % (vr(T+2), vr(T+2)))
            a('v_mul_u32_u24 %s, 18, %s' % (vr(T+3), vr(T+2))); a('v_sub_u32 %s, %s, %s' % (vr(T+3), vr(T+1), vr(T+3)))
            a('v_min_u32 %s, 12, %s' % (vr(T+2), vr(T+2)))
            a('v_mul_u32_u24 %s, 3200, %s' % (vr(T+2), vr(T+2))); a('v_lshl_add_u32 %s, %s, 1, %s' % (vr(T+2), vr(T+3), vr(T+2)))
            a('v_mul_u32_u24 %s, 40, %s' % (vr(T+3), vr(M))); a('v_add_u32 %s, %s, %s' % (d, vr(T+2), vr(T+3)))
    for i4 in range(4):
        for mt in range(5):
            for r in range(4): a('v_mov_b32 %s, 0' % vr(acc(i4, mt)+r))
    a('s_mul_i32 s37, %s, 72' % sr(S_HG)); a('s_mul_i32 s38, %s, 18' % sr(S_W)); a('s_add_u32 s37, s37, s38')
    for d in range(9):
        o = sr(S_OD+d)
        a('s_add_u32 s38, s37, %d' % (2*d))
        a('s_lshr_b32 %s, s38, 5' % o); a('s_lshl_b32 %s, %s, 10' % (o, o))
        a('s_bfe_u32 s39, s38, 0x20002'); a('s_lshl_b32 s39, s39, 8'); a('s_add_u32 %s, %s, s39' % (o, o))
        a('s_bfe_u32 s39, s38, 0x10004'); a('s_lshl_b32 s39, s39, 3'); a('s_add_u32 %s, %s, s39' % (o, o))
        a('s_bfe_u32 s39, s38, 0x10001'); a('s_lshl_b32 s39, s39, 2'); a('s_add_u32 %s, %s, s39' % (o, o))
    def work(lst, n):
        for _ in range(n):
            if not lst: return
            x = lst.pop(0)
            for t in (x if isinstance(x, list) else [x]): e(t)
    n1 = len(W1)
    for bi in range(3):
        if bi == 2:
            work(W1, 999)
            e('s_cmp_ge_u32 %s, 2' % sr(S_W)); e('s_cbranch_scc1 L_%s_nox' % name)
        e('s_add_u32 %s, %s, %d' % (sr(S_T0), sr(S_W), 4*bi))
        e('s_lshl_b32 %s, %s, 3' % (sr(S_T1), sr(S_MI))); e('s_add_u32 %s, %s, %s' % (sr(S_T1), sr(S_T1), sr(S_T0)))
        e('s_sub_u32 %s, %s, 2' % (sr(S_T1), sr(S_T1))); e('s_max_i32 %s, %s, 0' % (sr(S_T1), sr(S_T1)))
        e('s_mul_i32 %s, %s, %d' % (sr(S_T1), sr(S_T1), 8*1152))
        e('s_mul_i32 %s, %s, 9216' % (sr(S_T0), sr(S_T0)))
        for lam in range(9):
            P.raw('s_add_u32 m0, %s, %d' % (sr(S_T0), lam*1024))
            P.raw('s_add_u32 s36, %s, %d' % (sr(S_T1), lam*128))
            P.raw('buffer_load_dwordx4 %s, %s, s36 offen lds' % (vr(VX), sr(S_X,4)))
            if bi < 2: work(W1, (n1 + 17)//18)
    P.raw('L_%s_nox:' % name)
    e('s_mul_i32 %s, %s, 144' % (sr(S_SO), sr(S_HG)))
    e('s_lshl_b32 %s, %s, 10' % (sr(S_WB), sr(S_W))); e('s_add_u32 %s, %s, %d' % (sr(S_WB), sr(S_WB), XR_END))
    n2 = len(W2)
    for ks in range(4):
        for t in range(4):
            e('s_add_u32 m0, %s, %d' % (sr(S_WB), ks*WSLOT + t*4096))
            if t == 0: e('s_add_u32 %s, %s, %d' % (sr(S_T0), sr(S_SO), ks*32*3456))
            else: e('s_nop 0')
            e('buffer_load_dwordx4 %s, %s, %s offen lds' % (vr(VW+t), sr(S_WQ,4), sr(S_T0)), tag='w%d' % ks)
            work(W2, (n2 + 15)//16)
    work(W2, 999)
    e('s_add_u32 %s, %s, %d' % (sr(S_SO), sr(S_SO), 4*32*3456))
    VP = 36
    if 'code' in pf or 'wq' in pf or 'wo' in pf or 'wg' in pf:
        e('s_lshr_b32 s60, s2, 3'); e('s_and_b32 s61, s2, 7')
        e('s_lshl_b32 s50, %s, 6' % sr(S_W)); e('v_add_u32 %s, s50, v0' % vr(VP))
    if 'code' in pf:
        P.raw('s_getpc_b64 s[52:53]'); P.raw('L_%s_pc:' % name)
        P.raw('s_sub_u32 s52, s52, L_%s_pc - %s' % (name, name)); P.raw('s_subb_u32 s53, s53, 0')
        P.raw('s_mov_b32 s54, L_text_end - %s' % name); e('s_mov_b32 s55, 0x%x' % SRD3)
        e('s_mul_i32 s50, s60, 14'); e('v_add_u32 %s, s50, %s' % (vr(VP+1), vr(VP))); e('v_lshlrev_b32 %s, 7, %s' % (vr(VP+1), vr(VP+1)))
        e('v_cmp_gt_u32 vcc, 14, %s' % vr(VP)); e('v_mov_b32 %s, 0x7fff0000' % vr(VP+2)); e('s_nop 0'); e('v_cndmask_b32 %s, %s, %s, vcc' % (vr(VP+1), vr(VP+2), vr(VP+1)))
        P.raw('buffer_load_dword %s, %s, s[52:55], 0 offen' % (vr(VP+2), vr(VP+1)))
    if 'wq' in pf:
        e('v_mul_u32_u24 %s, 4370, %s' % (vr(VP+1), vr(VP))); e('v_lshrrev_b32 %s, 16, %s' % (vr(VP+1), vr(VP+1)))
        e('v_mul_u32_u24 %s, 15, %s' % (vr(VP+3), vr(VP+1))); e('v_sub_u32 %s, %s, %s' % (vr(VP+3), vr(VP), vr(VP+3)))
        e('s_mul_i32 s50, s60, 14'); e('s_add_u32 s50, s50, 128'); e('v_add_u32 %s, s50, %s' % (vr(VP+1), vr(VP+1))); e('v_mul_u32_u24 %s, 3456, %s' % (vr(VP+1), vr(VP+1)))
        e('v_mul_u32_u24 %s, 52, %s' % (vr(T), vr(VP+3))); e('v_lshrrev_b32 %s, 8, %s' % (vr(T), vr(T)))
        e('v_mul_u32_u24 %s, 5, %s' % (vr(T+1), vr(T))); e('v_sub_u32 %s, %s, %s' % (vr(VP+3), vr(VP+3), vr(T+1)))
        e('v_mul_u32_u24 %s, 1152, %s' % (vr(T), vr(T))); e('v_add_u32 %s, %s, %s' % (vr(VP+1), vr(VP+1), vr(T)))
        e('v_lshl_add_u32 %s, %s, 7, %s' % (vr(VP+1), vr(VP+3), vr(VP+1)))
        e('v_cmp_gt_u32 vcc, 210, %s' % vr(VP)); e('v_mov_b32 %s, 0x7fff0000' % vr(T)); e('s_and_b32 s50, s61, 1'); e('s_lshl_b32 s50, s50, 9')
        e('v_cndmask_b32 %s, %s, %s, vcc' % (vr(VP+1), vr(T), vr(VP+1)))
        P.raw('buffer_load_dword %s, %s, %s, s50 offen' % (vr(VP+3), vr(VP+1), sr(S_WQ,4)))
    stamp('issued')
    if prefetch: prefetch(P)
    def reads(st, kp, ni):
        l = []
        for mt in range(5):
            rd = VB[kp] if mt < 4 else VBH[kp]
            l.append('ds_read_b128 %s, %s offset:%d' % (vr(BB[st]+4*mt, 4), vr(rd), mt*18432 if mt < 4 else 0))
        for i in range(ni):
            for u in range(2):
                l.append('ds_read_b64_tr_b16 %s, %s offset:%d' % (vr(AB[st]+4*i+2*u, 2), vr(VA+i), u*576))
        return l
    def ones_fix(st):
        for d in range(4): e('v_cndmask_b32 %s, %s, %s, %s' % (vr(BB[st]+d), vr(BB[st]+d), vr(VONE), sr(S_MASK, 2)))
    P.wait_vm_tag('w0'); e('s_barrier')
    stamp('w0')
    for i in range(4): e('v_mov_b32 %s, %s' % (vr(VA+i), vr(PA+i)))
    for t in reads(0, 0, 4): e(t)
    e('s_mov_b32 %s, 0' % sr(S_C)); e('s_mov_b32 %s, 9' % sr(S_CNT))
    e('s_waitcnt lgkmcnt(0)')
    ones_fix(0)
    e('s_cmp_eq_u32 %s, 3' % sr(S_W)); e('s_cbranch_scc1 L_%s_loop3' % name)
    spans = {}
    def loop(lab, stats_wave):
        P.raw('.p2align 6'); P.raw('L_%s_%s:' % (name, lab))
        a0 = len(P.ins)
        for kp in range(2):
            cur, nxt = kp, 1-kp
            e('s_waitcnt vmcnt(8)'); e('s_barrier')
            e('s_lshl_b32 %s, %s, 14' % (sr(S_T0), sr(S_C))); e('s_add_u32 %s, %s, %s' % (sr(S_WA), sr(S_WB), sr(S_T0)))
            e('s_add_u32 %s, %s, 1' % (sr(S_C), sr(S_C))); e('s_and_b32 %s, %s, 3' % (sr(S_C), sr(S_C))); e('s_lshl_b32 %s, %s, 14' % (sr(S_RA), sr(S_C)))
            for i in range(2 if stats_wave else 4): e('v_add_u32 %s, %s, %s' % (vr(VA+i), sr(S_RA), vr(PA+i)))
            if kp == 1:
                e('v_add_u32 %s, 1024, %s' % (vr(VB[0]), vr(VB[0]))); e('v_add_u32 %s, 1024, %s' % (vr(VBH[0]), vr(VBH[0])))
            rd = reads(nxt, 1-kp, 2 if stats_wave else 4)
            n = 0; dq = 0
            for i in range(4):
                for mt in range(5):
                    A = vr(AB[cur]+4*i, 4)
                    if stats_wave and i == 2: A = vr(VONE, 4)
                    if stats_wave and i == 3: A = vr(BB[cur]+4*mt, 4)
                    e('v_mfma_f32_16x16x32_bf16 %s, %s, %s, %s' % (vr(acc(i, mt), 4), A, vr(BB[cur]+4*mt, 4), vr(acc(i, mt), 4)))
                    if n in (12, 14, 16, 18):
                        e('s_add_u32 m0, %s, %d' % (sr(S_WA), dq*4096))
                    if n in (13, 15, 17, 19):
                        e('buffer_load_dwordx4 %s, %s, %s offen lds' % (vr(VW+dq), sr(S_WQ,4), sr(S_SO))); dq += 1
                    elif rd: e(rd.pop(0))
                    n += 1
            assert not rd and dq == 4
            e('s_add_u32 %s, %s, %d' % (sr(S_SO), sr(S_SO), 32*3456))
            if kp == 0:
                e('v_add_u32 %s, 1024, %s' % (vr(VB[1]), vr(VB[1]))); e('v_add_u32 %s, 1024, %s' % (vr(VBH[1]), vr(VBH[1])))
            e('s_waitcnt lgkmcnt(0)')
            ones_fix(nxt)
            if kp == 0: e('s_nop 0')
        e('s_sub_u32 %s, %s, 1' % (sr(S_CNT), sr(S_CNT))); e('s_cmp_lg_u32 %s, 0' % sr(S_CNT)); e('s_cbranch_scc1 L_%s_%s' % (name, lab))
        spans[lab] = (a0, len(P.ins))
    loop('loop', False)
    e('s_branch L_%s_after' % name)
    b3 = len(P.ins)
    loop('loop3', True)
    STAT = LDS_BYTES - 1024*0
    e('v_and_b32 v1, 15, v0'); e('v_lshrrev_b32 %s, 4, v0' % vr(T)); e('v_lshrrev_b32 %s, 2, v1' % vr(T+1)); e('v_and_b32 %s, 3, v1' % vr(T+2))
    e('v_cmp_eq_u32 s[50:51], %s, %s' % (vr(T), vr(T+1)))
    for r in range(1, 4): e('v_cmp_eq_u32 s[%d:%d], %d, %s' % (50+2*r, 51+2*r, r, vr(T+2)))
    e('v_lshlrev_b32 v1, 3, v1'); e('v_add_u32 v1, %d, v1' % STAT)
    e('s_mov_b32 %s, 0x%08x' % (sr(S_T0), f2u(1.0/576)))
    for mt in range(5):
        g = acc(3, mt)
        for r in range(1, 4): e('v_cndmask_b32 %s, %s, %s, s[%d:%d]' % (vr(g), vr(g), vr(g+r), 50+2*r, 51+2*r))
    for mt in range(5): e('v_mul_f32 %s, %s, %s' % (vr(acc(2, mt)), sr(S_T0), vr(acc(2, mt))))
    for mt in range(5): e('v_mul_f32 %s, %s, %s' % (vr(acc(3, mt)), sr(S_T0), vr(acc(3, mt))))
    e('s_cmp_lg_u32 %s, 0' % sr(S_HG)); e('s_cbranch_scc1 L_%s_nomx' % name)
    e('v_and_b32 %s, 15, v0' % vr(T+3)); e('v_lshlrev_b32 %s, 2, %s' % (vr(T+3), vr(T+3)))
    e('s_lshl_b32 %s, %s, 8' % (sr(S_T1), sr(S_MI))); e('s_add_u32 %s, %s, 0x%x' % (sr(S_T1), sr(S_T1), WS_MX))
    e('s_mov_b64 exec, s[50:51]')
    for mt in range(1, 5): P.raw('buffer_store_dword %s, %s, %s, %s offen offset:%d' % (vr(acc(2, mt)), vr(T+3), sr(S_WS,4), sr(S_T1), 64*(mt-1)))
    e('s_mov_b64 exec, -1')
    P.raw('L_%s_nomx:' % name)
    for mt in range(5): e('v_fma_f32 %s, -%s, %s, %s' % (vr(acc(3, mt)), vr(acc(2, mt)), vr(acc(2, mt)), vr(acc(3, mt))))
    for mt in range(5): e('v_max_f32 %s, 0, %s' % (vr(acc(3, mt)), vr(acc(3, mt))))
    for mt in range(5): e('v_add_f32 %s, 0x%08x, %s' % (vr(acc(3, mt)), f2u(1e-5), vr(acc(3, mt))))
    for mt in range(5): e('v_rsq_f32 %s, %s' % (vr(acc(3, mt)+1), vr(acc(3, mt))))
    e('s_nop 0')
    for mt in range(5): e('v_mul_f32 %s, -%s, %s' % (vr(acc(3, mt)), vr(acc(2, mt)), vr(acc(3, mt)+1)))
    e('s_mov_b64 exec, s[50:51]')
    for mt in range(5): e('ds_write_b64 v1, %s offset:%d' % (vr(acc(3, mt), 2), 128*mt))
    e('s_mov_b64 exec, -1')
    e3 = len(P.ins)
    P.raw('L_%s_after:' % name)
    after = len(P.ins)
    stamp('loop')
    if 'wo' in pf or 'wg' in pf:
        e('s_load_dwordx2 s[52:53], s[0:1], %d' % KA_WO); e('s_load_dwordx2 s[56:57], s[0:1], %d' % KA_WG)
        e('v_mul_u32_u24 %s, 7282, %s' % (vr(VP+1), vr(VP))); e('v_lshrrev_b32 %s, 16, %s' % (vr(VP+1), vr(VP+1)))
        e('v_mul_u32_u24 %s, 9, %s' % (vr(VP+2), vr(VP+1))); e('v_sub_u32 %s, %s, %s' % (vr(VP+2), vr(VP), vr(VP+2)))
        e('s_mul_i32 s50, s60, 18'); e('v_add_u32 %s, s50, %s' % (vr(VP+1), vr(VP+1))); e('v_mul_u32_u24 %s, 9216, %s' % (vr(VP+1), vr(VP+1)))
        e('v_lshl_add_u32 %s, %s, 7, %s' % (vr(VP+1), vr(VP+2), vr(VP+1)))
        e('s_mul_i32 s50, s60, 162'); e('v_add_u32 %s, s50, %s' % (vr(VP+2), vr(VP))); e('v_lshlrev_b32 %s, 7, %s' % (vr(VP+2), vr(VP+2)))
        e('v_cmp_gt_u32 vcc, 162, %s' % vr(VP)); e('v_mov_b32 %s, 0x7fff0000' % vr(VP+3)); e('s_mul_i32 s51, s61, 1152')
        e('v_cndmask_b32 %s, %s, %s, vcc' % (vr(VP+1), vr(VP+3), vr(VP+1))); e('v_cndmask_b32 %s, %s, %s, vcc' % (vr(VP+2), vr(VP+3), vr(VP+2)))
        e('s_waitcnt lgkmcnt(0)')
        e('s_mov_b32 s54, 0x%x' % (D_*D_*2)); e('s_mov_b32 s55, 0x%x' % SRD3)
        e('s_mov_b32 s58, 0x%x' % (D_*F_*2)); e('s_mov_b32 s59, 0x%x' % SRD3)
        if 'wo' in pf: P.raw('buffer_load_dword v14, %s, s[52:55], 0 offen' % vr(VP+2))
        if 'wg' in pf: P.raw('buffer_load_dword v15, %s, s[56:59], s51 offen' % vr(VP+1))
    WB = 100
    e('s_load_dwordx2 s[52:53], s[0:1], %d' % KA_WO)
    e('s_lshl_b32 s50, %s, 8' % sr(S_W)); e('s_add_u32 s62, s50, s2')
    e('v_lshlrev_b32 %s, 4, v0' % vr(WB+8)); e('v_add_u32 %s, 1024, %s' % (vr(WB+9), vr(WB+8)))
    e('v_cmp_gt_u32 vcc, 8, v0'); e('v_mov_b32 %s, 0x7fff0000' % vr(WB)); e('s_mul_i32 s51, s62, 1152')
    e('v_cndmask_b32 %s, %s, %s, vcc' % (vr(WB+9), vr(WB), vr(WB+9)))
    e('s_waitcnt lgkmcnt(0)')
    e('s_mov_b32 s54, 0x%x' % (D_*D_*2)); e('s_mov_b32 s55, 0x%x' % SRD3)
    e('buffer_load_dwordx4 %s, %s, s[52:55], s51 offen' % (vr(WB, 4), vr(WB+8)), tag='wb')
    e('buffer_load_dwordx4 %s, %s, s[52:55], s51 offen' % (vr(WB+4, 4), vr(WB+9)), tag='wb')
    CS = BB[0]
    e('s_nop 4')
    for i in range(4):
        for r in range(4):
            e('v_mov_b32_dpp %s, %s row_newbcast:0 row_mask:0xf bank_mask:0xf' % (vr(CS+4*i+r), vr(acc(i, 0)+r)))
    e('s_waitcnt lgkmcnt(0)'); e('s_barrier')
    ST = BB[1]
    e('v_and_b32 v1, 15, v0'); e('v_lshlrev_b32 v1, 3, v1'); e('v_add_u32 v1, %d, v1' % STAT)
    for mt in range(5): e('ds_read_b64 %s, v1 offset:%d' % (vr(ST+2*mt, 2), 128*mt))
    e('s_waitcnt lgkmcnt(0)')
    for mt in range(5):
        for i in range(4):
            a = acc(i, mt); t0 = T + 4*(i % 2)
            for r in range(4): e('v_mul_f32 %s, %s, %s' % (vr(t0+r), vr(ST+2*mt), vr(CS+4*i+r)))
            for r in range(4): e('v_fma_f32 %s, %s, %s, %s' % (vr(a+r), vr(a+r), vr(ST+2*mt+1), vr(t0+r)))
            e('v_cvt_pk_bf16_f32 %s, %s, %s' % (vr(a), vr(a), vr(a+1))); e('v_cvt_pk_bf16_f32 %s, %s, %s' % (vr(a+1), vr(a+2), vr(a+3)))
            for d2 in range(2): e('ds_write_b32 %s, %s offset:%d' % (vr(VWA+2*i+d2), vr(a+d2), 640*mt))
    e('s_waitcnt lgkmcnt(0)'); e('s_barrier')
    stamp('fix')
    AD = 2
    e('v_add_u32 v1, 2, v0'); e('v_mul_u32_u24 %s, 40, v1' % vr(AD))
    e('s_mul_i32 %s, %s, 3200' % (sr(S_T0), sr(S_W))); e('v_add_u32 %s, %s, %s' % (vr(AD), sr(S_T0), vr(AD)))
    QR = 40; KR = 112; L = 50
    def rdvec(dst, kind, w):
        for t in range(5): e('ds_read_b64 %s, %s offset:%d' % (vr(dst+2*t, 2), vr(AD), kind*12800 + (14 - 2*w)*40 + 8*t))
    def kreg(w): return KR + 10*w
    rdvec(QR, 0, 0); rdvec(kreg(0), 1, 0); rdvec(kreg(1), 1, 1)
    for w in range(0, 8, 2):
        P.wait_lg_regs(rset('v', QR, 10) + rset('v', kreg(w), 10) + rset('v', kreg(w+1), 10))
        if w + 2 < 8: rdvec(kreg(w+2), 1, w+2); rdvec(kreg(w+3), 1, w+3)
        for d in range(9):
            for ww in (w, w+1):
                e('v_dot2_f32_bf16 %s, %s, %s, %s' % (vr(L+ww), vr(QR+d), vr(kreg(ww)+d), '0' if d == 0 else vr(L+ww)))
    rdvec(kreg(0), 2, 0); rdvec(kreg(1), 2, 1); rdvec(kreg(2), 2, 2)
    e('s_lshl_b32 %s, %s, 6' % (sr(S_T0), sr(S_MI))); e('v_add_u32 %s, %s, v0' % (vr(T), sr(S_T0))); e('v_mov_b32 %s, 0x%08x' % (vr(T+1), f2u(-1e9)))
    for w in range(1, 8):
        e('v_cmp_gt_u32 vcc, %d, %s' % (2*w, vr(T))); e('s_nop 1'); e('v_cndmask_b32 %s, %s, %s, vcc' % (vr(L+w), vr(L+w), vr(T+1)))
    e('v_max3_f32 %s, %s, %s, %s' % (vr(T+2), vr(L), vr(L+1), vr(L+2))); e('v_max3_f32 %s, %s, %s, %s' % (vr(T+3), vr(L+3), vr(L+4), vr(L+5)))
    e('v_max3_f32 %s, %s, %s, %s' % (vr(T+2), vr(T+2), vr(L+6), vr(L+7))); e('v_max_f32 %s, %s, %s' % (vr(T+2), vr(T+2), vr(T+3)))
    CSC = 18**-0.5 * 1.4426950408889634
    e('s_mov_b32 %s, 0x%08x' % (sr(S_T1), f2u(CSC)))
    e('v_mul_f32 %s, %s, %s' % (vr(T+2), sr(S_T1), vr(T+2)))
    for w in range(8): e('v_fma_f32 %s, %s, %s, -%s' % (vr(L+w), vr(L+w), sr(S_T1), vr(T+2)))
    for w in range(8): e('v_exp_f32 %s, %s' % (vr(L+w), vr(L+w)))
    P.wait_lg_regs(rset('v', kreg(2), 10))
    rdvec(kreg(3), 2, 3); rdvec(kreg(4), 2, 4); rdvec(kreg(5), 2, 5)
    e('v_add_f32 %s, %s, %s' % (vr(T+2), vr(L), vr(L+1))); e('v_add_f32 %s, %s, %s' % (vr(T+3), vr(L+2), vr(L+3)))
    e('v_add_f32 %s, %s, %s' % (vr(T+4), vr(L+4), vr(L+5))); e('v_add_f32 %s, %s, %s' % (vr(T+5), vr(L+6), vr(L+7)))
    e('v_add_f32 %s, %s, %s' % (vr(T+2), vr(T+2), vr(T+3))); e('v_add_f32 %s, %s, %s' % (vr(T+4), vr(T+4), vr(T+5))); e('v_add_f32 %s, %s, %s' % (vr(T+2), vr(T+2), vr(T+4)))
    e('v_rcp_f32 %s, %s' % (vr(T+2), vr(T+2))); e('s_nop 0')
    for w in range(8): e('v_mul_f32 %s, %s, %s' % (vr(L+w), vr(L+w), vr(T+2)))
    PL, PH = 60, 68
    for w in range(8):
        e('v_cvt_pk_bf16_f32 %s, %s, 0' % (vr(PL+w), vr(L+w))); e('v_cvt_pk_bf16_f32 %s, 0, %s' % (vr(PH+w), vr(L+w)))
    OL, OH = 80, 90
    def pv(w):
        for d in range(9):
            e('v_dot2_f32_bf16 %s, %s, %s, %s' % (vr(OL+d), vr(kreg(w)+d), vr(PL+w), '0' if w == 0 else vr(OL+d)))
            e('v_dot2_f32_bf16 %s, %s, %s, %s' % (vr(OH+d), vr(kreg(w)+d), vr(PH+w), '0' if w == 0 else vr(OH+d)))
    pv(0); pv(1); pv(2)
    P.wait_lg_regs(rset('v', kreg(5), 10))
    rdvec(kreg(6), 2, 6); rdvec(kreg(7), 2, 7)
    pv(3); pv(4); pv(5)
    P.wait_lg_regs(rset('v', kreg(7), 10))
    pv(6); pv(7)
    e('v_lshrrev_b32 %s, 4, v0' % vr(T)); e('s_lshl_b32 %s, %s, 2' % (sr(S_T0), sr(S_MI))); e('v_add_u32 %s, %s, %s' % (vr(T), sr(S_T0), vr(T)))
    e('v_mul_u32_u24 %s, 18432, %s' % (vr(T), vr(T))); e('v_and_b32 %s, 15, v0' % vr(T+1)); e('v_lshl_add_u32 %s, %s, 4, %s' % (vr(T), vr(T+1), vr(T)))
    for d in range(9): e('v_cvt_pk_bf16_f32 %s, %s, %s' % (vr(QR+d), vr(OL+d), vr(OH+d)))
    for d in range(9): e('buffer_store_dword %s, %s, %s, %s offen' % (vr(QR+d), vr(T), sr(S_WS,4), sr(S_OD+d)))
    P.wait_vm_tag('wb')
    e('v_mov_b32 %s, 0x3f803f80' % vr(WB+8))
    for d in range(8): e('v_dot2_f32_bf16 %s, %s, %s, %s' % (vr(WB+9), vr(WB+d), vr(WB+8), '0' if d == 0 else vr(WB+9)))
    e('s_nop 2')
    for dpp in ('quad_perm:[1,0,3,2]', 'quad_perm:[2,3,0,1]', 'row_half_mirror', 'row_mirror'):
        e('v_add_f32_dpp %s, %s, %s %s row_mask:0xf bank_mask:0xf' % (vr(WB+9), vr(WB+9), vr(WB+9), dpp)); e('s_nop 1')
    for swap in ('v_permlane16_swap_b32', 'v_permlane32_swap_b32'):
        e('v_mov_b32 %s, %s' % (vr(WB+10), vr(WB+9))); e('s_nop 1')
        e('%s %s, %s' % (swap, vr(WB+9), vr(WB+10))); e('s_nop 1')
        e('v_add_f32 %s, %s, %s' % (vr(WB+9), vr(WB+9), vr(WB+10)))
    e('v_mul_f32 %s, 0x%08x, %s' % (vr(WB+9), f2u(1.0/576), vr(WB+9)))
    e('v_cvt_pk_bf16_f32 %s, %s, 0' % (vr(WB), vr(WB+9)))
    e('v_lshlrev_b32 %s, 16, %s' % (vr(WB+1), vr(WB))); e('v_sub_f32 %s, %s, %s' % (vr(WB+1), vr(WB+9), vr(WB+1)))
    e('v_cvt_pk_bf16_f32 %s, %s, 0' % (vr(WB+1), vr(WB+1)))
    e('s_lshr_b32 s50, s62, 5'); e('s_lshl_b32 s50, s50, 6')
    e('s_bfe_u32 s51, s62, 0x20002'); e('s_lshl_b32 s51, s51, 4'); e('s_add_u32 s50, s50, s51')
    e('s_bfe_u32 s51, s62, 0x10004'); e('s_lshl_b32 s51, s51, 3'); e('s_add_u32 s50, s50, s51')
    e('s_and_b32 s51, s62, 3'); e('s_lshl_b32 s51, s51, 1'); e('s_add_u32 s50, s50, s51'); e('s_add_u32 s50, s50, 0x%x' % WS_WB)
    e('s_cmp_ge_u32 s62, 576'); e('s_cbranch_scc1 L_%s_nowb' % name)
    e('s_mov_b64 exec, 1')
    P.raw('buffer_store_short %s, off, %s, s50' % (vr(WB), sr(S_WS,4)))
    P.raw('buffer_store_short %s, off, %s, s50 offset:%d' % (vr(WB+1), sr(S_WS,4), 18*64))
    P.raw('L_%s_nowb:' % name)
    stamp('attn'); stamp.finish()
    P.raw('L_%s_end:' % name)
    e('s_endpgm')
    ins = P.ins
    a0, a1 = spans['loop']; c0, c1 = spans['loop3']
    path = ins[:a0] + ins[a0:a1]*3 + ins[after:]
    path3 = ins[:a0] + ins[c0:c1]*3 + ins[c1:]
    return P, (path, path3), dict(vgpr=200, accum=200, sgpr=102 if dbg else 64, grid=256, block=256, lds=LDS_BYTES + 1024, stamps=stamp.names)

if __name__ == '__main__':
    P, paths, o = build()
    for p in paths: check(p, 'k1')
    print(len(P.ins), o)
```

```python
from core import *
from common import *
from sched import *
from stamps import Stamper

def build(name='k2_kernel', prefetch=None, dbg=False, pf=None):
    P = Prog(); e = P.e
    NWG = 256 if pf == 'help' else 216
    V_L16, V_OG, V_RD, V_RD2, V_XO, V_T = 1, 2, 5, 6, 7, 8
    V_B, V_ACC, V_X, V_U = 16, 160, 192, 208
    A_W, NF, LAR = 0, 12, 12
    A_WB = 48
    V_MU, V_MX, V_WBO = 240, 248, 250
    S_WS, S_WO, S_X = 8, 12, 16
    S_W, S_MG, S_NG, S_MT, S_T0, S_T1, S_OO, S_WOFF = 20, 21, 22, 23, 24, 25, 26, 27
    e('s_cmp_ge_u32 s2, %d' % NWG); e('s_cbranch_scc1 L_%s_end' % name)
    stamp = Stamper(P, dbg, S_W); stamp('start')
    e('s_load_dwordx2 s[4:5], s[0:1], %d' % KA_WS); e('s_load_dwordx2 s[6:7], s[0:1], %d' % KA_WO); e('s_load_dwordx2 s[28:29], s[0:1], %d' % KA_X)
    e('v_mov_b32 %s, v0' % vr(V_T+7))
    e('v_lshrrev_b32 %s, 6, v0' % vr(V_T)); e('v_and_b32 v0, 63, v0')
    e('v_readfirstlane_b32 %s, %s' % (sr(S_W), vr(V_T)))
    e('v_lshlrev_b32 %s, 4, v0' % vr(V_L16))
    e('s_lshr_b32 %s, s2, 3' % sr(S_T0)); e('s_mul_i32 %s, %s, 57' % (sr(S_T1), sr(S_T0))); e('s_lshr_b32 %s, %s, 9' % (sr(S_T1), sr(S_T1)))
    e('s_mul_i32 %s, %s, 9' % (sr(S_NG), sr(S_T1))); e('s_sub_u32 %s, %s, %s' % (sr(S_NG), sr(S_T0), sr(S_NG)))
    e('s_lshl_b32 %s, %s, 3' % (sr(S_MG), sr(S_T1))); e('s_and_b32 %s, s2, 7' % sr(S_T0)); e('s_add_u32 %s, %s, %s' % (sr(S_MG), sr(S_MG), sr(S_T0)))
    skip = (0, 0)
    if pf == 'help':
        e('s_cmp_lt_u32 s2, 216'); e('s_cbranch_scc1 L_%s_tile' % name)
        help0 = len(P.ins)
        e('s_load_dwordx2 s[44:45], s[0:1], %d' % KA_WU); e('s_load_dwordx2 s[46:47], s[0:1], %d' % KA_WD)
        e('s_lshr_b32 s50, s2, 3'); e('s_sub_u32 s50, s50, 27'); e('s_mul_i32 s50, s50, 192'); e('v_add_u32 %s, s50, %s' % (vr(V_U), vr(V_T+7)))
        e('v_mul_u32_u24 %s, 7282, %s' % (vr(V_U+1), vr(V_U))); e('v_lshrrev_b32 %s, 16, %s' % (vr(V_U+1), vr(V_U+1)))
        e('v_mul_u32_u24 %s, 9, %s' % (vr(V_U+2), vr(V_U+1))); e('v_sub_u32 %s, %s, %s' % (vr(V_U+2), vr(V_U), vr(V_U+2)))
        e('v_mul_u32_u24 %s, 9216, %s' % (vr(V_U+1), vr(V_U+1))); e('v_lshl_add_u32 %s, %s, 7, %s' % (vr(V_U+1), vr(V_U+2), vr(V_U+1)))
        e('v_cmp_gt_u32 vcc, 954, %s' % vr(V_U)); e('v_mov_b32 %s, 0x7fff0000' % vr(V_U+3)); e('v_lshlrev_b32 %s, 7, %s' % (vr(V_U), vr(V_U)))
        e('v_cndmask_b32 %s, %s, %s, vcc' % (vr(V_U+1), vr(V_U+3), vr(V_U+1)))
        e('s_and_b32 s51, s2, 7'); e('s_mul_i32 s52, s51, 1152'); e('s_mul_i32 s53, s51, %d' % (576*1152))
        e('s_waitcnt lgkmcnt(0)')
        for k in range(2):
            b = 56 + 4*k
            e('s_mov_b32 s%d, s%d' % (b, 44+2*k)); e('s_mov_b32 s%d, s%d' % (b+1, 45+2*k)); e('s_mov_b32 s%d, 0x%x' % (b+2, D_*F_*2)); e('s_mov_b32 s%d, 0x%x' % (b+3, SRD3))
        for k in range(6):
            P.raw('buffer_load_dword %s, %s, s[56:59], s52 offen' % (vr(V_B+k), vr(V_U+1)))
            P.raw('buffer_load_dword %s, %s, s[60:63], s53 offen' % (vr(V_B+8+k), vr(V_U)))
            e('s_add_u32 s52, s52, %d' % (106*9216)); e('s_add_u32 s53, s53, %d' % (960*128))
        e('s_branch L_%s_end' % name)
        skip = (help0, len(P.ins))
        P.raw('L_%s_tile:' % name)
    e('s_cmp_ge_u32 %s, 22' % sr(S_MG)); e('s_cbranch_scc1 L_%s_end' % name)
    e('s_mul_i32 %s, %s, 6' % (sr(S_MT), sr(S_MG))); e('s_lshl_b32 %s, %s, 1' % (sr(S_T0), sr(S_W))); e('s_add_u32 %s, %s, %s' % (sr(S_MT), sr(S_MT), sr(S_T0)))
    e('s_mul_i32 %s, %s, %d' % (sr(S_OO), sr(S_MT), 18*1024))
    T = V_T
    e('v_bfe_u32 %s, v0, 1, 3' % vr(T)); e('v_mul_u32_u24 %s, 1152, %s' % (vr(T), vr(T)))
    e('v_lshrrev_b32 %s, 4, v0' % vr(T+1)); e('v_lshl_add_u32 %s, %s, 5, %s' % (vr(T), vr(T+1), vr(T)))
    e('v_and_b32 %s, 1, v0' % vr(T+2)); e('v_lshl_add_u32 %s, %s, 4, %s' % (vr(V_OG), vr(T+2), vr(T)))
    e('v_add_u32 %s, %d, %s' % (vr(V_OG+1), 8*1152 - 1024, vr(V_OG))); e('v_add_u32 %s, %d, %s' % (vr(V_OG+2), 2*(8*1152 - 1024), vr(V_OG)))
    e('s_mul_i32 %s, %s, %d' % (sr(S_WOFF), sr(S_W), 64*1152)); e('s_lshl_b32 %s, %s, 7' % (sr(S_T0), sr(S_NG))); e('s_add_u32 %s, %s, %s' % (sr(S_WOFF), sr(S_WOFF), sr(S_T0)))
    e('s_lshl_b32 s30, %s, 13' % sr(S_W))
    e('s_waitcnt lgkmcnt(0)')
    for srd, lo, hi, size in ((S_WS, 4, 5, WS_END), (S_WO, 6, 7, D_*D_*2), (S_X, 28, 29, S_*D_*2)):
        e('s_mov_b32 %s, s%d' % (sr(srd), lo)); e('s_mov_b32 %s, s%d' % (sr(srd+1), hi))
        e('s_mov_b32 %s, 0x%x' % (sr(srd+2), size)); e('s_mov_b32 %s, 0x%x' % (sr(srd+3), SRD3))
    def bfrag(ks, mm): return V_B + 8*ks + 4*mm
    stamp('setup')
    def phase_items(j):
        it = []
        for g, n in ((0, 3), (3, 3), (6, 2)):
            it.append(('S', 's_add_u32 %s, %s, %d' % (sr(S_T0), sr(S_WOFF), (192*j + 8*g)*1152), None))
            it.append(('S', 's_add_u32 m0, s30, %d' % ((24*j + g)*1024), None))
            for q in range(n):
                it.append(('D', 'buffer_load_dwordx4 %s, %s, %s offen offset:%d lds' % (vr(V_OG+q), sr(S_WO,4), sr(S_T0), 1024*q), 'ph%d' % j))
        for ks in range(6*j, 6*j+6):
            for mm in range(2):
                it.append(('S', 's_add_u32 %s, %s, %d' % (sr(S_T1), sr(S_OO), (18*mm + ks)*1024), None))
                it.append(('D', 'buffer_load_dwordx4 %s, %s, %s, %s offen' % (vr(bfrag(ks, mm), 4), vr(V_L16), sr(S_WS,4), sr(S_T1)), 'ph%d' % j))
        return it
    WB_LDS = 73728
    e('v_and_b32 %s, 1, v0' % vr(V_WBO)); e('v_mul_u32_u24 %s, %d, %s' % (vr(V_WBO), 18*64, vr(V_WBO)))
    e('v_lshrrev_b32 %s, 4, v0' % vr(V_T)); e('v_lshl_add_u32 %s, %s, 4, %s' % (vr(V_WBO), vr(V_T), vr(V_WBO))); e('v_add_u32 %s, %d, %s' % (vr(V_WBO), WB_LDS, vr(V_WBO)))
    e('s_lshl_b32 s37, %s, 10' % sr(S_W)); e('s_add_u32 s38, s37, %d' % WB_LDS); e('s_add_u32 s37, s37, 0x%x' % WS_WB)
    def wb_items(j):
        if j: return []
        return [('S', 's_mov_b32 m0, s38', None), ('D', 'buffer_load_dwordx4 %s, %s, s37 offen lds' % (vr(V_L16), sr(S_WS,4)), 'ph0')]
    for j in range(2):
        for kind, text, tag in phase_items(j) + wb_items(j):
            e(text, tag=tag)
            if ' m0,' in text: e('s_nop 0')
    e('s_cmp_ge_u32 s2, 8'); e('s_cbranch_scc1 L_%s_noflag' % name)
    e('v_cmp_gt_u32 vcc, 128, %s' % vr(V_T+7)); e('s_lshl_b32 %s, s2, 9' % sr(S_T0)); e('s_add_u32 %s, %s, 0x%x' % (sr(S_T0), sr(S_T0), WS_FLAG))
    e('v_lshlrev_b32 %s, 2, %s' % (vr(V_T+6), vr(V_T+7))); e('v_mov_b32 %s, 0' % vr(V_T+5))
    e('s_and_saveexec_b64 s[34:35], vcc'); e('s_cbranch_execz L_%s_noflag2' % name)
    P.raw('buffer_store_dword %s, %s, %s, %s offen' % (vr(V_T+5), vr(V_T+6), sr(S_WS,4), sr(S_T0)))
    P.raw('L_%s_noflag2:' % name)
    e('s_mov_b64 exec, s[34:35]')
    P.raw('L_%s_noflag:' % name)
    stamp('issued')
    e('v_lshrrev_b32 %s, 4, v0' % vr(T+1))
    e('v_bfe_u32 %s, v0, 2, 2' % vr(T)); e('v_lshlrev_b32 %s, 5, %s' % (vr(T), vr(T)))
    e('v_and_b32 %s, 3, v0' % vr(T+2)); e('v_lshl_add_u32 %s, %s, 3, %s' % (vr(T), vr(T+2), vr(T)))
    e('v_and_b32 %s, 1, %s' % (vr(T+2), vr(T+1))); e('v_lshl_add_u32 %s, %s, 7, %s' % (vr(T), vr(T+2), vr(T)))
    e('v_lshrrev_b32 %s, 1, %s' % (vr(T+2), vr(T+1))); e('v_lshl_add_u32 %s, %s, 10, %s' % (vr(V_RD), vr(T+2), vr(T)))
    e('v_add_u32 %s, 36864, %s' % (vr(V_RD2), vr(V_RD)))
    V_MXO = 251
    e('v_and_b32 %s, 15, v0' % vr(V_MXO)); e('v_lshlrev_b32 %s, 2, %s' % (vr(V_MXO), vr(V_MXO)))
    e('v_and_b32 %s, 15, v0' % vr(T)); e('v_mul_u32_u24 %s, 1152, %s' % (vr(T), vr(T))); e('v_lshl_add_u32 %s, %s, 3, %s' % (vr(V_XO), vr(T+1), vr(T)))
    e('s_mul_i32 s31, %s, %d' % (sr(S_MT), 16*1152)); e('s_lshl_b32 %s, %s, 7' % (sr(S_T0), sr(S_NG))); e('s_add_u32 s31, s31, %s' % sr(S_T0))
    e('s_mov_b32 s32, 0x3f80'); e('s_mov_b32 s33, 0x3f800000')
    if prefetch: prefetch(P, V_U, V_T)
    P.wait_vm_tag('ph0'); i = e('s_barrier'); i.meta = dict(needs='ph0')
    stamp('ph0')
    for ks in range(18):
        e('ds_read_b128 %s, %s offset:%d' % (ar(A_WB + 4*ks, 4), vr(V_WBO), 64*ks))
        if ks == 8: e('s_waitcnt lgkmcnt(0)')
    e('s_waitcnt lgkmcnt(0)')
    S = Stream()
    def acc(nt, mm): return vr(V_ACC + 8*nt + 4*mm, 4)
    for j in range(3):
        fr = []; mf = []
        for mm in range(2):
            for t in range(6):
                ks = 6*j + t
                mf.append(MF(vr(V_MU + 4*mm, 4), None, vr(bfrag(ks, mm), 4), '0' if ks == 0 else vr(V_MU + 4*mm, 4), None, A=ar(A_WB + 4*ks, 4)))
        for nt in range(4):
            for g in range(2):
                f0 = len(fr)
                for t in range(3):
                    ks = 6*j + 3*g + t; kl = ks % 9
                    fr.append(Frag(V_RD if ks < 9 else V_RD2, (4*kl)*1024 + nt*256, (4*kl+2)*1024 + nt*256))
                for mm in range(2):
                    for t in range(3):
                        ks = 6*j + 3*g + t
                        mf.append(MF(acc(nt, mm), f0+t, vr(bfrag(ks, mm), 4), '0' if ks == 0 else acc(nt, mm), [f0, f0+1, f0+2] if (mm == 0 and t == 0) else None))
        S.add(fr, mf)
    fx = Fixed()
    ch = []; g = 0
    for kind, text, tag in phase_items(2) + wb_items(2):
        ch.append((g, kind, text, tag)); g += 1 if kind == 'S' else 1
    ch.append((58, 'S', 's_lshl_b32 s38, %s, 6' % sr(S_MT), None)); ch.append((58, 'S', 's_add_u32 s38, s38, 0x%x' % WS_MX, None))
    for mm in range(2):
        ch.append((60, 'D', 'buffer_load_dword %s, %s, %s, s38 offen offset:%d' % (vr(V_MX+mm), vr(V_MXO), sr(S_WS,4), 64*mm), 'x'))
    for mm in range(2):
        ch.append((60, 'S', 's_add_u32 s36, s31, %d' % (16*1152*mm), None))
        for nt in range(4):
            ch.append((60, 'D', 'buffer_load_dwordx2 %s, %s, %s, s36 offen offset:%d' % (vr(V_X + 8*mm + 2*nt, 2), vr(V_XO), sr(S_X,4), 32*nt), 'x'))
    fx.chain(ch)
    for j in (1, 2):
        fx.put(60*j - LAR - 2, 'L', '@waitvm', 'ph%d' % j); fx.put(60*j - LAR - 2, 'B', 's_barrier', 'ph%d' % j)
    emit_stream(P, S, [], fx, [], A_W, NF, LAR, first_reads=True)
    stamp('gemm')
    e('s_cmp_ge_u32 %s, 128' % sr(S_MT)); e('s_cbranch_scc1 L_%s_end' % name)
    P.wait_vm_tag('x')
    e('s_nop 4')
    for mm in range(2):
        for nt in range(4):
            for r in range(4):
                a = V_ACC + 8*nt + 4*mm + r
                e('v_dot2_f32_bf16 %s, %s, s%d, %s' % (vr(a), vr(V_X + 8*mm + 2*nt + r//2), 32 + (r % 2), vr(a)))
    for mm in range(2):
        e('v_add_f32 %s, %s, %s' % (vr(V_MU+4*mm), vr(V_MU+4*mm), vr(V_MU+4*mm+1)))
    for mm in range(2):
        e('v_add_f32 %s, %s, %s' % (vr(V_MU+4*mm), vr(V_MU+4*mm), vr(V_MX+mm)))
    U = V_U
    H = V_U + 8
    def frag_store(mm, ws_off):
        e('s_add_u32 %s, %s, %d' % (sr(S_T0), sr(S_MT), mm)); e('s_mul_i32 %s, %s, 18' % (sr(S_T0), sr(S_T0)))
        e('s_lshl_b32 %s, %s, 1' % (sr(S_T1), sr(S_NG))); e('s_add_u32 %s, %s, %s' % (sr(S_T0), sr(S_T0), sr(S_T1)))
        e('s_lshl_b32 %s, %s, 10' % (sr(S_T0), sr(S_T0))); e('s_add_u32 %s, %s, 0x%x' % (sr(S_T0), sr(S_T0), ws_off))
        for p in range(2):
            hb = H + 8*((mm + (ws_off == WS_HC)) % 2) + 4*p
            for k in range(2):
                a = V_ACC + 8*(2*p+k) + 4*mm
                e('v_cvt_pk_bf16_f32 %s, %s, %s' % (vr(hb+2*k), vr(a), vr(a+1))); e('v_cvt_pk_bf16_f32 %s, %s, %s' % (vr(hb+2*k+1), vr(a+2), vr(a+3)))
            e('buffer_store_dwordx4 %s, %s, %s, %s offen offset:%d sc1' % (vr(hb,4), vr(V_L16), sr(S_WS,4), sr(S_T0), 1024*p))
    for mm in range(2):
        for nt in range(4):
            for r in range(4):
                a = vr(V_ACC + 8*nt + 4*mm + r)
                e('v_sub_f32 %s, %s, %s' % (vr(V_B + 16*mm + 4*nt + r), a, vr(V_MU+4*mm)))
    for mm in range(2):
        e('s_add_u32 %s, %s, %d' % (sr(S_T0), sr(S_MT), mm)); e('s_mul_i32 %s, %s, 18' % (sr(S_T0), sr(S_T0)))
        e('s_lshl_b32 %s, %s, 1' % (sr(S_T1), sr(S_NG))); e('s_add_u32 %s, %s, %s' % (sr(S_T0), sr(S_T0), sr(S_T1)))
        e('s_lshl_b32 %s, %s, 10' % (sr(S_T0), sr(S_T0))); e('s_add_u32 s39, %s, 0x%x' % (sr(S_T0), WS_HC))
        for p in range(2):
            hb = V_B + 32 + 8*mm + 4*p
            for k in range(2):
                a = V_B + 16*mm + 4*(2*p+k)
                e('v_cvt_pk_bf16_f32 %s, %s, %s' % (vr(hb+2*k), vr(a), vr(a+1))); e('v_cvt_pk_bf16_f32 %s, %s, %s' % (vr(hb+2*k+1), vr(a+2), vr(a+3)))
            e('buffer_store_dwordx4 %s, %s, %s, s39 offen offset:%d sc1' % (vr(hb,4), vr(V_L16), sr(S_WS,4), 1024*p))
    for mm in range(2):
        first = True
        for nt in range(4):
            for r in range(4):
                a = vr(V_B + 16*mm + 4*nt + r)
                if first: e('v_mul_f32 %s, %s, %s' % (vr(U+2*mm+1), a, a)); first = False
                else: e('v_fma_f32 %s, %s, %s, %s' % (vr(U+2*mm+1), a, a, vr(U+2*mm+1)))
    for swap in ('v_permlane32_swap_b32', 'v_permlane16_swap_b32'):
        for k in (1, 3): e('v_mov_b32 %s, %s' % (vr(U+4+k), vr(U+k)))
        e('s_nop 1')
        for k in (1, 3): e('%s %s, %s' % (swap, vr(U+k), vr(U+4+k)))
        e('s_nop 1')
        for k in (1, 3): e('v_add_f32 %s, %s, %s' % (vr(U+k), vr(U+k), vr(U+4+k)))
    for mm in range(2): e('v_mov_b32 %s, %s' % (vr(U+2*mm), vr(V_MU+4*mm)))
    e('v_and_b32 %s, 15, v0' % vr(T)); e('v_lshlrev_b32 %s, 3, %s' % (vr(T), vr(T)))
    e('s_lshl_b32 %s, %s, 11' % (sr(S_T0), sr(S_NG))); e('s_lshl_b32 %s, %s, 4' % (sr(S_T1), sr(S_MT))); e('s_add_u32 %s, %s, %s' % (sr(S_T0), sr(S_T0), sr(S_T1)))
    e('s_lshl_b32 %s, %s, 3' % (sr(S_T0), sr(S_T0))); e('s_add_u32 %s, %s, 0x%x' % (sr(S_T0), sr(S_T0), WS_ST))
    e('s_mov_b64 exec, 0xffff')
    for mm in range(2):
        e('buffer_store_dwordx2 %s, %s, %s, %s offen offset:%d' % (vr(U+2*mm, 2), vr(T), sr(S_WS,4), sr(S_T0), 128*mm))
    stamp('epi'); stamp.finish()
    P.raw('L_%s_end:' % name)
    e('s_endpgm')
    P.path = P.ins[:skip[0]] + P.ins[skip[1]:]
    return P, dict(stamps=stamp.names, vgpr=256+120, accum=256, sgpr=102 if dbg else (72 if pf else 40), grid=NWG, block=192, lds=73728 + 3072)

if __name__ == '__main__':
    P, o = build(); check(P.ins, 'k2'); print(verify_barriers(P.ins))
```

```python
from core import *
from common import *
from sched import *

SLOT = 36864
NF, LAR = 12, 12
def set_lar(x):
    global LAR
    LAR = x
V_RD, V_RD2 = 3, 4
V_PG, V_PH, V_PDE, V_PDO = 5, 6, 7, 8
V_OG, V_OH, V_OD = 9, 12, 15
V_C0, V_C1, V_K = 24, 26, 28
V_L16, V_FL = 30, 31
V_PO = 1
V_T = 32
V_H, V_HH = 40, 56
V_G, V_U = 64, 96
V_X = 128
A_OUT, A_X, A_W, A_HP = 0, 144, 160, 208
S_WG, S_WU, S_WD, S_WS = 8, 12, 16, 20
S_W = 24
S_GCOL, S_HCOL, S_DROW = 25, 26, 27
S_E = 28
S_HXO, S_HXP, S_P = 33, 34, 35
S_WR, S_WRAP, S_WOFF, S_RD = 36, 37, 38, 39
S_CNT, S_T0, S_T1 = 40, 41, 42
S_FLO, S_FLP, S_FVAL = 43, 44, 45
S_LO, S_HI = 46, 47
S_XO = 48
S_A, S_B, S_C, S_D = 50, 51, 52, 53
S_JP, S_S, S_I, S_FB, S_HB = 58, 59, 60, 61, 62
OPT = dict(no_dma=False, no_bar=False, no_valu=False, cap=3)

def xi_reg(ks, mm):
    xi = 2*ks + mm
    return ('v', V_X + 4*xi) if xi < 32 else ('a', A_X + 4*(xi-32))
def xfrag(ks, mm):
    k, b = xi_reg(ks, mm); return vr(b, 4) if k == 'v' else ar(b, 4)
def hpfrag(th, mm):
    x = 2*th + mm
    return ar(A_HP + 4*x, 4) if x < 12 else vr(V_X + 4*(x-12), 4)
def acc(base, ft, mm): return vr(base + 8*ft + 4*mm, 4)
def out(nt, mm): return ar(A_OUT + 8*nt + 4*mm, 4)

def st_GU(base, kh, first, fts=(0,1,2,3), rd=V_RD):
    fr = []; mf = []
    for ft in fts:
        for g in range(3):
            f0 = len(fr)
            for t in range(3):
                kl = 3*g + t
                fr.append(Frag(rd, (4*kl)*1024 + ft*256, (4*kl+2)*1024 + ft*256))
            for mm in range(2):
                for t in range(3):
                    kl = 3*g + t
                    C = '0' if (first and kl == 0) else acc(base, ft, mm)
                    mf.append(MF(acc(base, ft, mm), f0+t, xfrag(9*kh+kl, mm), C, [f0, f0+1, f0+2] if (mm == 0 and t == 0) else None))
    return fr, mf
def st_half(base):
    fr = []; mf = []
    for ft in range(2):
        for g in range(6):
            f0 = len(fr)
            for t in range(3):
                ks = 3*g + t
                fr.append(Frag(V_RD, (2*ks)*1024 + ft*512, (2*ks+1)*1024 + ft*512))
            for mm in range(2):
                for t in range(3):
                    ks = 3*g + t
                    C = '0' if ks == 0 else acc(base, ft, mm)
                    mf.append(MF(acc(base, ft, mm), f0+t, xfrag(ks, mm), C, [f0, f0+1, f0+2] if (mm == 0 and t == 0) else None))
    return fr, mf
def st_D(bf):
    fr = []; mf = []
    for nt in range(18):
        f0 = len(fr); rd = V_RD if nt % 2 == 0 else V_RD2
        for kq in range(2): fr.append(Frag(rd, (2*kq)*9216 + nt*128, (2*kq+1)*9216 + nt*128))
        for mm in range(2):
            for kq in range(2):
                w = [f0, f0+1, f0+2, f0+3] if (nt % 2 == 0 and mm == 0 and kq == 0) else None
                mf.append(MF(out(nt, mm), f0+kq, bf[kq][mm], out(nt, mm), w))
    return fr, mf
def st_final(bf, rdA, rdB):
    fr = []; mf = []
    for nt in range(18):
        f0 = len(fr)
        for k in range(4):
            rd = (rdA if k < 2 else rdB)[nt % 2]; kq = k % 2
            fr.append(Frag(rd, (2*kq)*9216 + nt*128, (2*kq+1)*9216 + nt*128))
        for mm in range(2):
            for k in range(4):
                w = [f0, f0+1, f0+2, f0+3] if (mm == 0 and k == 0) else None
                mf.append(MF(out(nt, mm), f0+k, bf[k][mm], out(nt, mm), w))
    return fr, mf

def gelu_ops(ft, vals, tb):
    ops = []
    for g0 in range(0, len(vals), 4):
        grp = vals[g0:g0+4]
        def G(v): return vr(V_G + 8*ft + 4*v[0] + v[1])
        steps = [lambda v, t: 'v_mul_f32 %s, %s, %s' % (t, G(v), G(v)),
                 lambda v, t: 'v_fma_f32 %s, %s, %s, %s' % (t, t, vr(V_C1+v[0]), vr(V_C0+v[0])),
                 lambda v, t: 'v_mul_f32 %s, %s, %s' % (t, G(v), t),
                 lambda v, t: 'v_exp_f32 %s, %s' % (t, t),
                 lambda v, t: 'v_fma_f32 %s, %s, %s, %s' % (t, t, vr(V_K+v[0]), vr(V_K+v[0])),
                 lambda v, t: 'v_rcp_f32 %s, %s' % (t, t),
                 lambda v, t: 'v_mul_f32 %s, %s, %s' % (G(v), G(v), t)]
        for st in steps:
            for n, v in enumerate(grp): ops.append(Op(st(v, vr(tb+n))))
    return ops
ALLV = [(mm, r) for mm in range(2) for r in range(4)]
def gelu_q(ft, name, tb): return Queue(gelu_ops(ft, ALLV, tb), name)
def prod_q(ft, H, name, store=None):
    ops = []
    for mm in range(2):
        for r in range(4):
            g = vr(V_G + 8*ft + 4*mm + r)
            ops.append(Op('v_mul_f32 %s, %s, %s' % (g, g, vr(V_U + 8*ft + 4*mm + r))))
    for mm in range(2):
        for d in range(2):
            g = V_G + 8*ft + 4*mm + 2*d
            ops.append(Op('v_cvt_pk_bf16_f32 %s, %s, %s' % (vr(H + 4*mm + 2*(ft % 2) + d), vr(g), vr(g+1))))
    if store:
        soff, imm0, tag = store
        for mm in range(2):
            ops.append(Op('buffer_store_dwordx4 %s, %s, %s, %s offen offset:%d %s' % (vr(H + 4*mm, 4), vr(V_L16), sr(S_WS,4), soff, imm0 + 1024*mm, OPT.get('hst_flags', 'sc1')), tag=tag))
    return Queue(ops, name, prio=True)

S_CW, S_CR = 96, 97
def rot_wr(): return ['s_add_u32 %s, %s, 1' % (sr(S_CW), sr(S_CW)), 's_and_b32 %s, %s, 3' % (sr(S_CW), sr(S_CW)),
                      's_mul_i32 %s, %s, %d' % (sr(S_WR), sr(S_CW), SLOT), 's_add_u32 %s, %s, %s' % (sr(S_WR), sr(S_WR), sr(S_WOFF))]
def rot_rd(): return ['s_add_u32 %s, %s, 1' % (sr(S_CR), sr(S_CR)), 's_and_b32 %s, %s, 3' % (sr(S_CR), sr(S_CR)),
                      's_mul_i32 %s, %s, %d' % (sr(S_RD), sr(S_CR), SLOT)]
def dma_G(srd, scol, kh, tag, step_rows=8):
    it = []
    vo = V_OG if step_rows == 8 else V_OH
    for g in range(3):
        const = (288*kh)*9216 + 3*g*step_rows*9216
        it.append(('S', 's_add_u32 %s, %s, 0x%x' % (sr(S_T0), scol, const) if const else 's_mov_b32 %s, %s' % (sr(S_T0), scol), None))
        it.append(('S', 's_add_u32 m0, %s, %d' % (sr(S_WR), 3072*g) if g else 's_mov_b32 m0, %s' % sr(S_WR), None))
        for q in range(3):
            it.append(('D', 'buffer_load_dwordx4 %s, %s, %s offen offset:%d %s lds' % (vr(vo+q), sr(srd,4), sr(S_T0), 1024*q, OPT.get('dma_flags', '')), tag))
    return it + [('S', t, None) for t in rot_wr()]
def dma_D(srow, tag):
    it = []
    for q in range(9):
        it.append(('S', 's_add_u32 m0, %s, %d' % (sr(S_WR), 1024*q) if q else 's_mov_b32 m0, %s' % sr(S_WR), None))
        it.append(('D', 'buffer_load_dwordx4 %s, %s, %s offen %s lds' % (vr(V_OD+q), sr(S_WD,4), srow, OPT.get('dma_flags', '')), tag))
    return it + [('S', t, None) for t in rot_wr()]
def put_dma(chain, g0, items, step=None):
    step = step or OPT.get('dma_step', 7)
    k = 0; pend = []
    for kind, text, tag in items:
        if kind == 'S': pend.append(text)
        else:
            due = g0 + step*k; k += 1
            for n, t in enumerate(pend): chain.append((max(0, due - 2*len(pend) + 2*n - 1), 'S', t, None))
            pend = []
            chain.append((due, 'D', text, tag))
    for n, t in enumerate(pend): chain.append((g0 + step*(k-1) + 1, 'S', t, None))
def put_bar(fx, end, tags, pats, rot=True):
    gb = end - LAR - 2
    if rot: fx.chain([(gb - 12, 'S', t, None) for t in rot_rd()])
    tag = tags if not isinstance(tags, (list, tuple)) else tags[-1]
    fx.put(gb, 'L', '@waitvm', tag)
    fx.put(gb, 'B', 's_barrier', tags)
    for rd, pat in pats: fx.put(gb+1, 'R', 'v_add_u32 %s, %s, %s' % (vr(rd), sr(S_RD), vr(pat)))
PAT_G = [(V_RD, V_PG)]; PAT_H = [(V_RD, V_PH)]; PAT_D = [(V_RD, V_PDE), (V_RD2, V_PDO)]

def build(name='k3_kernel', dbg=False):
    P = Prog(); e = P.e
    stamps = []
    def stamp(label):
        if not dbg: return
        k = len(stamps); stamps.append(label); assert k < 13
        P.raw('s_memtime s[92:93]'); P.raw('s_memrealtime s[90:91]'); P.raw('s_waitcnt lgkmcnt(0)')
        P.raw('s_mov_b32 s%d, s92' % (64+k)); P.raw('s_mov_b32 s%d, s90' % (77+k))
    info = {}
    e('s_cmp_ge_u32 s2, 256'); e('s_cbranch_scc1 L_%s_end' % name)
    stamp('start')
    if OPT.get('scramble'):
        e('s_lshr_b32 s3, s2, 3'); e('s_and_b32 s2, s2, 7'); e('s_lshl_b32 s2, s2, 5'); e('s_or_b32 s2, s2, s3')
    if dbg: e('s_load_dwordx2 s[94:95], s[0:1], %d' % KA_DBG)
    e('s_load_dwordx2 s[56:57], s[0:1], %d' % KA_WS)
    e('s_load_dwordx4 s[4:7], s[0:1], %d' % KA_WG)
    e('s_load_dwordx2 s[54:55], s[0:1], %d' % KA_WD)
    e('v_lshrrev_b32 v1, 6, v0'); e('v_and_b32 v0, 63, v0')
    e('v_readfirstlane_b32 %s, v1' % sr(S_W))
    e('v_lshlrev_b32 %s, 4, v0' % vr(V_L16))
    e('v_lshrrev_b32 v2, 4, v0'); e('v_and_b32 v1, 15, v0'); e('v_lshl_add_u32 v1, v2, 11, v1'); e('v_lshlrev_b32 v1, 3, v1')
    if OPT.get('map', 0) == 0:
        e('s_and_b32 %s, s2, 7' % sr(S_JP))
        e('s_lshr_b32 %s, s2, 3' % sr(S_I)); e('s_and_b32 %s, %s, 1' % (sr(S_S), sr(S_I))); e('s_lshr_b32 %s, %s, 1' % (sr(S_I), sr(S_I)))
    else:
        e('s_bfe_u32 %s, s2, 0x20001' % sr(S_JP)); e('s_lshl_b32 %s, %s, 1' % (sr(S_JP), sr(S_JP)))
        e('s_bfe_u32 %s, s2, 0x10004' % sr(S_T0)); e('s_add_u32 %s, %s, %s' % (sr(S_JP), sr(S_JP), sr(S_T0)))
        e('s_bfe_u32 %s, s2, 0x10003' % sr(S_S))
        e('s_and_b32 %s, s2, 1' % sr(S_I)); e('s_lshl_b32 %s, %s, 3' % (sr(S_I), sr(S_I)))
        e('s_lshr_b32 %s, s2, 5' % sr(S_T0)); e('s_add_u32 %s, %s, %s' % (sr(S_I), sr(S_I), sr(S_T0)))
    e('s_lshl_b32 %s, %s, 2' % (sr(S_T0), sr(S_I))); e('s_add_u32 %s, %s, %s' % (sr(S_T0), sr(S_T0), sr(S_W)))
    e('s_mul_i32 %s, %s, %d' % (sr(S_XO), sr(S_T0), 2*18*1024)); e('s_add_u32 %s, %s, 0x%x' % (sr(S_XO), sr(S_XO), WS_HC))
    e('s_lshl_b32 %s, %s, 8' % (sr(S_D), sr(S_T0)))
    e('s_waitcnt lgkmcnt(0)')
    def mksrd(srd, lo, hi, size):
        e('s_mov_b32 %s, s%d' % (sr(srd), lo)); e('s_mov_b32 %s, s%d' % (sr(srd+1), hi))
        e('s_mov_b32 %s, 0x%x' % (sr(srd+2), size)); e('s_mov_b32 %s, 0x%x' % (sr(srd+3), SRD3))
    mksrd(S_WS, 56, 57, WS_END); mksrd(S_WG, 4, 5, D_*F_*2); mksrd(S_WU, 6, 7, D_*F_*2)
    e('s_add_u32 s4, s56, 0x%x' % WS_ST); e('s_addc_u32 s5, s57, 0'); e('s_mov_b32 s6, %d' % (9*2048*8)); e('s_mov_b32 s7, 0x%x' % SRD3)
    e('v_mov_b32 %s, v1' % vr(V_HH))
    def xload(P, ks):
        for mm in range(2):
            P.e('s_add_u32 %s, %s, %d' % (sr(S_T1), sr(S_XO), (18*mm+ks)*1024))
            P.e('buffer_load_dwordx4 %s, %s, %s, %s offen' % (xfrag(ks, mm), vr(V_L16), sr(S_WS,4), sr(S_T1)), tag='x%d' % ks)
    def stload(P):
        for t in range(3):
            P.e('s_add_u32 %s, %s, %d' % (sr(S_T1), sr(S_D), t*4*2048*8 + 4))
            for mm in range(2):
                P.e('buffer_load_dword %s, %s, s[4:7], %s offen offset:%d' % (vr(V_H + 2*t + mm), vr(V_HH), sr(S_T1), 128*mm), tag='st')
    def dma_now(items):
        for kind, text, tag in items:
            e(text, tag=tag)
            if text.startswith('s_add_u32 m0') or text.startswith('s_mov_b32 m0'): e('s_nop 0')
    if OPT.get('pro_stamps'): stamp('karg')
    xload(P, 0); xload(P, 1)
    mksrd(S_WD, 54, 55, D_*F_*2)
    e('v_bfe_u32 v1, v0, 1, 3'); e('v_mul_u32_u24 v1, 9216, v1')
    e('v_lshl_add_u32 v1, v2, 5, v1')
    e('v_and_b32 %s, 1, v0' % vr(V_T)); e('v_lshl_add_u32 %s, %s, 4, v1' % (vr(V_OG), vr(V_T)))
    e('v_add_u32 %s, %d, %s' % (vr(V_OG+1), 8*9216 - 1024, vr(V_OG))); e('v_add_u32 %s, %d, %s' % (vr(V_OG+2), 2*(8*9216 - 1024), vr(V_OG)))
    e('s_mul_i32 %s, %s, 576' % (sr(S_T0), sr(S_JP)))
    e('s_mul_i32 %s, %s, 320' % (sr(S_T1), sr(S_S))); e('s_add_u32 %s, %s, %s' % (sr(S_FB), sr(S_T0), sr(S_T1)))
    e('s_lshl_b32 %s, %s, 5' % (sr(S_T1), sr(S_S))); e('s_add_u32 %s, %s, %s' % (sr(S_HB), sr(S_T0), sr(S_T1))); e('s_add_u32 %s, %s, 256' % (sr(S_HB), sr(S_HB)))
    e('s_mul_i32 %s, %s, %d' % (sr(S_T0), sr(S_W), 9*8*9216)); e('s_lshl_b32 %s, %s, 1' % (sr(S_T1), sr(S_FB)))
    e('s_add_u32 %s, %s, %s' % (sr(S_GCOL), sr(S_T0), sr(S_T1)))
    e('s_mul_i32 %s, %s, 9216' % (sr(S_WOFF), sr(S_W))); e('s_mov_b32 %s, 0' % sr(S_CW)); e('s_mov_b32 %s, 1' % sr(S_CR))
    e('s_mov_b32 %s, %s' % (sr(S_WR), sr(S_WOFF)))
    T = V_T
    pat = []; a = pat.append
    a('v_bfe_u32 %s, v0, 2, 2' % vr(T)); a('v_lshlrev_b32 %s, 5, %s' % (vr(T), vr(T)))
    a('v_and_b32 %s, 3, v0' % vr(T+1)); a('v_lshl_add_u32 %s, %s, 3, %s' % (vr(T), vr(T+1), vr(T)))
    a('v_lshl_add_u32 %s, v2, 7, %s' % (vr(V_PH), vr(T)))
    a('v_and_b32 %s, 1, v2' % vr(T+1)); a('v_lshlrev_b32 %s, 7, %s' % (vr(T+1), vr(T+1)))
    a('v_lshrrev_b32 %s, 1, v2' % vr(T+2)); a('v_lshl_add_u32 %s, %s, 10, %s' % (vr(T+2), vr(T+2), vr(T)))
    a('v_add_u32 %s, %s, %s' % (vr(V_PG), vr(T+2), vr(T+1)))
    a('v_mul_u32_u24 %s, 2304, v2' % vr(T+2)); a('v_add_u32 %s, %s, %s' % (vr(T+2), vr(T+2), vr(T)))
    a('v_add_u32 %s, %s, %s' % (vr(V_PDE), vr(T+2), vr(T+1))); a('v_sub_u32 %s, %s, %s' % (vr(V_PDO), vr(T+2), vr(T+1)))
    rest = []
    a = rest.append
    a('v_and_b32 v1, 1, v0'); a('v_bfe_u32 v2, v0, 1, 4'); a('v_mul_u32_u24 v2, 9216, v2'); a('v_lshl_add_u32 v2, v1, 4, v2')
    a('v_lshrrev_b32 v1, 5, v0'); a('v_lshl_add_u32 %s, v1, 5, v2' % vr(V_OH))
    a('v_add_u32 %s, %d, %s' % (vr(V_OH+1), 16*9216 - 1024, vr(V_OH))); a('v_add_u32 %s, %d, %s' % (vr(V_OH+2), 2*(16*9216 - 1024), vr(V_OH)))
    T2 = V_T + 4
    a('v_bfe_u32 v1, v0, 1, 2'); a('v_mul_u32_u24 v1, 1152, v1'); a('v_and_b32 v2, 1, v0'); a('v_lshl_add_u32 v1, v2, 4, v1'); a('v_lshrrev_b32 v2, 3, v0')
    for p in range(9):
        d = vr(V_OD+p)
        a('v_add_u32 %s, %d, v2' % (d, 8*p))
        a('v_mul_u32_u24 %s, 57, %s' % (vr(T2), d)); a('v_lshrrev_b32 %s, 10, %s' % (vr(T2), vr(T2)))
        a('v_mul_u32_u24 %s, 18, %s' % (vr(T2+1), vr(T2))); a('v_sub_u32 %s, %s, %s' % (d, d, vr(T2+1)))
        a('v_and_b32 %s, 1, %s' % (vr(T2+1), vr(T2))); a('v_xor_b32 %s, %s, %s' % (d, d, vr(T2+1)))
        a('v_mul_u32_u24 %s, 4608, %s' % (vr(T2), vr(T2))); a('v_lshl_add_u32 %s, %s, 5, %s' % (d, d, vr(T2)))
        a('v_add_u32 %s, %s, v1' % (d, d))
    for r in range(144): a('v_accvgpr_write_b32 a%d, 0' % (A_OUT + r))
    s_ = []
    b = s_.append
    b('s_mul_i32 %s, %s, %d' % (sr(S_A), sr(S_W), 9*16*9216)); b('s_lshl_b32 %s, %s, 1' % (sr(S_B), sr(S_HB))); b('s_add_u32 %s, %s, %s' % (sr(S_HCOL), sr(S_A), sr(S_B)))
    b('s_mul_i32 s63, %s, 576' % sr(S_S))
    b('s_lshl_b32 %s, %s, 4' % (sr(S_C), sr(S_W)))
    b('s_add_u32 %s, %s, %s' % (sr(S_A), sr(S_FB), sr(S_C))); b('s_mul_i32 %s, %s, 1152' % (sr(S_A), sr(S_A))); b('s_add_u32 %s, %s, s63' % (sr(S_DROW), sr(S_A)))
    b('s_xor_b32 %s, %s, 1' % (sr(S_B), sr(S_S))); b('s_mul_i32 %s, %s, 576' % (sr(S_A), sr(S_JP)))
    b('s_mul_i32 s54, %s, 320' % sr(S_B)); b('s_add_u32 s54, s54, %s' % sr(S_A))
    b('s_lshl_b32 s55, %s, 5' % sr(S_B)); b('s_add_u32 s55, s55, %s' % sr(S_A)); b('s_add_u32 s55, s55, 256')
    b('s_and_b32 s56, %s, 1' % sr(S_W)); b('s_lshl_b32 s56, s56, 4')
    b('s_lshr_b32 s57, %s, 1' % sr(S_W))
    for ee, th0 in enumerate((0, 2, 4, 5, 7)):
        d = sr(S_E+ee)
        b('s_lshl_b32 %s, s57, 5' % d); b('s_add_u32 %s, %s, s54' % (d, d))
        b('s_add_u32 %s, %s, %d' % (d, d, 32*th0))
        if ee == 3: s_.append(['s_cmp_eq_u32 s57, 0', 's_cselect_b32 %s, %s, %s' % (d, sr(S_HB), d)])
        if ee == 4: s_.append(['s_cmp_eq_u32 s57, 1', 's_cselect_b32 %s, s55, %s' % (d, d)])
        b('s_add_u32 %s, %s, s56' % (d, d)); b('s_mul_i32 %s, %s, 1152' % (d, d)); b('s_add_u32 %s, %s, s63' % (d, d))
    b('s_lshl_b32 %s, s2, 2' % sr(S_A)); b('s_add_u32 %s, %s, %s' % (sr(S_A), sr(S_A), sr(S_W)))
    b('s_lshl_b32 %s, %s, 2' % (sr(S_FLO), sr(S_A))); b('s_add_u32 %s, %s, 0x%x' % (sr(S_FLO), sr(S_FLO), WS_FLAG))
    b('s_mul_i32 %s, %s, 18432' % (sr(S_HXO), sr(S_A))); b('s_add_u32 %s, %s, 0x%x' % (sr(S_HXO), sr(S_HXO), WS_HX))
    b('s_xor_b32 %s, s2, 8' % sr(S_A)); b('s_lshl_b32 %s, %s, 2' % (sr(S_A), sr(S_A))); b('s_add_u32 %s, %s, %s' % (sr(S_A), sr(S_A), sr(S_W)))
    b('s_lshl_b32 %s, %s, 2' % (sr(S_FLP), sr(S_A))); b('s_add_u32 %s, %s, 0x%x' % (sr(S_FLP), sr(S_FLP), WS_FLAG))
    b('s_mul_i32 %s, %s, 18432' % (sr(S_HXP), sr(S_A))); b('s_add_u32 %s, %s, 0x%x' % (sr(S_HXP), sr(S_HXP), WS_HX))
    b('s_lshl_b32 %s, %s, 1' % (sr(S_A), sr(S_I))); b('s_add_u32 %s, %s, %s' % (sr(S_A), sr(S_A), sr(S_S)))
    b('s_lshl_b32 %s, %s, 3' % (sr(S_A), sr(S_A))); b('s_add_u32 %s, %s, %s' % (sr(S_A), sr(S_A), sr(S_JP)))
    b('s_lshl_b32 %s, %s, 2' % (sr(S_A), sr(S_A))); b('s_add_u32 %s, %s, %s' % (sr(S_A), sr(S_A), sr(S_W)))
    b('s_mul_i32 %s, %s, 18432' % (sr(S_P), sr(S_A))); b('s_add_u32 %s, %s, 0x%x' % (sr(S_P), sr(S_P), WS_P))
    b('s_mov_b32 %s, 0x3f80' % sr(S_LO)); b('s_mov_b32 %s, 0x3f800000' % sr(S_HI))
    b('s_mov_b32 %s, 3' % sr(S_CNT)); b('s_mov_b32 %s, 1' % sr(S_FVAL))
    work = pat + rest + s_
    def do_work(n):
        for _ in range(n):
            if not work: return
            x = work.pop(0)
            for t in (x if isinstance(x, list) else [x]): e(t)
    XLA = OPT.get('xla', 6)
    first = dma_G(S_WG, sr(S_GCOL), 0, 'Ga') + [('X', k, None) for k in range(2, XLA)] + dma_G(S_WG, sr(S_GCOL), 1, 'Gb') + [('T', 0, None)]
    nvm = sum(1 for k in first if k[0] in 'DXT'); per = (len(work) + nvm - 1)//nvm
    for kind, text, tag in first:
        if kind == 'X': xload(P, text); do_work(per)
        elif kind == 'T': stload(P); do_work(per)
        else:
            e(text, tag=tag)
            if ' m0,' in text: e('s_nop 0')
            if kind == 'D': do_work(per)
    do_work(9999)
    if OPT.get('pro_stamps'): stamp('setup')
    def stats_block(P):
        e = P.e; Q = V_H; T = V_H + 8
        P.wait_vm_tag('st')
        for mm in range(2): e('v_add_f32 %s, %s, %s' % (vr(Q+mm), vr(Q+mm), vr(Q+2+mm)))
        for mm in range(2): e('v_add_f32 %s, %s, %s' % (vr(Q+mm), vr(Q+mm), vr(Q+4+mm)))
        for swap in ('v_permlane32_swap_b32', 'v_permlane16_swap_b32'):
            for k in range(2): e('v_mov_b32 %s, %s' % (vr(Q+2+k), vr(Q+k)))
            e('s_nop 1')
            for k in range(2): e('%s %s, %s' % (swap, vr(Q+k), vr(Q+2+k)))
            e('s_nop 1')
            for k in range(2): e('v_add_f32 %s, %s, %s' % (vr(Q+k), vr(Q+k), vr(Q+2+k)))
        e('s_mov_b32 %s, 0x%08x' % (sr(S_A), f2u(1.0/576)))
        CC = -2.0*0.7978845608028654*1.4426950408889634
        for mm in range(2): e('v_mul_f32 %s, %s, %s' % (vr(V_K+mm), sr(S_A), vr(Q+mm)))
        for mm in range(2): e('v_add_f32 %s, 0x%08x, %s' % (vr(V_K+mm), f2u(1e-5), vr(V_K+mm)))
        for mm in range(2): e('v_rsq_f32 %s, %s' % (vr(T+mm), vr(V_K+mm)))
        e('s_nop 0')
        for mm in range(2):
            e('v_mul_f32 %s, 0x%08x, %s' % (vr(V_C0+mm), f2u(CC), vr(T+mm)))
            e('v_mul_f32 %s, %s, %s' % (vr(T+2+mm), vr(T+mm), vr(T+mm)))
        for mm in range(2): e('v_mul_f32 %s, 0x%08x, %s' % (vr(T+2+mm), f2u(0.044715), vr(T+2+mm)))
        for mm in range(2): e('v_mul_f32 %s, %s, %s' % (vr(V_C1+mm), vr(V_C0+mm), vr(T+2+mm)))
    e('v_mov_b32 %s, %s' % (vr(V_RD), vr(V_PG))); e('v_add_u32 %s, %d, %s' % (vr(V_RD2), SLOT, vr(V_PG)))
    P.wait_vm(lambda x: x.tag in ('Ga', 'x0')); i = e('s_barrier'); i.meta = dict(needs='Ga')
    stamp('bar0')
    S = Stream()
    fr = []; mf = []
    for ks in range(18):
        rd = V_RD if ks < 9 else V_RD2; kl = ks % 9
        f0 = len(fr)
        for ft in range(2): fr.append(Frag(rd, (4*kl)*1024 + ft*256, (4*kl+2)*1024 + ft*256))
        for ft in range(2):
            for mm in range(2):
                mf.append(MF(acc(V_G, ft, mm), f0+ft, xfrag(ks, mm), '0' if ks == 0 else acc(V_G, ft, mm), [f0, f0+1] if (ft == 0 and mm == 0) else None))
    S.add(fr, mf)
    fr = []; mf = []
    for ft in (2, 3):
        for g in range(6):
            f0 = len(fr)
            for t in range(3):
                ks = 3*g + t; kl = ks % 9
                fr.append(Frag(V_RD if ks < 9 else V_RD2, (4*kl)*1024 + ft*256, (4*kl+2)*1024 + ft*256))
            for mm in range(2):
                for t in range(3):
                    ks = 3*g + t
                    mf.append(MF(acc(V_G, ft, mm), f0+t, xfrag(ks, mm), '0' if ks == 0 else acc(V_G, ft, mm), [f0, f0+1, f0+2] if (mm == 0 and t == 0) else None))
    S.add(fr, mf)
    fx = Fixed()
    for ks in range(18):
        if ks + XLA < 18: fx.put(4*ks, 'X', (lambda P, k=ks+XLA: xload(P, k)), cost=4)
        if ks + 1 < 18: fx.put(4*ks+3, 'X', (lambda P, k=ks+1: P.wait_vm_tag('x%d' % k)))
    fx.put(61, 'X', stats_block, cost=8)
    ch = []
    put_dma(ch, 57, dma_G(S_WU, sr(S_GCOL), 0, 'Ua'), step=2)
    put_dma(ch, 78, dma_G(S_WU, sr(S_GCOL), 1, 'Ub'), step=5)
    ch.append((126, 'S', 's_add_u32 %s, %s, 128' % (sr(S_GCOL), sr(S_GCOL)), None))
    fx.chain(ch)
    if dbg and OPT.get('pro_stamps'):
        for g in (23, 47, 71): fx.put(g, 'X', (lambda P, g=g: stamp('p%d' % g)), cost=0)
    fx.put(22, 'L', '@waitvm', 'Gb'); fx.put(22, 'B', 's_barrier', 'Gb')
    qa = gelu_q(0, 'g0', V_T).window(75, 75, 108); qb = gelu_q(1, 'g1', V_T+4).window(92, 100, 142)
    put_bar(fx, 144, 'Ua', PAT_G)
    ua = st_GU(V_U, 0, True)
    info['peel'] = emit_stream(P, S, ua[0][:LAR//2], fx, [qa, qb], A_W, NF, LAR, 0, maxslots=9, opt=OPT, first_reads=True, drain_ok=True)
    stamp('peel')
    P.raw('.p2align 6'); P.raw('L_%s_loop:' % name)
    body_start = len(P.ins)
    def flagstore(tag, val):
        def f(P):
            if not OPT.get('no_flagwait'): P.wait_vm_tag(tag)
            P.e('v_mov_b32 %s, %s' % (vr(V_FL), val))
            P.e('buffer_store_dword %s, off, %s, %s sc1' % (vr(V_FL), sr(S_WS,4), sr(S_FLO)), tag='fl')
        f.cost = 3
        return f
    def front(fx, ch, tail):
        S = Stream().add(*st_GU(V_U, 0, True)).add(*st_GU(V_U, 1, False))
        G0 = OPT.get('dma_g0', 2)
        if not tail:
            put_dma(ch, G0, dma_G(S_WG, sr(S_GCOL), 0, 'Ga')); put_dma(ch, 72+G0, dma_G(S_WG, sr(S_GCOL), 1, 'Gb'))
            put_bar(fx, 72, 'Ub', PAT_G); put_bar(fx, 144, 'Ga', PAT_G)
        else:
            put_dma(ch, G0, dma_G(S_WG, sr(S_HCOL), 0, 'Gh', 16)); put_dma(ch, 72+G0, dma_D(sr(S_DROW), 'D'))
            put_bar(fx, 72, 'Ub', PAT_G); put_bar(fx, 144, 'Gh', PAT_H)
        W = OPT.get('win', dict())
        def win(k, kind): return W.get(k + ('T' if tail else ''), W.get(k, kind))
        g2 = gelu_q(2, 'g2', V_T).window(0, *win('g2', (18, 85))); g3 = gelu_q(3, 'g3', V_T+4).window(0, *win('g3', (51, 148)))
        p0 = prod_q(0, V_H, 'p0').window(92, *win('p0', (130, 143)))
        p1 = prod_q(1, V_H, 'p1', (sr(S_HXO), 0, 'h0')).window(110, *win('p1', (135, 149))).after([p0])
        p2 = prod_q(2, V_H+8, 'p2').window(128, *win('p2', (165, 178))).after([g2, p1])
        p3 = prod_q(3, V_H+8, 'p3', (sr(S_HXO), 2048, 'h1')).window(146, *win('p3', (172, 188))).after([g3, p2])
        return S, [p0, p1, p2, p3, g2, g3]
    G0 = OPT.get('dma_g0', 2)
    Hf = [[vr(V_H + 8*kq + 4*mm, 4) for mm in range(2)] for kq in range(2)]
    fx = Fixed(); ch = []
    S, qs = front(fx, ch, False)
    S.add(*st_GU(V_G, 0, True)).add(*st_GU(V_G, 1, False)).add(*st_D(Hf))
    put_dma(ch, 144+G0, dma_D(sr(S_DROW), 'D')); put_dma(ch, 216+G0, dma_G(S_WU, sr(S_GCOL), 0, 'Ua')); put_dma(ch, 288+G0, dma_G(S_WU, sr(S_GCOL), 1, 'Ub'))
    fx.chain(ch)
    put_bar(fx, 216, 'Gb', PAT_G); put_bar(fx, 288, 'D', PAT_D); put_bar(fx, 360, 'Ua', PAT_G)
    p3 = qs[3]
    W = OPT.get('win', dict())
    n0 = gelu_q(0, 'g0n', V_T).window(237, *W.get('n0', (252, 318))).after([p3]); n1 = gelu_q(1, 'g1n', V_T+4).window(255, *W.get('n1', (295, 359))).after([p3])
    fx.put(277, 'X', flagstore('h1', sr(S_FVAL)), cost=3)
    fx.chain([(285, 'S', 's_add_u32 %s, %s, 1' % (sr(S_FVAL), sr(S_FVAL)), None), (286, 'S', 's_add_u32 %s, %s, 4096' % (sr(S_HXO), sr(S_HXO)), None),
              (287, 'S', 's_add_u32 %s, %s, %d' % (sr(S_DROW), sr(S_DROW), 64*1152), None)])
    info['body'] = emit_stream(P, S, ua[0][:LAR//2], fx, qs + [n0, n1], A_W, NF, LAR, 0, maxslots=OPT['cap'], opt=OPT)
    dl = {q.name: q.finish for q in qs + [n0, n1]}
    assert dl['p0'] <= 143 and dl['p1'] <= 161 and dl['p2'] <= 179 and dl['p3'] <= 197, dl
    info['fb'] = dl
    e('s_add_u32 %s, %s, 128' % (sr(S_GCOL), sr(S_GCOL)))
    e('s_sub_u32 %s, %s, 1' % (sr(S_CNT), sr(S_CNT))); e('s_cmp_lg_u32 %s, 0' % sr(S_CNT))
    e('s_cbranch_scc1 L_%s_loop' % name)
    body_end = len(P.ins)
    stamp('loop')
    fx = Fixed(); ch = []
    S, qs = front(fx, ch, True)
    S.add(*st_half(V_G)).add(*st_D(Hf)).add(*st_half(V_U))
    HHf = [vr(V_HH + 4*mm, 4) for mm in range(2)]
    hp = [[hpfrag(th, mm) for mm in range(2)] for th in range(9)]
    F2 = OPT.get('final2', True)
    RA = (V_RD, V_RD2); RB = (V_T, V_T+1)
    put_dma(ch, 144+G0, dma_G(S_WU, sr(S_HCOL), 0, 'Uh', 16))
    if not F2:
        for pair in ([hp[0], hp[1]], [hp[2], hp[3]], [hp[4], hp[5]], [HHf, hp[6]], [hp[7], hp[8]]): S.add(*st_D(pair))
        for k in range(5): put_dma(ch, 216+72*k+G0, dma_D(sr(S_E+k), 'E%d' % k))
        fx.chain(ch)
        put_bar(fx, 216, 'D', PAT_D); put_bar(fx, 288, 'Uh', PAT_H)
        for k in range(5): put_bar(fx, 360+72*k, 'E%d' % k, PAT_D)
    else:
        for pair in ([hp[0], hp[1]], [hp[2], hp[3]], [hp[4], hp[5]]): S.add(*st_D(pair))
        S.add(*st_final([HHf, hp[6], hp[7], hp[8]], RA, RB))
        for k in range(3): put_dma(ch, 216+72*k+G0, dma_D(sr(S_E+k), 'E%d' % k))
        put_dma(ch, 421, dma_D(sr(S_E+3), 'E3'), step=6); put_dma(ch, 475, dma_D(sr(S_E+4), 'E4'), step=6)
        fx.chain(ch)
        put_bar(fx, 216, 'D', PAT_D); put_bar(fx, 288, 'Uh', PAT_H)
        for k in range(3): put_bar(fx, 360+72*k, 'E%d' % k, PAT_D)
        fx.put(436, 'B', 's_barrier', None)
        put_bar(fx, 576, ['E3', 'E4'], PAT_D)
        def second_base(P):
            P.e('s_add_u32 %s, %s, 1' % (sr(S_A), sr(S_CR))); P.e('s_and_b32 %s, %s, 3' % (sr(S_A), sr(S_A))); P.e('s_mul_i32 %s, %s, %d' % (sr(S_A), sr(S_A), SLOT))
            P.e('v_add_u32 %s, %s, %s' % (vr(RB[0]), sr(S_A), vr(V_PDE))); P.e('v_add_u32 %s, %s, %s' % (vr(RB[1]), sr(S_A), vr(V_PDO)))
        fx.put(576-LAR-3, 'X', second_base, cost=5)
    p3 = qs[3]
    h0 = gelu_q(0, 'gh0', V_T).window(183, 195, 265).after([p3]); h1 = gelu_q(1, 'gh1', V_T+4).window(219, 255, 330).after([p3])
    fx.chain([(340, 'S', 's_add_u32 %s, %s, 4096' % (sr(S_T1), sr(S_HXO)), None)])
    ph0 = prod_q(0, V_HH, 'ph0').window(327, 330, 350).after([h0])
    ph1 = prod_q(1, V_HH, 'ph1', (sr(S_T1), 0, 'hh')).window(363, 364, 384).after([h1, ph0])
    def poll_issue(P): P.e('buffer_load_dword %s, off, %s, %s sc1' % (vr(V_PO), sr(S_WS,4), sr(S_FLP)), tag='poll')
    slow = []
    def poll_check(val, lab):
        def f(P):
            P.wait_vm_tag('poll')
            P.e('v_readfirstlane_b32 %s, %s' % (sr(S_A), vr(V_PO)))
            P.e('s_nop 0')
            P.e('s_cmp_ge_u32 %s, %d' % (sr(S_A), val))
            P.e('s_cbranch_scc0 L_%s_slow%s' % (name, lab))
            P.raw('L_%s_back%s:' % (name, lab))
            slow.append((val, lab))
        f.cost = 5
        return f
    def hp_load(x):
        def f(P):
            if x % 4 == 0: P.e('s_add_u32 %s, %s, %d' % (sr(S_B), sr(S_HXP), (x//4)*4096))
            th, mm = divmod(x, 2)
            P.e('buffer_load_dwordx4 %s, %s, %s, %s offen offset:%d sc1' % (hpfrag(th, mm), vr(V_L16), sr(S_WS,4), sr(S_B), (x % 4)*1024), tag='hp%d' % x)
        return f
    if dbg and OPT.get('tail_stamps'):
        for g in OPT['tail_stamps']: fx.put(g, 'X', (lambda P, g=g: stamp('t%d' % g)), cost=0)
    fx.put(144, 'X', poll_issue, cost=2); fx.put(277, 'X', poll_check(3, 'a'), cost=5)
    for x in range(4): fx.put(279 + 2*x, 'X', hp_load(x), cost=2)
    for x in range(4, 8): fx.put(350 + 2*(x-4), 'X', hp_load(x), cost=2)
    for x in range(8, 12): fx.put(422 + 2*(x-8), 'X', hp_load(x), cost=2)
    fx.put(279, 'X', flagstore('h1', '4'), cost=3)
    fx.put(440, 'X', flagstore('hh', '5'), cost=3)
    if not F2:
        fx.put(360, 'X', poll_issue, cost=2); fx.put(493, 'X', poll_check(4, 'b'), cost=5)
        for x in range(12, 16): fx.put(495 + 2*(x-12), 'X', hp_load(x), cost=2)
        fx.put(504, 'X', poll_issue, cost=2); fx.put(565, 'X', poll_check(5, 'c'), cost=5)
        for x in range(16, 18): fx.put(567 + 2*(x-16), 'X', hp_load(x), cost=2)
    else:
        fx.put(478, 'X', poll_issue, cost=2); fx.put(513, 'X', poll_check(5, 'b'), cost=5)
        for x in range(12, 18): fx.put(515 + 2*(x-12), 'X', hp_load(x), cost=2)
    def hp_wait(xs):
        def f(P): P.wait_vm(lambda i: i.tag in ['hp%d' % t for t in xs])
        return f
    fx.put(360-4, 'X', hp_wait(range(4)))
    fx.put(432-4, 'X', hp_wait(range(4, 8)))
    fx.put(504-4, 'X', hp_wait(range(8, 12)))
    if not F2:
        fx.put(576-4, 'X', hp_wait(range(12, 14)))
        fx.put(648-4, 'X', hp_wait(range(14, 18)))
    else: fx.put(576-2, 'X', hp_wait(range(12, 18)))
    ep = []
    for np_ in range(9):
        ear = (576 + 16*(np_+1) + 2) if F2 else (648 + 8*(np_+1) + 2)
        for mm in range(2):
            tb = V_G + 16*((2*np_+mm) % 4); hb = V_H + 4*((2*np_+mm) % 4)
            for k in range(2):
                for r in range(4): ep.append(Op('v_accvgpr_read_b32 %s, a%d' % (vr(tb+4*k+r), A_OUT + 8*(2*np_+k) + 4*mm + r), ear))
            for d in range(4): ep.append(Op('v_cvt_pk_bf16_f32 %s, %s, %s' % (vr(hb+d), vr(tb+2*d), vr(tb+2*d+1)), ear))
            fr_ = mm*9 + np_
            def st(P, fr_=fr_, hb=hb):
                P.e('s_add_u32 %s, %s, %d' % (sr(S_T0), sr(S_P), fr_*1024))
                P.e('buffer_store_dwordx4 %s, %s, %s, %s offen sc1' % (vr(hb,4), vr(V_L16), sr(S_WS,4), sr(S_T0)), tag='p')
            ep.append(Op(st, ear, cost=2))
    qe = Queue(ep, 'ep', prio=True)
    allq = qs + [ph0, ph1, h0, h1, qe]
    info['tail'] = emit_stream(P, S, [], fx, allq, A_W, NF, LAR, 0, maxslots=OPT['cap'], opt=OPT, drain_ok=True, drain_pre='s_nop 7')
    dl = {q.name: q.finish for q in allq}
    assert dl['p0'] <= 143 and dl['p1'] <= 179 and dl['p3'] < 212 and dl['ph1'] < 420 and dl['gh0'] < 326, dl
    info['ft'] = dl
    stamp('tail')
    if dbg:
        e('s_waitcnt vmcnt(0)')
        stamp('end')
        e('s_mov_b32 s4, s94'); e('s_mov_b32 s5, s95'); e('s_mov_b32 s6, 0x100000'); e('s_mov_b32 s7, 0x20000')
        e('s_lshl_b32 s41, s2, 2'); e('s_add_u32 s41, s41, %s' % sr(S_W)); e('s_lshl_b32 s41, s41, 7')
        for k in range(len(stamps)):
            e('s_sub_u32 s42, s%d, s64' % (64+k)); e('v_mov_b32 v1, s42')
            e('buffer_store_dword v1, off, s[4:7], s41 offset:%d' % (4*k))
            e('s_sub_u32 s42, s%d, s77' % (77+k)); e('v_mov_b32 v1, s42')
            e('buffer_store_dword v1, off, s[4:7], s41 offset:%d' % (64+4*k))
        e('v_mov_b32 v1, s77'); e('buffer_store_dword v1, off, s[4:7], s41 offset:60')
    P.raw('L_%s_end:' % name)
    e('s_endpgm')
    main_end = len(P.ins)
    for val, lab in slow:
        P.raw('L_%s_slow%s:' % (name, lab))
        P.raw('s_mov_b32 %s, 0x8000' % sr(S_C))
        P.raw('L_%s_spin%s:' % (name, lab))
        P.raw('s_sleep 2')
        P.raw('buffer_load_dword %s, off, %s, %s sc1' % (vr(V_PO), sr(S_WS,4), sr(S_FLP)))
        P.raw('s_waitcnt vmcnt(0)')
        P.raw('v_readfirstlane_b32 %s, %s' % (sr(S_A), vr(V_PO)))
        P.raw('s_sub_u32 %s, %s, 1' % (sr(S_C), sr(S_C)))
        P.raw('s_cmp_eq_u32 %s, 0' % sr(S_C))
        P.raw('s_cbranch_scc1 L_%s_back%s' % (name, lab))
        P.raw('s_cmp_ge_u32 %s, %d' % (sr(S_A), val))
        P.raw('s_cbranch_scc0 L_%s_spin%s' % (name, lab))
        P.raw('s_branch L_%s_back%s' % (name, lab))
    ins = P.ins
    path = ins[:body_start] + ins[body_start:body_end]*3 + ins[body_end:main_end]
    info['stamps'] = stamps
    return P, path, info

if __name__ == '__main__':
    import collections
    P, path, info = build()
    check(path, 'k3b')
    print('barrier problems', verify_barriers(path))
    for k in ('peel', 'body', 'tail'):
        print(k, 'slots/gap hist', sorted(collections.Counter(info[k]).items()), 'est cyc/unit %.2f' % (est_cycles(info[k])/len(info[k])*2))
    print(info['fb']); print(info['ft'])
    print('instrs', len(P.ins))
```

```python
from core import *
from common import *

def build(name='k4_kernel', ldf='', stf='', block=256):
    P = Prog(); e = P.e
    WPB = block//64
    NWG = 1152//WPB
    S_WS, S_OUT = 8, 12
    e('s_cmp_ge_u32 s2, %d' % NWG); e('s_cbranch_scc1 L_%s_end' % name)
    e('s_load_dwordx2 s[4:5], s[0:1], %d' % KA_WS); e('s_load_dwordx2 s[6:7], s[0:1], %d' % KA_OUT)
    e('v_lshrrev_b32 v1, 6, v0'); e('v_and_b32 v0, 63, v0')
    e('v_readfirstlane_b32 s16, v1')
    e('v_lshlrev_b32 v2, 4, v0')
    e('s_mul_i32 s17, s2, %d' % WPB); e('s_add_u32 s17, s17, s16')
    e('s_mul_i32 s18, s17, 7282'); e('s_lshr_b32 s18, s18, 16')
    e('s_mul_i32 s19, s18, 9'); e('s_sub_u32 s19, s17, s19')
    e('s_lshr_b32 s20, s18, 3'); e('s_and_b32 s21, s18, 7')
    e('s_mul_i32 s22, s18, 18'); e('s_lshl_b32 s23, s19, 1'); e('s_add_u32 s22, s22, s23'); e('s_lshl_b32 s22, s22, 10'); e('s_add_u32 s22, s22, 0x%x' % WS_HC)
    for k in range(2):
        e('s_lshl_b32 s24, s19, 1'); e('s_add_u32 s24, s24, %d' % k)
        e('s_cmp_ge_u32 s24, 9'); e('s_cselect_b32 s25, 1, 0'); e('s_cselect_b32 s26, 9, 0'); e('s_sub_u32 s24, s24, s26')
        e('s_lshl_b32 s26, s20, 1'); e('s_add_u32 s26, s26, s25'); e('s_lshl_b32 s26, s26, 6')
        e('s_add_u32 s26, s26, s21'); e('s_mul_i32 s26, s26, 9'); e('s_add_u32 s26, s26, s24'); e('s_lshl_b32 s26, s26, 10')
        e('s_add_u32 s%d, s26, 0x%x' % (28+k, WS_P))
    e('s_waitcnt lgkmcnt(0)')
    e('s_mov_b32 s8, s4'); e('s_mov_b32 s9, s5'); e('s_mov_b32 s10, 0x%x' % WS_END); e('s_mov_b32 s11, 0x%x' % SRD3)
    e('s_mov_b32 s12, s6'); e('s_mov_b32 s13, s7'); e('s_mov_b32 s14, %d' % (S_*D_*2)); e('s_mov_b32 s15, 0x%x' % SRD3)
    e('v_and_b32 v5, 15, v0'); e('v_lshlrev_b32 v5, 3, v5'); e('s_lshl_b32 s34, s18, 7'); e('s_add_u32 s34, s34, 0x%x' % WS_ST)
    e('buffer_load_dword v6, v5, s[8:11], s34 offen', tag='mu')
    for k in range(2):
        e('buffer_load_dwordx4 %s, v2, s[8:11], s22 offen offset:%d' % (vr(16+36*k, 4), 1024*k), tag='l%d_0' % k)
        for jp in range(8):
            if jp: e('s_add_u32 s%d, s%d, %d' % (28+k, 28+k, 8*9*1024))
            e('buffer_load_dwordx4 %s, v2, s[8:11], s%d offen %s' % (vr(16+36*k+4*(jp+1), 4), 28+k, ldf), tag='l%d_%d' % (k, jp+1))
    e('v_and_b32 v3, 15, v0'); e('s_lshl_b32 s30, s18, 4'); e('v_add_u32 v3, s30, v3'); e('v_mul_u32_u24 v3, 1152, v3')
    e('v_bfe_u32 v4, v0, 4, 1'); e('v_lshl_add_u32 v3, v4, 5, v3')
    e('v_bfe_u32 v4, v0, 5, 1'); e('v_lshl_add_u32 v3, v4, 4, v3')
    e('s_lshl_b32 s31, s19, 7')
    e('s_mov_b32 s32, 0x3f80'); e('s_mov_b32 s33, 0x3f800000')
    for k in range(2):
        acc = 88 + 8*k
        for src in range(9):
            P.wait_vm_tag('l%d_%d' % (k, src))
            b = 16 + 36*k + 4*src
            for d in range(4):
                for hi in range(2):
                    c = 'v6' if src == 0 else vr(acc+2*d+hi)
                    e('v_dot2_f32_bf16 %s, %s, s%d, %s' % (vr(acc+2*d+hi), vr(b+d), 32+hi, c))
    for k in range(2):
        acc = 88 + 8*k; o = 104 + 4*k
        if k == 1: e('s_nop 1')
        for d in range(4): e('v_cvt_pk_bf16_f32 %s, %s, %s' % (vr(o+d), vr(acc+2*d), vr(acc+2*d+1)))
    e('s_nop 1')
    for k in range(2):
        o = 104 + 4*k
        e('v_permlane16_swap_b32 %s, %s' % (vr(o), vr(o+2)))
        e('v_permlane16_swap_b32 %s, %s' % (vr(o+1), vr(o+3)))
    e('s_nop 1')
    for k in range(2):
        o = 104 + 4*k
        e('buffer_store_dwordx4 %s, v3, s[12:15], s31 offen offset:%d %s' % (vr(o, 4), 64*k, stf))
    P.raw('L_%s_end:' % name)
    e('s_endpgm')
    return P, dict(vgpr=112, sgpr=40, grid=NWG, block=block, lds=0)

if __name__ == '__main__':
    P, o = build(); check(P.ins, 'k4')
```

```python
from core import *

class Op:
    def __init__(self, text, ready=0, after=None, tag=None, cost=None):
        self.text, self.ready, self.after, self.tag = text, ready, after, tag
        self.due = ready
        self.cost = cost if cost is not None else (1 if callable(text) else Ins(text).cost)
        if not callable(text) and text.startswith('buffer_'): self.cost = 2

class Queue:
    def __init__(self, ops, name='', prio=False):
        self.ops = list(ops); self.name = name; self.k = 0; self.prio = prio; self.finish = -1
    def done(self): return self.k >= len(self.ops)
    def peek(self): return None if self.done() else self.ops[self.k]
    def window(self, ready, a, b):
        tot = sum(o.cost for o in self.ops); acc = 0
        for o in self.ops:
            o.ready = max(o.ready, ready); o.due = max(o.ready, int(a + (b - a) * acc / tot)); acc += o.cost
        return self
    def after(self, qs):
        for o in self.ops: o.after = list(qs)
        return self

class Frag:
    def __init__(self, rd, imm0, imm1): self.rd, self.imm = rd, (imm0, imm1)
class MF:
    def __init__(self, D, fi, B, C, wait=None, A=None): self.D, self.fi, self.B, self.C, self.wait, self.A = D, fi, B, C, wait, A
class Stream:
    def __init__(self): self.frags = []; self.mf = []
    def add(self, frags, mfs):
        o = len(self.frags)
        self.frags += frags
        for m in mfs:
            self.mf.append(MF(m.D, None if m.fi is None else m.fi + o, m.B, m.C, None if m.wait is None else [x + o for x in m.wait], m.A))
        return self

class Fixed:
    def __init__(self): self.chains = []; self.at = {}
    def chain(self, items): self.chains.append(list(items))
    def put(self, gap, kind, text, tag=None, cost=1): self.at.setdefault(gap, []).append((kind, text, tag, cost))

def emit_stream(P, S, nxt_frags, fx, queues, A_W, NF, LAR, phase=0, maxslots=3, opt=None, drain_ok=False, first_reads=False, drain_pre=None):
    opt = opt or {}
    allf = S.frags + nxt_frags
    nreads = 2*len(allf)
    def areg(fi, n=4, off=0): return ar(A_W + 4*((phase + fi) % NF) + off, n)
    def aregs(fi): return rset('a', A_W + 4*((phase + fi) % NF), 4)
    last_use = {}
    for mu, m in enumerate(S.mf):
        if m.fi is not None: last_use[m.fi] = mu
    nfr = 0
    st = dict(rho=0)
    def read():
        fi, u = divmod(st['rho'], 2); f = allf[fi]
        P.e('ds_read_b64_tr_b16 %s, %s offset:%d' % (areg(fi, 2, 2*u), vr(f.rd), f.imm[u])); st['rho'] += 1
    if first_reads:
        while st['rho'] < LAR: read()
    else: st['rho'] = LAR
    chains = [list(c) for c in fx.chains]
    hist = []
    def wait_for(m):
        regs = []
        for w in m.wait: regs += aregs(w)
        return P.wait_lg_regs(regs)
    if S.mf and S.mf[0].wait is not None: wait_for(S.mf[0])
    for mu, m in enumerate(S.mf):
        P.e('v_mfma_f32_16x16x32_bf16 %s, %s, %s, %s' % (m.D, m.A or areg(m.fi), m.B, m.C))
        if m.fi is not None: nfr += 1
        free_scalar = True; used = 0
        here = fx.at.get(mu, [])
        nxt = S.mf[mu+1] if mu + 1 < len(S.mf) else None
        lead = [x for x in here if x[0] == 'L']
        if nxt is not None and nxt.wait is not None:
            assert st['rho'] >= 2*(max(nxt.wait)+1), (mu, st['rho'], nxt.wait)
            if wait_for(nxt) is not None: free_scalar = False
        for kind, text, tag, cost in lead:
            if text == '@waitvm':
                if not opt.get('no_vmwait') and P.wait_vm_tag(tag) is None: continue
            else: P.e(text, tag=tag)
            if free_scalar: free_scalar = False
            else: used += 1
        emitted_chain = set()
        def chain_scalar():
            for ci, c in enumerate(chains):
                if c and c[0][1] == 'S' and c[0][0] <= mu:
                    P.e(c[0][2]); c.pop(0); emitted_chain.add(ci); return True
            return False
        if free_scalar and chain_scalar(): free_scalar = False
        dma = None
        for ci, c in enumerate(chains):
            if c and c[0][1] == 'D' and c[0][0] <= mu and ci not in emitted_chain: dma = ci; break
        nominal = min(nreads, nfr + LAR)
        must_read = any(x[0] == 'R' for x in here)
        if dma is not None and not must_read and nominal - st['rho'] <= 1:
            c = chains[dma]; it = c.pop(0)
            if not (opt.get('no_dma') and ' lds' in it[2]): P.e(it[2], tag=it[3]); used += 2
        else:
            n = min(2 if not must_read else 99, nominal - st['rho'])
            for _ in range(n):
                fi = st['rho'] // 2
                assert fi - NF < 0 or last_use.get(fi - NF, -1) <= mu, ('ring', mu, fi)
                read(); used += 1
        for kind, text, tag, cost in here:
            if kind == 'M': text(P); used += 1
        for kind, text, tag, cost in here:
            if kind in ('L', 'M'): continue
            if kind == 'R':
                assert st['rho'] == nominal
                P.e(text); used += 1
            elif kind == 'B':
                if not opt.get('no_bar'):
                    i = P.e('s_barrier'); i.meta = dict(needs=tag)
                used += 1
            elif kind == 'X': text(P); used += cost
            else: P.e(text, tag=tag); used += cost
        while True:
            cands = []
            for q in queues:
                o = q.peek()
                if o is None or o.ready > mu: continue
                if o.after is not None and not all(x.done() for x in o.after): continue
                if used + o.cost <= 2: cands.append((0, o.due, q))
                elif o.due <= mu and used + o.cost <= maxslots + (1 if o.cost == 2 and used <= 2 and maxslots == 3 and used == 2 and o.due + 6 <= mu else 0): cands.append((1, o.due, q))
            if not cands: break
            cands.sort(key=lambda t: (t[0], 0 if t[2].prio else 1, t[1]))
            q = cands[0][2]; o = q.peek()
            if callable(o.text): o.text(P)
            elif opt.get('no_hst') and o.text.startswith('buffer_store'): pass
            elif not (opt.get('no_valu') and o.text.startswith('v_')): P.e(o.text, tag=o.tag)
            used += o.cost; q.k += 1
            if q.done(): q.finish = mu
        for ci, c in enumerate(chains):
            while c and c[0][1] == 'S' and c[0][0] + 2 <= mu and used < 4:
                P.e(c[0][2]); c.pop(0); used += 1
        hist.append(used)
    for c in chains: assert not c, ('chain left', c[:2])
    assert st['rho'] == nreads, (st['rho'], nreads)
    for q in queues:
        if not q.done():
            if not drain_ok: raise AssertionError('queue %s not drained: %d left' % (q.name, len(q.ops) - q.k))
            if drain_pre: P.e(drain_pre); drain_pre = None
            while not q.done():
                o = q.peek()
                if callable(o.text): o.text(P)
                else: P.e(o.text, tag=o.tag)
                q.k += 1
            q.finish = len(S.mf)
    return hist

def verify_barriers(path):
    vmq = []; bad = 0
    for i in path:
        if i.kind == 'vmem': vmq.append(i)
        elif i.kind == 'wait' and i.meta['vm'] is not None:
            vm = i.meta['vm']
            if len(vmq) > vm: vmq = vmq[len(vmq)-vm:] if vm else []
        elif (i.kind == 'barrier' or (i.kind == 'ds' and i.meta and i.meta.get('arrive'))) and i.meta and i.meta.get('needs'):
            ts = i.meta['needs']; ts = ts if isinstance(ts, (list, tuple)) else [ts]
            if any(x.tag in ts for x in vmq): print('BARRIER with outstanding', ts); bad += 1
    return bad
def est_cycles(hist): return sum(16.25 + 4*max(0, u-2) for u in hist)
```

```python
from core import *
from common import *
from sched import *

SLOT = 36864
NF, LAR = 12, 12
def set_lar(x):
    global LAR
    LAR = x
V_RD, V_RD2 = 3, 4
V_PG, V_PH, V_PDE, V_PDO = 5, 6, 7, 8
V_OG, V_OH, V_OD = 9, 12, 15
V_C0, V_C1, V_K = 24, 26, 28
V_L16, V_FL = 30, 31
V_PO = 1
V_T = 32
V_H, V_HH = 40, 56
V_G, V_U = 64, 96
V_X = 128
A_OUT, A_X, A_W, A_HP = 0, 144, 160, 208
S_WG, S_WU, S_WD, S_WS = 8, 12, 16, 20
S_W = 24
S_GCOL, S_HCOL, S_DROW = 25, 26, 27
S_E = 28
S_HXO, S_HXP, S_P = 33, 34, 35
S_WR, S_WRAP, S_WOFF, S_RD = 36, 37, 38, 39
S_CNT, S_T0, S_T1 = 40, 41, 42
S_FLO, S_FLP, S_FVAL = 43, 44, 45
S_LO, S_HI = 46, 47
S_XO = 48
S_A, S_B, S_C, S_D = 50, 51, 52, 53
S_JP, S_S, S_I, S_FB, S_HB = 58, 59, 60, 61, 62
OPT = dict(no_dma=False, no_bar=False, no_valu=False, cap=3)

def xi_reg(ks, mm):
    xi = 2*ks + mm
    return ('v', V_X + 4*xi) if xi < 32 else ('a', A_X + 4*(xi-32))
def xfrag(ks, mm):
    k, b = xi_reg(ks, mm); return vr(b, 4) if k == 'v' else ar(b, 4)
def hpfrag(th, mm):
    x = 2*th + mm
    return ar(A_HP + 4*x, 4) if x < 12 else vr(V_X + 4*(x-12), 4)
def acc(base, ft, mm): return vr(base + 8*ft + 4*mm, 4)
def out(nt, mm): return ar(A_OUT + 8*nt + 4*mm, 4)

def st_GU(base, kh, first, fts=(0,1,2,3), rd=V_RD):
    fr = []; mf = []
    for ft in fts:
        for g in range(3):
            f0 = len(fr)
            for t in range(3):
                kl = 3*g + t
                fr.append(Frag(rd, (4*kl)*1024 + ft*256, (4*kl+2)*1024 + ft*256))
            for mm in range(2):
                for t in range(3):
                    kl = 3*g + t
                    C = '0' if (first and kl == 0) else acc(base, ft, mm)
                    mf.append(MF(acc(base, ft, mm), f0+t, xfrag(9*kh+kl, mm), C, [f0, f0+1, f0+2] if (mm == 0 and t == 0) else None))
    return fr, mf
def st_half(base):
    fr = []; mf = []
    for ft in range(2):
        for g in range(6):
            f0 = len(fr)
            for t in range(3):
                ks = 3*g + t
                fr.append(Frag(V_RD, (2*ks)*1024 + ft*512, (2*ks+1)*1024 + ft*512))
            for mm in range(2):
                for t in range(3):
                    ks = 3*g + t
                    C = '0' if ks == 0 else acc(base, ft, mm)
                    mf.append(MF(acc(base, ft, mm), f0+t, xfrag(ks, mm), C, [f0, f0+1, f0+2] if (mm == 0 and t == 0) else None))
    return fr, mf
def st_D(bf):
    fr = []; mf = []
    for nt in range(18):
        f0 = len(fr); rd = V_RD if nt % 2 == 0 else V_RD2
        for kq in range(2): fr.append(Frag(rd, (2*kq)*9216 + nt*128, (2*kq+1)*9216 + nt*128))
        for mm in range(2):
            for kq in range(2):
                w = [f0, f0+1, f0+2, f0+3] if (nt % 2 == 0 and mm == 0 and kq == 0) else None
                mf.append(MF(out(nt, mm), f0+kq, bf[kq][mm], out(nt, mm), w))
    return fr, mf
def st_final(bf, rdA, rdB):
    fr = []; mf = []
    for nt in range(18):
        f0 = len(fr)
        for k in range(4):
            rd = (rdA if k < 2 else rdB)[nt % 2]; kq = k % 2
            fr.append(Frag(rd, (2*kq)*9216 + nt*128, (2*kq+1)*9216 + nt*128))
        for mm in range(2):
            for k in range(4):
                w = [f0, f0+1, f0+2, f0+3] if (mm == 0 and k == 0) else None
                mf.append(MF(out(nt, mm), f0+k, bf[k][mm], out(nt, mm), w))
    return fr, mf

def gelu_ops(ft, vals, tb):
    ops = []
    for g0 in range(0, len(vals), 4):
        grp = vals[g0:g0+4]
        def G(v): return vr(V_G + 8*ft + 4*v[0] + v[1])
        steps = [lambda v, t: 'v_mul_f32 %s, %s, %s' % (t, G(v), G(v)),
                 lambda v, t: 'v_fma_f32 %s, %s, %s, %s' % (t, t, vr(V_C1+v[0]), vr(V_C0+v[0])),
                 lambda v, t: 'v_mul_f32 %s, %s, %s' % (t, G(v), t),
                 lambda v, t: 'v_exp_f32 %s, %s' % (t, t),
                 lambda v, t: 'v_fma_f32 %s, %s, %s, %s' % (t, t, vr(V_K+v[0]), vr(V_K+v[0])),
                 lambda v, t: 'v_rcp_f32 %s, %s' % (t, t),
                 lambda v, t: 'v_mul_f32 %s, %s, %s' % (G(v), G(v), t)]
        for st in steps:
            for n, v in enumerate(grp): ops.append(Op(st(v, vr(tb+n))))
    return ops
ALLV = [(mm, r) for mm in range(2) for r in range(4)]
def gelu_q(ft, name, tb): return Queue(gelu_ops(ft, ALLV, tb), name)
def prod_q(ft, H, name, store=None):
    ops = []
    for mm in range(2):
        for r in range(4):
            g = vr(V_G + 8*ft + 4*mm + r)
            ops.append(Op('v_mul_f32 %s, %s, %s' % (g, g, vr(V_U + 8*ft + 4*mm + r))))
    for mm in range(2):
        for d in range(2):
            g = V_G + 8*ft + 4*mm + 2*d
            ops.append(Op('v_cvt_pk_bf16_f32 %s, %s, %s' % (vr(H + 4*mm + 2*(ft % 2) + d), vr(g), vr(g+1))))
    if store:
        soff, imm0, tag = store
        for mm in range(2):
            ops.append(Op('buffer_store_dwordx4 %s, %s, %s, %s offen offset:%d %s' % (vr(H + 4*mm, 4), vr(V_L16), sr(S_WS,4), soff, imm0 + 1024*mm, OPT.get('hst_flags', 'sc1')), tag=tag))
    return Queue(ops, name, prio=True)

S_CW, S_CR = 96, 97
S_GCOL2, S_XO2 = 100, 101
def rot_wr(): return ['s_add_u32 %s, %s, 1' % (sr(S_CW), sr(S_CW)), 's_and_b32 %s, %s, 3' % (sr(S_CW), sr(S_CW)),
                      's_mul_i32 %s, %s, %d' % (sr(S_WR), sr(S_CW), SLOT), 's_add_u32 %s, %s, %s' % (sr(S_WR), sr(S_WR), sr(S_WOFF))]
def rot_rd(): return ['s_add_u32 %s, %s, 1' % (sr(S_CR), sr(S_CR)), 's_and_b32 %s, %s, 3' % (sr(S_CR), sr(S_CR)),
                      's_mul_i32 %s, %s, %d' % (sr(S_RD), sr(S_CR), SLOT)]
def dma_G(srd, scol, kh, tag, step_rows=8):
    it = []
    vo = V_OG if step_rows == 8 else V_OH
    for g in range(3):
        const = 3*g*step_rows*9216
        if step_rows == 8 and kh == 1: scol = sr(S_GCOL2)
        it.append(('S', 's_add_u32 %s, %s, 0x%x' % (sr(S_T0), scol, const) if const else 's_mov_b32 %s, %s' % (sr(S_T0), scol), None))
        it.append(('S', 's_add_u32 m0, %s, %d' % (sr(S_WR), 3072*g) if g else 's_mov_b32 m0, %s' % sr(S_WR), None))
        for q in range(3):
            it.append(('D', 'buffer_load_dwordx4 %s, %s, %s offen offset:%d %s lds' % (vr(vo+q), sr(srd,4), sr(S_T0), 1024*q, OPT.get('dma_flags', '')), tag))
    return it + [('S', t, None) for t in rot_wr()]
def dma_D(srow, tag):
    it = []
    for q in range(9):
        it.append(('S', 's_add_u32 m0, %s, %d' % (sr(S_WR), 1024*q) if q else 's_mov_b32 m0, %s' % sr(S_WR), None))
        it.append(('D', 'buffer_load_dwordx4 %s, %s, %s offen %s lds' % (vr(V_OD+q), sr(S_WD,4), srow, OPT.get('dma_flags', '')), tag))
    return it + [('S', t, None) for t in rot_wr()]
def put_dma(chain, g0, items, step=None):
    step = step or OPT.get('dma_step', 7)
    k = 0; pend = []
    for kind, text, tag in items:
        if kind == 'S': pend.append(text)
        else:
            due = g0 + step*k; k += 1
            for n, t in enumerate(pend): chain.append((max(0, due - 2*len(pend) + 2*n - 1), 'S', t, None))
            pend = []
            chain.append((due, 'D', text, tag))
    for n, t in enumerate(pend): chain.append((g0 + step*(k-1) + 1, 'S', t, None))
def put_bar(fx, end, tags, pats, rot=True):
    gb = end - LAR - 2
    if rot: fx.chain([(gb - 12, 'S', t, None) for t in rot_rd()])
    tag = tags if not isinstance(tags, (list, tuple)) else tags[-1]
    fx.put(gb, 'L', '@waitvm', tag)
    fx.put(gb, 'B', 's_barrier', tags)
    for rd, pat in pats: fx.put(gb+1, 'R', 'v_add_u32 %s, %s, %s' % (vr(rd), sr(S_RD), vr(pat)))
PAT_G = [(V_RD, V_PG)]; PAT_H = [(V_RD, V_PH)]; PAT_D = [(V_RD, V_PDE), (V_RD2, V_PDO)]

def build(name='k3_kernel', dbg=False):
    P = Prog(); e = P.e
    stamps = []
    def stamp(label):
        if not dbg: return
        k = len(stamps); stamps.append(label); assert k < 13
        P.raw('s_memtime s[92:93]'); P.raw('s_memrealtime s[90:91]'); P.raw('s_waitcnt lgkmcnt(0)')
        P.raw('s_mov_b32 s%d, s92' % (64+k)); P.raw('s_mov_b32 s%d, s90' % (77+k))
    info = {}
    e('s_cmp_ge_u32 s2, 256'); e('s_cbranch_scc1 L_%s_end' % name)
    stamp('start')
    if OPT.get('scramble'):
        e('s_lshr_b32 s3, s2, 3'); e('s_and_b32 s2, s2, 7'); e('s_lshl_b32 s2, s2, 5'); e('s_or_b32 s2, s2, s3')
    if dbg: e('s_load_dwordx2 s[94:95], s[0:1], %d' % KA_DBG)
    e('s_load_dwordx2 s[56:57], s[0:1], %d' % KA_WS)
    e('s_load_dwordx4 s[4:7], s[0:1], %d' % KA_WG)
    e('s_load_dwordx2 s[54:55], s[0:1], %d' % KA_WD)
    e('v_lshrrev_b32 v1, 6, v0'); e('v_and_b32 v0, 63, v0')
    e('v_readfirstlane_b32 %s, v1' % sr(S_W))
    e('v_lshlrev_b32 %s, 4, v0' % vr(V_L16))
    e('v_lshrrev_b32 v2, 4, v0'); e('v_and_b32 v1, 15, v0'); e('v_lshl_add_u32 v1, v2, 11, v1'); e('v_lshlrev_b32 v1, 3, v1')
    if OPT.get('map', 0) == 0:
        e('s_and_b32 %s, s2, 7' % sr(S_JP))
        e('s_lshr_b32 %s, s2, 3' % sr(S_I)); e('s_and_b32 %s, %s, 1' % (sr(S_S), sr(S_I))); e('s_lshr_b32 %s, %s, 1' % (sr(S_I), sr(S_I)))
    else:
        e('s_bfe_u32 %s, s2, 0x20001' % sr(S_JP)); e('s_lshl_b32 %s, %s, 1' % (sr(S_JP), sr(S_JP)))
        e('s_bfe_u32 %s, s2, 0x10004' % sr(S_T0)); e('s_add_u32 %s, %s, %s' % (sr(S_JP), sr(S_JP), sr(S_T0)))
        e('s_bfe_u32 %s, s2, 0x10003' % sr(S_S))
        e('s_and_b32 %s, s2, 1' % sr(S_I)); e('s_lshl_b32 %s, %s, 3' % (sr(S_I), sr(S_I)))
        e('s_lshr_b32 %s, s2, 5' % sr(S_T0)); e('s_add_u32 %s, %s, %s' % (sr(S_I), sr(S_I), sr(S_T0)))
    e('s_lshl_b32 %s, %s, 2' % (sr(S_T0), sr(S_I))); e('s_add_u32 %s, %s, %s' % (sr(S_T0), sr(S_T0), sr(S_W)))
    e('s_mul_i32 %s, %s, %d' % (sr(S_XO), sr(S_T0), 2*18*1024)); e('s_add_u32 %s, %s, 0x%x' % (sr(S_XO), sr(S_XO), WS_HC))
    e('s_lshl_b32 %s, %s, 8' % (sr(S_D), sr(S_T0)))
    e('s_mul_i32 %s, %s, %d' % (sr(S_T1), sr(S_S), 9216 if OPT.get('kswap', False) else 0)); e('s_sub_u32 %s, %s, %s' % (sr(S_XO2), sr(S_XO), sr(S_T1))); e('s_add_u32 %s, %s, %s' % (sr(S_XO), sr(S_XO), sr(S_T1)))
    e('s_waitcnt lgkmcnt(0)')
    def mksrd(srd, lo, hi, size):
        e('s_mov_b32 %s, s%d' % (sr(srd), lo)); e('s_mov_b32 %s, s%d' % (sr(srd+1), hi))
        e('s_mov_b32 %s, 0x%x' % (sr(srd+2), size)); e('s_mov_b32 %s, 0x%x' % (sr(srd+3), SRD3))
    mksrd(S_WS, 56, 57, WS_END); mksrd(S_WG, 4, 5, D_*F_*2); mksrd(S_WU, 6, 7, D_*F_*2)
    e('s_add_u32 s4, s56, 0x%x' % WS_ST); e('s_addc_u32 s5, s57, 0'); e('s_mov_b32 s6, %d' % (9*2048*8)); e('s_mov_b32 s7, 0x%x' % SRD3)
    e('v_mov_b32 %s, v1' % vr(V_HH))
    def xload(P, ks):
        for mm in range(2):
            P.e('s_add_u32 %s, %s, %d' % (sr(S_T1), sr(S_XO if ks < 9 else S_XO2), (18*mm+ks)*1024))
            P.e('buffer_load_dwordx4 %s, %s, %s, %s offen' % (xfrag(ks, mm), vr(V_L16), sr(S_WS,4), sr(S_T1)), tag='x%d' % ks)
    def stload(P):
        for t in range(3):
            P.e('s_add_u32 %s, %s, %d' % (sr(S_T1), sr(S_D), t*4*2048*8 + 4))
            for mm in range(2):
                P.e('buffer_load_dword %s, %s, s[4:7], %s offen offset:%d' % (vr(V_H + 2*t + mm), vr(V_HH), sr(S_T1), 128*mm), tag='st')
    def dma_now(items):
        for kind, text, tag in items:
            e(text, tag=tag)
            if text.startswith('s_add_u32 m0') or text.startswith('s_mov_b32 m0'): e('s_nop 0')
    if OPT.get('pro_stamps'): stamp('karg')
    xload(P, 0); xload(P, 1)
    mksrd(S_WD, 54, 55, D_*F_*2)
    e('v_bfe_u32 v1, v0, 1, 3'); e('v_mul_u32_u24 v1, 9216, v1')
    e('v_lshl_add_u32 v1, v2, 5, v1')
    e('v_and_b32 %s, 1, v0' % vr(V_T)); e('v_lshl_add_u32 %s, %s, 4, v1' % (vr(V_OG), vr(V_T)))
    e('v_add_u32 %s, %d, %s' % (vr(V_OG+1), 8*9216 - 1024, vr(V_OG))); e('v_add_u32 %s, %d, %s' % (vr(V_OG+2), 2*(8*9216 - 1024), vr(V_OG)))
    e('s_mul_i32 %s, %s, 576' % (sr(S_T0), sr(S_JP)))
    e('s_mul_i32 %s, %s, 320' % (sr(S_T1), sr(S_S))); e('s_add_u32 %s, %s, %s' % (sr(S_FB), sr(S_T0), sr(S_T1)))
    e('s_lshl_b32 %s, %s, 5' % (sr(S_T1), sr(S_S))); e('s_add_u32 %s, %s, %s' % (sr(S_HB), sr(S_T0), sr(S_T1))); e('s_add_u32 %s, %s, 256' % (sr(S_HB), sr(S_HB)))
    e('s_mul_i32 %s, %s, %d' % (sr(S_T0), sr(S_W), 9*8*9216)); e('s_lshl_b32 %s, %s, 1' % (sr(S_T1), sr(S_FB)))
    e('s_add_u32 %s, %s, %s' % (sr(S_GCOL), sr(S_T0), sr(S_T1)))
    e('s_mul_i32 %s, %s, %d' % (sr(S_T1), sr(S_S), 288*9216 if OPT.get('kswap', False) else 0))
    e('s_add_u32 %s, %s, %d' % (sr(S_GCOL2), sr(S_GCOL), 288*9216)); e('s_sub_u32 %s, %s, %s' % (sr(S_GCOL2), sr(S_GCOL2), sr(S_T1))); e('s_add_u32 %s, %s, %s' % (sr(S_GCOL), sr(S_GCOL), sr(S_T1)))
    e('s_mul_i32 %s, %s, 9216' % (sr(S_WOFF), sr(S_W))); e('s_mov_b32 %s, 0' % sr(S_CW)); e('s_mov_b32 %s, 1' % sr(S_CR))
    e('s_mov_b32 %s, %s' % (sr(S_WR), sr(S_WOFF)))
    T = V_T
    pat = []; a = pat.append
    a('v_bfe_u32 %s, v0, 2, 2' % vr(T)); a('v_lshlrev_b32 %s, 5, %s' % (vr(T), vr(T)))
    a('v_and_b32 %s, 3, v0' % vr(T+1)); a('v_lshl_add_u32 %s, %s, 3, %s' % (vr(T), vr(T+1), vr(T)))
    a('v_lshl_add_u32 %s, v2, 7, %s' % (vr(V_PH), vr(T)))
    a('v_and_b32 %s, 1, v2' % vr(T+1)); a('v_lshlrev_b32 %s, 7, %s' % (vr(T+1), vr(T+1)))
    a('v_lshrrev_b32 %s, 1, v2' % vr(T+2)); a('v_lshl_add_u32 %s, %s, 10, %s' % (vr(T+2), vr(T+2), vr(T)))
    a('v_add_u32 %s, %s, %s' % (vr(V_PG), vr(T+2), vr(T+1)))
    a('v_mul_u32_u24 %s, 2304, v2' % vr(T+2)); a('v_add_u32 %s, %s, %s' % (vr(T+2), vr(T+2), vr(T)))
    a('v_add_u32 %s, %s, %s' % (vr(V_PDE), vr(T+2), vr(T+1))); a('v_sub_u32 %s, %s, %s' % (vr(V_PDO), vr(T+2), vr(T+1)))
    rest = []
    a = rest.append
    a('v_and_b32 v1, 1, v0'); a('v_bfe_u32 v2, v0, 1, 4'); a('v_mul_u32_u24 v2, 9216, v2'); a('v_lshl_add_u32 v2, v1, 4, v2')
    a('v_lshrrev_b32 v1, 5, v0'); a('v_lshl_add_u32 %s, v1, 5, v2' % vr(V_OH))
    a('v_add_u32 %s, %d, %s' % (vr(V_OH+1), 16*9216 - 1024, vr(V_OH))); a('v_add_u32 %s, %d, %s' % (vr(V_OH+2), 2*(16*9216 - 1024), vr(V_OH)))
    T2 = V_T + 4
    a('v_bfe_u32 v1, v0, 1, 2'); a('v_mul_u32_u24 v1, 1152, v1'); a('v_and_b32 v2, 1, v0'); a('v_lshl_add_u32 v1, v2, 4, v1'); a('v_lshrrev_b32 v2, 3, v0')
    for p in range(9):
        d = vr(V_OD+p)
        a('v_add_u32 %s, %d, v2' % (d, 8*p))
        a('v_mul_u32_u24 %s, 57, %s' % (vr(T2), d)); a('v_lshrrev_b32 %s, 10, %s' % (vr(T2), vr(T2)))
        a('v_mul_u32_u24 %s, 18, %s' % (vr(T2+1), vr(T2))); a('v_sub_u32 %s, %s, %s' % (d, d, vr(T2+1)))
        a('v_and_b32 %s, 1, %s' % (vr(T2+1), vr(T2))); a('v_xor_b32 %s, %s, %s' % (d, d, vr(T2+1)))
        a('v_mul_u32_u24 %s, 4608, %s' % (vr(T2), vr(T2))); a('v_lshl_add_u32 %s, %s, 5, %s' % (d, d, vr(T2)))
        a('v_add_u32 %s, %s, v1' % (d, d))
    for r in range(144): a('v_accvgpr_write_b32 a%d, 0' % (A_OUT + r))
    s_ = []
    b = s_.append
    b('s_mul_i32 %s, %s, %d' % (sr(S_A), sr(S_W), 9*16*9216)); b('s_lshl_b32 %s, %s, 1' % (sr(S_B), sr(S_HB))); b('s_add_u32 %s, %s, %s' % (sr(S_HCOL), sr(S_A), sr(S_B)))
    if OPT.get('kswap', False):
        b('s_mul_i32 %s, %s, %d' % (sr(S_A), sr(S_S), 288*9216)); b('s_sub_u32 %s, 0, %s' % (sr(S_B), sr(S_A)))
        s_.append(['s_cmp_lt_u32 %s, 2' % sr(S_W), 's_cselect_b32 %s, %s, %s' % (sr(S_A), sr(S_A), sr(S_B))])
        b('s_add_u32 %s, %s, %s' % (sr(S_HCOL), sr(S_HCOL), sr(S_A)))
    b('s_mul_i32 s63, %s, 576' % sr(S_S))
    b('s_lshl_b32 %s, %s, 4' % (sr(S_C), sr(S_W)))
    b('s_add_u32 %s, %s, %s' % (sr(S_A), sr(S_FB), sr(S_C))); b('s_mul_i32 %s, %s, 1152' % (sr(S_A), sr(S_A))); b('s_add_u32 %s, %s, s63' % (sr(S_DROW), sr(S_A)))
    b('s_xor_b32 %s, %s, 1' % (sr(S_B), sr(S_S))); b('s_mul_i32 %s, %s, 576' % (sr(S_A), sr(S_JP)))
    b('s_mul_i32 s54, %s, 320' % sr(S_B)); b('s_add_u32 s54, s54, %s' % sr(S_A))
    b('s_lshl_b32 s55, %s, 5' % sr(S_B)); b('s_add_u32 s55, s55, %s' % sr(S_A)); b('s_add_u32 s55, s55, 256')
    b('s_and_b32 s56, %s, 1' % sr(S_W)); b('s_lshl_b32 s56, s56, 4')
    b('s_lshr_b32 s57, %s, 1' % sr(S_W))
    for ee, th0 in enumerate((0, 2, 4, 5, 7)):
        d = sr(S_E+ee)
        b('s_lshl_b32 %s, s57, 5' % d); b('s_add_u32 %s, %s, s54' % (d, d))
        b('s_add_u32 %s, %s, %d' % (d, d, 32*th0))
        if ee == 3: s_.append(['s_cmp_eq_u32 s57, 0', 's_cselect_b32 %s, %s, %s' % (d, sr(S_HB), d)])
        if ee == 4: s_.append(['s_cmp_eq_u32 s57, 1', 's_cselect_b32 %s, s55, %s' % (d, d)])
        b('s_add_u32 %s, %s, s56' % (d, d)); b('s_mul_i32 %s, %s, 1152' % (d, d)); b('s_add_u32 %s, %s, s63' % (d, d))
    b('s_lshl_b32 %s, s2, 2' % sr(S_A)); b('s_add_u32 %s, %s, %s' % (sr(S_A), sr(S_A), sr(S_W)))
    b('s_lshl_b32 %s, %s, 2' % (sr(S_FLO), sr(S_A))); b('s_add_u32 %s, %s, 0x%x' % (sr(S_FLO), sr(S_FLO), WS_FLAG))
    b('s_mul_i32 %s, %s, 18432' % (sr(S_HXO), sr(S_A))); b('s_add_u32 %s, %s, 0x%x' % (sr(S_HXO), sr(S_HXO), WS_HX))
    b('s_xor_b32 %s, s2, 8' % sr(S_A)); b('s_lshl_b32 %s, %s, 2' % (sr(S_A), sr(S_A))); b('s_add_u32 %s, %s, %s' % (sr(S_A), sr(S_A), sr(S_W)))
    b('s_lshl_b32 %s, %s, 2' % (sr(S_FLP), sr(S_A))); b('s_add_u32 %s, %s, 0x%x' % (sr(S_FLP), sr(S_FLP), WS_FLAG))
    b('s_mul_i32 %s, %s, 18432' % (sr(S_HXP), sr(S_A))); b('s_add_u32 %s, %s, 0x%x' % (sr(S_HXP), sr(S_HXP), WS_HX))
    b('s_lshl_b32 %s, %s, 1' % (sr(S_A), sr(S_I))); b('s_add_u32 %s, %s, %s' % (sr(S_A), sr(S_A), sr(S_S)))
    b('s_lshl_b32 %s, %s, 3' % (sr(S_A), sr(S_A))); b('s_add_u32 %s, %s, %s' % (sr(S_A), sr(S_A), sr(S_JP)))
    b('s_lshl_b32 %s, %s, 2' % (sr(S_A), sr(S_A))); b('s_add_u32 %s, %s, %s' % (sr(S_A), sr(S_A), sr(S_W)))
    b('s_mul_i32 %s, %s, 18432' % (sr(S_P), sr(S_A))); b('s_add_u32 %s, %s, 0x%x' % (sr(S_P), sr(S_P), WS_P))
    b('s_mov_b32 %s, 0x3f80' % sr(S_LO)); b('s_mov_b32 %s, 0x3f800000' % sr(S_HI))
    b('s_mov_b32 %s, 3' % sr(S_CNT)); b('s_mov_b32 %s, 1' % sr(S_FVAL))
    LATE = OPT.get('late_setup', True)
    work = (pat if LATE else pat + rest + s_)
    def do_work(n):
        for _ in range(n):
            if not work: return
            x = work.pop(0)
            for t in (x if isinstance(x, list) else [x]): e(t)
    XLA = OPT.get('xla', 6)
    first = dma_G(S_WG, sr(S_GCOL), 0, 'Ga') + [('X', k, None) for k in range(2, XLA)]
    if not LATE: first += dma_G(S_WG, sr(S_GCOL), 1, 'Gb') + [('T', 0, None)]
    nvm = sum(1 for k in first if k[0] in 'DXT'); per = (len(work) + nvm - 1)//nvm
    for kind, text, tag in first:
        if kind == 'X': xload(P, text); do_work(per)
        elif kind == 'T': stload(P); do_work(per)
        else:
            e(text, tag=tag)
            if ' m0,' in text: e('s_nop 0')
            if kind == 'D': do_work(per)
    do_work(9999)
    if OPT.get('pro_stamps'): stamp('setup')
    def stats_block(P):
        e = P.e; Q = V_H; T = V_H + 8
        P.wait_vm_tag('st')
        for mm in range(2): e('v_add_f32 %s, %s, %s' % (vr(Q+mm), vr(Q+mm), vr(Q+2+mm)))
        for mm in range(2): e('v_add_f32 %s, %s, %s' % (vr(Q+mm), vr(Q+mm), vr(Q+4+mm)))
        for swap in ('v_permlane32_swap_b32', 'v_permlane16_swap_b32'):
            for k in range(2): e('v_mov_b32 %s, %s' % (vr(Q+2+k), vr(Q+k)))
            e('s_nop 1')
            for k in range(2): e('%s %s, %s' % (swap, vr(Q+k), vr(Q+2+k)))
            e('s_nop 1')
            for k in range(2): e('v_add_f32 %s, %s, %s' % (vr(Q+k), vr(Q+k), vr(Q+2+k)))
        e('s_mov_b32 s99, 0x%08x' % f2u(1.0/576))
        CC = -2.0*0.7978845608028654*1.4426950408889634
        for mm in range(2): e('v_mul_f32 %s, s99, %s' % (vr(V_K+mm), vr(Q+mm)))
        for mm in range(2): e('v_add_f32 %s, 0x%08x, %s' % (vr(V_K+mm), f2u(1e-5), vr(V_K+mm)))
        for mm in range(2): e('v_rsq_f32 %s, %s' % (vr(T+mm), vr(V_K+mm)))
        e('s_nop 0')
        for mm in range(2):
            e('v_mul_f32 %s, 0x%08x, %s' % (vr(V_C0+mm), f2u(CC), vr(T+mm)))
            e('v_mul_f32 %s, %s, %s' % (vr(T+2+mm), vr(T+mm), vr(T+mm)))
        for mm in range(2): e('v_mul_f32 %s, 0x%08x, %s' % (vr(T+2+mm), f2u(0.044715), vr(T+2+mm)))
        for mm in range(2): e('v_mul_f32 %s, %s, %s' % (vr(V_C1+mm), vr(V_C0+mm), vr(T+2+mm)))
    e('v_mov_b32 %s, %s' % (vr(V_RD), vr(V_PG))); e('v_add_u32 %s, %d, %s' % (vr(V_RD2), SLOT, vr(V_PG)))
    P.wait_vm(lambda x: x.tag in ('Ga', 'x0')); i = e('s_barrier'); i.meta = dict(needs='Ga')
    stamp('bar0')
    S = Stream()
    P4 = OPT.get('pass4', True)
    fr = []; mf = []
    if P4:
        def step(ks, fts):
            rd = V_RD if ks < 9 else V_RD2; kl = ks % 9
            f0 = len(fr)
            for ft in fts: fr.append(Frag(rd, (4*kl)*1024 + ft*256, (4*kl+2)*1024 + ft*256))
            for n, ft in enumerate(fts):
                for mm in range(2):
                    mf.append(MF(acc(V_G, ft, mm), f0+n, xfrag(ks, mm), '0' if ks == 0 else acc(V_G, ft, mm), [f0+n, f0+n+1] if (n % 2 == 0 and mm == 0) else None))
        for ks in range(15): step(ks, (0, 1, 2, 3))
        for ks in range(15, 18): step(ks, (0, 1))
        for ks in range(15, 18): step(ks, (2, 3))
        S.add(fr, mf)
    else:
        for ks in range(18):
            rd = V_RD if ks < 9 else V_RD2; kl = ks % 9
            f0 = len(fr)
            for ft in range(2): fr.append(Frag(rd, (4*kl)*1024 + ft*256, (4*kl+2)*1024 + ft*256))
            for ft in range(2):
                for mm in range(2):
                    mf.append(MF(acc(V_G, ft, mm), f0+ft, xfrag(ks, mm), '0' if ks == 0 else acc(V_G, ft, mm), [f0, f0+1] if (ft == 0 and mm == 0) else None))
        S.add(fr, mf)
        fr = []; mf = []
        for ft in (2, 3):
            for g in range(6):
                f0 = len(fr)
                for t in range(3):
                    ks = 3*g + t; kl = ks % 9
                    fr.append(Frag(V_RD if ks < 9 else V_RD2, (4*kl)*1024 + ft*256, (4*kl+2)*1024 + ft*256))
                for mm in range(2):
                    for t in range(3):
                        ks = 3*g + t
                        mf.append(MF(acc(V_G, ft, mm), f0+t, xfrag(ks, mm), '0' if ks == 0 else acc(V_G, ft, mm), [f0, f0+1, f0+2] if (mm == 0 and t == 0) else None))
        S.add(fr, mf)
    fx = Fixed()
    G = 8 if P4 else 4
    for ks in range(18):
        g0 = G*ks if (not P4 or ks < 15) else 120 + 4*(ks-15)
        g1 = g0 + (G if (not P4 or ks < 15) else 4) - 1
        if ks + XLA < 18: fx.put(g0, 'X', (lambda P, k=ks+XLA: xload(P, k)), cost=4)
        if ks + 1 < 18: fx.put(g1, 'X', (lambda P, k=ks+1: P.wait_vm_tag('x%d' % k)))
    fx.put(100 if P4 else 61, 'X', stats_block, cost=8)
    ch = []
    late_q = []
    if LATE:
        put_dma(ch, 1, dma_G(S_WG, sr(S_GCOL), 1, 'Gb'), step=2)
        fx.put(30, 'X', stload, cost=9)
        late_q = [Queue([Op(x) for x in rest], 'rest').window(0, 0, 110),
                  Queue([Op((lambda P, x=x: [P.e(t) for t in x]), cost=1) if isinstance(x, list) else Op(x) for x in s_], 'srest').window(0, 0, 110)]
    if P4:
        put_dma(ch, 62, dma_G(S_WU, sr(S_GCOL), 0, 'Ua'), step=3)
        put_dma(ch, 100, dma_G(S_WU, sr(S_GCOL), 1, 'Ub'), step=3)
        ch.append((136, 'S', 's_add_u32 %s, %s, 128' % (sr(S_GCOL), sr(S_GCOL)), None)); ch.append((137, 'S', 's_add_u32 %s, %s, 128' % (sr(S_GCOL2), sr(S_GCOL2)), None))
        gbw = 9*8 - LAR - 2
    else:
        put_dma(ch, 57, dma_G(S_WU, sr(S_GCOL), 0, 'Ua'), step=2)
        put_dma(ch, 78, dma_G(S_WU, sr(S_GCOL), 1, 'Ub'), step=5)
        ch.append((126, 'S', 's_add_u32 %s, %s, 128' % (sr(S_GCOL), sr(S_GCOL)), None)); ch.append((127, 'S', 's_add_u32 %s, %s, 128' % (sr(S_GCOL2), sr(S_GCOL2)), None))
        gbw = 22
    fx.chain(ch)
    if dbg and OPT.get('pro_stamps'):
        for g in ((39, 79, 119) if P4 else (23, 47, 71)): fx.put(g, 'X', (lambda P, g=g: stamp('p%d' % g)), cost=0)
    fx.put(gbw, 'L', '@waitvm', 'Gb'); fx.put(gbw, 'B', 's_barrier', 'Gb')
    if P4: qa = gelu_q(0, 'g0', V_T).window(134, 134, 140); qb = gelu_q(1, 'g1', V_T+4).window(135, 135, 141)
    else: qa = gelu_q(0, 'g0', V_T).window(75, 75, 108); qb = gelu_q(1, 'g1', V_T+4).window(92, 100, 142)
    if late_q: qa.after([late_q[0]]); qb.after([late_q[0]])
    put_bar(fx, 144, 'Ua', PAT_G)
    ua = st_GU(V_U, 0, True)
    info['peel'] = emit_stream(P, S, ua[0][:LAR//2], fx, late_q + [qa, qb], A_W, NF, LAR, 0, maxslots=9, opt=OPT, first_reads=True, drain_ok=True, drain_interleave=True)
    stamp('peel')
    P.raw('.p2align 6'); P.raw('L_%s_loop:' % name)
    body_start = len(P.ins)
    def flagstore(tag, val):
        def f(P):
            if not OPT.get('no_flagwait'): P.wait_vm_tag(tag)
            P.e('v_mov_b32 %s, %s' % (vr(V_FL), val))
            P.e('buffer_store_dword %s, off, %s, %s sc1' % (vr(V_FL), sr(S_WS,4), sr(S_FLO)), tag='fl')
        f.cost = 3
        return f
    def front(fx, ch, tail):
        S = Stream().add(*st_GU(V_U, 0, True)).add(*st_GU(V_U, 1, False))
        G0 = OPT.get('dma_g0', 2)
        if not tail:
            put_dma(ch, G0, dma_G(S_WG, sr(S_GCOL), 0, 'Ga')); put_dma(ch, 72+G0, dma_G(S_WG, sr(S_GCOL), 1, 'Gb'))
            put_bar(fx, 72, 'Ub', PAT_G); put_bar(fx, 144, 'Ga', PAT_G)
        else:
            put_dma(ch, G0, dma_G(S_WG, sr(S_HCOL), 0, 'Gh', 16)); put_dma(ch, 72+G0, dma_D(sr(S_DROW), 'D'))
            put_bar(fx, 72, 'Ub', PAT_G); put_bar(fx, 144, 'Gh', PAT_H)
        W = OPT.get('win', dict())
        def win(k, kind): return W.get(k + ('T' if tail else ''), W.get(k, kind))
        g2 = gelu_q(2, 'g2', V_T).window(0, *win('g2', (18, 85))); g3 = gelu_q(3, 'g3', V_T+4).window(0, *win('g3', (51, 148)))
        p0 = prod_q(0, V_H, 'p0').window(92, *win('p0', (130, 143)))
        p1 = prod_q(1, V_H, 'p1', (sr(S_HXO), 0, 'h0')).window(110, *win('p1', (135, 149))).after([p0])
        p2 = prod_q(2, V_H+8, 'p2').window(128, *win('p2', (165, 178))).after([g2, p1])
        p3 = prod_q(3, V_H+8, 'p3', (sr(S_HXO), 2048, 'h1')).window(146, *win('p3', (172, 188))).after([g3, p2])
        return S, [p0, p1, p2, p3, g2, g3]
    G0 = OPT.get('dma_g0', 2)
    Hf = [[vr(V_H + 8*kq + 4*mm, 4) for mm in range(2)] for kq in range(2)]
    fx = Fixed(); ch = []
    S, qs = front(fx, ch, False)
    S.add(*st_GU(V_G, 0, True)).add(*st_GU(V_G, 1, False)).add(*st_D(Hf))
    put_dma(ch, 144+G0, dma_D(sr(S_DROW), 'D')); put_dma(ch, 216+G0, dma_G(S_WU, sr(S_GCOL), 0, 'Ua')); put_dma(ch, 288+G0, dma_G(S_WU, sr(S_GCOL), 1, 'Ub'))
    fx.chain(ch)
    put_bar(fx, 216, 'Gb', PAT_G); put_bar(fx, 288, 'D', PAT_D); put_bar(fx, 360, 'Ua', PAT_G)
    p3 = qs[3]
    W = OPT.get('win', dict())
    n0 = gelu_q(0, 'g0n', V_T).window(237, *W.get('n0', (252, 318))).after([p3]); n1 = gelu_q(1, 'g1n', V_T+4).window(255, *W.get('n1', (295, 359))).after([p3])
    fx.put(277, 'X', flagstore('h1', sr(S_FVAL)), cost=3)
    fx.chain([(285, 'S', 's_add_u32 %s, %s, 1' % (sr(S_FVAL), sr(S_FVAL)), None), (286, 'S', 's_add_u32 %s, %s, 4096' % (sr(S_HXO), sr(S_HXO)), None),
              (287, 'S', 's_add_u32 %s, %s, %d' % (sr(S_DROW), sr(S_DROW), 64*1152), None)])
    info['body'] = emit_stream(P, S, ua[0][:LAR//2], fx, qs + [n0, n1], A_W, NF, LAR, 0, maxslots=OPT['cap'], opt=OPT)
    dl = {q.name: q.finish for q in qs + [n0, n1]}
    assert dl['p0'] <= 143 and dl['p1'] <= 161 and dl['p2'] <= 179 and dl['p3'] <= 197, dl
    info['fb'] = dl
    e('s_add_u32 %s, %s, 128' % (sr(S_GCOL), sr(S_GCOL))); e('s_add_u32 %s, %s, 128' % (sr(S_GCOL2), sr(S_GCOL2)))
    e('s_sub_u32 %s, %s, 1' % (sr(S_CNT), sr(S_CNT))); e('s_cmp_lg_u32 %s, 0' % sr(S_CNT))
    e('s_cbranch_scc1 L_%s_loop' % name)
    body_end = len(P.ins)
    stamp('loop')
    fx = Fixed(); ch = []
    S, qs = front(fx, ch, True)
    S.add(*st_half(V_G)).add(*st_D(Hf)).add(*st_half(V_U))
    HHf = [vr(V_HH + 4*mm, 4) for mm in range(2)]
    hp = [[hpfrag(th, mm) for mm in range(2)] for th in range(9)]
    F2 = OPT.get('final2', True)
    RA = (V_RD, V_RD2); RB = (V_T, V_T+1)
    put_dma(ch, 144+G0, dma_G(S_WU, sr(S_HCOL), 0, 'Uh', 16))
    if not F2:
        for pair in ([hp[0], hp[1]], [hp[2], hp[3]], [hp[4], hp[5]], [HHf, hp[6]], [hp[7], hp[8]]): S.add(*st_D(pair))
        for k in range(5): put_dma(ch, 216+72*k+G0, dma_D(sr(S_E+k), 'E%d' % k))
        fx.chain(ch)
        put_bar(fx, 216, 'D', PAT_D); put_bar(fx, 288, 'Uh', PAT_H)
        for k in range(5): put_bar(fx, 360+72*k, 'E%d' % k, PAT_D)
    else:
        for pair in ([hp[0], hp[1]], [hp[2], hp[3]], [hp[4], hp[5]]): S.add(*st_D(pair))
        S.add(*st_final([HHf, hp[6], hp[7], hp[8]], RA, RB))
        for k in range(3): put_dma(ch, 216+72*k+G0, dma_D(sr(S_E+k), 'E%d' % k))
        put_dma(ch, 421, dma_D(sr(S_E+3), 'E3'), step=6); put_dma(ch, 475, dma_D(sr(S_E+4), 'E4'), step=6)
        fx.chain(ch)
        put_bar(fx, 216, 'D', PAT_D); put_bar(fx, 288, 'Uh', PAT_H)
        for k in range(3): put_bar(fx, 360+72*k, 'E%d' % k, PAT_D)
        fx.put(436, 'B', 's_barrier', None)
        put_bar(fx, 576, ['E3', 'E4'], PAT_D)
        def second_base(P):
            P.e('s_add_u32 %s, %s, 1' % (sr(S_A), sr(S_CR))); P.e('s_and_b32 %s, %s, 3' % (sr(S_A), sr(S_A))); P.e('s_mul_i32 %s, %s, %d' % (sr(S_A), sr(S_A), SLOT))
            P.e('v_add_u32 %s, %s, %s' % (vr(RB[0]), sr(S_A), vr(V_PDE))); P.e('v_add_u32 %s, %s, %s' % (vr(RB[1]), sr(S_A), vr(V_PDO)))
        fx.put(576-LAR-3, 'X', second_base, cost=5)
    p3 = qs[3]
    h0 = gelu_q(0, 'gh0', V_T).window(183, 195, 265).after([p3]); h1 = gelu_q(1, 'gh1', V_T+4).window(219, 255, 330).after([p3])
    fx.chain([(340, 'S', 's_add_u32 %s, %s, 4096' % (sr(S_T1), sr(S_HXO)), None)])
    ph0 = prod_q(0, V_HH, 'ph0').window(327, 330, 350).after([h0])
    ph1 = prod_q(1, V_HH, 'ph1', (sr(S_T1), 0, 'hh')).window(363, 364, 384).after([h1, ph0])
    def poll_issue(P): P.e('buffer_load_dword %s, off, %s, %s sc1' % (vr(V_PO), sr(S_WS,4), sr(S_FLP)), tag='poll')
    slow = []
    def poll_check(val, lab):
        def f(P):
            P.wait_vm_tag('poll')
            P.e('v_readfirstlane_b32 %s, %s' % (sr(S_A), vr(V_PO)))
            P.e('s_nop 0')
            P.e('s_cmp_ge_u32 %s, %d' % (sr(S_A), val))
            P.e('s_cbranch_scc0 L_%s_slow%s' % (name, lab))
            P.raw('L_%s_back%s:' % (name, lab))
            slow.append((val, lab))
        f.cost = 5
        return f
    def hp_load(x):
        def f(P):
            if x % 4 == 0: P.e('s_add_u32 %s, %s, %d' % (sr(S_B), sr(S_HXP), (x//4)*4096))
            th, mm = divmod(x, 2)
            P.e('buffer_load_dwordx4 %s, %s, %s, %s offen offset:%d sc1' % (hpfrag(th, mm), vr(V_L16), sr(S_WS,4), sr(S_B), (x % 4)*1024), tag='hp%d' % x)
        return f
    if dbg and OPT.get('tail_stamps'):
        for g in OPT['tail_stamps']: fx.put(g, 'X', (lambda P, g=g: stamp('t%d' % g)), cost=0)
    fx.put(144, 'X', poll_issue, cost=2); fx.put(277, 'X', poll_check(3, 'a'), cost=5)
    for x in range(4): fx.put(279 + 2*x, 'X', hp_load(x), cost=2)
    for x in range(4, 8): fx.put(350 + 2*(x-4), 'X', hp_load(x), cost=2)
    for x in range(8, 12): fx.put(422 + 2*(x-8), 'X', hp_load(x), cost=2)
    fx.put(279, 'X', flagstore('h1', '4'), cost=3)
    fx.put(440, 'X', flagstore('hh', '5'), cost=3)
    if not F2:
        fx.put(360, 'X', poll_issue, cost=2); fx.put(493, 'X', poll_check(4, 'b'), cost=5)
        for x in range(12, 16): fx.put(495 + 2*(x-12), 'X', hp_load(x), cost=2)
        fx.put(504, 'X', poll_issue, cost=2); fx.put(565, 'X', poll_check(5, 'c'), cost=5)
        for x in range(16, 18): fx.put(567 + 2*(x-16), 'X', hp_load(x), cost=2)
    else:
        fx.put(478, 'X', poll_issue, cost=2); fx.put(513, 'X', poll_check(5, 'b'), cost=5)
        for x in range(12, 18): fx.put(515 + 2*(x-12), 'X', hp_load(x), cost=2)
    def hp_wait(xs):
        def f(P): P.wait_vm(lambda i: i.tag in ['hp%d' % t for t in xs])
        return f
    fx.put(360-4, 'X', hp_wait(range(4)))
    fx.put(432-4, 'X', hp_wait(range(4, 8)))
    fx.put(504-4, 'X', hp_wait(range(8, 12)))
    if not F2:
        fx.put(576-4, 'X', hp_wait(range(12, 14)))
        fx.put(648-4, 'X', hp_wait(range(14, 18)))
    else: fx.put(576-2, 'X', hp_wait(range(12, 18)))
    ep = []
    for np_ in range(9):
        ear = (576 + 16*(np_+1) + 2) if F2 else (648 + 8*(np_+1) + 2)
        for mm in range(2):
            tb = V_G + 16*((2*np_+mm) % 4); hb = V_H + 4*((2*np_+mm) % 4)
            for k in range(2):
                for r in range(4): ep.append(Op('v_accvgpr_read_b32 %s, a%d' % (vr(tb+4*k+r), A_OUT + 8*(2*np_+k) + 4*mm + r), ear))
            for d in range(4): ep.append(Op('v_cvt_pk_bf16_f32 %s, %s, %s' % (vr(hb+d), vr(tb+2*d), vr(tb+2*d+1)), ear))
            fr_ = mm*9 + np_
            def st(P, fr_=fr_, hb=hb):
                P.e('s_add_u32 %s, %s, %d' % (sr(S_T0), sr(S_P), fr_*1024))
                P.e('buffer_store_dwordx4 %s, %s, %s, %s offen sc1' % (vr(hb,4), vr(V_L16), sr(S_WS,4), sr(S_T0)), tag='p')
            ep.append(Op(st, ear, cost=2))
    qe = Queue(ep, 'ep', prio=True)
    allq = qs + [ph0, ph1, h0, h1, qe]
    info['tail'] = emit_stream(P, S, [], fx, allq, A_W, NF, LAR, 0, maxslots=OPT['cap'], opt=OPT, drain_ok=True, drain_pre='s_nop 7')
    dl = {q.name: q.finish for q in allq}
    assert dl['p0'] <= 143 and dl['p1'] <= 179 and dl['p3'] < 212 and dl['ph1'] < 420 and dl['gh0'] < 326, dl
    info['ft'] = dl
    stamp('tail')
    if dbg:
        e('s_waitcnt vmcnt(0)')
        stamp('end')
        e('s_mov_b32 s4, s94'); e('s_mov_b32 s5, s95'); e('s_mov_b32 s6, 0x100000'); e('s_mov_b32 s7, 0x20000')
        e('s_lshl_b32 s41, s2, 2'); e('s_add_u32 s41, s41, %s' % sr(S_W)); e('s_lshl_b32 s41, s41, 7')
        for k in range(len(stamps)):
            e('s_sub_u32 s42, s%d, s64' % (64+k)); e('v_mov_b32 v1, s42')
            e('buffer_store_dword v1, off, s[4:7], s41 offset:%d' % (4*k))
            e('s_sub_u32 s42, s%d, s77' % (77+k)); e('v_mov_b32 v1, s42')
            e('buffer_store_dword v1, off, s[4:7], s41 offset:%d' % (64+4*k))
        e('v_mov_b32 v1, s77'); e('buffer_store_dword v1, off, s[4:7], s41 offset:60')
    P.raw('L_%s_end:' % name)
    e('s_endpgm')
    main_end = len(P.ins)
    for val, lab in slow:
        P.raw('L_%s_slow%s:' % (name, lab))
        P.raw('s_mov_b32 %s, 0x8000' % sr(S_C))
        P.raw('L_%s_spin%s:' % (name, lab))
        P.raw('s_sleep 2')
        P.raw('buffer_load_dword %s, off, %s, %s sc1' % (vr(V_PO), sr(S_WS,4), sr(S_FLP)))
        P.raw('s_waitcnt vmcnt(0)')
        P.raw('v_readfirstlane_b32 %s, %s' % (sr(S_A), vr(V_PO)))
        P.raw('s_sub_u32 %s, %s, 1' % (sr(S_C), sr(S_C)))
        P.raw('s_cmp_eq_u32 %s, 0' % sr(S_C))
        P.raw('s_cbranch_scc1 L_%s_back%s' % (name, lab))
        P.raw('s_cmp_ge_u32 %s, %d' % (sr(S_A), val))
        P.raw('s_cbranch_scc0 L_%s_spin%s' % (name, lab))
        P.raw('s_branch L_%s_back%s' % (name, lab))
    ins = P.ins
    path = ins[:body_start] + ins[body_start:body_end]*3 + ins[body_end:main_end]
    info['stamps'] = stamps
    return P, path, info

if __name__ == '__main__':
    import collections
    P, path, info = build()
    check(path, 'k3b')
    print('barrier problems', verify_barriers(path))
    for k in ('peel', 'body', 'tail'):
        print(k, 'slots/gap hist', sorted(collections.Counter(info[k]).items()), 'est cyc/unit %.2f' % (est_cycles(info[k])/len(info[k])*2))
    print(info['fb']); print(info['ft'])
    print('instrs', len(P.ins))
```

```python
from core import *

class Op:
    def __init__(self, text, ready=0, after=None, tag=None, cost=None):
        self.text, self.ready, self.after, self.tag = text, ready, after, tag
        self.due = ready
        self.cost = cost if cost is not None else (1 if callable(text) else Ins(text).cost)
        if not callable(text) and text.startswith('buffer_'): self.cost = 2

class Queue:
    def __init__(self, ops, name='', prio=False):
        self.ops = list(ops); self.name = name; self.k = 0; self.prio = prio; self.finish = -1
    def done(self): return self.k >= len(self.ops)
    def peek(self): return None if self.done() else self.ops[self.k]
    def window(self, ready, a, b):
        tot = sum(o.cost for o in self.ops); acc = 0
        for o in self.ops:
            o.ready = max(o.ready, ready); o.due = max(o.ready, int(a + (b - a) * acc / tot)); acc += o.cost
        return self
    def after(self, qs):
        for o in self.ops: o.after = list(qs)
        return self

class Frag:
    def __init__(self, rd, imm0, imm1): self.rd, self.imm = rd, (imm0, imm1)
class MF:
    def __init__(self, D, fi, B, C, wait=None, A=None): self.D, self.fi, self.B, self.C, self.wait, self.A = D, fi, B, C, wait, A
class Stream:
    def __init__(self): self.frags = []; self.mf = []
    def add(self, frags, mfs):
        o = len(self.frags)
        self.frags += frags
        for m in mfs:
            self.mf.append(MF(m.D, None if m.fi is None else m.fi + o, m.B, m.C, None if m.wait is None else [x + o for x in m.wait], m.A))
        return self

class Fixed:
    def __init__(self): self.chains = []; self.at = {}
    def chain(self, items): self.chains.append(list(items))
    def put(self, gap, kind, text, tag=None, cost=1): self.at.setdefault(gap, []).append((kind, text, tag, cost))

def emit_stream(P, S, nxt_frags, fx, queues, A_W, NF, LAR, phase=0, maxslots=3, opt=None, drain_ok=False, first_reads=False, drain_pre=None, drain_interleave=False):
    opt = opt or {}
    allf = S.frags + nxt_frags
    nreads = 2*len(allf)
    def areg(fi, n=4, off=0): return ar(A_W + 4*((phase + fi) % NF) + off, n)
    def aregs(fi): return rset('a', A_W + 4*((phase + fi) % NF), 4)
    last_use = {}
    for mu, m in enumerate(S.mf):
        if m.fi is not None: last_use[m.fi] = mu
    nfr = 0
    st = dict(rho=0)
    def read():
        fi, u = divmod(st['rho'], 2); f = allf[fi]
        P.e('ds_read_b64_tr_b16 %s, %s offset:%d' % (areg(fi, 2, 2*u), vr(f.rd), f.imm[u])); st['rho'] += 1
    if first_reads:
        while st['rho'] < LAR: read()
    else: st['rho'] = LAR
    chains = [list(c) for c in fx.chains]
    hist = []
    def wait_for(m):
        regs = []
        for w in m.wait: regs += aregs(w)
        return P.wait_lg_regs(regs)
    if S.mf and S.mf[0].wait is not None: wait_for(S.mf[0])
    for mu, m in enumerate(S.mf):
        P.e('v_mfma_f32_16x16x32_bf16 %s, %s, %s, %s' % (m.D, m.A or areg(m.fi), m.B, m.C))
        if m.fi is not None: nfr += 1
        free_scalar = True; used = 0
        here = fx.at.get(mu, [])
        nxt = S.mf[mu+1] if mu + 1 < len(S.mf) else None
        lead = [x for x in here if x[0] == 'L']
        if nxt is not None and nxt.wait is not None:
            assert st['rho'] >= 2*(max(nxt.wait)+1), (mu, st['rho'], nxt.wait)
            if wait_for(nxt) is not None: free_scalar = False
        for kind, text, tag, cost in lead:
            if text == '@waitvm':
                if not opt.get('no_vmwait') and P.wait_vm_tag(tag) is None: continue
            else: P.e(text, tag=tag)
            if free_scalar: free_scalar = False
            else: used += 1
        emitted_chain = set()
        def chain_scalar():
            for ci, c in enumerate(chains):
                if c and c[0][1] == 'S' and c[0][0] <= mu:
                    P.e(c[0][2]); c.pop(0); emitted_chain.add(ci); return True
            return False
        if free_scalar and chain_scalar(): free_scalar = False
        dma = None
        for ci, c in enumerate(chains):
            if c and c[0][1] == 'D' and c[0][0] <= mu and ci not in emitted_chain: dma = ci; break
        nominal = min(nreads, nfr + LAR)
        must_read = any(x[0] == 'R' for x in here)
        if dma is not None and not must_read and nominal - st['rho'] <= 1:
            c = chains[dma]; it = c.pop(0)
            if not (opt.get('no_dma') and ' lds' in it[2]): P.e(it[2], tag=it[3]); used += 2
        else:
            n = min(2 if not must_read else 99, nominal - st['rho'])
            for _ in range(n):
                fi = st['rho'] // 2
                assert fi - NF < 0 or last_use.get(fi - NF, -1) <= mu, ('ring', mu, fi)
                read(); used += 1
        for kind, text, tag, cost in here:
            if kind == 'M': text(P); used += 1
        for kind, text, tag, cost in here:
            if kind in ('L', 'M'): continue
            if kind == 'R':
                assert st['rho'] == nominal
                P.e(text); used += 1
            elif kind == 'B':
                if not opt.get('no_bar'):
                    i = P.e('s_barrier'); i.meta = dict(needs=tag)
                used += 1
            elif kind == 'X': text(P); used += cost
            else: P.e(text, tag=tag); used += cost
        while True:
            cands = []
            for q in queues:
                o = q.peek()
                if o is None or o.ready > mu: continue
                if o.after is not None and not all(x.done() for x in o.after): continue
                if used + o.cost <= 2: cands.append((0, o.due, q))
                elif o.due <= mu and used + o.cost <= maxslots + (1 if o.cost == 2 and used <= 2 and maxslots == 3 and used == 2 and o.due + 6 <= mu else 0): cands.append((1, o.due, q))
            if not cands: break
            cands.sort(key=lambda t: (t[0], 0 if t[2].prio else 1, t[1]))
            q = cands[0][2]; o = q.peek()
            if callable(o.text): o.text(P)
            elif opt.get('no_hst') and o.text.startswith('buffer_store'): pass
            elif not (opt.get('no_valu') and o.text.startswith('v_')): P.e(o.text, tag=o.tag)
            used += o.cost; q.k += 1
            if q.done(): q.finish = mu
        for ci, c in enumerate(chains):
            while c and c[0][1] == 'S' and c[0][0] + 2 <= mu and used < 4:
                P.e(c[0][2]); c.pop(0); used += 1
        hist.append(used)
    for c in chains: assert not c, ('chain left', c[:2])
    assert st['rho'] == nreads, (st['rho'], nreads)
    if drain_interleave and drain_ok:
        while any(not q.done() for q in queues):
            for q in queues:
                if q.done(): continue
                o = q.peek()
                if o.after is not None and not all(x.done() for x in o.after): continue
                if callable(o.text): o.text(P)
                else: P.e(o.text, tag=o.tag)
                q.k += 1
                if q.done(): q.finish = len(S.mf)
    for q in queues:
        if not q.done():
            if not drain_ok: raise AssertionError('queue %s not drained: %d left' % (q.name, len(q.ops) - q.k))
            if drain_pre: P.e(drain_pre); drain_pre = None
            while not q.done():
                o = q.peek()
                if callable(o.text): o.text(P)
                else: P.e(o.text, tag=o.tag)
                q.k += 1
            q.finish = len(S.mf)
    return hist

def verify_barriers(path):
    vmq = []; bad = 0
    for i in path:
        if i.kind == 'vmem': vmq.append(i)
        elif i.kind == 'wait' and i.meta['vm'] is not None:
            vm = i.meta['vm']
            if len(vmq) > vm: vmq = vmq[len(vmq)-vm:] if vm else []
        elif (i.kind == 'barrier' or (i.kind == 'ds' and i.meta and i.meta.get('arrive'))) and i.meta and i.meta.get('needs'):
            ts = i.meta['needs']; ts = ts if isinstance(ts, (list, tuple)) else [ts]
            if any(x.tag in ts for x in vmq): print('BARRIER with outstanding', ts); bad += 1
    return bad
def est_cycles(hist): return sum(16.25 + 4*max(0, u-2) for u in hist)
```

```python
from core import *
from common import *
from stamps import Stamper

XR_END = 92160
WSLOT = 16384
PITCH = 516
LDS_BYTES = XR_END + 4*WSLOT

def build(name='k1_kernel', prefetch=None, dbg=False, pf=()):
    P = Prog(); e = P.e
    VB = [2, 3]; VBH = [4, 5]; VA, PA = 6, 20
    VW, VX, VONE = 10, 14, 16
    VWA, T = 192, 27
    BB = [40, 60]; AB = [80, 96]; ACC = 112
    S_X, S_WQ, S_WS = 8, 12, 16
    S_W, S_HG, S_MI, S_C, S_RA, S_WA, S_WB, S_SO, S_T0, S_T1, S_CNT = 20, 21, 22, 23, 24, 25, 26, 27, 28, 29, 30
    S_MASK = 32
    S_OD = 40
    def acc(i, mt): return ACC + 20*i + 4*mt
    e('s_cmp_ge_u32 s2, 256'); e('s_cbranch_scc1 L_%s_end' % name)
    stamp = Stamper(P, dbg, S_W); stamp('start')
    if 'scramble' in pf:
        e('s_lshr_b32 s3, s2, 3'); e('s_and_b32 s2, s2, 7'); e('s_lshl_b32 s2, s2, 5'); e('s_or_b32 s2, s2, s3')
    e('s_load_dwordx4 s[4:7], s[0:1], %d' % KA_X)
    e('s_load_dwordx2 s[34:35], s[0:1], %d' % KA_WS)
    e('s_load_dwordx2 s[96:97], s[0:1], %d' % KA_WO); e('s_load_dwordx2 s[98:99], s[0:1], %d' % KA_WG)
    e('v_lshrrev_b32 v1, 6, v0'); e('v_and_b32 v0, 63, v0')
    e('v_readfirstlane_b32 %s, v1' % sr(S_W))
    e('s_and_b32 %s, s2, 1' % sr(S_HG)); e('s_lshl_b32 %s, %s, 2' % (sr(S_HG), sr(S_HG)))
    e('s_bfe_u32 %s, s2, 0x20003' % sr(S_T0)); e('s_add_u32 %s, %s, %s' % (sr(S_HG), sr(S_HG), sr(S_T0)))
    e('s_bfe_u32 %s, s2, 0x20001' % sr(S_MI)); e('s_lshl_b32 %s, %s, 3' % (sr(S_MI), sr(S_MI)))
    e('s_lshr_b32 %s, s2, 5' % sr(S_T0)); e('s_add_u32 %s, %s, %s' % (sr(S_MI), sr(S_MI), sr(S_T0)))
    e('v_lshrrev_b32 v1, 3, v0'); e('v_and_b32 %s, 7, v0' % vr(T))
    e('s_and_b32 %s, %s, 1' % (sr(S_T0), sr(S_W))); e('s_lshl_b32 %s, %s, 2' % (sr(S_T0), sr(S_T0)))
    e('v_lshrrev_b32 %s, 1, v1' % vr(T+1)); e('v_add_u32 %s, %s, %s' % (vr(T+1), sr(S_T0), vr(T+1)))
    e('v_xor_b32 %s, %s, %s' % (vr(T+1), vr(T+1), vr(T))); e('v_lshlrev_b32 %s, 4, %s' % (vr(T+1), vr(T+1)))
    e('v_mul_u32_u24 %s, 1152, v1' % vr(T+2)); e('v_add_u32 %s, %s, %s' % (vr(VX), vr(T+1), vr(T+2)))
    e('s_waitcnt lgkmcnt(0)')
    for srd, lo, hi, size in ((S_X, 4, 5, S_*D_*2), (S_WQ, 6, 7, D_*3*D_*2), (S_WS, 34, 35, WS_END)):
        e('s_mov_b32 %s, s%d' % (sr(srd), lo)); e('s_mov_b32 %s, s%d' % (sr(srd+1), hi))
        e('s_mov_b32 %s, 0x%x' % (sr(srd+2), size)); e('s_mov_b32 %s, 0x%x' % (sr(srd+3), SRD3))
    stamp('setup')
    W1 = []; a = W1.append
    for t in range(4):
        d = vr(VW+t)
        a('s_lshl_b32 s31, %s, 6' % sr(S_W)); a('s_add_u32 s31, s31, %d' % (256*t))
        a('v_add_u32 %s, s31, v0' % vr(T))
        a('v_mul_u32_u24 %s, 7282, %s' % (vr(T+1), vr(T))); a('v_lshrrev_b32 %s, 16, %s' % (vr(T+1), vr(T+1)))
        a('v_mul_u32_u24 %s, 9, %s' % (vr(T+2), vr(T+1))); a('v_sub_u32 %s, %s, %s' % (vr(T+2), vr(T), vr(T+2)))
        a('v_lshrrev_b32 %s, 5, %s' % (vr(T+3), vr(T+1))); a('v_and_b32 %s, 31, %s' % (vr(T+1), vr(T+1)))
        a('v_mul_u32_u24 %s, 1152, %s' % (vr(T+3), vr(T+3))); a('v_lshl_add_u32 %s, %s, 4, %s' % (vr(T+2), vr(T+2), vr(T+3)))
        a('v_mul_u32_u24 %s, 3456, %s' % (vr(T+1), vr(T+1))); a('v_add_u32 %s, %s, %s' % (d, vr(T+2), vr(T+1)))
        a(['v_cmp_le_u32 vcc, 864, %s' % vr(T), 'v_mov_b32 %s, 0x7fff0000' % vr(T+3), 's_nop 0', 'v_cndmask_b32 %s, %s, %s, vcc' % (d, d, vr(T+3))])
    W2 = []; a = W2.append
    M = T+5; Q_ = T+6
    a('v_and_b32 %s, 15, v0' % vr(M)); a('v_lshrrev_b32 %s, 4, v0' % vr(Q_))
    a('v_lshrrev_b32 %s, 3, %s' % (vr(T+1), vr(M))); a('v_mul_u32_u24 %s, 9216, %s' % (vr(T+1), vr(T+1)))
    a('v_and_b32 %s, 7, %s' % (vr(T+2), vr(M))); a('v_lshl_add_u32 %s, %s, 7, %s' % (vr(T+1), vr(T+2), vr(T+1)))
    a('v_lshrrev_b32 %s, 1, %s' % (vr(T+2), vr(M)))
    for kp in range(2):
        a('v_add_u32 %s, %d, %s' % (vr(T+3), 4*kp, vr(Q_))); a('v_xor_b32 %s, %s, %s' % (vr(T+3), vr(T+3), vr(T+2)))
        a('v_lshl_add_u32 %s, %s, 4, %s' % (vr(VB[kp]), vr(T+3), vr(T+1))); a('v_add_u32 %s, %d, %s' % (vr(VBH[kp]), 4*18432, vr(VB[kp])))
    a('v_bfe_u32 %s, v0, 2, 2' % vr(T+2)); a('v_lshl_add_u32 %s, %s, 3, %s' % (vr(T+2), vr(Q_), vr(T+2)))
    a('v_mul_u32_u24 %s, 144, %s' % (vr(T+2), vr(T+2))); a('v_add_u32 %s, %d, %s' % (vr(T+2), XR_END, vr(T+2)))
    a('v_and_b32 %s, 3, v0' % vr(T+1)); a('v_lshlrev_b32 %s, 2, %s' % (vr(T+1), vr(T+1)))
    for i4 in range(4):
        a('s_lshl_b32 s31, %s, 6' % sr(S_W)); a('s_add_u32 s31, s31, %d' % (16*i4))
        a('v_add_u32 %s, s31, %s' % (vr(T+3), vr(T+1)))
        a('v_min_u32 %s, 212, %s' % (vr(T+3), vr(T+3)))
        a('v_mul_u32_u24 %s, 911, %s' % (vr(T+4), vr(T+3))); a('v_lshrrev_b32 %s, 16, %s' % (vr(T+4), vr(T+4)))
        a('v_mul_u32_u24 %s, %d, %s' % (vr(T+4), 4608 - 144, vr(T+4)))
        a('v_lshl_add_u32 %s, %s, 1, %s' % (vr(T+3), vr(T+3), vr(T+4))); a('v_add_u32 %s, %s, %s' % (vr(PA+i4), vr(T+3), vr(T+2)))
    for k in range(4): a('v_mov_b32 %s, 0x3f803f80' % vr(VONE+k))
    a('v_cmp_eq_u32 %s, 0, %s' % (sr(S_MASK, 2), vr(M)))
    for i4 in range(4):
        for d2 in range(2):
            d = vr(VWA + 2*i4 + d2)
            a('s_lshl_b32 s31, %s, 6' % sr(S_W)); a('s_add_u32 s31, s31, %d' % (16*i4 + 2*d2))
            a('v_lshl_add_u32 %s, %s, 2, s31' % (vr(T+1), vr(Q_)))
            a('v_mul_u32_u24 %s, 3641, %s' % (vr(T+2), vr(T+1))); a('v_lshrrev_b32 %s, 16, %s' % (vr(T+2), vr(T+2)))
            a('v_mul_u32_u24 %s, 18, %s' % (vr(T+3), vr(T+2))); a('v_sub_u32 %s, %s, %s' % (vr(T+3), vr(T+1), vr(T+3)))
            a('v_min_u32 %s, 12, %s' % (vr(T+2), vr(T+2)))
            a('v_mul_u32_u24 %s, 3200, %s' % (vr(T+2), vr(T+2))); a('v_lshl_add_u32 %s, %s, 1, %s' % (vr(T+2), vr(T+3), vr(T+2)))
            a('v_mul_u32_u24 %s, 40, %s' % (vr(T+3), vr(M))); a('v_add_u32 %s, %s, %s' % (d, vr(T+2), vr(T+3)))
    for i4 in range(4):
        for mt in range(5):
            for r in range(4): a('v_mov_b32 %s, 0' % vr(acc(i4, mt)+r))
    a('s_mul_i32 s37, %s, 72' % sr(S_HG)); a('s_mul_i32 s38, %s, 18' % sr(S_W)); a('s_add_u32 s37, s37, s38')
    for d in range(9):
        o = sr(S_OD+d)
        a('s_add_u32 s38, s37, %d' % (2*d))
        a('s_lshr_b32 %s, s38, 5' % o); a('s_lshl_b32 %s, %s, 10' % (o, o))
        a('s_bfe_u32 s39, s38, 0x20002'); a('s_lshl_b32 s39, s39, 8'); a('s_add_u32 %s, %s, s39' % (o, o))
        a('s_bfe_u32 s39, s38, 0x10004'); a('s_lshl_b32 s39, s39, 3'); a('s_add_u32 %s, %s, s39' % (o, o))
        a('s_bfe_u32 s39, s38, 0x10001'); a('s_lshl_b32 s39, s39, 2'); a('s_add_u32 %s, %s, s39' % (o, o))
    def work(lst, n):
        for _ in range(n):
            if not lst: return
            x = lst.pop(0)
            for t in (x if isinstance(x, list) else [x]): e(t)
    n1 = len(W1)
    for bi in range(3):
        if bi == 2:
            work(W1, 999)
            e('s_cmp_ge_u32 %s, 2' % sr(S_W)); e('s_cbranch_scc1 L_%s_nox' % name)
        e('s_add_u32 %s, %s, %d' % (sr(S_T0), sr(S_W), 4*bi))
        e('s_lshl_b32 %s, %s, 3' % (sr(S_T1), sr(S_MI))); e('s_add_u32 %s, %s, %s' % (sr(S_T1), sr(S_T1), sr(S_T0)))
        e('s_sub_u32 %s, %s, 2' % (sr(S_T1), sr(S_T1))); e('s_max_i32 %s, %s, 0' % (sr(S_T1), sr(S_T1)))
        e('s_mul_i32 %s, %s, %d' % (sr(S_T1), sr(S_T1), 8*1152))
        e('s_mul_i32 %s, %s, 9216' % (sr(S_T0), sr(S_T0)))
        for lam in range(9):
            P.raw('s_add_u32 m0, %s, %d' % (sr(S_T0), lam*1024))
            P.raw('s_add_u32 s36, %s, %d' % (sr(S_T1), lam*128))
            P.raw('buffer_load_dwordx4 %s, %s, s36 offen lds' % (vr(VX), sr(S_X,4)))
            if bi < 2: work(W1, (n1 + 17)//18)
    P.raw('L_%s_nox:' % name)
    e('s_mul_i32 %s, %s, 144' % (sr(S_SO), sr(S_HG)))
    e('s_lshl_b32 %s, %s, 10' % (sr(S_WB), sr(S_W))); e('s_add_u32 %s, %s, %d' % (sr(S_WB), sr(S_WB), XR_END))
    n2 = len(W2)
    for ks in range(4):
        for t in range(4):
            e('s_add_u32 m0, %s, %d' % (sr(S_WB), ks*WSLOT + t*4096))
            if t == 0: e('s_add_u32 %s, %s, %d' % (sr(S_T0), sr(S_SO), ks*32*3456))
            else: e('s_nop 0')
            e('buffer_load_dwordx4 %s, %s, %s offen lds' % (vr(VW+t), sr(S_WQ,4), sr(S_T0)), tag='w%d' % ks)
            work(W2, (n2 + 15)//16)
    work(W2, 999)
    e('s_add_u32 %s, %s, %d' % (sr(S_SO), sr(S_SO), 4*32*3456))
    VP = 36
    if 'code' in pf or 'wq' in pf or 'wo' in pf or 'wg' in pf:
        e('s_lshr_b32 s60, s2, 3'); e('s_and_b32 s61, s2, 7')
        e('s_lshl_b32 s50, %s, 6' % sr(S_W)); e('v_add_u32 %s, s50, v0' % vr(VP))
    if 'code' in pf:
        P.raw('s_getpc_b64 s[52:53]'); P.raw('L_%s_pc:' % name)
        P.raw('s_sub_u32 s52, s52, L_%s_pc - %s' % (name, name)); P.raw('s_subb_u32 s53, s53, 0')
        P.raw('s_mov_b32 s54, L_text_end - %s' % name); e('s_mov_b32 s55, 0x%x' % SRD3)
        e('s_mul_i32 s50, s60, 14'); e('v_add_u32 %s, s50, %s' % (vr(VP+1), vr(VP))); e('v_lshlrev_b32 %s, 7, %s' % (vr(VP+1), vr(VP+1)))
        e('v_cmp_gt_u32 vcc, 14, %s' % vr(VP)); e('v_mov_b32 %s, 0x7fff0000' % vr(VP+2)); e('s_nop 0'); e('v_cndmask_b32 %s, %s, %s, vcc' % (vr(VP+1), vr(VP+2), vr(VP+1)))
        P.raw('buffer_load_dword %s, %s, s[52:55], 0 offen' % (vr(VP+2), vr(VP+1)))
    if 'wq' in pf:
        e('v_mul_u32_u24 %s, 4370, %s' % (vr(VP+1), vr(VP))); e('v_lshrrev_b32 %s, 16, %s' % (vr(VP+1), vr(VP+1)))
        e('v_mul_u32_u24 %s, 15, %s' % (vr(VP+3), vr(VP+1))); e('v_sub_u32 %s, %s, %s' % (vr(VP+3), vr(VP), vr(VP+3)))
        e('s_mul_i32 s50, s60, 14'); e('s_add_u32 s50, s50, 128'); e('v_add_u32 %s, s50, %s' % (vr(VP+1), vr(VP+1))); e('v_mul_u32_u24 %s, 3456, %s' % (vr(VP+1), vr(VP+1)))
        e('v_mul_u32_u24 %s, 52, %s' % (vr(T), vr(VP+3))); e('v_lshrrev_b32 %s, 8, %s' % (vr(T), vr(T)))
        e('v_mul_u32_u24 %s, 5, %s' % (vr(T+1), vr(T))); e('v_sub_u32 %s, %s, %s' % (vr(VP+3), vr(VP+3), vr(T+1)))
        e('v_mul_u32_u24 %s, 1152, %s' % (vr(T), vr(T))); e('v_add_u32 %s, %s, %s' % (vr(VP+1), vr(VP+1), vr(T)))
        e('v_lshl_add_u32 %s, %s, 7, %s' % (vr(VP+1), vr(VP+3), vr(VP+1)))
        e('v_cmp_gt_u32 vcc, 210, %s' % vr(VP)); e('v_mov_b32 %s, 0x7fff0000' % vr(T)); e('s_and_b32 s50, s61, 1'); e('s_lshl_b32 s50, s50, 9')
        e('v_cndmask_b32 %s, %s, %s, vcc' % (vr(VP+1), vr(T), vr(VP+1)))
        P.raw('buffer_load_dword %s, %s, %s, s50 offen' % (vr(VP+3), vr(VP+1), sr(S_WQ,4)))
    stamp('issued')
    if prefetch: prefetch(P)
    def reads(st, kp, ni):
        l = []
        for mt in range(5):
            rd = VB[kp] if mt < 4 else VBH[kp]
            l.append('ds_read_b128 %s, %s offset:%d' % (vr(BB[st]+4*mt, 4), vr(rd), mt*18432 if mt < 4 else 0))
        for i in range(ni):
            for u in range(2):
                l.append('ds_read_b64_tr_b16 %s, %s offset:%d' % (vr(AB[st]+4*i+2*u, 2), vr(VA+i), u*576))
        return l
    def ones_fix(st):
        for d in range(4): e('v_cndmask_b32 %s, %s, %s, %s' % (vr(BB[st]+d), vr(BB[st]+d), vr(VONE), sr(S_MASK, 2)))
    P.wait_vm_tag('w0'); e('s_barrier')
    stamp('w0')
    for i in range(4): e('v_mov_b32 %s, %s' % (vr(VA+i), vr(PA+i)))
    for t in reads(0, 0, 4): e(t)
    e('s_mov_b32 %s, 0' % sr(S_C)); e('s_mov_b32 %s, 9' % sr(S_CNT))
    e('s_waitcnt lgkmcnt(0)')
    ones_fix(0)
    e('s_cmp_eq_u32 %s, 3' % sr(S_W)); e('s_cbranch_scc1 L_%s_loop3' % name)
    spans = {}
    def loop(lab, stats_wave):
        P.raw('.p2align 6'); P.raw('L_%s_%s:' % (name, lab))
        a0 = len(P.ins)
        for kp in range(2):
            cur, nxt = kp, 1-kp
            ni = 2 if stats_wave else 4
            e('s_waitcnt vmcnt(8)')
            if 'nobar' not in pf: e('s_barrier')
            rd = reads(nxt, 1-kp, ni)
            SC = {0: 's_lshl_b32 %s, %s, 14' % (sr(S_T0), sr(S_C)), 1: 's_add_u32 %s, %s, %s' % (sr(S_WA), sr(S_WB), sr(S_T0)),
                  2: 's_add_u32 %s, %s, 1' % (sr(S_C), sr(S_C)), 3: 's_and_b32 %s, %s, 3' % (sr(S_C), sr(S_C)), 4: 's_lshl_b32 %s, %s, 14' % (sr(S_RA), sr(S_C)),
                  12: 's_waitcnt lgkmcnt(%d)' % min(15, (5 + 2*ni if ni == 4 else 5 + 2*ni) - 2 - (1 if ni == 4 else 0)),
                  13: 's_add_u32 m0, %s, 0' % sr(S_WA), 15: 's_add_u32 m0, %s, 4096' % sr(S_WA), 17: 's_add_u32 m0, %s, 8192' % sr(S_WA), 19: 's_add_u32 m0, %s, 12288' % sr(S_WA)}
            DS = {n: rd[n] for n in range(5)}
            for k in range(2*ni): DS[6+k] = rd[5+k]
            for t, n in enumerate((14, 16, 18)): DS[n] = 'buffer_load_dwordx4 %s, %s, %s offen lds' % (vr(VW+t), sr(S_WQ,4), sr(S_SO))
            VL = {}
            for i in range(ni): VL[5+i] = ['v_add_u32 %s, %s, %s' % (vr(VA+i), sr(S_RA), vr(PA+i))]
            VL[10] = ['v_add_u32 %s, 1024, %s' % (vr(VB[kp]), vr(VB[kp]))]; VL[11] = ['v_add_u32 %s, 1024, %s' % (vr(VBH[kp]), vr(VBH[kp]))]
            fix = ['v_cndmask_b32 %s, %s, %s, %s' % (vr(BB[nxt]+d), vr(BB[nxt]+d), vr(VONE), sr(S_MASK, 2)) for d in range(4)]
            VL[15] = fix[:2]; VL[17] = fix[2:]
            n = 0
            for i in range(4):
                for mt in range(5):
                    A = vr(AB[cur]+4*i, 4)
                    if stats_wave and i == 2: A = vr(VONE, 4)
                    if stats_wave and i == 3: A = vr(BB[cur]+4*mt, 4)
                    e('v_mfma_f32_16x16x32_bf16 %s, %s, %s, %s' % (vr(acc(i, mt), 4), A, vr(BB[cur]+4*mt, 4), vr(acc(i, mt), 4)))
                    if n == 12: P.wait_lg_regs(rset('v', BB[nxt], 4))
                    elif n in SC: e(SC[n])
                    if n in DS and not ('nodma' in pf and 'lds' in DS[n].split()[-1:]): e(DS[n])
                    for t in VL.get(n, []): e(t)
                    n += 1
            e('s_nop 0')
            if 'nodma' not in pf: e('buffer_load_dwordx4 %s, %s, %s offen lds' % (vr(VW+3), sr(S_WQ,4), sr(S_SO)))
            e('s_add_u32 %s, %s, %d' % (sr(S_SO), sr(S_SO), 32*3456))
            e('s_waitcnt lgkmcnt(0)')
        e('s_sub_u32 %s, %s, 1' % (sr(S_CNT), sr(S_CNT))); e('s_cmp_lg_u32 %s, 0' % sr(S_CNT)); e('s_cbranch_scc1 L_%s_%s' % (name, lab))
        spans[lab] = (a0, len(P.ins))
    loop('loop', False)
    e('s_branch L_%s_after' % name)
    b3 = len(P.ins)
    loop('loop3', True)
    STAT = LDS_BYTES - 1024*0
    e('v_and_b32 v1, 15, v0'); e('v_lshrrev_b32 %s, 4, v0' % vr(T)); e('v_lshrrev_b32 %s, 2, v1' % vr(T+1)); e('v_and_b32 %s, 3, v1' % vr(T+2))
    e('v_cmp_eq_u32 s[50:51], %s, %s' % (vr(T), vr(T+1)))
    for r in range(1, 4): e('v_cmp_eq_u32 s[%d:%d], %d, %s' % (50+2*r, 51+2*r, r, vr(T+2)))
    e('v_lshlrev_b32 v1, 3, v1'); e('v_add_u32 v1, %d, v1' % STAT)
    e('s_mov_b32 %s, 0x%08x' % (sr(S_T0), f2u(1.0/576)))
    for mt in range(5):
        g = acc(3, mt)
        for r in range(1, 4): e('v_cndmask_b32 %s, %s, %s, s[%d:%d]' % (vr(g), vr(g), vr(g+r), 50+2*r, 51+2*r))
    for mt in range(5): e('v_mul_f32 %s, %s, %s' % (vr(acc(2, mt)), sr(S_T0), vr(acc(2, mt))))
    for mt in range(5): e('v_mul_f32 %s, %s, %s' % (vr(acc(3, mt)), sr(S_T0), vr(acc(3, mt))))
    e('s_cmp_lg_u32 %s, 0' % sr(S_HG)); e('s_cbranch_scc1 L_%s_nomx' % name)
    e('v_and_b32 %s, 15, v0' % vr(T+3)); e('v_lshlrev_b32 %s, 2, %s' % (vr(T+3), vr(T+3)))
    e('s_lshl_b32 %s, %s, 8' % (sr(S_T1), sr(S_MI))); e('s_add_u32 %s, %s, 0x%x' % (sr(S_T1), sr(S_T1), WS_MX))
    e('s_mov_b64 exec, s[50:51]')
    for mt in range(1, 5): P.raw('buffer_store_dword %s, %s, %s, %s offen offset:%d' % (vr(acc(2, mt)), vr(T+3), sr(S_WS,4), sr(S_T1), 64*(mt-1)))
    e('s_mov_b64 exec, -1')
    P.raw('L_%s_nomx:' % name)
    for mt in range(5): e('v_fma_f32 %s, -%s, %s, %s' % (vr(acc(3, mt)), vr(acc(2, mt)), vr(acc(2, mt)), vr(acc(3, mt))))
    for mt in range(5): e('v_max_f32 %s, 0, %s' % (vr(acc(3, mt)), vr(acc(3, mt))))
    for mt in range(5): e('v_add_f32 %s, 0x%08x, %s' % (vr(acc(3, mt)), f2u(1e-5), vr(acc(3, mt))))
    for mt in range(5): e('v_rsq_f32 %s, %s' % (vr(acc(3, mt)+1), vr(acc(3, mt))))
    e('s_nop 0')
    for mt in range(5): e('v_mul_f32 %s, -%s, %s' % (vr(acc(3, mt)), vr(acc(2, mt)), vr(acc(3, mt)+1)))
    e('s_mov_b64 exec, s[50:51]')
    for mt in range(5): e('ds_write_b64 v1, %s offset:%d' % (vr(acc(3, mt), 2), 128*mt))
    e('s_mov_b64 exec, -1')
    e3 = len(P.ins)
    P.raw('L_%s_after:' % name)
    after = len(P.ins)
    stamp('loop')
    if 'wo' in pf or 'wg' in pf:
        e('s_mov_b32 s52, s96'); e('s_mov_b32 s53, s97'); e('s_mov_b32 s56, s98'); e('s_mov_b32 s57, s99')
        e('v_mul_u32_u24 %s, 7282, %s' % (vr(VP+1), vr(VP))); e('v_lshrrev_b32 %s, 16, %s' % (vr(VP+1), vr(VP+1)))
        e('v_mul_u32_u24 %s, 9, %s' % (vr(VP+2), vr(VP+1))); e('v_sub_u32 %s, %s, %s' % (vr(VP+2), vr(VP), vr(VP+2)))
        e('s_mul_i32 s50, s60, 18'); e('v_add_u32 %s, s50, %s' % (vr(VP+1), vr(VP+1))); e('v_mul_u32_u24 %s, 9216, %s' % (vr(VP+1), vr(VP+1)))
        e('v_lshl_add_u32 %s, %s, 7, %s' % (vr(VP+1), vr(VP+2), vr(VP+1)))
        e('s_mul_i32 s50, s60, 162'); e('v_add_u32 %s, s50, %s' % (vr(VP+2), vr(VP))); e('v_lshlrev_b32 %s, 7, %s' % (vr(VP+2), vr(VP+2)))
        e('v_cmp_gt_u32 vcc, 162, %s' % vr(VP)); e('v_mov_b32 %s, 0x7fff0000' % vr(VP+3)); e('s_mul_i32 s51, s61, 1152')
        e('v_cndmask_b32 %s, %s, %s, vcc' % (vr(VP+1), vr(VP+3), vr(VP+1))); e('v_cndmask_b32 %s, %s, %s, vcc' % (vr(VP+2), vr(VP+3), vr(VP+2)))
        e('s_mov_b32 s54, 0x%x' % (D_*D_*2)); e('s_mov_b32 s55, 0x%x' % SRD3)
        e('s_mov_b32 s58, 0x%x' % (D_*F_*2)); e('s_mov_b32 s59, 0x%x' % SRD3)
        if 'wo' in pf: P.raw('buffer_load_dword v14, %s, s[52:55], 0 offen' % vr(VP+2))
        if 'wg' in pf: P.raw('buffer_load_dword v15, %s, s[56:59], s51 offen' % vr(VP+1))
    WB = 100
    e('s_mov_b32 s52, s96'); e('s_mov_b32 s53, s97')
    e('s_lshl_b32 s50, %s, 8' % sr(S_W)); e('s_add_u32 s62, s50, s2')
    e('v_lshlrev_b32 %s, 4, v0' % vr(WB+8)); e('v_add_u32 %s, 1024, %s' % (vr(WB+9), vr(WB+8)))
    e('v_cmp_gt_u32 vcc, 8, v0'); e('v_mov_b32 %s, 0x7fff0000' % vr(WB)); e('s_mul_i32 s51, s62, 1152')
    e('v_cndmask_b32 %s, %s, %s, vcc' % (vr(WB+9), vr(WB), vr(WB+9)))
    e('s_mov_b32 s54, 0x%x' % (D_*D_*2)); e('s_mov_b32 s55, 0x%x' % SRD3)
    e('buffer_load_dwordx4 %s, %s, s[52:55], s51 offen' % (vr(WB, 4), vr(WB+8)), tag='wb')
    e('buffer_load_dwordx4 %s, %s, s[52:55], s51 offen' % (vr(WB+4, 4), vr(WB+9)), tag='wb')
    CS = BB[0]
    e('s_nop 4')
    for i in range(4):
        for r in range(4):
            e('v_mov_b32_dpp %s, %s row_newbcast:0 row_mask:0xf bank_mask:0xf' % (vr(CS+4*i+r), vr(acc(i, 0)+r)))
    e('s_waitcnt lgkmcnt(0)'); e('s_barrier')
    ST = BB[1]
    e('v_and_b32 v1, 15, v0'); e('v_lshlrev_b32 v1, 3, v1'); e('v_add_u32 v1, %d, v1' % STAT)
    for mt in range(5): e('ds_read_b64 %s, v1 offset:%d' % (vr(ST+2*mt, 2), 128*mt))
    e('s_waitcnt lgkmcnt(0)')
    for mt in range(5):
        for i in range(4):
            a = acc(i, mt); t0 = T + 4*(i % 2)
            for r in range(4): e('v_mul_f32 %s, %s, %s' % (vr(t0+r), vr(ST+2*mt), vr(CS+4*i+r)))
            for r in range(4): e('v_fma_f32 %s, %s, %s, %s' % (vr(a+r), vr(a+r), vr(ST+2*mt+1), vr(t0+r)))
            e('v_cvt_pk_bf16_f32 %s, %s, %s' % (vr(a), vr(a), vr(a+1))); e('v_cvt_pk_bf16_f32 %s, %s, %s' % (vr(a+1), vr(a+2), vr(a+3)))
            for d2 in range(2): e('ds_write_b32 %s, %s offset:%d' % (vr(VWA+2*i+d2), vr(a+d2), 640*mt))
    e('s_waitcnt lgkmcnt(0)'); e('s_barrier')
    stamp('fix')
    AD = 2
    e('v_add_u32 v1, 2, v0'); e('v_mul_u32_u24 %s, 40, v1' % vr(AD))
    e('s_mul_i32 %s, %s, 3200' % (sr(S_T0), sr(S_W))); e('v_add_u32 %s, %s, %s' % (vr(AD), sr(S_T0), vr(AD)))
    QR = 40; KR = 112; L = 50
    def rdvec(dst, kind, w):
        for t in range(5): e('ds_read_b64 %s, %s offset:%d' % (vr(dst+2*t, 2), vr(AD), kind*12800 + (14 - 2*w)*40 + 8*t))
    def kreg(w): return KR + 10*w
    rdvec(QR, 0, 0); rdvec(kreg(0), 1, 0); rdvec(kreg(1), 1, 1)
    for w in range(0, 8, 2):
        P.wait_lg_regs(rset('v', QR, 10) + rset('v', kreg(w), 10) + rset('v', kreg(w+1), 10))
        if w + 2 < 8: rdvec(kreg(w+2), 1, w+2); rdvec(kreg(w+3), 1, w+3)
        for d in range(9):
            for ww in (w, w+1):
                e('v_dot2_f32_bf16 %s, %s, %s, %s' % (vr(L+ww), vr(QR+d), vr(kreg(ww)+d), '0' if d == 0 else vr(L+ww)))
    rdvec(kreg(0), 2, 0); rdvec(kreg(1), 2, 1); rdvec(kreg(2), 2, 2)
    e('s_lshl_b32 %s, %s, 6' % (sr(S_T0), sr(S_MI))); e('v_add_u32 %s, %s, v0' % (vr(T), sr(S_T0))); e('v_mov_b32 %s, 0x%08x' % (vr(T+1), f2u(-1e9)))
    for w in range(1, 8):
        e('v_cmp_gt_u32 vcc, %d, %s' % (2*w, vr(T))); e('s_nop 1'); e('v_cndmask_b32 %s, %s, %s, vcc' % (vr(L+w), vr(L+w), vr(T+1)))
    e('v_max3_f32 %s, %s, %s, %s' % (vr(T+2), vr(L), vr(L+1), vr(L+2))); e('v_max3_f32 %s, %s, %s, %s' % (vr(T+3), vr(L+3), vr(L+4), vr(L+5)))
    e('v_max3_f32 %s, %s, %s, %s' % (vr(T+2), vr(T+2), vr(L+6), vr(L+7))); e('v_max_f32 %s, %s, %s' % (vr(T+2), vr(T+2), vr(T+3)))
    CSC = 18**-0.5 * 1.4426950408889634
    e('s_mov_b32 %s, 0x%08x' % (sr(S_T1), f2u(CSC)))
    e('v_mul_f32 %s, %s, %s' % (vr(T+2), sr(S_T1), vr(T+2)))
    for w in range(8): e('v_fma_f32 %s, %s, %s, -%s' % (vr(L+w), vr(L+w), sr(S_T1), vr(T+2)))
    for w in range(8): e('v_exp_f32 %s, %s' % (vr(L+w), vr(L+w)))
    P.wait_lg_regs(rset('v', kreg(2), 10))
    rdvec(kreg(3), 2, 3); rdvec(kreg(4), 2, 4); rdvec(kreg(5), 2, 5)
    e('v_add_f32 %s, %s, %s' % (vr(T+2), vr(L), vr(L+1))); e('v_add_f32 %s, %s, %s' % (vr(T+3), vr(L+2), vr(L+3)))
    e('v_add_f32 %s, %s, %s' % (vr(T+4), vr(L+4), vr(L+5))); e('v_add_f32 %s, %s, %s' % (vr(T+5), vr(L+6), vr(L+7)))
    e('v_add_f32 %s, %s, %s' % (vr(T+2), vr(T+2), vr(T+3))); e('v_add_f32 %s, %s, %s' % (vr(T+4), vr(T+4), vr(T+5))); e('v_add_f32 %s, %s, %s' % (vr(T+2), vr(T+2), vr(T+4)))
    e('v_rcp_f32 %s, %s' % (vr(T+2), vr(T+2))); e('s_nop 0')
    for w in range(8): e('v_mul_f32 %s, %s, %s' % (vr(L+w), vr(L+w), vr(T+2)))
    PL, PH = 60, 68
    for w in range(8):
        e('v_cvt_pk_bf16_f32 %s, %s, 0' % (vr(PL+w), vr(L+w))); e('v_cvt_pk_bf16_f32 %s, 0, %s' % (vr(PH+w), vr(L+w)))
    OL, OH = 80, 90
    def pv(w):
        for d in range(9):
            e('v_dot2_f32_bf16 %s, %s, %s, %s' % (vr(OL+d), vr(kreg(w)+d), vr(PL+w), '0' if w == 0 else vr(OL+d)))
            e('v_dot2_f32_bf16 %s, %s, %s, %s' % (vr(OH+d), vr(kreg(w)+d), vr(PH+w), '0' if w == 0 else vr(OH+d)))
    pv(0); pv(1); pv(2)
    P.wait_lg_regs(rset('v', kreg(5), 10))
    rdvec(kreg(6), 2, 6); rdvec(kreg(7), 2, 7)
    pv(3); pv(4); pv(5)
    P.wait_lg_regs(rset('v', kreg(7), 10))
    pv(6); pv(7)
    e('v_lshrrev_b32 %s, 4, v0' % vr(T)); e('s_lshl_b32 %s, %s, 2' % (sr(S_T0), sr(S_MI))); e('v_add_u32 %s, %s, %s' % (vr(T), sr(S_T0), vr(T)))
    e('v_mul_u32_u24 %s, 18432, %s' % (vr(T), vr(T))); e('v_and_b32 %s, 15, v0' % vr(T+1)); e('v_lshl_add_u32 %s, %s, 4, %s' % (vr(T), vr(T+1), vr(T)))
    for d in range(9): e('v_cvt_pk_bf16_f32 %s, %s, %s' % (vr(QR+d), vr(OL+d), vr(OH+d)))
    for d in range(9): e('buffer_store_dword %s, %s, %s, %s offen' % (vr(QR+d), vr(T), sr(S_WS,4), sr(S_OD+d)))
    P.wait_vm_tag('wb')
    e('v_mov_b32 %s, 0x3f803f80' % vr(WB+8))
    for d in range(8): e('v_dot2_f32_bf16 %s, %s, %s, %s' % (vr(WB+9), vr(WB+d), vr(WB+8), '0' if d == 0 else vr(WB+9)))
    e('s_nop 2')
    for dpp in ('quad_perm:[1,0,3,2]', 'quad_perm:[2,3,0,1]', 'row_half_mirror', 'row_mirror'):
        e('v_add_f32_dpp %s, %s, %s %s row_mask:0xf bank_mask:0xf' % (vr(WB+9), vr(WB+9), vr(WB+9), dpp)); e('s_nop 1')
    for swap in ('v_permlane16_swap_b32', 'v_permlane32_swap_b32'):
        e('v_mov_b32 %s, %s' % (vr(WB+10), vr(WB+9))); e('s_nop 1')
        e('%s %s, %s' % (swap, vr(WB+9), vr(WB+10))); e('s_nop 1')
        e('v_add_f32 %s, %s, %s' % (vr(WB+9), vr(WB+9), vr(WB+10)))
    e('v_mul_f32 %s, 0x%08x, %s' % (vr(WB+9), f2u(1.0/576), vr(WB+9)))
    e('v_cvt_pk_bf16_f32 %s, %s, 0' % (vr(WB), vr(WB+9)))
    e('v_lshlrev_b32 %s, 16, %s' % (vr(WB+1), vr(WB))); e('v_sub_f32 %s, %s, %s' % (vr(WB+1), vr(WB+9), vr(WB+1)))
    e('v_cvt_pk_bf16_f32 %s, %s, 0' % (vr(WB+1), vr(WB+1)))
    e('s_lshr_b32 s50, s62, 5'); e('s_lshl_b32 s50, s50, 6')
    e('s_bfe_u32 s51, s62, 0x20002'); e('s_lshl_b32 s51, s51, 4'); e('s_add_u32 s50, s50, s51')
    e('s_bfe_u32 s51, s62, 0x10004'); e('s_lshl_b32 s51, s51, 3'); e('s_add_u32 s50, s50, s51')
    e('s_and_b32 s51, s62, 3'); e('s_lshl_b32 s51, s51, 1'); e('s_add_u32 s50, s50, s51'); e('s_add_u32 s50, s50, 0x%x' % WS_WB)
    e('s_cmp_ge_u32 s62, 576'); e('s_cbranch_scc1 L_%s_nowb' % name)
    e('s_mov_b64 exec, 1')
    P.raw('buffer_store_short %s, off, %s, s50' % (vr(WB), sr(S_WS,4)))
    P.raw('buffer_store_short %s, off, %s, s50 offset:%d' % (vr(WB+1), sr(S_WS,4), 18*64))
    P.raw('L_%s_nowb:' % name)
    stamp('attn'); stamp.finish()
    P.raw('L_%s_end:' % name)
    e('s_endpgm')
    ins = P.ins
    a0, a1 = spans['loop']; c0, c1 = spans['loop3']
    path = ins[:a0] + ins[a0:a1]*3 + ins[after:]
    path3 = ins[:a0] + ins[c0:c1]*3 + ins[c1:]
    return P, (path, path3), dict(vgpr=200, accum=200, sgpr=102 if dbg else 100, grid=256, block=256, lds=LDS_BYTES + 1024, stamps=stamp.names)

if __name__ == '__main__':
    P, paths, o = build()
    for p in paths: check(p, 'k1')
    print(len(P.ins), o)
```

```python
from core import *
from common import *
from sched import *
from stamps import Stamper

def build(name='k2_kernel', prefetch=None, dbg=False, pf=None, code_pf=False):
    P = Prog(); e = P.e
    NWG = 256 if pf == 'help' else 216
    V_L16, V_OG, V_RD, V_RD2, V_XO, V_T = 1, 2, 5, 6, 7, 8
    V_B, V_ACC, V_X, V_U = 16, 160, 192, 208
    A_W, NF, LAR = 0, 12, 12
    A_WB = 48
    V_MU, V_MX, V_WBO = 240, 248, 250
    S_WS, S_WO, S_X = 8, 12, 16
    S_W, S_MG, S_NG, S_MT, S_T0, S_T1, S_OO, S_WOFF = 20, 21, 22, 23, 24, 25, 26, 27
    e('s_cmp_ge_u32 s2, %d' % NWG); e('s_cbranch_scc1 L_%s_end' % name)
    stamp = Stamper(P, dbg, S_W); stamp('start')
    e('s_load_dwordx2 s[4:5], s[0:1], %d' % KA_WS); e('s_load_dwordx2 s[6:7], s[0:1], %d' % KA_WO); e('s_load_dwordx2 s[28:29], s[0:1], %d' % KA_X)
    e('v_mov_b32 %s, v0' % vr(V_T+7))
    e('v_lshrrev_b32 %s, 6, v0' % vr(V_T)); e('v_and_b32 v0, 63, v0')
    e('v_readfirstlane_b32 %s, %s' % (sr(S_W), vr(V_T)))
    e('v_lshlrev_b32 %s, 4, v0' % vr(V_L16))
    e('s_lshr_b32 %s, s2, 3' % sr(S_T0)); e('s_mul_i32 %s, %s, 57' % (sr(S_T1), sr(S_T0))); e('s_lshr_b32 %s, %s, 9' % (sr(S_T1), sr(S_T1)))
    e('s_mul_i32 %s, %s, 9' % (sr(S_NG), sr(S_T1))); e('s_sub_u32 %s, %s, %s' % (sr(S_NG), sr(S_T0), sr(S_NG)))
    e('s_lshl_b32 %s, %s, 3' % (sr(S_MG), sr(S_T1))); e('s_and_b32 %s, s2, 7' % sr(S_T0)); e('s_add_u32 %s, %s, %s' % (sr(S_MG), sr(S_MG), sr(S_T0)))
    skip = (0, 0)
    if pf == 'help':
        e('s_cmp_lt_u32 s2, 216'); e('s_cbranch_scc1 L_%s_tile' % name)
        help0 = len(P.ins)
        e('s_load_dwordx2 s[44:45], s[0:1], %d' % KA_WU); e('s_load_dwordx2 s[46:47], s[0:1], %d' % KA_WD)
        e('s_lshr_b32 s50, s2, 3'); e('s_sub_u32 s50, s50, 27'); e('s_mul_i32 s50, s50, 192'); e('v_add_u32 %s, s50, %s' % (vr(V_U), vr(V_T+7)))
        e('v_mul_u32_u24 %s, 7282, %s' % (vr(V_U+1), vr(V_U))); e('v_lshrrev_b32 %s, 16, %s' % (vr(V_U+1), vr(V_U+1)))
        e('v_mul_u32_u24 %s, 9, %s' % (vr(V_U+2), vr(V_U+1))); e('v_sub_u32 %s, %s, %s' % (vr(V_U+2), vr(V_U), vr(V_U+2)))
        e('v_mul_u32_u24 %s, 9216, %s' % (vr(V_U+1), vr(V_U+1))); e('v_lshl_add_u32 %s, %s, 7, %s' % (vr(V_U+1), vr(V_U+2), vr(V_U+1)))
        e('v_cmp_gt_u32 vcc, 954, %s' % vr(V_U)); e('v_mov_b32 %s, 0x7fff0000' % vr(V_U+3)); e('v_lshlrev_b32 %s, 7, %s' % (vr(V_U), vr(V_U)))
        e('v_cndmask_b32 %s, %s, %s, vcc' % (vr(V_U+1), vr(V_U+3), vr(V_U+1)))
        e('s_and_b32 s51, s2, 7'); e('s_mul_i32 s52, s51, 1152'); e('s_mul_i32 s53, s51, %d' % (576*1152))
        e('s_waitcnt lgkmcnt(0)')
        for k in range(2):
            b = 56 + 4*k
            e('s_mov_b32 s%d, s%d' % (b, 44+2*k)); e('s_mov_b32 s%d, s%d' % (b+1, 45+2*k)); e('s_mov_b32 s%d, 0x%x' % (b+2, D_*F_*2)); e('s_mov_b32 s%d, 0x%x' % (b+3, SRD3))
        if code_pf:
            P.raw('s_getpc_b64 s[64:65]'); P.raw('L_%s_pc:' % name)
            P.raw('s_add_u32 s64, s64, k3_kernel - L_%s_pc' % name); P.raw('s_addc_u32 s65, s65, 0')
            P.raw('s_mov_b32 s66, L_text_end - k3_kernel'); e('s_mov_b32 s67, 0x%x' % SRD3)
            P.raw('buffer_load_dword %s, %s, s[64:67], 0 offen' % (vr(V_B+16), vr(V_U)))
        for k in range(6):
            P.raw('buffer_load_dword %s, %s, s[56:59], s52 offen' % (vr(V_B+k), vr(V_U+1)))
            P.raw('buffer_load_dword %s, %s, s[60:63], s53 offen' % (vr(V_B+8+k), vr(V_U)))
            e('s_add_u32 s52, s52, %d' % (106*9216)); e('s_add_u32 s53, s53, %d' % (960*128))
        e('s_branch L_%s_end' % name)
        skip = (help0, len(P.ins))
        P.raw('L_%s_tile:' % name)
    e('s_cmp_ge_u32 %s, 22' % sr(S_MG)); e('s_cbranch_scc1 L_%s_end' % name)
    e('s_mul_i32 %s, %s, 6' % (sr(S_MT), sr(S_MG))); e('s_lshl_b32 %s, %s, 1' % (sr(S_T0), sr(S_W))); e('s_add_u32 %s, %s, %s' % (sr(S_MT), sr(S_MT), sr(S_T0)))
    e('s_mul_i32 %s, %s, %d' % (sr(S_OO), sr(S_MT), 18*1024))
    T = V_T
    e('v_bfe_u32 %s, v0, 1, 3' % vr(T)); e('v_mul_u32_u24 %s, 1152, %s' % (vr(T), vr(T)))
    e('v_lshrrev_b32 %s, 4, v0' % vr(T+1)); e('v_lshl_add_u32 %s, %s, 5, %s' % (vr(T), vr(T+1), vr(T)))
    e('v_and_b32 %s, 1, v0' % vr(T+2)); e('v_lshl_add_u32 %s, %s, 4, %s' % (vr(V_OG), vr(T+2), vr(T)))
    e('v_add_u32 %s, %d, %s' % (vr(V_OG+1), 8*1152 - 1024, vr(V_OG))); e('v_add_u32 %s, %d, %s' % (vr(V_OG+2), 2*(8*1152 - 1024), vr(V_OG)))
    e('s_mul_i32 %s, %s, %d' % (sr(S_WOFF), sr(S_W), 64*1152)); e('s_lshl_b32 %s, %s, 7' % (sr(S_T0), sr(S_NG))); e('s_add_u32 %s, %s, %s' % (sr(S_WOFF), sr(S_WOFF), sr(S_T0)))
    e('s_lshl_b32 s30, %s, 13' % sr(S_W))
    e('s_waitcnt lgkmcnt(0)')
    for srd, lo, hi, size in ((S_WS, 4, 5, WS_END), (S_WO, 6, 7, D_*D_*2), (S_X, 28, 29, S_*D_*2)):
        e('s_mov_b32 %s, s%d' % (sr(srd), lo)); e('s_mov_b32 %s, s%d' % (sr(srd+1), hi))
        e('s_mov_b32 %s, 0x%x' % (sr(srd+2), size)); e('s_mov_b32 %s, 0x%x' % (sr(srd+3), SRD3))
    def bfrag(ks, mm): return V_B + 8*ks + 4*mm
    stamp('setup')
    def phase_items(j):
        it = []
        for g, n in ((0, 3), (3, 3), (6, 2)):
            it.append(('S', 's_add_u32 %s, %s, %d' % (sr(S_T0), sr(S_WOFF), (192*j + 8*g)*1152), None))
            it.append(('S', 's_add_u32 m0, s30, %d' % ((24*j + g)*1024), None))
            for q in range(n):
                it.append(('D', 'buffer_load_dwordx4 %s, %s, %s offen offset:%d lds' % (vr(V_OG+q), sr(S_WO,4), sr(S_T0), 1024*q), 'ph%d' % j))
        for ks in range(6*j, 6*j+6):
            for mm in range(2):
                it.append(('S', 's_add_u32 %s, %s, %d' % (sr(S_T1), sr(S_OO), (18*mm + ks)*1024), None))
                it.append(('D', 'buffer_load_dwordx4 %s, %s, %s, %s offen' % (vr(bfrag(ks, mm), 4), vr(V_L16), sr(S_WS,4), sr(S_T1)), 'ph%d' % j))
        return it
    WB_LDS = 73728
    e('v_and_b32 %s, 1, v0' % vr(V_WBO)); e('v_mul_u32_u24 %s, %d, %s' % (vr(V_WBO), 18*64, vr(V_WBO)))
    e('v_lshrrev_b32 %s, 4, v0' % vr(V_T)); e('v_lshl_add_u32 %s, %s, 4, %s' % (vr(V_WBO), vr(V_T), vr(V_WBO))); e('v_add_u32 %s, %d, %s' % (vr(V_WBO), WB_LDS, vr(V_WBO)))
    e('s_lshl_b32 s37, %s, 10' % sr(S_W)); e('s_add_u32 s38, s37, %d' % WB_LDS); e('s_add_u32 s37, s37, 0x%x' % WS_WB)
    def wb_items(j):
        if j: return []
        return [('S', 's_mov_b32 m0, s38', None), ('D', 'buffer_load_dwordx4 %s, %s, s37 offen lds' % (vr(V_L16), sr(S_WS,4)), 'ph0')]
    for j in range(2):
        for kind, text, tag in phase_items(j) + wb_items(j):
            e(text, tag=tag)
            if ' m0,' in text: e('s_nop 0')
    e('s_cmp_ge_u32 s2, 8'); e('s_cbranch_scc1 L_%s_noflag' % name)
    e('v_cmp_gt_u32 vcc, 128, %s' % vr(V_T+7)); e('s_lshl_b32 %s, s2, 9' % sr(S_T0)); e('s_add_u32 %s, %s, 0x%x' % (sr(S_T0), sr(S_T0), WS_FLAG))
    e('v_lshlrev_b32 %s, 2, %s' % (vr(V_T+6), vr(V_T+7))); e('v_mov_b32 %s, 0' % vr(V_T+5))
    e('s_and_saveexec_b64 s[34:35], vcc'); e('s_cbranch_execz L_%s_noflag2' % name)
    P.raw('buffer_store_dword %s, %s, %s, %s offen' % (vr(V_T+5), vr(V_T+6), sr(S_WS,4), sr(S_T0)))
    P.raw('L_%s_noflag2:' % name)
    e('s_mov_b64 exec, s[34:35]')
    P.raw('L_%s_noflag:' % name)
    stamp('issued')
    e('v_lshrrev_b32 %s, 4, v0' % vr(T+1))
    e('v_bfe_u32 %s, v0, 2, 2' % vr(T)); e('v_lshlrev_b32 %s, 5, %s' % (vr(T), vr(T)))
    e('v_and_b32 %s, 3, v0' % vr(T+2)); e('v_lshl_add_u32 %s, %s, 3, %s' % (vr(T), vr(T+2), vr(T)))
    e('v_and_b32 %s, 1, %s' % (vr(T+2), vr(T+1))); e('v_lshl_add_u32 %s, %s, 7, %s' % (vr(T), vr(T+2), vr(T)))
    e('v_lshrrev_b32 %s, 1, %s' % (vr(T+2), vr(T+1))); e('v_lshl_add_u32 %s, %s, 10, %s' % (vr(V_RD), vr(T+2), vr(T)))
    e('v_add_u32 %s, 36864, %s' % (vr(V_RD2), vr(V_RD)))
    V_MXO = 251
    e('v_and_b32 %s, 15, v0' % vr(V_MXO)); e('v_lshlrev_b32 %s, 2, %s' % (vr(V_MXO), vr(V_MXO)))
    e('v_and_b32 %s, 15, v0' % vr(T)); e('v_mul_u32_u24 %s, 1152, %s' % (vr(T), vr(T))); e('v_lshl_add_u32 %s, %s, 3, %s' % (vr(V_XO), vr(T+1), vr(T)))
    e('s_mul_i32 s31, %s, %d' % (sr(S_MT), 16*1152)); e('s_lshl_b32 %s, %s, 7' % (sr(S_T0), sr(S_NG))); e('s_add_u32 s31, s31, %s' % sr(S_T0))
    e('s_mov_b32 s32, 0x3f80'); e('s_mov_b32 s33, 0x3f800000')
    if prefetch: prefetch(P, V_U, V_T)
    P.wait_vm_tag('ph0'); i = e('s_barrier'); i.meta = dict(needs='ph0')
    stamp('ph0')
    for ks in range(18):
        e('ds_read_b128 %s, %s offset:%d' % (ar(A_WB + 4*ks, 4), vr(V_WBO), 64*ks))
        if ks == 8: e('s_waitcnt lgkmcnt(0)')
    e('s_waitcnt lgkmcnt(0)')
    S = Stream()
    def acc(nt, mm): return vr(V_ACC + 8*nt + 4*mm, 4)
    for j in range(3):
        fr = []; mf = []
        for mm in range(2):
            for t in range(6):
                ks = 6*j + t
                mf.append(MF(vr(V_MU + 4*mm, 4), None, vr(bfrag(ks, mm), 4), '0' if ks == 0 else vr(V_MU + 4*mm, 4), None, A=ar(A_WB + 4*ks, 4)))
        for nt in range(4):
            for g in range(2):
                f0 = len(fr)
                for t in range(3):
                    ks = 6*j + 3*g + t; kl = ks % 9
                    fr.append(Frag(V_RD if ks < 9 else V_RD2, (4*kl)*1024 + nt*256, (4*kl+2)*1024 + nt*256))
                for mm in range(2):
                    for t in range(3):
                        ks = 6*j + 3*g + t
                        mf.append(MF(acc(nt, mm), f0+t, vr(bfrag(ks, mm), 4), '0' if ks == 0 else acc(nt, mm), [f0, f0+1, f0+2] if (mm == 0 and t == 0) else None))
        S.add(fr, mf)
    fx = Fixed()
    ch = []; g = 0
    for kind, text, tag in phase_items(2) + wb_items(2):
        ch.append((g, kind, text, tag)); g += 1 if kind == 'S' else 1
    ch.append((58, 'S', 's_lshl_b32 s38, %s, 6' % sr(S_MT), None)); ch.append((58, 'S', 's_add_u32 s38, s38, 0x%x' % WS_MX, None))
    for mm in range(2):
        ch.append((60, 'D', 'buffer_load_dword %s, %s, %s, s38 offen offset:%d' % (vr(V_MX+mm), vr(V_MXO), sr(S_WS,4), 64*mm), 'x'))
    for mm in range(2):
        ch.append((60, 'S', 's_add_u32 s36, s31, %d' % (16*1152*mm), None))
        for nt in range(4):
            ch.append((60, 'D', 'buffer_load_dwordx2 %s, %s, %s, s36 offen offset:%d' % (vr(V_X + 8*mm + 2*nt, 2), vr(V_XO), sr(S_X,4), 32*nt), 'x'))
    fx.chain(ch)
    for j in (1, 2):
        fx.put(60*j - LAR - 2, 'L', '@waitvm', 'ph%d' % j); fx.put(60*j - LAR - 2, 'B', 's_barrier', 'ph%d' % j)
    emit_stream(P, S, [], fx, [], A_W, NF, LAR, first_reads=True)
    stamp('gemm')
    e('s_cmp_ge_u32 %s, 128' % sr(S_MT)); e('s_cbranch_scc1 L_%s_end' % name)
    P.wait_vm_tag('x')
    e('s_nop 4')
    for mm in range(2):
        for nt in range(4):
            for r in range(4):
                a = V_ACC + 8*nt + 4*mm + r
                e('v_dot2_f32_bf16 %s, %s, s%d, %s' % (vr(a), vr(V_X + 8*mm + 2*nt + r//2), 32 + (r % 2), vr(a)))
    for mm in range(2):
        e('v_add_f32 %s, %s, %s' % (vr(V_MU+4*mm), vr(V_MU+4*mm), vr(V_MU+4*mm+1)))
    for mm in range(2):
        e('v_add_f32 %s, %s, %s' % (vr(V_MU+4*mm), vr(V_MU+4*mm), vr(V_MX+mm)))
    U = V_U
    H = V_U + 8
    def frag_store(mm, ws_off):
        e('s_add_u32 %s, %s, %d' % (sr(S_T0), sr(S_MT), mm)); e('s_mul_i32 %s, %s, 18' % (sr(S_T0), sr(S_T0)))
        e('s_lshl_b32 %s, %s, 1' % (sr(S_T1), sr(S_NG))); e('s_add_u32 %s, %s, %s' % (sr(S_T0), sr(S_T0), sr(S_T1)))
        e('s_lshl_b32 %s, %s, 10' % (sr(S_T0), sr(S_T0))); e('s_add_u32 %s, %s, 0x%x' % (sr(S_T0), sr(S_T0), ws_off))
        for p in range(2):
            hb = H + 8*((mm + (ws_off == WS_HC)) % 2) + 4*p
            for k in range(2):
                a = V_ACC + 8*(2*p+k) + 4*mm
                e('v_cvt_pk_bf16_f32 %s, %s, %s' % (vr(hb+2*k), vr(a), vr(a+1))); e('v_cvt_pk_bf16_f32 %s, %s, %s' % (vr(hb+2*k+1), vr(a+2), vr(a+3)))
            e('buffer_store_dwordx4 %s, %s, %s, %s offen offset:%d sc1' % (vr(hb,4), vr(V_L16), sr(S_WS,4), sr(S_T0), 1024*p))
    for mm in range(2):
        for nt in range(4):
            for r in range(4):
                a = vr(V_ACC + 8*nt + 4*mm + r)
                e('v_sub_f32 %s, %s, %s' % (vr(V_B + 16*mm + 4*nt + r), a, vr(V_MU+4*mm)))
    for mm in range(2):
        e('s_add_u32 %s, %s, %d' % (sr(S_T0), sr(S_MT), mm)); e('s_mul_i32 %s, %s, 18' % (sr(S_T0), sr(S_T0)))
        e('s_lshl_b32 %s, %s, 1' % (sr(S_T1), sr(S_NG))); e('s_add_u32 %s, %s, %s' % (sr(S_T0), sr(S_T0), sr(S_T1)))
        e('s_lshl_b32 %s, %s, 10' % (sr(S_T0), sr(S_T0))); e('s_add_u32 s39, %s, 0x%x' % (sr(S_T0), WS_HC))
        for p in range(2):
            hb = V_B + 32 + 8*mm + 4*p
            for k in range(2):
                a = V_B + 16*mm + 4*(2*p+k)
                e('v_cvt_pk_bf16_f32 %s, %s, %s' % (vr(hb+2*k), vr(a), vr(a+1))); e('v_cvt_pk_bf16_f32 %s, %s, %s' % (vr(hb+2*k+1), vr(a+2), vr(a+3)))
            e('buffer_store_dwordx4 %s, %s, %s, s39 offen offset:%d sc1' % (vr(hb,4), vr(V_L16), sr(S_WS,4), 1024*p))
    for mm in range(2):
        first = True
        for nt in range(4):
            for r in range(4):
                a = vr(V_B + 16*mm + 4*nt + r)
                if first: e('v_mul_f32 %s, %s, %s' % (vr(U+2*mm+1), a, a)); first = False
                else: e('v_fma_f32 %s, %s, %s, %s' % (vr(U+2*mm+1), a, a, vr(U+2*mm+1)))
    for swap in ('v_permlane32_swap_b32', 'v_permlane16_swap_b32'):
        for k in (1, 3): e('v_mov_b32 %s, %s' % (vr(U+4+k), vr(U+k)))
        e('s_nop 1')
        for k in (1, 3): e('%s %s, %s' % (swap, vr(U+k), vr(U+4+k)))
        e('s_nop 1')
        for k in (1, 3): e('v_add_f32 %s, %s, %s' % (vr(U+k), vr(U+k), vr(U+4+k)))
    for mm in range(2): e('v_mov_b32 %s, %s' % (vr(U+2*mm), vr(V_MU+4*mm)))
    e('v_and_b32 %s, 15, v0' % vr(T)); e('v_lshlrev_b32 %s, 3, %s' % (vr(T), vr(T)))
    e('s_lshl_b32 %s, %s, 11' % (sr(S_T0), sr(S_NG))); e('s_lshl_b32 %s, %s, 4' % (sr(S_T1), sr(S_MT))); e('s_add_u32 %s, %s, %s' % (sr(S_T0), sr(S_T0), sr(S_T1)))
    e('s_lshl_b32 %s, %s, 3' % (sr(S_T0), sr(S_T0))); e('s_add_u32 %s, %s, 0x%x' % (sr(S_T0), sr(S_T0), WS_ST))
    e('s_mov_b64 exec, 0xffff')
    for mm in range(2):
        e('buffer_store_dwordx2 %s, %s, %s, %s offen offset:%d' % (vr(U+2*mm, 2), vr(T), sr(S_WS,4), sr(S_T0), 128*mm))
    stamp('epi'); stamp.finish()
    P.raw('L_%s_end:' % name)
    e('s_endpgm')
    P.path = P.ins[:skip[0]] + P.ins[skip[1]:]
    return P, dict(stamps=stamp.names, vgpr=256+120, accum=256, sgpr=102 if dbg else (72 if pf else 40), grid=NWG, block=192, lds=73728 + 3072)

if __name__ == '__main__':
    P, o = build(); check(P.ins, 'k2'); print(verify_barriers(P.ins))
```

```python
from core import *
from common import *
from sched import *

SLOT = 36864
NF, LAR = 12, 12
def set_lar(x):
    global LAR
    LAR = x
V_RD, V_RD2 = 3, 4
V_PG, V_PH, V_PDE, V_PDO = 5, 6, 7, 8
V_OG, V_OH, V_OD = 9, 12, 15
V_C0, V_C1, V_K = 24, 26, 28
V_L16, V_FL = 30, 31
V_PO = 1
V_T = 32
V_H, V_HH = 40, 56
V_G, V_U = 64, 96
V_X = 128
A_OUT, A_X, A_W, A_HP = 0, 144, 160, 208
S_WG, S_WU, S_WD, S_WS = 8, 12, 16, 20
S_W = 24
S_GCOL, S_HCOL, S_DROW = 25, 26, 27
S_E = 28
S_HXO, S_HXP, S_P = 33, 34, 35
S_WR, S_WRAP, S_WOFF, S_RD = 36, 37, 38, 39
S_CNT, S_T0, S_T1 = 40, 41, 42
S_FLO, S_FLP, S_FVAL = 43, 44, 45
S_LO, S_HI = 46, 47
S_XO = 48
S_A, S_B, S_C, S_D = 50, 51, 52, 53
S_JP, S_S, S_I, S_FB, S_HB = 58, 59, 60, 61, 62
OPT = dict(no_dma=False, no_bar=False, no_valu=False, cap=3)

def xi_reg(ks, mm):
    xi = 2*ks + mm
    return ('v', V_X + 4*xi) if xi < 32 else ('a', A_X + 4*(xi-32))
def xfrag(ks, mm):
    k, b = xi_reg(ks, mm); return vr(b, 4) if k == 'v' else ar(b, 4)
def hpfrag(th, mm):
    x = 2*th + mm
    return ar(A_HP + 4*x, 4) if x < 12 else vr(V_X + 4*(x-12), 4)
def acc(base, ft, mm): return vr(base + 8*ft + 4*mm, 4)
def out(nt, mm): return ar(A_OUT + 8*nt + 4*mm, 4)

def st_GU(base, kh, first, fts=(0,1,2,3), rd=V_RD):
    fr = []; mf = []
    for ft in fts:
        for g in range(3):
            f0 = len(fr)
            for t in range(3):
                kl = 3*g + t
                fr.append(Frag(rd, (4*kl)*1024 + ft*256, (4*kl+2)*1024 + ft*256))
            for mm in range(2):
                for t in range(3):
                    kl = 3*g + t
                    C = '0' if (first and kl == 0) else acc(base, ft, mm)
                    mf.append(MF(acc(base, ft, mm), f0+t, xfrag(9*kh+kl, mm), C, [f0, f0+1, f0+2] if (mm == 0 and t == 0) else None))
    return fr, mf
def st_half(base):
    fr = []; mf = []
    for ft in range(2):
        for g in range(6):
            f0 = len(fr)
            for t in range(3):
                ks = 3*g + t
                fr.append(Frag(V_RD, (2*ks)*1024 + ft*512, (2*ks+1)*1024 + ft*512))
            for mm in range(2):
                for t in range(3):
                    ks = 3*g + t
                    C = '0' if ks == 0 else acc(base, ft, mm)
                    mf.append(MF(acc(base, ft, mm), f0+t, xfrag(ks, mm), C, [f0, f0+1, f0+2] if (mm == 0 and t == 0) else None))
    return fr, mf
def st_D(bf):
    fr = []; mf = []
    for nt in range(18):
        f0 = len(fr); rd = V_RD if nt % 2 == 0 else V_RD2
        for kq in range(2): fr.append(Frag(rd, (2*kq)*9216 + nt*128, (2*kq+1)*9216 + nt*128))
        for mm in range(2):
            for kq in range(2):
                w = [f0, f0+1, f0+2, f0+3] if (nt % 2 == 0 and mm == 0 and kq == 0) else None
                mf.append(MF(out(nt, mm), f0+kq, bf[kq][mm], out(nt, mm), w))
    return fr, mf
def st_final(bf, rdA, rdB):
    fr = []; mf = []
    for nt in range(18):
        f0 = len(fr)
        for k in range(4):
            rd = (rdA if k < 2 else rdB)[nt % 2]; kq = k % 2
            fr.append(Frag(rd, (2*kq)*9216 + nt*128, (2*kq+1)*9216 + nt*128))
        for mm in range(2):
            for k in range(4):
                w = [f0, f0+1, f0+2, f0+3] if (mm == 0 and k == 0) else None
                mf.append(MF(out(nt, mm), f0+k, bf[k][mm], out(nt, mm), w))
    return fr, mf

V_OF, V_PF = 160, 169
def st_F(bf, nh):
    fr = []; mf = []
    for ntl in range(9):
        f0 = len(fr); nt = 9*nh + ntl
        for k in range(4): fr.append(Frag(V_RD, k*9216 + ntl*128, k*9216 + 4608 + ntl*128))
        for mm in range(2):
            for k in range(4):
                w = [f0, f0+1, f0+2, f0+3] if (mm == 0 and k == 0) else None
                mf.append(MF(out(nt, mm), f0+k, bf[k][mm], out(nt, mm), w))
    return fr, mf
def dma_F(srow, tag):
    it = []
    for q in range(9):
        it.append(('S', 's_add_u32 m0, %s, %d' % (sr(S_WR), 1024*q) if q else 's_mov_b32 m0, %s' % sr(S_WR), None))
        it.append(('D', 'buffer_load_dwordx4 %s, %s, %s offen lds' % (vr(V_OF+q), sr(S_WD,4), srow), tag))
    return it + [('S', t, None) for t in rot_wr()]
def f_setup_ops():
    a = []; t0, t1, t2, t3 = 170, 171, 172, 173
    a.append('v_bfe_u32 %s, v0, 1, 2' % vr(t0)); a.append('v_mul_u32_u24 %s, 1152, %s' % (vr(t0), vr(t0)))
    a.append('v_and_b32 %s, 1, v0' % vr(t1)); a.append('v_lshl_add_u32 %s, %s, 4, %s' % (vr(t0), vr(t1), vr(t0))); a.append('v_lshrrev_b32 %s, 3, v0' % vr(t1))
    for p in range(9):
        d = vr(V_OF+p)
        a.append('v_add_u32 %s, %d, %s' % (d, 8*p, vr(t1)))
        a.append('v_mul_u32_u24 %s, 57, %s' % (vr(t2), d)); a.append('v_lshrrev_b32 %s, 9, %s' % (vr(t2), vr(t2)))
        a.append('v_mul_u32_u24 %s, 9, %s' % (vr(t3), vr(t2))); a.append('v_sub_u32 %s, %s, %s' % (d, d, vr(t3)))
        a.append('v_mul_u32_u24 %s, 4608, %s' % (vr(t2), vr(t2))); a.append('v_lshl_add_u32 %s, %s, 5, %s' % (d, d, vr(t2)))
        a.append('v_add_u32 %s, %s, %s' % (d, d, vr(t0)))
    a.append('v_lshrrev_b32 %s, 4, v0' % vr(t1)); a.append('v_mul_u32_u24 %s, 1152, %s' % (vr(t1), vr(t1)))
    a.append('v_bfe_u32 %s, v0, 2, 2' % vr(t2)); a.append('v_lshl_add_u32 %s, %s, 5, %s' % (vr(t1), vr(t2), vr(t1)))
    a.append('v_and_b32 %s, 3, v0' % vr(t2)); a.append('v_lshl_add_u32 %s, %s, 3, %s' % (vr(V_PF), vr(t2), vr(t1)))
    return a
assert all((b*57) >> 9 == b//9 for b in range(72))

def gelu_ops(ft, vals, tb):
    ops = []
    for g0 in range(0, len(vals), 4):
        grp = vals[g0:g0+4]
        def G(v): return vr(V_G + 8*ft + 4*v[0] + v[1])
        steps = [lambda v, t: 'v_mul_f32 %s, %s, %s' % (t, G(v), G(v)),
                 lambda v, t: 'v_fma_f32 %s, %s, %s, %s' % (t, t, vr(V_C1+v[0]), vr(V_C0+v[0])),
                 lambda v, t: 'v_mul_f32 %s, %s, %s' % (t, G(v), t),
                 lambda v, t: 'v_exp_f32 %s, %s' % (t, t),
                 lambda v, t: 'v_fma_f32 %s, %s, %s, %s' % (t, t, vr(V_K+v[0]), vr(V_K+v[0])),
                 lambda v, t: 'v_rcp_f32 %s, %s' % (t, t),
                 lambda v, t: 'v_mul_f32 %s, %s, %s' % (G(v), G(v), t)]
        for st in steps:
            for n, v in enumerate(grp): ops.append(Op(st(v, vr(tb+n))))
    return ops
ALLV = [(mm, r) for mm in range(2) for r in range(4)]
def gelu_q(ft, name, tb): return Queue(gelu_ops(ft, ALLV, tb), name)
def prod_q(ft, H, name, store=None):
    ops = []
    for mm in range(2):
        for r in range(4):
            g = vr(V_G + 8*ft + 4*mm + r)
            ops.append(Op('v_mul_f32 %s, %s, %s' % (g, g, vr(V_U + 8*ft + 4*mm + r))))
    for mm in range(2):
        for d in range(2):
            g = V_G + 8*ft + 4*mm + 2*d
            ops.append(Op('v_cvt_pk_bf16_f32 %s, %s, %s' % (vr(H + 4*mm + 2*(ft % 2) + d), vr(g), vr(g+1))))
    if store:
        soff, imm0, tag = store
        for mm in range(2):
            ops.append(Op('buffer_store_dwordx4 %s, %s, %s, %s offen offset:%d %s' % (vr(H + 4*mm, 4), vr(V_L16), sr(S_WS,4), soff, imm0 + 1024*mm, OPT.get('hst_flags', 'sc1')), tag=tag))
    return Queue(ops, name, prio=True)

S_CW, S_CR = 96, 97
S_CPF = 99
S_GCOL2, S_XO2 = 100, 101
def rot_wr(): return ['s_add_u32 %s, %s, 1' % (sr(S_CW), sr(S_CW)), 's_and_b32 %s, %s, 3' % (sr(S_CW), sr(S_CW)),
                      's_mul_i32 %s, %s, %d' % (sr(S_WR), sr(S_CW), SLOT), 's_add_u32 %s, %s, %s' % (sr(S_WR), sr(S_WR), sr(S_WOFF))]
def rot_rd(): return ['s_add_u32 %s, %s, 1' % (sr(S_CR), sr(S_CR)), 's_and_b32 %s, %s, 3' % (sr(S_CR), sr(S_CR)),
                      's_mul_i32 %s, %s, %d' % (sr(S_RD), sr(S_CR), SLOT)]
def dma_G(srd, scol, kh, tag, step_rows=8):
    it = []
    vo = V_OG if step_rows == 8 else V_OH
    for g in range(3):
        const = 3*g*step_rows*9216
        if step_rows == 8 and kh == 1: scol = sr(S_GCOL2)
        it.append(('S', 's_add_u32 %s, %s, 0x%x' % (sr(S_T0), scol, const) if const else 's_mov_b32 %s, %s' % (sr(S_T0), scol), None))
        it.append(('S', 's_add_u32 m0, %s, %d' % (sr(S_WR), 3072*g) if g else 's_mov_b32 m0, %s' % sr(S_WR), None))
        for q in range(3):
            it.append(('D', 'buffer_load_dwordx4 %s, %s, %s offen offset:%d %s lds' % (vr(vo+q), sr(srd,4), sr(S_T0), 1024*q, OPT.get('dma_flags', '')), tag))
    return it + [('S', t, None) for t in rot_wr()]
def dma_D(srow, tag):
    it = []
    for q in range(9):
        it.append(('S', 's_add_u32 m0, %s, %d' % (sr(S_WR), 1024*q) if q else 's_mov_b32 m0, %s' % sr(S_WR), None))
        it.append(('D', 'buffer_load_dwordx4 %s, %s, %s offen %s lds' % (vr(V_OD+q), sr(S_WD,4), srow, OPT.get('dma_flags', '')), tag))
    return it + [('S', t, None) for t in rot_wr()]
def put_dma(chain, g0, items, step=None):
    step = step or OPT.get('dma_step', 7)
    k = 0; pend = []
    for kind, text, tag in items:
        if kind == 'S': pend.append(text)
        else:
            due = g0 + step*k; k += 1
            for n, t in enumerate(pend): chain.append((max(0, due - 2*len(pend) + 2*n - 1), 'S', t, None))
            pend = []
            chain.append((due, 'D', text, tag))
    for n, t in enumerate(pend): chain.append((g0 + step*(k-1) + 1, 'S', t, None))
def put_bar(fx, end, tags, pats, rot=True):
    gb = end - LAR - 2
    if rot: fx.chain([(gb - 12, 'S', t, None) for t in rot_rd()])
    tag = tags if not isinstance(tags, (list, tuple)) else tags[-1]
    fx.put(gb, 'L', '@waitvm', tag)
    fx.put(gb, 'B', 's_barrier', tags)
    for rd, pat in pats: fx.put(gb+1, 'R', 'v_add_u32 %s, %s, %s' % (vr(rd), sr(S_RD), vr(pat)))
PAT_G = [(V_RD, V_PG)]; PAT_H = [(V_RD, V_PH)]; PAT_D = [(V_RD, V_PDE), (V_RD2, V_PDO)]

def build(name='k3_kernel', dbg=False):
    P = Prog(); e = P.e
    stamps = []
    def stamp(label):
        if not dbg: return
        k = len(stamps); stamps.append(label); assert k < 13
        P.raw('s_memtime s[92:93]'); P.raw('s_memrealtime s[90:91]'); P.raw('s_waitcnt lgkmcnt(0)')
        P.raw('s_mov_b32 s%d, s92' % (64+k)); P.raw('s_mov_b32 s%d, s90' % (77+k))
    info = {}
    e('s_cmp_ge_u32 s2, 256'); e('s_cbranch_scc1 L_%s_end' % name)
    stamp('start')
    if OPT.get('scramble'):
        e('s_lshr_b32 s3, s2, 3'); e('s_and_b32 s2, s2, 7'); e('s_lshl_b32 s2, s2, 5'); e('s_or_b32 s2, s2, s3')
    if dbg: e('s_load_dwordx2 s[94:95], s[0:1], %d' % KA_DBG)
    e('s_load_dwordx2 s[56:57], s[0:1], %d' % KA_WS)
    e('s_load_dwordx4 s[4:7], s[0:1], %d' % KA_WG)
    e('s_load_dwordx2 s[54:55], s[0:1], %d' % KA_WD)
    e('v_lshrrev_b32 v1, 6, v0'); e('v_and_b32 v0, 63, v0')
    e('v_readfirstlane_b32 %s, v1' % sr(S_W))
    e('v_lshlrev_b32 %s, 4, v0' % vr(V_L16))
    e('v_lshrrev_b32 v2, 4, v0'); e('v_and_b32 v1, 15, v0'); e('v_lshl_add_u32 v1, v2, 11, v1'); e('v_lshlrev_b32 v1, 3, v1')
    if OPT.get('map', 0) == 0:
        e('s_and_b32 %s, s2, 7' % sr(S_JP))
        e('s_lshr_b32 %s, s2, 3' % sr(S_I)); e('s_and_b32 %s, %s, 1' % (sr(S_S), sr(S_I))); e('s_lshr_b32 %s, %s, 1' % (sr(S_I), sr(S_I)))
    else:
        e('s_bfe_u32 %s, s2, 0x20001' % sr(S_JP)); e('s_lshl_b32 %s, %s, 1' % (sr(S_JP), sr(S_JP)))
        e('s_bfe_u32 %s, s2, 0x10004' % sr(S_T0)); e('s_add_u32 %s, %s, %s' % (sr(S_JP), sr(S_JP), sr(S_T0)))
        e('s_bfe_u32 %s, s2, 0x10003' % sr(S_S))
        e('s_and_b32 %s, s2, 1' % sr(S_I)); e('s_lshl_b32 %s, %s, 3' % (sr(S_I), sr(S_I)))
        e('s_lshr_b32 %s, s2, 5' % sr(S_T0)); e('s_add_u32 %s, %s, %s' % (sr(S_I), sr(S_I), sr(S_T0)))
    e('s_lshl_b32 %s, %s, 2' % (sr(S_T0), sr(S_I))); e('s_add_u32 %s, %s, %s' % (sr(S_T0), sr(S_T0), sr(S_W)))
    e('s_mul_i32 %s, %s, %d' % (sr(S_XO), sr(S_T0), 2*18*1024)); e('s_add_u32 %s, %s, 0x%x' % (sr(S_XO), sr(S_XO), WS_HC))
    e('s_lshl_b32 %s, %s, 8' % (sr(S_D), sr(S_T0)))
    e('s_mul_i32 %s, %s, %d' % (sr(S_T1), sr(S_S), 9216 if OPT.get('kswap', False) else 0)); e('s_sub_u32 %s, %s, %s' % (sr(S_XO2), sr(S_XO), sr(S_T1))); e('s_add_u32 %s, %s, %s' % (sr(S_XO), sr(S_XO), sr(S_T1)))
    e('s_waitcnt lgkmcnt(0)')
    def mksrd(srd, lo, hi, size):
        e('s_mov_b32 %s, s%d' % (sr(srd), lo)); e('s_mov_b32 %s, s%d' % (sr(srd+1), hi))
        e('s_mov_b32 %s, 0x%x' % (sr(srd+2), size)); e('s_mov_b32 %s, 0x%x' % (sr(srd+3), SRD3))
    mksrd(S_WS, 56, 57, WS_END); mksrd(S_WG, 4, 5, D_*F_*2); mksrd(S_WU, 6, 7, D_*F_*2)
    e('s_add_u32 s4, s56, 0x%x' % WS_ST); e('s_addc_u32 s5, s57, 0'); e('s_mov_b32 s6, %d' % (9*2048*8)); e('s_mov_b32 s7, 0x%x' % SRD3)
    e('v_mov_b32 %s, v1' % vr(V_HH))
    def xload(P, ks):
        for mm in range(2):
            P.e('s_add_u32 %s, %s, %d' % (sr(S_T1), sr(S_XO if ks < 9 else S_XO2), (18*mm+ks)*1024))
            P.e('buffer_load_dwordx4 %s, %s, %s, %s offen' % (xfrag(ks, mm), vr(V_L16), sr(S_WS,4), sr(S_T1)), tag='x%d' % ks)
    def stload(P):
        for t in range(3):
            P.e('s_add_u32 %s, %s, %d' % (sr(S_T1), sr(S_D), t*4*2048*8 + 4))
            for mm in range(2):
                P.e('buffer_load_dword %s, %s, s[4:7], %s offen offset:%d' % (vr(V_H + 2*t + mm), vr(V_HH), sr(S_T1), 128*mm), tag='st')
    def dma_now(items):
        for kind, text, tag in items:
            e(text, tag=tag)
            if text.startswith('s_add_u32 m0') or text.startswith('s_mov_b32 m0'): e('s_nop 0')
    if OPT.get('pro_stamps'): stamp('karg')
    xload(P, 0); xload(P, 1)
    mksrd(S_WD, 54, 55, D_*F_*2)
    e('v_bfe_u32 v1, v0, 1, 3'); e('v_mul_u32_u24 v1, 9216, v1')
    e('v_lshl_add_u32 v1, v2, 5, v1')
    e('v_and_b32 %s, 1, v0' % vr(V_T)); e('v_lshl_add_u32 %s, %s, 4, v1' % (vr(V_OG), vr(V_T)))
    e('v_add_u32 %s, %d, %s' % (vr(V_OG+1), 8*9216 - 1024, vr(V_OG))); e('v_add_u32 %s, %d, %s' % (vr(V_OG+2), 2*(8*9216 - 1024), vr(V_OG)))
    e('s_mul_i32 %s, %s, 576' % (sr(S_T0), sr(S_JP)))
    e('s_mul_i32 %s, %s, 320' % (sr(S_T1), sr(S_S))); e('s_add_u32 %s, %s, %s' % (sr(S_FB), sr(S_T0), sr(S_T1)))
    e('s_lshl_b32 %s, %s, 5' % (sr(S_T1), sr(S_S))); e('s_add_u32 %s, %s, %s' % (sr(S_HB), sr(S_T0), sr(S_T1))); e('s_add_u32 %s, %s, 256' % (sr(S_HB), sr(S_HB)))
    e('s_mul_i32 %s, %s, %d' % (sr(S_T0), sr(S_W), 9*8*9216)); e('s_lshl_b32 %s, %s, 1' % (sr(S_T1), sr(S_FB)))
    e('s_add_u32 %s, %s, %s' % (sr(S_GCOL), sr(S_T0), sr(S_T1)))
    e('s_mul_i32 %s, %s, %d' % (sr(S_T1), sr(S_S), 288*9216 if OPT.get('kswap', False) else 0))
    e('s_add_u32 %s, %s, %d' % (sr(S_GCOL2), sr(S_GCOL), 288*9216)); e('s_sub_u32 %s, %s, %s' % (sr(S_GCOL2), sr(S_GCOL2), sr(S_T1))); e('s_add_u32 %s, %s, %s' % (sr(S_GCOL), sr(S_GCOL), sr(S_T1)))
    e('s_mul_i32 %s, %s, 9216' % (sr(S_WOFF), sr(S_W))); e('s_mov_b32 %s, 0' % sr(S_CW)); e('s_mov_b32 %s, 1' % sr(S_CR))
    e('s_mov_b32 %s, %s' % (sr(S_WR), sr(S_WOFF)))
    T = V_T
    pat = []; a = pat.append
    a('v_bfe_u32 %s, v0, 2, 2' % vr(T)); a('v_lshlrev_b32 %s, 5, %s' % (vr(T), vr(T)))
    a('v_and_b32 %s, 3, v0' % vr(T+1)); a('v_lshl_add_u32 %s, %s, 3, %s' % (vr(T), vr(T+1), vr(T)))
    a('v_lshl_add_u32 %s, v2, 7, %s' % (vr(V_PH), vr(T)))
    a('v_and_b32 %s, 1, v2' % vr(T+1)); a('v_lshlrev_b32 %s, 7, %s' % (vr(T+1), vr(T+1)))
    a('v_lshrrev_b32 %s, 1, v2' % vr(T+2)); a('v_lshl_add_u32 %s, %s, 10, %s' % (vr(T+2), vr(T+2), vr(T)))
    a('v_add_u32 %s, %s, %s' % (vr(V_PG), vr(T+2), vr(T+1)))
    a('v_mul_u32_u24 %s, 2304, v2' % vr(T+2)); a('v_add_u32 %s, %s, %s' % (vr(T+2), vr(T+2), vr(T)))
    a('v_add_u32 %s, %s, %s' % (vr(V_PDE), vr(T+2), vr(T+1))); a('v_sub_u32 %s, %s, %s' % (vr(V_PDO), vr(T+2), vr(T+1)))
    rest = []
    a = rest.append
    a('v_and_b32 v1, 1, v0'); a('v_bfe_u32 v2, v0, 1, 4'); a('v_mul_u32_u24 v2, 9216, v2'); a('v_lshl_add_u32 v2, v1, 4, v2')
    a('v_lshrrev_b32 v1, 5, v0'); a('v_lshl_add_u32 %s, v1, 5, v2' % vr(V_OH))
    a('v_add_u32 %s, %d, %s' % (vr(V_OH+1), 16*9216 - 1024, vr(V_OH))); a('v_add_u32 %s, %d, %s' % (vr(V_OH+2), 2*(16*9216 - 1024), vr(V_OH)))
    T2 = V_T + 4
    a('v_bfe_u32 v1, v0, 1, 2'); a('v_mul_u32_u24 v1, 1152, v1'); a('v_and_b32 v2, 1, v0'); a('v_lshl_add_u32 v1, v2, 4, v1'); a('v_lshrrev_b32 v2, 3, v0')
    for p in range(9):
        d = vr(V_OD+p)
        a('v_add_u32 %s, %d, v2' % (d, 8*p))
        a('v_mul_u32_u24 %s, 57, %s' % (vr(T2), d)); a('v_lshrrev_b32 %s, 10, %s' % (vr(T2), vr(T2)))
        a('v_mul_u32_u24 %s, 18, %s' % (vr(T2+1), vr(T2))); a('v_sub_u32 %s, %s, %s' % (d, d, vr(T2+1)))
        a('v_and_b32 %s, 1, %s' % (vr(T2+1), vr(T2))); a('v_xor_b32 %s, %s, %s' % (d, d, vr(T2+1)))
        a('v_mul_u32_u24 %s, 4608, %s' % (vr(T2), vr(T2))); a('v_lshl_add_u32 %s, %s, 5, %s' % (d, d, vr(T2)))
        a('v_add_u32 %s, %s, v1' % (d, d))
    for r in range(144): a('v_accvgpr_write_b32 a%d, 0' % (A_OUT + r))
    s_ = []
    b = s_.append
    b('s_mul_i32 %s, %s, %d' % (sr(S_A), sr(S_W), 9*16*9216)); b('s_lshl_b32 %s, %s, 1' % (sr(S_B), sr(S_HB))); b('s_add_u32 %s, %s, %s' % (sr(S_HCOL), sr(S_A), sr(S_B)))
    if OPT.get('kswap', False):
        b('s_mul_i32 %s, %s, %d' % (sr(S_A), sr(S_S), 288*9216)); b('s_sub_u32 %s, 0, %s' % (sr(S_B), sr(S_A)))
        s_.append(['s_cmp_lt_u32 %s, 2' % sr(S_W), 's_cselect_b32 %s, %s, %s' % (sr(S_A), sr(S_A), sr(S_B))])
        b('s_add_u32 %s, %s, %s' % (sr(S_HCOL), sr(S_HCOL), sr(S_A)))
    b('s_mul_i32 s63, %s, 576' % sr(S_S))
    b('s_lshl_b32 %s, %s, 4' % (sr(S_C), sr(S_W)))
    b('s_add_u32 %s, %s, %s' % (sr(S_A), sr(S_FB), sr(S_C))); b('s_mul_i32 %s, %s, 1152' % (sr(S_A), sr(S_A))); b('s_add_u32 %s, %s, s63' % (sr(S_DROW), sr(S_A)))
    b('s_xor_b32 %s, %s, 1' % (sr(S_B), sr(S_S))); b('s_mul_i32 %s, %s, 576' % (sr(S_A), sr(S_JP)))
    b('s_mul_i32 s54, %s, 320' % sr(S_B)); b('s_add_u32 s54, s54, %s' % sr(S_A))
    b('s_lshl_b32 s55, %s, 5' % sr(S_B)); b('s_add_u32 s55, s55, %s' % sr(S_A)); b('s_add_u32 s55, s55, 256')
    b('s_and_b32 s56, %s, 1' % sr(S_W)); b('s_lshl_b32 s56, s56, 4')
    b('s_lshr_b32 s57, %s, 1' % sr(S_W))
    for ee, th0 in enumerate((0, 2, 4, 5, 7)):
        d = sr(S_E+ee)
        b('s_lshl_b32 %s, s57, 5' % d); b('s_add_u32 %s, %s, s54' % (d, d))
        b('s_add_u32 %s, %s, %d' % (d, d, 32*th0))
        if ee == 3: s_.append(['s_cmp_eq_u32 s57, 0', 's_cselect_b32 %s, %s, %s' % (d, sr(S_HB), d)])
        if ee == 4: s_.append(['s_cmp_eq_u32 s57, 1', 's_cselect_b32 %s, s55, %s' % (d, d)])
        b('s_add_u32 %s, %s, s56' % (d, d)); b('s_mul_i32 %s, %s, 1152' % (d, d)); b('s_add_u32 %s, %s, s63' % (d, d))
    if OPT.get('final', 3) == 3:
        d = sr(S_E+3)
        b('s_add_u32 %s, s54, 192' % d)
        s_.append(['s_cmp_eq_u32 %s, 2' % sr(S_W), 's_cselect_b32 %s, 32, 0' % sr(S_A)]); b('s_add_u32 %s, %s, %s' % (d, d, sr(S_A)))
        s_.append(['s_cmp_eq_u32 %s, 0' % sr(S_W), 's_cselect_b32 %s, %s, %s' % (d, sr(S_HB), d)])
        s_.append(['s_cmp_eq_u32 %s, 3' % sr(S_W), 's_cselect_b32 %s, s55, %s' % (d, d)])
        b('s_mul_i32 %s, %s, 1152' % (d, d)); b('s_add_u32 %s, %s, s63' % (d, d)); b('s_add_u32 %s, %s, 288' % (sr(S_E+4), d))
    b('s_lshl_b32 %s, s2, 2' % sr(S_A)); b('s_add_u32 %s, %s, %s' % (sr(S_A), sr(S_A), sr(S_W)))
    b('s_lshl_b32 %s, %s, 2' % (sr(S_FLO), sr(S_A))); b('s_add_u32 %s, %s, 0x%x' % (sr(S_FLO), sr(S_FLO), WS_FLAG))
    b('s_mul_i32 %s, %s, 18432' % (sr(S_HXO), sr(S_A))); b('s_add_u32 %s, %s, 0x%x' % (sr(S_HXO), sr(S_HXO), WS_HX))
    b('s_xor_b32 %s, s2, 8' % sr(S_A)); b('s_lshl_b32 %s, %s, 2' % (sr(S_A), sr(S_A))); b('s_add_u32 %s, %s, %s' % (sr(S_A), sr(S_A), sr(S_W)))
    b('s_lshl_b32 %s, %s, 2' % (sr(S_FLP), sr(S_A))); b('s_add_u32 %s, %s, 0x%x' % (sr(S_FLP), sr(S_FLP), WS_FLAG))
    b('s_mul_i32 %s, %s, 18432' % (sr(S_HXP), sr(S_A))); b('s_add_u32 %s, %s, 0x%x' % (sr(S_HXP), sr(S_HXP), WS_HX))
    b('s_lshl_b32 %s, %s, 1' % (sr(S_A), sr(S_I))); b('s_add_u32 %s, %s, %s' % (sr(S_A), sr(S_A), sr(S_S)))
    b('s_lshl_b32 %s, %s, 3' % (sr(S_A), sr(S_A))); b('s_add_u32 %s, %s, %s' % (sr(S_A), sr(S_A), sr(S_JP)))
    b('s_lshl_b32 %s, %s, 2' % (sr(S_A), sr(S_A))); b('s_add_u32 %s, %s, %s' % (sr(S_A), sr(S_A), sr(S_W)))
    b('s_mul_i32 %s, %s, 18432' % (sr(S_P), sr(S_A))); b('s_add_u32 %s, %s, 0x%x' % (sr(S_P), sr(S_P), WS_P))
    b('s_mov_b32 %s, 0x3f80' % sr(S_LO)); b('s_mov_b32 %s, 0x3f800000' % sr(S_HI))
    b('s_mov_b32 %s, 3' % sr(S_CNT)); b('s_mov_b32 %s, 1' % sr(S_FVAL))
    LATE = OPT.get('late_setup', True)
    work = (pat if LATE else pat + rest + s_)
    def do_work(n):
        for _ in range(n):
            if not work: return
            x = work.pop(0)
            for t in (x if isinstance(x, list) else [x]): e(t)
    XLA = OPT.get('xla', 6)
    first = dma_G(S_WG, sr(S_GCOL), 0, 'Ga') + [('X', k, None) for k in range(2, XLA)]
    if not LATE: first += dma_G(S_WG, sr(S_GCOL), 1, 'Gb') + [('T', 0, None)]
    nvm = sum(1 for k in first if k[0] in 'DXT'); per = (len(work) + nvm - 1)//nvm
    for kind, text, tag in first:
        if kind == 'X': xload(P, text); do_work(per)
        elif kind == 'T': stload(P); do_work(per)
        else:
            e(text, tag=tag)
            if ' m0,' in text: e('s_nop 0')
            if kind == 'D': do_work(per)
    do_work(9999)
    if OPT.get('pro_stamps'): stamp('setup')
    def stats_block(P):
        e = P.e; Q = V_H; T = V_H + 8
        P.wait_vm_tag('st')
        for mm in range(2): e('v_add_f32 %s, %s, %s' % (vr(Q+mm), vr(Q+mm), vr(Q+2+mm)))
        for mm in range(2): e('v_add_f32 %s, %s, %s' % (vr(Q+mm), vr(Q+mm), vr(Q+4+mm)))
        for swap in ('v_permlane32_swap_b32', 'v_permlane16_swap_b32'):
            for k in range(2): e('v_mov_b32 %s, %s' % (vr(Q+2+k), vr(Q+k)))
            e('s_nop 1')
            for k in range(2): e('%s %s, %s' % (swap, vr(Q+k), vr(Q+2+k)))
            e('s_nop 1')
            for k in range(2): e('v_add_f32 %s, %s, %s' % (vr(Q+k), vr(Q+k), vr(Q+2+k)))
        e('s_mov_b32 s99, 0x%08x' % f2u(1.0/576))
        CC = -2.0*0.7978845608028654*1.4426950408889634
        for mm in range(2): e('v_mul_f32 %s, s99, %s' % (vr(V_K+mm), vr(Q+mm)))
        for mm in range(2): e('v_add_f32 %s, 0x%08x, %s' % (vr(V_K+mm), f2u(1e-5), vr(V_K+mm)))
        for mm in range(2): e('v_rsq_f32 %s, %s' % (vr(T+mm), vr(V_K+mm)))
        e('s_nop 0')
        for mm in range(2):
            e('v_mul_f32 %s, 0x%08x, %s' % (vr(V_C0+mm), f2u(CC), vr(T+mm)))
            e('v_mul_f32 %s, %s, %s' % (vr(T+2+mm), vr(T+mm), vr(T+mm)))
        for mm in range(2): e('v_mul_f32 %s, 0x%08x, %s' % (vr(T+2+mm), f2u(0.044715), vr(T+2+mm)))
        for mm in range(2): e('v_mul_f32 %s, %s, %s' % (vr(V_C1+mm), vr(V_C0+mm), vr(T+2+mm)))
    e('v_mov_b32 %s, %s' % (vr(V_RD), vr(V_PG))); e('v_add_u32 %s, %d, %s' % (vr(V_RD2), SLOT, vr(V_PG)))
    P.wait_vm(lambda x: x.tag in ('Ga', 'x0')); i = e('s_barrier'); i.meta = dict(needs='Ga')
    stamp('bar0')
    S = Stream()
    P4 = OPT.get('pass4', True)
    fr = []; mf = []
    if P4:
        def step(ks, fts):
            rd = V_RD if ks < 9 else V_RD2; kl = ks % 9
            f0 = len(fr)
            for ft in fts: fr.append(Frag(rd, (4*kl)*1024 + ft*256, (4*kl+2)*1024 + ft*256))
            for n, ft in enumerate(fts):
                for mm in range(2):
                    mf.append(MF(acc(V_G, ft, mm), f0+n, xfrag(ks, mm), '0' if ks == 0 else acc(V_G, ft, mm), [f0+n, f0+n+1] if (n % 2 == 0 and mm == 0) else None))
        for ks in range(15): step(ks, (0, 1, 2, 3))
        for ks in range(15, 18): step(ks, (0, 1))
        for ks in range(15, 18): step(ks, (2, 3))
        S.add(fr, mf)
    else:
        for ks in range(18):
            rd = V_RD if ks < 9 else V_RD2; kl = ks % 9
            f0 = len(fr)
            for ft in range(2): fr.append(Frag(rd, (4*kl)*1024 + ft*256, (4*kl+2)*1024 + ft*256))
            for ft in range(2):
                for mm in range(2):
                    mf.append(MF(acc(V_G, ft, mm), f0+ft, xfrag(ks, mm), '0' if ks == 0 else acc(V_G, ft, mm), [f0, f0+1] if (ft == 0 and mm == 0) else None))
        S.add(fr, mf)
        fr = []; mf = []
        for ft in (2, 3):
            for g in range(6):
                f0 = len(fr)
                for t in range(3):
                    ks = 3*g + t; kl = ks % 9
                    fr.append(Frag(V_RD if ks < 9 else V_RD2, (4*kl)*1024 + ft*256, (4*kl+2)*1024 + ft*256))
                for mm in range(2):
                    for t in range(3):
                        ks = 3*g + t
                        mf.append(MF(acc(V_G, ft, mm), f0+t, xfrag(ks, mm), '0' if ks == 0 else acc(V_G, ft, mm), [f0, f0+1, f0+2] if (mm == 0 and t == 0) else None))
        S.add(fr, mf)
    fx = Fixed()
    G = 8 if P4 else 4
    for ks in range(18):
        g0 = G*ks if (not P4 or ks < 15) else 120 + 4*(ks-15)
        g1 = g0 + (G if (not P4 or ks < 15) else 4) - 1
        if ks + XLA < 18: fx.put(g0, 'X', (lambda P, k=ks+XLA: xload(P, k)), cost=4)
        if ks + 1 < 18: fx.put(g1, 'X', (lambda P, k=ks+1: P.wait_vm_tag('x%d' % k)))
    fx.put(100 if P4 else 61, 'X', stats_block, cost=8)
    ch = []
    late_q = []
    if LATE:
        put_dma(ch, 1, dma_G(S_WG, sr(S_GCOL), 1, 'Gb'), step=2)
        fx.put(30, 'X', stload, cost=9)
        late_q = [Queue([Op(x) for x in rest], 'rest').window(0, 0, 110),
                  Queue([Op((lambda P, x=x: [P.e(t) for t in x]), cost=1) if isinstance(x, list) else Op(x) for x in s_], 'srest').window(0, 0, 110)]
    if P4:
        put_dma(ch, 62, dma_G(S_WU, sr(S_GCOL), 0, 'Ua'), step=3)
        put_dma(ch, 100, dma_G(S_WU, sr(S_GCOL), 1, 'Ub'), step=3)
        ch.append((136, 'S', 's_add_u32 %s, %s, 128' % (sr(S_GCOL), sr(S_GCOL)), None)); ch.append((137, 'S', 's_add_u32 %s, %s, 128' % (sr(S_GCOL2), sr(S_GCOL2)), None))
        gbw = 9*8 - LAR - 2
    else:
        put_dma(ch, 57, dma_G(S_WU, sr(S_GCOL), 0, 'Ua'), step=2)
        put_dma(ch, 78, dma_G(S_WU, sr(S_GCOL), 1, 'Ub'), step=5)
        ch.append((126, 'S', 's_add_u32 %s, %s, 128' % (sr(S_GCOL), sr(S_GCOL)), None)); ch.append((127, 'S', 's_add_u32 %s, %s, 128' % (sr(S_GCOL2), sr(S_GCOL2)), None))
        gbw = 22
    fx.chain(ch)
    if dbg and OPT.get('pro_stamps'):
        for g in ((39, 79, 119) if P4 else (23, 47, 71)): fx.put(g, 'X', (lambda P, g=g: stamp('p%d' % g)), cost=0)
    fx.put(gbw, 'L', '@waitvm', 'Gb'); fx.put(gbw, 'B', 's_barrier', 'Gb')
    if P4: qa = gelu_q(0, 'g0', V_T).window(134, 134, 140); qb = gelu_q(1, 'g1', V_T+4).window(135, 135, 141)
    else: qa = gelu_q(0, 'g0', V_T).window(75, 75, 108); qb = gelu_q(1, 'g1', V_T+4).window(92, 100, 142)
    if late_q: qa.after([late_q[0]]); qb.after([late_q[0]])
    put_bar(fx, 144, 'Ua', PAT_G)
    ua = st_GU(V_U, 0, True)
    info['peel'] = emit_stream(P, S, ua[0][:LAR//2], fx, late_q + [qa, qb], A_W, NF, LAR, 0, maxslots=9, opt=OPT, first_reads=True, drain_ok=True, drain_interleave=True)
    if OPT.get('code_pf'):
        P.raw('s_getpc_b64 s[4:5]'); P.raw('L_%s_pc:' % name)
        P.raw('s_add_u32 s4, s4, L_%s_tail - L_%s_pc' % (name, name)); P.raw('s_addc_u32 s5, s5, 0')
        P.raw('s_mov_b32 s6, L_text_end - L_%s_tail' % name); e('s_mov_b32 s7, 0x%x' % SRD3)
        e('s_lshl_b32 %s, %s, 13' % (sr(S_CPF), sr(S_W)))
    stamp('peel')
    P.raw('.p2align 6'); P.raw('L_%s_loop:' % name)
    body_start = len(P.ins)
    def flagstore(tag, val):
        def f(P):
            if not OPT.get('no_flagwait'): P.wait_vm_tag(tag)
            P.e('v_mov_b32 %s, %s' % (vr(V_FL), val))
            P.e('buffer_store_dword %s, off, %s, %s sc1' % (vr(V_FL), sr(S_WS,4), sr(S_FLO)), tag='fl')
        f.cost = 3
        return f
    def front(fx, ch, tail):
        S = Stream().add(*st_GU(V_U, 0, True)).add(*st_GU(V_U, 1, False))
        G0 = OPT.get('dma_g0', 2)
        if not tail:
            put_dma(ch, G0, dma_G(S_WG, sr(S_GCOL), 0, 'Ga')); put_dma(ch, 72+G0, dma_G(S_WG, sr(S_GCOL), 1, 'Gb'))
            put_bar(fx, 72, 'Ub', PAT_G); put_bar(fx, 144, 'Ga', PAT_G)
        else:
            put_dma(ch, G0, dma_G(S_WG, sr(S_HCOL), 0, 'Gh', 16)); put_dma(ch, 72+G0, dma_D(sr(S_DROW), 'D'))
            put_bar(fx, 72, 'Ub', PAT_G); put_bar(fx, 144, 'Gh', PAT_H)
        W = OPT.get('win', dict())
        def win(k, kind): return W.get(k + ('T' if tail else ''), W.get(k, kind))
        g2 = gelu_q(2, 'g2', V_T).window(0, *win('g2', (18, 85))); g3 = gelu_q(3, 'g3', V_T+4).window(0, *win('g3', (51, 148)))
        p0 = prod_q(0, V_H, 'p0').window(92, *win('p0', (130, 143)))
        p1 = prod_q(1, V_H, 'p1', (sr(S_HXO), 0, 'h0')).window(110, *win('p1', (135, 149))).after([p0])
        p2 = prod_q(2, V_H+8, 'p2').window(128, *win('p2', (165, 178))).after([g2, p1])
        p3 = prod_q(3, V_H+8, 'p3', (sr(S_HXO), 2048, 'h1')).window(146, *win('p3', (172, 188))).after([g3, p2])
        return S, [p0, p1, p2, p3, g2, g3]
    G0 = OPT.get('dma_g0', 2)
    Hf = [[vr(V_H + 8*kq + 4*mm, 4) for mm in range(2)] for kq in range(2)]
    fx = Fixed(); ch = []
    S, qs = front(fx, ch, False)
    S.add(*st_GU(V_G, 0, True)).add(*st_GU(V_G, 1, False)).add(*st_D(Hf))
    put_dma(ch, 144+G0, dma_D(sr(S_DROW), 'D')); put_dma(ch, 216+G0, dma_G(S_WU, sr(S_GCOL), 0, 'Ua')); put_dma(ch, 288+G0, dma_G(S_WU, sr(S_GCOL), 1, 'Ub'))
    fx.chain(ch)
    put_bar(fx, 216, 'Gb', PAT_G); put_bar(fx, 288, 'D', PAT_D); put_bar(fx, 360, 'Ua', PAT_G)
    p3 = qs[3]
    W = OPT.get('win', dict())
    n0 = gelu_q(0, 'g0n', V_T).window(237, *W.get('n0', (252, 318))).after([p3]); n1 = gelu_q(1, 'g1n', V_T+4).window(255, *W.get('n1', (295, 359))).after([p3])
    if OPT.get('code_pf'):
        def cpf(P):
            P.e('v_lshlrev_b32 v2, 7, v0')
            P.e('buffer_load_dword v2, v2, s[4:7], %s offen' % sr(S_CPF), tag='cpf')
        fx.put(OPT.get('cpf_gap', 132), 'X', cpf, cost=3)
    fx.put(277, 'X', flagstore('h1', sr(S_FVAL)), cost=3)
    fx.chain([(285, 'S', 's_add_u32 %s, %s, 1' % (sr(S_FVAL), sr(S_FVAL)), None), (286, 'S', 's_add_u32 %s, %s, 4096' % (sr(S_HXO), sr(S_HXO)), None),
              (287, 'S', 's_add_u32 %s, %s, %d' % (sr(S_DROW), sr(S_DROW), 64*1152), None)])
    info['body'] = emit_stream(P, S, ua[0][:LAR//2], fx, qs + [n0, n1], A_W, NF, LAR, 0, maxslots=OPT['cap'], opt=OPT)
    dl = {q.name: q.finish for q in qs + [n0, n1]}
    assert dl['p0'] <= 143 and dl['p1'] <= 161 and dl['p2'] <= 179 and dl['p3'] <= 197, dl
    info['fb'] = dl
    e('s_add_u32 %s, %s, 128' % (sr(S_GCOL), sr(S_GCOL))); e('s_add_u32 %s, %s, 128' % (sr(S_GCOL2), sr(S_GCOL2)))
    e('s_sub_u32 %s, %s, 1' % (sr(S_CNT), sr(S_CNT))); e('s_cmp_lg_u32 %s, 0' % sr(S_CNT))
    e('s_cbranch_scc1 L_%s_loop' % name)
    body_end = len(P.ins)
    P.raw('L_%s_tail:' % name)
    stamp('loop')
    fx = Fixed(); ch = []
    S, qs = front(fx, ch, True)
    S.add(*st_half(V_G)).add(*st_D(Hf)).add(*st_half(V_U))
    HHf = [vr(V_HH + 4*mm, 4) for mm in range(2)]
    hp = [[hpfrag(th, mm) for mm in range(2)] for th in range(9)]
    FIN = OPT.get('final', 3)
    F2 = FIN in (2, 3)
    RA = (V_RD, V_RD2); RB = (V_T, V_T+1)
    put_dma(ch, 144+G0, dma_G(S_WU, sr(S_HCOL), 0, 'Uh', 16))
    if FIN == 1:
        for pair in ([hp[0], hp[1]], [hp[2], hp[3]], [hp[4], hp[5]], [HHf, hp[6]], [hp[7], hp[8]]): S.add(*st_D(pair))
        for k in range(5): put_dma(ch, 216+72*k+G0, dma_D(sr(S_E+k), 'E%d' % k))
        fx.chain(ch)
        put_bar(fx, 216, 'D', PAT_D); put_bar(fx, 288, 'Uh', PAT_H)
        for k in range(5): put_bar(fx, 360+72*k, 'E%d' % k, PAT_D)
    elif FIN == 3:
        for pair in ([hp[0], hp[1]], [hp[2], hp[3]], [hp[4], hp[5]]): S.add(*st_D(pair))
        last = [HHf, hp[6], hp[7], hp[8]]
        S.add(*st_F(last, 0)).add(*st_F(last, 1))
        for k in range(3): put_dma(ch, 216+72*k+G0, dma_D(sr(S_E+k), 'E%d' % k))
        put_dma(ch, 432+G0, dma_F(sr(S_E+3), 'F0')); put_dma(ch, 504+G0, dma_F(sr(S_E+4), 'F1'))
        fx.chain(ch)
        put_bar(fx, 216, 'D', PAT_D); put_bar(fx, 288, 'Uh', PAT_H)
        for k in range(3): put_bar(fx, 360+72*k, 'E%d' % k, PAT_D)
        put_bar(fx, 576, 'F0', [(V_RD, V_PF)]); put_bar(fx, 648, 'F1', [(V_RD, V_PF)])
        qf = Queue([Op(x) for x in f_setup_ops()], 'fset').window(362, 362, 425)
    else:
        for pair in ([hp[0], hp[1]], [hp[2], hp[3]], [hp[4], hp[5]]): S.add(*st_D(pair))
        S.add(*st_final([HHf, hp[6], hp[7], hp[8]], RA, RB))
        for k in range(3): put_dma(ch, 216+72*k+G0, dma_D(sr(S_E+k), 'E%d' % k))
        put_dma(ch, 421, dma_D(sr(S_E+3), 'E3'), step=6); put_dma(ch, 475, dma_D(sr(S_E+4), 'E4'), step=6)
        fx.chain(ch)
        put_bar(fx, 216, 'D', PAT_D); put_bar(fx, 288, 'Uh', PAT_H)
        for k in range(3): put_bar(fx, 360+72*k, 'E%d' % k, PAT_D)
        fx.put(436, 'B', 's_barrier', None)
        put_bar(fx, 576, ['E3', 'E4'], PAT_D)
        def second_base(P):
            P.e('s_add_u32 %s, %s, 1' % (sr(S_A), sr(S_CR))); P.e('s_and_b32 %s, %s, 3' % (sr(S_A), sr(S_A))); P.e('s_mul_i32 %s, %s, %d' % (sr(S_A), sr(S_A), SLOT))
            P.e('v_add_u32 %s, %s, %s' % (vr(RB[0]), sr(S_A), vr(V_PDE))); P.e('v_add_u32 %s, %s, %s' % (vr(RB[1]), sr(S_A), vr(V_PDO)))
        fx.put(576-LAR-3, 'X', second_base, cost=5)
    p3 = qs[3]
    h0 = gelu_q(0, 'gh0', V_T).window(183, 195, 265).after([p3]); h1 = gelu_q(1, 'gh1', V_T+4).window(219, 255, 330).after([p3])
    fx.chain([(340, 'S', 's_add_u32 %s, %s, 4096' % (sr(S_T1), sr(S_HXO)), None)])
    ph0 = prod_q(0, V_HH, 'ph0').window(327, 330, 350).after([h0])
    ph1 = prod_q(1, V_HH, 'ph1', (sr(S_T1), 0, 'hh')).window(363, 364, 384).after([h1, ph0])
    def poll_issue(P): P.e('buffer_load_dword %s, off, %s, %s sc1' % (vr(V_PO), sr(S_WS,4), sr(S_FLP)), tag='poll')
    slow = []
    def poll_check(val, lab):
        def f(P):
            P.wait_vm_tag('poll')
            P.e('v_readfirstlane_b32 %s, %s' % (sr(S_A), vr(V_PO)))
            P.e('s_nop 0')
            P.e('s_cmp_ge_u32 %s, %d' % (sr(S_A), val))
            P.e('s_cbranch_scc0 L_%s_slow%s' % (name, lab))
            P.raw('L_%s_back%s:' % (name, lab))
            slow.append((val, lab))
        f.cost = 5
        return f
    def hp_load(x):
        def f(P):
            if x % 4 == 0: P.e('s_add_u32 %s, %s, %d' % (sr(S_B), sr(S_HXP), (x//4)*4096))
            th, mm = divmod(x, 2)
            P.e('buffer_load_dwordx4 %s, %s, %s, %s offen offset:%d sc1' % (hpfrag(th, mm), vr(V_L16), sr(S_WS,4), sr(S_B), (x % 4)*1024), tag='hp%d' % x)
        return f
    if dbg and OPT.get('tail_stamps'):
        for g in OPT['tail_stamps']: fx.put(g, 'X', (lambda P, g=g: stamp('t%d' % g)), cost=0)
    fx.put(144, 'X', poll_issue, cost=2); fx.put(277, 'X', poll_check(3, 'a'), cost=5)
    for x in range(4): fx.put(279 + 2*x, 'X', hp_load(x), cost=2)
    for x in range(4, 8): fx.put(350 + 2*(x-4), 'X', hp_load(x), cost=2)
    for x in range(8, 12): fx.put(422 + 2*(x-8), 'X', hp_load(x), cost=2)
    fx.put(279, 'X', flagstore('h1', '4'), cost=3)
    fx.put(440, 'X', flagstore('hh', '5'), cost=3)
    if not F2:
        fx.put(360, 'X', poll_issue, cost=2); fx.put(493, 'X', poll_check(4, 'b'), cost=5)
        for x in range(12, 16): fx.put(495 + 2*(x-12), 'X', hp_load(x), cost=2)
        fx.put(504, 'X', poll_issue, cost=2); fx.put(565, 'X', poll_check(5, 'c'), cost=5)
        for x in range(16, 18): fx.put(567 + 2*(x-16), 'X', hp_load(x), cost=2)
    else:
        fx.put(478, 'X', poll_issue, cost=2); fx.put(513, 'X', poll_check(5, 'b'), cost=5)
        for x in range(12, 18): fx.put(515 + 2*(x-12), 'X', hp_load(x), cost=2)
    def hp_wait(xs):
        def f(P): P.wait_vm(lambda i: i.tag in ['hp%d' % t for t in xs])
        return f
    fx.put(360-4, 'X', hp_wait(range(4)))
    fx.put(432-4, 'X', hp_wait(range(4, 8)))
    fx.put(504-4, 'X', hp_wait(range(8, 12)))
    if not F2:
        fx.put(576-4, 'X', hp_wait(range(12, 14)))
        fx.put(648-4, 'X', hp_wait(range(14, 18)))
    else: fx.put(576-2, 'X', hp_wait(range(12, 18)))
    ep = []
    for np_ in range(9):
        ear = (576 + 16*(np_+1) + 2) if F2 else (648 + 8*(np_+1) + 2)
        for mm in range(2):
            tb = V_G + 16*((2*np_+mm) % 4); hb = V_H + 4*((2*np_+mm) % 4)
            for k in range(2):
                for r in range(4): ep.append(Op('v_accvgpr_read_b32 %s, a%d' % (vr(tb+4*k+r), A_OUT + 8*(2*np_+k) + 4*mm + r), ear))
            for d in range(4): ep.append(Op('v_cvt_pk_bf16_f32 %s, %s, %s' % (vr(hb+d), vr(tb+2*d), vr(tb+2*d+1)), ear))
            fr_ = mm*9 + np_
            def st(P, fr_=fr_, hb=hb):
                P.e('s_add_u32 %s, %s, %d' % (sr(S_T0), sr(S_P), fr_*1024))
                P.e('buffer_store_dwordx4 %s, %s, %s, %s offen sc1' % (vr(hb,4), vr(V_L16), sr(S_WS,4), sr(S_T0)), tag='p')
            ep.append(Op(st, ear, cost=2))
    qe = Queue(ep, 'ep', prio=True)
    allq = qs + [ph0, ph1, h0, h1, qe] + ([qf] if FIN == 3 else [])
    info['tail'] = emit_stream(P, S, [], fx, allq, A_W, NF, LAR, 0, maxslots=OPT['cap'], opt=OPT, drain_ok=True, drain_pre='s_nop 7')
    dl = {q.name: q.finish for q in allq}
    assert dl['p0'] <= 143 and dl['p1'] <= 179 and dl['p3'] < 212 and dl['ph1'] < 420 and dl['gh0'] < 326, dl
    if FIN == 3: assert dl['fset'] < 430, dl
    info['ft'] = dl
    stamp('tail')
    if dbg:
        e('s_waitcnt vmcnt(0)')
        stamp('end')
        e('s_mov_b32 s4, s94'); e('s_mov_b32 s5, s95'); e('s_mov_b32 s6, 0x100000'); e('s_mov_b32 s7, 0x20000')
        e('s_lshl_b32 s41, s2, 2'); e('s_add_u32 s41, s41, %s' % sr(S_W)); e('s_lshl_b32 s41, s41, 7')
        for k in range(len(stamps)):
            e('s_sub_u32 s42, s%d, s64' % (64+k)); e('v_mov_b32 v1, s42')
            e('buffer_store_dword v1, off, s[4:7], s41 offset:%d' % (4*k))
            e('s_sub_u32 s42, s%d, s77' % (77+k)); e('v_mov_b32 v1, s42')
            e('buffer_store_dword v1, off, s[4:7], s41 offset:%d' % (64+4*k))
        e('v_mov_b32 v1, s77'); e('buffer_store_dword v1, off, s[4:7], s41 offset:60')
    P.raw('L_%s_end:' % name)
    e('s_endpgm')
    main_end = len(P.ins)
    for val, lab in slow:
        P.raw('L_%s_slow%s:' % (name, lab))
        P.raw('s_mov_b32 %s, 0x8000' % sr(S_C))
        P.raw('L_%s_spin%s:' % (name, lab))
        P.raw('s_sleep 2')
        P.raw('buffer_load_dword %s, off, %s, %s sc1' % (vr(V_PO), sr(S_WS,4), sr(S_FLP)))
        P.raw('s_waitcnt vmcnt(0)')
        P.raw('v_readfirstlane_b32 %s, %s' % (sr(S_A), vr(V_PO)))
        P.raw('s_sub_u32 %s, %s, 1' % (sr(S_C), sr(S_C)))
        P.raw('s_cmp_eq_u32 %s, 0' % sr(S_C))
        P.raw('s_cbranch_scc1 L_%s_back%s' % (name, lab))
        P.raw('s_cmp_ge_u32 %s, %d' % (sr(S_A), val))
        P.raw('s_cbranch_scc0 L_%s_spin%s' % (name, lab))
        P.raw('s_branch L_%s_back%s' % (name, lab))
    ins = P.ins
    path = ins[:body_start] + ins[body_start:body_end]*3 + ins[body_end:main_end]
    info['stamps'] = stamps
    return P, path, info

if __name__ == '__main__':
    import collections
    P, path, info = build()
    check(path, 'k3b')
    print('barrier problems', verify_barriers(path))
    for k in ('peel', 'body', 'tail'):
        print(k, 'slots/gap hist', sorted(collections.Counter(info[k]).items()), 'est cyc/unit %.2f' % (est_cycles(info[k])/len(info[k])*2))
    print(info['fb']); print(info['ft'])
    print('instrs', len(P.ins))
```

```python
import build_all as B
from common import *
B4 = ['k1_kernel','k2_kernel','k3_kernel','k4_kernel']
B4 = ['k1_kernel','k2_kernel','k3_kernel','k4_kernel']
B4 = ['k1_kernel','k2_kernel','k3_kernel','k4_kernel']
from common import *
V = {'vA': (None, None, None), 'vB': (dict(k2code=True), None, None), 'vC': (dict(code_pf=True), None, None), 'vD': (dict(k2code=True, code_pf=True), None, None)}
import os
os.makedirs('variants', exist_ok=True)
for n, (o, order, kp) in V.items():
    t, ks = B.make(opts=o, order=order, kpopts=kp)
    open('variants/%s.s' % n, 'w').write(t)
    B.assemble(t, ks, 'var_' + n)
print('ok')
```

```python
from core import *
from common import *
from sched import *

SLOT = 36864
NF, LAR = 12, 12
def set_lar(x):
    global LAR
    LAR = x
V_RD, V_RD2 = 3, 4
V_PG, V_PH, V_PDE, V_PDO = 5, 6, 7, 8
V_OG, V_OH, V_OD = 9, 12, 15
V_C0, V_C1, V_K = 24, 26, 28
V_L16, V_FL = 30, 31
V_PO = 1
V_T = 32
V_H, V_HH = 40, 56
V_G, V_U = 64, 96
V_X = 128
A_OUT, A_X, A_W, A_HP = 0, 144, 160, 208
S_WG, S_WU, S_WD, S_WS = 8, 12, 16, 20
S_W = 24
S_GCOL, S_HCOL, S_DROW = 25, 26, 27
S_E = 28
S_HXO, S_HXP, S_P = 33, 34, 35
S_WR, S_WRAP, S_WOFF, S_RD = 36, 37, 38, 39
S_CNT, S_T0, S_T1 = 40, 41, 42
S_FLO, S_FLP, S_FVAL = 43, 44, 45
S_LO, S_HI = 46, 47
S_XO = 48
S_A, S_B, S_C, S_D = 50, 51, 52, 53
S_JP, S_S, S_I, S_FB, S_HB = 58, 59, 60, 61, 62
OPT = dict(no_dma=False, no_bar=False, no_valu=False, cap=3)

def xi_reg(ks, mm):
    xi = 2*ks + mm
    return ('v', V_X + 4*xi) if xi < 32 else ('a', A_X + 4*(xi-32))
def xfrag(ks, mm):
    k, b = xi_reg(ks, mm); return vr(b, 4) if k == 'v' else ar(b, 4)
def hpfrag(th, mm):
    x = 2*th + mm
    return ar(A_HP + 4*x, 4) if x < 12 else vr(V_X + 4*(x-12), 4)
def acc(base, ft, mm): return vr(base + 8*ft + 4*mm, 4)
def out(nt, mm): return ar(A_OUT + 8*nt + 4*mm, 4)

def st_GU(base, kh, first, fts=(0,1,2,3), rd=V_RD):
    fr = []; mf = []
    for ft in fts:
        for g in range(3):
            f0 = len(fr)
            for t in range(3):
                kl = 3*g + t
                fr.append(Frag(rd, (4*kl)*1024 + ft*256, (4*kl+2)*1024 + ft*256))
            for mm in range(2):
                for t in range(3):
                    kl = 3*g + t
                    C = '0' if (first and kl == 0) else acc(base, ft, mm)
                    mf.append(MF(acc(base, ft, mm), f0+t, xfrag(9*kh+kl, mm), C, [f0, f0+1, f0+2] if (mm == 0 and t == 0) else None))
    return fr, mf
def st_half(base):
    fr = []; mf = []
    for ft in range(2):
        for g in range(6):
            f0 = len(fr)
            for t in range(3):
                ks = 3*g + t
                fr.append(Frag(V_RD, (2*ks)*1024 + ft*512, (2*ks+1)*1024 + ft*512))
            for mm in range(2):
                for t in range(3):
                    ks = 3*g + t
                    C = '0' if ks == 0 else acc(base, ft, mm)
                    mf.append(MF(acc(base, ft, mm), f0+t, xfrag(ks, mm), C, [f0, f0+1, f0+2] if (mm == 0 and t == 0) else None))
    return fr, mf
def st_D(bf):
    fr = []; mf = []
    for nt in range(18):
        f0 = len(fr); rd = V_RD if nt % 2 == 0 else V_RD2
        for kq in range(2): fr.append(Frag(rd, (2*kq)*9216 + nt*128, (2*kq+1)*9216 + nt*128))
        for mm in range(2):
            for kq in range(2):
                w = [f0, f0+1, f0+2, f0+3] if (nt % 2 == 0 and mm == 0 and kq == 0) else None
                mf.append(MF(out(nt, mm), f0+kq, bf[kq][mm], out(nt, mm), w))
    return fr, mf
def st_final(bf, rdA, rdB):
    fr = []; mf = []
    for nt in range(18):
        f0 = len(fr)
        for k in range(4):
            rd = (rdA if k < 2 else rdB)[nt % 2]; kq = k % 2
            fr.append(Frag(rd, (2*kq)*9216 + nt*128, (2*kq+1)*9216 + nt*128))
        for mm in range(2):
            for k in range(4):
                w = [f0, f0+1, f0+2, f0+3] if (mm == 0 and k == 0) else None
                mf.append(MF(out(nt, mm), f0+k, bf[k][mm], out(nt, mm), w))
    return fr, mf

V_OF, V_PF = 160, 169
def st_F(bf, nh):
    fr = []; mf = []
    for ntl in range(9):
        f0 = len(fr); nt = 9*nh + ntl
        for k in range(4): fr.append(Frag(V_RD, k*9216 + ntl*128, k*9216 + 4608 + ntl*128))
        for mm in range(2):
            for k in range(4):
                w = [f0, f0+1, f0+2, f0+3] if (mm == 0 and k == 0) else None
                mf.append(MF(out(nt, mm), f0+k, bf[k][mm], out(nt, mm), w))
    return fr, mf
def dma_F(srow, tag):
    it = []
    for q in range(9):
        it.append(('S', 's_add_u32 m0, %s, %d' % (sr(S_WR), 1024*q) if q else 's_mov_b32 m0, %s' % sr(S_WR), None))
        it.append(('D', 'buffer_load_dwordx4 %s, %s, %s offen lds' % (vr(V_OF+q), sr(S_WD,4), srow), tag))
    return it + [('S', t, None) for t in rot_wr()]
def f_setup_ops():
    a = []; t0, t1, t2, t3 = 170, 171, 172, 173
    a.append('v_bfe_u32 %s, v0, 1, 2' % vr(t0)); a.append('v_mul_u32_u24 %s, 1152, %s' % (vr(t0), vr(t0)))
    a.append('v_and_b32 %s, 1, v0' % vr(t1)); a.append('v_lshl_add_u32 %s, %s, 4, %s' % (vr(t0), vr(t1), vr(t0))); a.append('v_lshrrev_b32 %s, 3, v0' % vr(t1))
    for p in range(9):
        d = vr(V_OF+p)
        a.append('v_add_u32 %s, %d, %s' % (d, 8*p, vr(t1)))
        a.append('v_mul_u32_u24 %s, 57, %s' % (vr(t2), d)); a.append('v_lshrrev_b32 %s, 9, %s' % (vr(t2), vr(t2)))
        a.append('v_mul_u32_u24 %s, 9, %s' % (vr(t3), vr(t2))); a.append('v_sub_u32 %s, %s, %s' % (d, d, vr(t3)))
        a.append('v_mul_u32_u24 %s, 4608, %s' % (vr(t2), vr(t2))); a.append('v_lshl_add_u32 %s, %s, 5, %s' % (d, d, vr(t2)))
        a.append('v_add_u32 %s, %s, %s' % (d, d, vr(t0)))
    a.append('v_lshrrev_b32 %s, 4, v0' % vr(t1)); a.append('v_mul_u32_u24 %s, 1152, %s' % (vr(t1), vr(t1)))
    a.append('v_bfe_u32 %s, v0, 2, 2' % vr(t2)); a.append('v_lshl_add_u32 %s, %s, 5, %s' % (vr(t1), vr(t2), vr(t1)))
    a.append('v_and_b32 %s, 3, v0' % vr(t2)); a.append('v_lshl_add_u32 %s, %s, 3, %s' % (vr(V_PF), vr(t2), vr(t1)))
    return a
assert all((b*57) >> 9 == b//9 for b in range(72))

def gelu_ops(ft, vals, tb):
    ops = []
    for g0 in range(0, len(vals), 4):
        grp = vals[g0:g0+4]
        def G(v): return vr(V_G + 8*ft + 4*v[0] + v[1])
        steps = [lambda v, t: 'v_mul_f32 %s, %s, %s' % (t, G(v), G(v)),
                 lambda v, t: 'v_fma_f32 %s, %s, %s, %s' % (t, t, vr(V_C1+v[0]), vr(V_C0+v[0])),
                 lambda v, t: 'v_mul_f32 %s, %s, %s' % (t, G(v), t),
                 lambda v, t: 'v_exp_f32 %s, %s' % (t, t),
                 lambda v, t: 'v_fma_f32 %s, %s, %s, %s' % (t, t, vr(V_K+v[0]), vr(V_K+v[0])),
                 lambda v, t: 'v_rcp_f32 %s, %s' % (t, t),
                 lambda v, t: 'v_mul_f32 %s, %s, %s' % (G(v), G(v), t)]
        for st in steps:
            for n, v in enumerate(grp): ops.append(Op(st(v, vr(tb+n))))
    return ops
ALLV = [(mm, r) for mm in range(2) for r in range(4)]
def gelu_q(ft, name, tb): return Queue(gelu_ops(ft, ALLV, tb), name)
def prod_q(ft, H, name, store=None):
    ops = []
    for mm in range(2):
        for r in range(4):
            g = vr(V_G + 8*ft + 4*mm + r)
            ops.append(Op('v_mul_f32 %s, %s, %s' % (g, g, vr(V_U + 8*ft + 4*mm + r))))
    for mm in range(2):
        for d in range(2):
            g = V_G + 8*ft + 4*mm + 2*d
            ops.append(Op('v_cvt_pk_bf16_f32 %s, %s, %s' % (vr(H + 4*mm + 2*(ft % 2) + d), vr(g), vr(g+1))))
    if store:
        soff, imm0, tag = store
        for mm in range(2):
            ops.append(Op('buffer_store_dwordx4 %s, %s, %s, %s offen offset:%d %s' % (vr(H + 4*mm, 4), vr(V_L16), sr(S_WS,4), soff, imm0 + 1024*mm, OPT.get('hst_flags', 'sc1')), tag=tag))
    return Queue(ops, name, prio=True)

S_CW, S_CR = 96, 97
S_GCOL2, S_XO2 = 100, 101
def rot_wr(): return ['s_add_u32 %s, %s, 1' % (sr(S_CW), sr(S_CW)), 's_and_b32 %s, %s, 3' % (sr(S_CW), sr(S_CW)),
                      's_mul_i32 %s, %s, %d' % (sr(S_WR), sr(S_CW), SLOT), 's_add_u32 %s, %s, %s' % (sr(S_WR), sr(S_WR), sr(S_WOFF))]
def rot_rd(): return ['s_add_u32 %s, %s, 1' % (sr(S_CR), sr(S_CR)), 's_and_b32 %s, %s, 3' % (sr(S_CR), sr(S_CR)),
                      's_mul_i32 %s, %s, %d' % (sr(S_RD), sr(S_CR), SLOT)]
def dma_G(srd, scol, kh, tag, step_rows=8):
    it = []
    vo = V_OG if step_rows == 8 else V_OH
    for g in range(3):
        const = 3*g*step_rows*9216
        if step_rows == 8 and kh == 1: scol = sr(S_GCOL2)
        it.append(('S', 's_add_u32 %s, %s, 0x%x' % (sr(S_T0), scol, const) if const else 's_mov_b32 %s, %s' % (sr(S_T0), scol), None))
        it.append(('S', 's_add_u32 m0, %s, %d' % (sr(S_WR), 3072*g) if g else 's_mov_b32 m0, %s' % sr(S_WR), None))
        for q in range(3):
            it.append(('D', 'buffer_load_dwordx4 %s, %s, %s offen offset:%d %s lds' % (vr(vo+q), sr(srd,4), sr(S_T0), 1024*q, OPT.get('dma_flags', '')), tag))
    return it + [('S', t, None) for t in rot_wr()]
def dma_D(srow, tag):
    it = []
    for q in range(9):
        it.append(('S', 's_add_u32 m0, %s, %d' % (sr(S_WR), 1024*q) if q else 's_mov_b32 m0, %s' % sr(S_WR), None))
        it.append(('D', 'buffer_load_dwordx4 %s, %s, %s offen %s lds' % (vr(V_OD+q), sr(S_WD,4), srow, OPT.get('dma_flags', '')), tag))
    return it + [('S', t, None) for t in rot_wr()]
def put_dma(chain, g0, items, step=None):
    step = step or OPT.get('dma_step', 7)
    k = 0; pend = []
    for kind, text, tag in items:
        if kind == 'S': pend.append(text)
        else:
            due = g0 + step*k; k += 1
            for n, t in enumerate(pend): chain.append((max(0, due - 2*len(pend) + 2*n - 1), 'S', t, None))
            pend = []
            chain.append((due, 'D', text, tag))
    for n, t in enumerate(pend): chain.append((g0 + step*(k-1) + 1, 'S', t, None))
def put_bar(fx, end, tags, pats, rot=True):
    gb = end - LAR - 2
    if rot: fx.chain([(gb - 12, 'S', t, None) for t in rot_rd()])
    tag = tags if not isinstance(tags, (list, tuple)) else tags[-1]
    fx.put(gb, 'L', '@waitvm', tag)
    fx.put(gb, 'B', 's_barrier', tags)
    for rd, pat in pats: fx.put(gb+1, 'R', 'v_add_u32 %s, %s, %s' % (vr(rd), sr(S_RD), vr(pat)))
PAT_G = [(V_RD, V_PG)]; PAT_H = [(V_RD, V_PH)]; PAT_D = [(V_RD, V_PDE), (V_RD2, V_PDO)]

def build(name='k3_kernel', dbg=False):
    P = Prog(); e = P.e
    stamps = []
    def stamp(label):
        if not dbg: return
        k = len(stamps); stamps.append(label); assert k < 13
        P.raw('s_memtime s[92:93]'); P.raw('s_memrealtime s[90:91]'); P.raw('s_waitcnt lgkmcnt(0)')
        P.raw('s_mov_b32 s%d, s92' % (64+k)); P.raw('s_mov_b32 s%d, s90' % (77+k))
    info = {}
    e('s_cmp_ge_u32 s2, 256'); e('s_cbranch_scc1 L_%s_end' % name)
    stamp('start')
    if OPT.get('scramble'):
        e('s_lshr_b32 s3, s2, 3'); e('s_and_b32 s2, s2, 7'); e('s_lshl_b32 s2, s2, 5'); e('s_or_b32 s2, s2, s3')
    if dbg: e('s_load_dwordx2 s[94:95], s[0:1], %d' % KA_DBG)
    e('s_load_dwordx2 s[56:57], s[0:1], %d' % KA_WS)
    e('s_load_dwordx4 s[4:7], s[0:1], %d' % KA_WG)
    e('s_load_dwordx2 s[54:55], s[0:1], %d' % KA_WD)
    e('v_lshrrev_b32 v1, 6, v0'); e('v_and_b32 v0, 63, v0')
    e('v_readfirstlane_b32 %s, v1' % sr(S_W))
    e('v_lshlrev_b32 %s, 4, v0' % vr(V_L16))
    e('v_lshrrev_b32 v2, 4, v0'); e('v_and_b32 v1, 15, v0'); e('v_lshl_add_u32 v1, v2, 11, v1'); e('v_lshlrev_b32 v1, 3, v1')
    if OPT.get('map', 0) == 0:
        e('s_and_b32 %s, s2, 7' % sr(S_JP))
        e('s_lshr_b32 %s, s2, 3' % sr(S_I)); e('s_and_b32 %s, %s, 1' % (sr(S_S), sr(S_I))); e('s_lshr_b32 %s, %s, 1' % (sr(S_I), sr(S_I)))
    else:
        e('s_bfe_u32 %s, s2, 0x20001' % sr(S_JP)); e('s_lshl_b32 %s, %s, 1' % (sr(S_JP), sr(S_JP)))
        e('s_bfe_u32 %s, s2, 0x10004' % sr(S_T0)); e('s_add_u32 %s, %s, %s' % (sr(S_JP), sr(S_JP), sr(S_T0)))
        e('s_bfe_u32 %s, s2, 0x10003' % sr(S_S))
        e('s_and_b32 %s, s2, 1' % sr(S_I)); e('s_lshl_b32 %s, %s, 3' % (sr(S_I), sr(S_I)))
        e('s_lshr_b32 %s, s2, 5' % sr(S_T0)); e('s_add_u32 %s, %s, %s' % (sr(S_I), sr(S_I), sr(S_T0)))
    e('s_lshl_b32 %s, %s, 2' % (sr(S_T0), sr(S_I))); e('s_add_u32 %s, %s, %s' % (sr(S_T0), sr(S_T0), sr(S_W)))
    e('s_mul_i32 %s, %s, %d' % (sr(S_XO), sr(S_T0), 2*18*1024)); e('s_add_u32 %s, %s, 0x%x' % (sr(S_XO), sr(S_XO), WS_HC))
    e('s_lshl_b32 %s, %s, 8' % (sr(S_D), sr(S_T0)))
    e('s_mul_i32 %s, %s, %d' % (sr(S_T1), sr(S_S), 9216 if OPT.get('kswap', False) else 0)); e('s_sub_u32 %s, %s, %s' % (sr(S_XO2), sr(S_XO), sr(S_T1))); e('s_add_u32 %s, %s, %s' % (sr(S_XO), sr(S_XO), sr(S_T1)))
    e('s_waitcnt lgkmcnt(0)')
    def mksrd(srd, lo, hi, size):
        e('s_mov_b32 %s, s%d' % (sr(srd), lo)); e('s_mov_b32 %s, s%d' % (sr(srd+1), hi))
        e('s_mov_b32 %s, 0x%x' % (sr(srd+2), size)); e('s_mov_b32 %s, 0x%x' % (sr(srd+3), SRD3))
    mksrd(S_WS, 56, 57, WS_END); mksrd(S_WG, 4, 5, D_*F_*2); mksrd(S_WU, 6, 7, D_*F_*2)
    e('s_add_u32 s4, s56, 0x%x' % WS_ST); e('s_addc_u32 s5, s57, 0'); e('s_mov_b32 s6, %d' % (9*2048*8)); e('s_mov_b32 s7, 0x%x' % SRD3)
    e('v_mov_b32 %s, v1' % vr(V_HH))
    def xload(P, ks):
        for mm in range(2):
            P.e('s_add_u32 %s, %s, %d' % (sr(S_T1), sr(S_XO if ks < 9 else S_XO2), (18*mm+ks)*1024))
            P.e('buffer_load_dwordx4 %s, %s, %s, %s offen' % (xfrag(ks, mm), vr(V_L16), sr(S_WS,4), sr(S_T1)), tag='x%d' % ks)
    def stload(P):
        for t in range(3):
            P.e('s_add_u32 %s, %s, %d' % (sr(S_T1), sr(S_D), t*4*2048*8 + 4))
            for mm in range(2):
                P.e('buffer_load_dword %s, %s, s[4:7], %s offen offset:%d' % (vr(V_H + 2*t + mm), vr(V_HH), sr(S_T1), 128*mm), tag='st')
    def dma_now(items):
        for kind, text, tag in items:
            e(text, tag=tag)
            if text.startswith('s_add_u32 m0') or text.startswith('s_mov_b32 m0'): e('s_nop 0')
    if OPT.get('pro_stamps'): stamp('karg')
    xload(P, 0); xload(P, 1)
    mksrd(S_WD, 54, 55, D_*F_*2)
    e('v_bfe_u32 v1, v0, 1, 3'); e('v_mul_u32_u24 v1, 9216, v1')
    e('v_lshl_add_u32 v1, v2, 5, v1')
    e('v_and_b32 %s, 1, v0' % vr(V_T)); e('v_lshl_add_u32 %s, %s, 4, v1' % (vr(V_OG), vr(V_T)))
    e('v_add_u32 %s, %d, %s' % (vr(V_OG+1), 8*9216 - 1024, vr(V_OG))); e('v_add_u32 %s, %d, %s' % (vr(V_OG+2), 2*(8*9216 - 1024), vr(V_OG)))
    e('s_mul_i32 %s, %s, 576' % (sr(S_T0), sr(S_JP)))
    e('s_mul_i32 %s, %s, 320' % (sr(S_T1), sr(S_S))); e('s_add_u32 %s, %s, %s' % (sr(S_FB), sr(S_T0), sr(S_T1)))
    e('s_lshl_b32 %s, %s, 5' % (sr(S_T1), sr(S_S))); e('s_add_u32 %s, %s, %s' % (sr(S_HB), sr(S_T0), sr(S_T1))); e('s_add_u32 %s, %s, 256' % (sr(S_HB), sr(S_HB)))
    e('s_mul_i32 %s, %s, %d' % (sr(S_T0), sr(S_W), 9*8*9216)); e('s_lshl_b32 %s, %s, 1' % (sr(S_T1), sr(S_FB)))
    e('s_add_u32 %s, %s, %s' % (sr(S_GCOL), sr(S_T0), sr(S_T1)))
    e('s_mul_i32 %s, %s, %d' % (sr(S_T1), sr(S_S), 288*9216 if OPT.get('kswap', False) else 0))
    e('s_add_u32 %s, %s, %d' % (sr(S_GCOL2), sr(S_GCOL), 288*9216)); e('s_sub_u32 %s, %s, %s' % (sr(S_GCOL2), sr(S_GCOL2), sr(S_T1))); e('s_add_u32 %s, %s, %s' % (sr(S_GCOL), sr(S_GCOL), sr(S_T1)))
    e('s_mul_i32 %s, %s, 9216' % (sr(S_WOFF), sr(S_W))); e('s_mov_b32 %s, 0' % sr(S_CW)); e('s_mov_b32 %s, 1' % sr(S_CR))
    e('s_mov_b32 %s, %s' % (sr(S_WR), sr(S_WOFF)))
    T = V_T
    pat = []; a = pat.append
    a('v_bfe_u32 %s, v0, 2, 2' % vr(T)); a('v_lshlrev_b32 %s, 5, %s' % (vr(T), vr(T)))
    a('v_and_b32 %s, 3, v0' % vr(T+1)); a('v_lshl_add_u32 %s, %s, 3, %s' % (vr(T), vr(T+1), vr(T)))
    a('v_lshl_add_u32 %s, v2, 7, %s' % (vr(V_PH), vr(T)))
    a('v_and_b32 %s, 1, v2' % vr(T+1)); a('v_lshlrev_b32 %s, 7, %s' % (vr(T+1), vr(T+1)))
    a('v_lshrrev_b32 %s, 1, v2' % vr(T+2)); a('v_lshl_add_u32 %s, %s, 10, %s' % (vr(T+2), vr(T+2), vr(T)))
    a('v_add_u32 %s, %s, %s' % (vr(V_PG), vr(T+2), vr(T+1)))
    a('v_mul_u32_u24 %s, 2304, v2' % vr(T+2)); a('v_add_u32 %s, %s, %s' % (vr(T+2), vr(T+2), vr(T)))
    a('v_add_u32 %s, %s, %s' % (vr(V_PDE), vr(T+2), vr(T+1))); a('v_sub_u32 %s, %s, %s' % (vr(V_PDO), vr(T+2), vr(T+1)))
    rest = []
    a = rest.append
    a('v_and_b32 v1, 1, v0'); a('v_bfe_u32 v2, v0, 1, 4'); a('v_mul_u32_u24 v2, 9216, v2'); a('v_lshl_add_u32 v2, v1, 4, v2')
    a('v_lshrrev_b32 v1, 5, v0'); a('v_lshl_add_u32 %s, v1, 5, v2' % vr(V_OH))
    a('v_add_u32 %s, %d, %s' % (vr(V_OH+1), 16*9216 - 1024, vr(V_OH))); a('v_add_u32 %s, %d, %s' % (vr(V_OH+2), 2*(16*9216 - 1024), vr(V_OH)))
    T2 = V_T + 4
    a('v_bfe_u32 v1, v0, 1, 2'); a('v_mul_u32_u24 v1, 1152, v1'); a('v_and_b32 v2, 1, v0'); a('v_lshl_add_u32 v1, v2, 4, v1'); a('v_lshrrev_b32 v2, 3, v0')
    for p in range(9):
        d = vr(V_OD+p)
        a('v_add_u32 %s, %d, v2' % (d, 8*p))
        a('v_mul_u32_u24 %s, 57, %s' % (vr(T2), d)); a('v_lshrrev_b32 %s, 10, %s' % (vr(T2), vr(T2)))
        a('v_mul_u32_u24 %s, 18, %s' % (vr(T2+1), vr(T2))); a('v_sub_u32 %s, %s, %s' % (d, d, vr(T2+1)))
        a('v_and_b32 %s, 1, %s' % (vr(T2+1), vr(T2))); a('v_xor_b32 %s, %s, %s' % (d, d, vr(T2+1)))
        a('v_mul_u32_u24 %s, 4608, %s' % (vr(T2), vr(T2))); a('v_lshl_add_u32 %s, %s, 5, %s' % (d, d, vr(T2)))
        a('v_add_u32 %s, %s, v1' % (d, d))
    for r in range(144): a('v_accvgpr_write_b32 a%d, 0' % (A_OUT + r))
    s_ = []
    b = s_.append
    b('s_mul_i32 %s, %s, %d' % (sr(S_A), sr(S_W), 9*16*9216)); b('s_lshl_b32 %s, %s, 1' % (sr(S_B), sr(S_HB))); b('s_add_u32 %s, %s, %s' % (sr(S_HCOL), sr(S_A), sr(S_B)))
    if OPT.get('kswap', False):
        b('s_mul_i32 %s, %s, %d' % (sr(S_A), sr(S_S), 288*9216)); b('s_sub_u32 %s, 0, %s' % (sr(S_B), sr(S_A)))
        s_.append(['s_cmp_lt_u32 %s, 2' % sr(S_W), 's_cselect_b32 %s, %s, %s' % (sr(S_A), sr(S_A), sr(S_B))])
        b('s_add_u32 %s, %s, %s' % (sr(S_HCOL), sr(S_HCOL), sr(S_A)))
    b('s_mul_i32 s63, %s, 576' % sr(S_S))
    b('s_lshl_b32 %s, %s, 4' % (sr(S_C), sr(S_W)))
    b('s_add_u32 %s, %s, %s' % (sr(S_A), sr(S_FB), sr(S_C))); b('s_mul_i32 %s, %s, 1152' % (sr(S_A), sr(S_A))); b('s_add_u32 %s, %s, s63' % (sr(S_DROW), sr(S_A)))
    b('s_xor_b32 %s, %s, 1' % (sr(S_B), sr(S_S))); b('s_mul_i32 %s, %s, 576' % (sr(S_A), sr(S_JP)))
    b('s_mul_i32 s54, %s, 320' % sr(S_B)); b('s_add_u32 s54, s54, %s' % sr(S_A))
    b('s_lshl_b32 s55, %s, 5' % sr(S_B)); b('s_add_u32 s55, s55, %s' % sr(S_A)); b('s_add_u32 s55, s55, 256')
    b('s_and_b32 s56, %s, 1' % sr(S_W)); b('s_lshl_b32 s56, s56, 4')
    b('s_lshr_b32 s57, %s, 1' % sr(S_W))
    for ee, th0 in enumerate((0, 2, 4, 5, 7)):
        d = sr(S_E+ee)
        b('s_lshl_b32 %s, s57, 5' % d); b('s_add_u32 %s, %s, s54' % (d, d))
        b('s_add_u32 %s, %s, %d' % (d, d, 32*th0))
        if ee == 3: s_.append(['s_cmp_eq_u32 s57, 0', 's_cselect_b32 %s, %s, %s' % (d, sr(S_HB), d)])
        if ee == 4: s_.append(['s_cmp_eq_u32 s57, 1', 's_cselect_b32 %s, s55, %s' % (d, d)])
        b('s_add_u32 %s, %s, s56' % (d, d)); b('s_mul_i32 %s, %s, 1152' % (d, d)); b('s_add_u32 %s, %s, s63' % (d, d))
    if OPT.get('final', 3) == 3:
        d = sr(S_E+3)
        b('s_add_u32 %s, s54, 192' % d)
        s_.append(['s_cmp_eq_u32 %s, 2' % sr(S_W), 's_cselect_b32 %s, 32, 0' % sr(S_A)]); b('s_add_u32 %s, %s, %s' % (d, d, sr(S_A)))
        s_.append(['s_cmp_eq_u32 %s, 0' % sr(S_W), 's_cselect_b32 %s, %s, %s' % (d, sr(S_HB), d)])
        s_.append(['s_cmp_eq_u32 %s, 3' % sr(S_W), 's_cselect_b32 %s, s55, %s' % (d, d)])
        b('s_mul_i32 %s, %s, 1152' % (d, d)); b('s_add_u32 %s, %s, s63' % (d, d)); b('s_add_u32 %s, %s, 288' % (sr(S_E+4), d))
    b('s_lshl_b32 %s, s2, 2' % sr(S_A)); b('s_add_u32 %s, %s, %s' % (sr(S_A), sr(S_A), sr(S_W)))
    b('s_lshl_b32 %s, %s, 2' % (sr(S_FLO), sr(S_A))); b('s_add_u32 %s, %s, 0x%x' % (sr(S_FLO), sr(S_FLO), WS_FLAG))
    b('s_mul_i32 %s, %s, 18432' % (sr(S_HXO), sr(S_A))); b('s_add_u32 %s, %s, 0x%x' % (sr(S_HXO), sr(S_HXO), WS_HX))
    b('s_xor_b32 %s, s2, 8' % sr(S_A)); b('s_lshl_b32 %s, %s, 2' % (sr(S_A), sr(S_A))); b('s_add_u32 %s, %s, %s' % (sr(S_A), sr(S_A), sr(S_W)))
    b('s_lshl_b32 %s, %s, 2' % (sr(S_FLP), sr(S_A))); b('s_add_u32 %s, %s, 0x%x' % (sr(S_FLP), sr(S_FLP), WS_FLAG))
    b('s_mul_i32 %s, %s, 18432' % (sr(S_HXP), sr(S_A))); b('s_add_u32 %s, %s, 0x%x' % (sr(S_HXP), sr(S_HXP), WS_HX))
    b('s_lshl_b32 %s, %s, 1' % (sr(S_A), sr(S_I))); b('s_add_u32 %s, %s, %s' % (sr(S_A), sr(S_A), sr(S_S)))
    b('s_lshl_b32 %s, %s, 3' % (sr(S_A), sr(S_A))); b('s_add_u32 %s, %s, %s' % (sr(S_A), sr(S_A), sr(S_JP)))
    b('s_lshl_b32 %s, %s, 2' % (sr(S_A), sr(S_A))); b('s_add_u32 %s, %s, %s' % (sr(S_A), sr(S_A), sr(S_W)))
    b('s_mul_i32 %s, %s, 18432' % (sr(S_P), sr(S_A))); b('s_add_u32 %s, %s, 0x%x' % (sr(S_P), sr(S_P), WS_P))
    b('s_mov_b32 %s, 0x3f80' % sr(S_LO)); b('s_mov_b32 %s, 0x3f800000' % sr(S_HI))
    b('s_mov_b32 %s, 3' % sr(S_CNT)); b('s_mov_b32 %s, 1' % sr(S_FVAL))
    LATE = OPT.get('late_setup', True)
    work = (pat if LATE else pat + rest + s_)
    def do_work(n):
        for _ in range(n):
            if not work: return
            x = work.pop(0)
            for t in (x if isinstance(x, list) else [x]): e(t)
    XLA = OPT.get('xla', 6)
    first = dma_G(S_WG, sr(S_GCOL), 0, 'Ga') + [('X', k, None) for k in range(2, XLA)]
    if not LATE: first += dma_G(S_WG, sr(S_GCOL), 1, 'Gb') + [('T', 0, None)]
    nvm = sum(1 for k in first if k[0] in 'DXT'); per = (len(work) + nvm - 1)//nvm
    for kind, text, tag in first:
        if kind == 'X': xload(P, text); do_work(per)
        elif kind == 'T': stload(P); do_work(per)
        else:
            e(text, tag=tag)
            if ' m0,' in text: e('s_nop 0')
            if kind == 'D': do_work(per)
    do_work(9999)
    if OPT.get('pro_stamps'): stamp('setup')
    def stats_block(P):
        e = P.e; Q = V_H; T = V_H + 8
        P.wait_vm_tag('st')
        for mm in range(2): e('v_add_f32 %s, %s, %s' % (vr(Q+mm), vr(Q+mm), vr(Q+2+mm)))
        for mm in range(2): e('v_add_f32 %s, %s, %s' % (vr(Q+mm), vr(Q+mm), vr(Q+4+mm)))
        for swap in ('v_permlane32_swap_b32', 'v_permlane16_swap_b32'):
            for k in range(2): e('v_mov_b32 %s, %s' % (vr(Q+2+k), vr(Q+k)))
            e('s_nop 1')
            for k in range(2): e('%s %s, %s' % (swap, vr(Q+k), vr(Q+2+k)))
            e('s_nop 1')
            for k in range(2): e('v_add_f32 %s, %s, %s' % (vr(Q+k), vr(Q+k), vr(Q+2+k)))
        e('s_mov_b32 s99, 0x%08x' % f2u(1.0/576))
        CC = -2.0*0.7978845608028654*1.4426950408889634
        for mm in range(2): e('v_mul_f32 %s, s99, %s' % (vr(V_K+mm), vr(Q+mm)))
        for mm in range(2): e('v_add_f32 %s, 0x%08x, %s' % (vr(V_K+mm), f2u(1e-5), vr(V_K+mm)))
        for mm in range(2): e('v_rsq_f32 %s, %s' % (vr(T+mm), vr(V_K+mm)))
        e('s_nop 0')
        for mm in range(2):
            e('v_mul_f32 %s, 0x%08x, %s' % (vr(V_C0+mm), f2u(CC), vr(T+mm)))
            e('v_mul_f32 %s, %s, %s' % (vr(T+2+mm), vr(T+mm), vr(T+mm)))
        for mm in range(2): e('v_mul_f32 %s, 0x%08x, %s' % (vr(T+2+mm), f2u(0.044715), vr(T+2+mm)))
        for mm in range(2): e('v_mul_f32 %s, %s, %s' % (vr(V_C1+mm), vr(V_C0+mm), vr(T+2+mm)))
    e('v_mov_b32 %s, %s' % (vr(V_RD), vr(V_PG))); e('v_add_u32 %s, %d, %s' % (vr(V_RD2), SLOT, vr(V_PG)))
    P.wait_vm(lambda x: x.tag in ('Ga', 'x0')); i = e('s_barrier'); i.meta = dict(needs='Ga')
    stamp('bar0')
    S = Stream()
    P4 = OPT.get('pass4', True)
    fr = []; mf = []
    if P4:
        def step(ks, fts):
            rd = V_RD if ks < 9 else V_RD2; kl = ks % 9
            f0 = len(fr)
            for ft in fts: fr.append(Frag(rd, (4*kl)*1024 + ft*256, (4*kl+2)*1024 + ft*256))
            for n, ft in enumerate(fts):
                for mm in range(2):
                    mf.append(MF(acc(V_G, ft, mm), f0+n, xfrag(ks, mm), '0' if ks == 0 else acc(V_G, ft, mm), [f0+n, f0+n+1] if (n % 2 == 0 and mm == 0) else None))
        for ks in range(15): step(ks, (0, 1, 2, 3))
        for ks in range(15, 18): step(ks, (0, 1))
        for ks in range(15, 18): step(ks, (2, 3))
        S.add(fr, mf)
    else:
        for ks in range(18):
            rd = V_RD if ks < 9 else V_RD2; kl = ks % 9
            f0 = len(fr)
            for ft in range(2): fr.append(Frag(rd, (4*kl)*1024 + ft*256, (4*kl+2)*1024 + ft*256))
            for ft in range(2):
                for mm in range(2):
                    mf.append(MF(acc(V_G, ft, mm), f0+ft, xfrag(ks, mm), '0' if ks == 0 else acc(V_G, ft, mm), [f0, f0+1] if (ft == 0 and mm == 0) else None))
        S.add(fr, mf)
        fr = []; mf = []
        for ft in (2, 3):
            for g in range(6):
                f0 = len(fr)
                for t in range(3):
                    ks = 3*g + t; kl = ks % 9
                    fr.append(Frag(V_RD if ks < 9 else V_RD2, (4*kl)*1024 + ft*256, (4*kl+2)*1024 + ft*256))
                for mm in range(2):
                    for t in range(3):
                        ks = 3*g + t
                        mf.append(MF(acc(V_G, ft, mm), f0+t, xfrag(ks, mm), '0' if ks == 0 else acc(V_G, ft, mm), [f0, f0+1, f0+2] if (mm == 0 and t == 0) else None))
        S.add(fr, mf)
    fx = Fixed()
    G = 8 if P4 else 4
    for ks in range(18):
        g0 = G*ks if (not P4 or ks < 15) else 120 + 4*(ks-15)
        g1 = g0 + (G if (not P4 or ks < 15) else 4) - 1
        if ks + XLA < 18: fx.put(g0, 'X', (lambda P, k=ks+XLA: xload(P, k)), cost=4)
        if ks + 1 < 18: fx.put(g1, 'X', (lambda P, k=ks+1: P.wait_vm_tag('x%d' % k)))
    fx.put(100 if P4 else 61, 'X', stats_block, cost=8)
    ch = []
    late_q = []
    if LATE:
        put_dma(ch, 1, dma_G(S_WG, sr(S_GCOL), 1, 'Gb'), step=2)
        fx.put(30, 'X', stload, cost=9)
        late_q = [Queue([Op(x) for x in rest], 'rest').window(0, 0, 110),
                  Queue([Op((lambda P, x=x: [P.e(t) for t in x]), cost=1) if isinstance(x, list) else Op(x) for x in s_], 'srest').window(0, 0, 110)]
    if P4:
        put_dma(ch, 62, dma_G(S_WU, sr(S_GCOL), 0, 'Ua'), step=3)
        put_dma(ch, 100, dma_G(S_WU, sr(S_GCOL), 1, 'Ub'), step=3)
        ch.append((136, 'S', 's_add_u32 %s, %s, 128' % (sr(S_GCOL), sr(S_GCOL)), None)); ch.append((137, 'S', 's_add_u32 %s, %s, 128' % (sr(S_GCOL2), sr(S_GCOL2)), None))
        gbw = 9*8 - LAR - 2
    else:
        put_dma(ch, 57, dma_G(S_WU, sr(S_GCOL), 0, 'Ua'), step=2)
        put_dma(ch, 78, dma_G(S_WU, sr(S_GCOL), 1, 'Ub'), step=5)
        ch.append((126, 'S', 's_add_u32 %s, %s, 128' % (sr(S_GCOL), sr(S_GCOL)), None)); ch.append((127, 'S', 's_add_u32 %s, %s, 128' % (sr(S_GCOL2), sr(S_GCOL2)), None))
        gbw = 22
    fx.chain(ch)
    if dbg and OPT.get('pro_stamps'):
        for g in ((39, 79, 119) if P4 else (23, 47, 71)): fx.put(g, 'X', (lambda P, g=g: stamp('p%d' % g)), cost=0)
    fx.put(gbw, 'L', '@waitvm', 'Gb'); fx.put(gbw, 'B', 's_barrier', 'Gb')
    if P4: qa = gelu_q(0, 'g0', V_T).window(134, 134, 140); qb = gelu_q(1, 'g1', V_T+4).window(135, 135, 141)
    else: qa = gelu_q(0, 'g0', V_T).window(75, 75, 108); qb = gelu_q(1, 'g1', V_T+4).window(92, 100, 142)
    if late_q: qa.after([late_q[0]]); qb.after([late_q[0]])
    put_bar(fx, 144, 'Ua', PAT_G)
    ua = st_GU(V_U, 0, True)
    info['peel'] = emit_stream(P, S, ua[0][:LAR//2], fx, late_q + [qa, qb], A_W, NF, LAR, 0, maxslots=9, opt=OPT, first_reads=True, drain_ok=True, drain_interleave=True)
    stamp('peel')
    P.raw('.p2align 6'); P.raw('L_%s_loop:' % name)
    body_start = len(P.ins)
    def flagstore(tag, val):
        def f(P):
            if not OPT.get('no_flagwait'): P.wait_vm_tag(tag)
            P.e('v_mov_b32 %s, %s' % (vr(V_FL), val))
            P.e('buffer_store_dword %s, off, %s, %s sc1' % (vr(V_FL), sr(S_WS,4), sr(S_FLO)), tag='fl')
        f.cost = 3
        return f
    def front(fx, ch, tail):
        S = Stream().add(*st_GU(V_U, 0, True)).add(*st_GU(V_U, 1, False))
        G0 = OPT.get('dma_g0', 2)
        if not tail:
            put_dma(ch, G0, dma_G(S_WG, sr(S_GCOL), 0, 'Ga')); put_dma(ch, 72+G0, dma_G(S_WG, sr(S_GCOL), 1, 'Gb'))
            put_bar(fx, 72, 'Ub', PAT_G); put_bar(fx, 144, 'Ga', PAT_G)
        else:
            put_dma(ch, G0, dma_G(S_WG, sr(S_HCOL), 0, 'Gh', 16)); put_dma(ch, 72+G0, dma_D(sr(S_DROW), 'D'))
            put_bar(fx, 72, 'Ub', PAT_G); put_bar(fx, 144, 'Gh', PAT_H)
        W = OPT.get('win', dict())
        def win(k, kind): return W.get(k + ('T' if tail else ''), W.get(k, kind))
        g2 = gelu_q(2, 'g2', V_T).window(0, *win('g2', (18, 85))); g3 = gelu_q(3, 'g3', V_T+4).window(0, *win('g3', (51, 148)))
        p0 = prod_q(0, V_H, 'p0').window(92, *win('p0', (130, 143)))
        p1 = prod_q(1, V_H, 'p1', (sr(S_HXO), 0, 'h0')).window(110, *win('p1', (135, 149))).after([p0])
        p2 = prod_q(2, V_H+8, 'p2').window(128, *win('p2', (165, 178))).after([g2, p1])
        p3 = prod_q(3, V_H+8, 'p3', (sr(S_HXO), 2048, 'h1')).window(146, *win('p3', (172, 188))).after([g3, p2])
        return S, [p0, p1, p2, p3, g2, g3]
    G0 = OPT.get('dma_g0', 2)
    Hf = [[vr(V_H + 8*kq + 4*mm, 4) for mm in range(2)] for kq in range(2)]
    fx = Fixed(); ch = []
    S, qs = front(fx, ch, False)
    S.add(*st_GU(V_G, 0, True)).add(*st_GU(V_G, 1, False)).add(*st_D(Hf))
    put_dma(ch, 144+G0, dma_D(sr(S_DROW), 'D')); put_dma(ch, 216+G0, dma_G(S_WU, sr(S_GCOL), 0, 'Ua')); put_dma(ch, 288+G0, dma_G(S_WU, sr(S_GCOL), 1, 'Ub'))
    fx.chain(ch)
    put_bar(fx, 216, 'Gb', PAT_G); put_bar(fx, 288, 'D', PAT_D); put_bar(fx, 360, 'Ua', PAT_G)
    p3 = qs[3]
    W = OPT.get('win', dict())
    n0 = gelu_q(0, 'g0n', V_T).window(237, *W.get('n0', (252, 318))).after([p3]); n1 = gelu_q(1, 'g1n', V_T+4).window(255, *W.get('n1', (295, 359))).after([p3])
    fx.put(277, 'X', flagstore('h1', sr(S_FVAL)), cost=3)
    fx.chain([(285, 'S', 's_add_u32 %s, %s, 1' % (sr(S_FVAL), sr(S_FVAL)), None), (286, 'S', 's_add_u32 %s, %s, 4096' % (sr(S_HXO), sr(S_HXO)), None),
              (287, 'S', 's_add_u32 %s, %s, %d' % (sr(S_DROW), sr(S_DROW), 64*1152), None)])
    info['body'] = emit_stream(P, S, ua[0][:LAR//2], fx, qs + [n0, n1], A_W, NF, LAR, 0, maxslots=OPT['cap'], opt=OPT)
    dl = {q.name: q.finish for q in qs + [n0, n1]}
    assert dl['p0'] <= 143 and dl['p1'] <= 161 and dl['p2'] <= 179 and dl['p3'] <= 197, dl
    info['fb'] = dl
    e('s_add_u32 %s, %s, 128' % (sr(S_GCOL), sr(S_GCOL))); e('s_add_u32 %s, %s, 128' % (sr(S_GCOL2), sr(S_GCOL2)))
    e('s_sub_u32 %s, %s, 1' % (sr(S_CNT), sr(S_CNT))); e('s_cmp_lg_u32 %s, 0' % sr(S_CNT))
    e('s_cbranch_scc1 L_%s_loop' % name)
    body_end = len(P.ins)
    stamp('loop')
    fx = Fixed(); ch = []
    S, qs = front(fx, ch, True)
    S.add(*st_half(V_G)).add(*st_D(Hf)).add(*st_half(V_U))
    HHf = [vr(V_HH + 4*mm, 4) for mm in range(2)]
    hp = [[hpfrag(th, mm) for mm in range(2)] for th in range(9)]
    FIN = OPT.get('final', 3)
    F2 = FIN in (2, 3)
    RA = (V_RD, V_RD2); RB = (V_T, V_T+1)
    put_dma(ch, 144+G0, dma_G(S_WU, sr(S_HCOL), 0, 'Uh', 16))
    if FIN == 1:
        for pair in ([hp[0], hp[1]], [hp[2], hp[3]], [hp[4], hp[5]], [HHf, hp[6]], [hp[7], hp[8]]): S.add(*st_D(pair))
        for k in range(5): put_dma(ch, 216+72*k+G0, dma_D(sr(S_E+k), 'E%d' % k))
        fx.chain(ch)
        put_bar(fx, 216, 'D', PAT_D); put_bar(fx, 288, 'Uh', PAT_H)
        for k in range(5): put_bar(fx, 360+72*k, 'E%d' % k, PAT_D)
    elif FIN == 3:
        for pair in ([hp[0], hp[1]], [hp[2], hp[3]], [hp[4], hp[5]]): S.add(*st_D(pair))
        last = [HHf, hp[6], hp[7], hp[8]]
        S.add(*st_F(last, 0)).add(*st_F(last, 1))
        for k in range(3): put_dma(ch, 216+72*k+G0, dma_D(sr(S_E+k), 'E%d' % k))
        put_dma(ch, 432+G0, dma_F(sr(S_E+3), 'F0')); put_dma(ch, 504+G0, dma_F(sr(S_E+4), 'F1'))
        fx.chain(ch)
        put_bar(fx, 216, 'D', PAT_D); put_bar(fx, 288, 'Uh', PAT_H)
        for k in range(3): put_bar(fx, 360+72*k, 'E%d' % k, PAT_D)
        put_bar(fx, 576, 'F0', [(V_RD, V_PF)]); put_bar(fx, 648, 'F1', [(V_RD, V_PF)])
        qf = Queue([Op(x) for x in f_setup_ops()], 'fset').window(362, 362, 425)
    else:
        for pair in ([hp[0], hp[1]], [hp[2], hp[3]], [hp[4], hp[5]]): S.add(*st_D(pair))
        S.add(*st_final([HHf, hp[6], hp[7], hp[8]], RA, RB))
        for k in range(3): put_dma(ch, 216+72*k+G0, dma_D(sr(S_E+k), 'E%d' % k))
        put_dma(ch, 421, dma_D(sr(S_E+3), 'E3'), step=6); put_dma(ch, 475, dma_D(sr(S_E+4), 'E4'), step=6)
        fx.chain(ch)
        put_bar(fx, 216, 'D', PAT_D); put_bar(fx, 288, 'Uh', PAT_H)
        for k in range(3): put_bar(fx, 360+72*k, 'E%d' % k, PAT_D)
        fx.put(436, 'B', 's_barrier', None)
        put_bar(fx, 576, ['E3', 'E4'], PAT_D)
        def second_base(P):
            P.e('s_add_u32 %s, %s, 1' % (sr(S_A), sr(S_CR))); P.e('s_and_b32 %s, %s, 3' % (sr(S_A), sr(S_A))); P.e('s_mul_i32 %s, %s, %d' % (sr(S_A), sr(S_A), SLOT))
            P.e('v_add_u32 %s, %s, %s' % (vr(RB[0]), sr(S_A), vr(V_PDE))); P.e('v_add_u32 %s, %s, %s' % (vr(RB[1]), sr(S_A), vr(V_PDO)))
        fx.put(576-LAR-3, 'X', second_base, cost=5)
    p3 = qs[3]
    h0 = gelu_q(0, 'gh0', V_T).window(183, 195, 265).after([p3]); h1 = gelu_q(1, 'gh1', V_T+4).window(219, 255, 330).after([p3])
    fx.chain([(340, 'S', 's_add_u32 %s, %s, 4096' % (sr(S_T1), sr(S_HXO)), None)])
    ph0 = prod_q(0, V_HH, 'ph0').window(327, 330, 350).after([h0])
    ph1 = prod_q(1, V_HH, 'ph1', (sr(S_T1), 0, 'hh')).window(363, 364, 384).after([h1, ph0])
    def poll_issue(P): P.e('buffer_load_dword %s, off, %s, %s sc1' % (vr(V_PO), sr(S_WS,4), sr(S_FLP)), tag='poll')
    slow = []
    def poll_check(val, lab):
        def f(P):
            P.wait_vm_tag('poll')
            P.e('v_readfirstlane_b32 %s, %s' % (sr(S_A), vr(V_PO)))
            P.e('s_nop 0')
            P.e('s_cmp_ge_u32 %s, %d' % (sr(S_A), val))
            P.e('s_cbranch_scc0 L_%s_slow%s' % (name, lab))
            P.raw('L_%s_back%s:' % (name, lab))
            slow.append((val, lab))
        f.cost = 5
        return f
    def hp_load(x):
        def f(P):
            if x % 4 == 0: P.e('s_add_u32 %s, %s, %d' % (sr(S_B), sr(S_HXP), (x//4)*4096))
            th, mm = divmod(x, 2)
            P.e('buffer_load_dwordx4 %s, %s, %s, %s offen offset:%d sc1' % (hpfrag(th, mm), vr(V_L16), sr(S_WS,4), sr(S_B), (x % 4)*1024), tag='hp%d' % x)
        return f
    if dbg and OPT.get('tail_stamps'):
        for g in OPT['tail_stamps']: fx.put(g, 'X', (lambda P, g=g: stamp('t%d' % g)), cost=0)
    fx.put(144, 'X', poll_issue, cost=2); fx.put(277, 'X', poll_check(3, 'a'), cost=5)
    for x in range(4): fx.put(279 + 2*x, 'X', hp_load(x), cost=2)
    for x in range(4, 8): fx.put(350 + 2*(x-4), 'X', hp_load(x), cost=2)
    for x in range(8, 12): fx.put(422 + 2*(x-8), 'X', hp_load(x), cost=2)
    fx.put(279, 'X', flagstore('h1', '4'), cost=3)
    fx.put(440, 'X', flagstore('hh', '5'), cost=3)
    if not F2:
        fx.put(360, 'X', poll_issue, cost=2); fx.put(493, 'X', poll_check(4, 'b'), cost=5)
        for x in range(12, 16): fx.put(495 + 2*(x-12), 'X', hp_load(x), cost=2)
        fx.put(504, 'X', poll_issue, cost=2); fx.put(565, 'X', poll_check(5, 'c'), cost=5)
        for x in range(16, 18): fx.put(567 + 2*(x-16), 'X', hp_load(x), cost=2)
    else:
        fx.put(478, 'X', poll_issue, cost=2); fx.put(513, 'X', poll_check(5, 'b'), cost=5)
        for x in range(12, 18): fx.put(515 + 2*(x-12), 'X', hp_load(x), cost=2)
    def hp_wait(xs):
        def f(P): P.wait_vm(lambda i: i.tag in ['hp%d' % t for t in xs])
        return f
    fx.put(360-4, 'X', hp_wait(range(4)))
    fx.put(432-4, 'X', hp_wait(range(4, 8)))
    fx.put(504-4, 'X', hp_wait(range(8, 12)))
    if not F2:
        fx.put(576-4, 'X', hp_wait(range(12, 14)))
        fx.put(648-4, 'X', hp_wait(range(14, 18)))
    else: fx.put(576-2, 'X', hp_wait(range(12, 18)))
    ep = []
    for np_ in range(9):
        ear = (576 + 16*(np_+1) + 2) if F2 else (648 + 8*(np_+1) + 2)
        for mm in range(2):
            tb = V_G + 16*((2*np_+mm) % 4); hb = V_H + 4*((2*np_+mm) % 4)
            for k in range(2):
                for r in range(4): ep.append(Op('v_accvgpr_read_b32 %s, a%d' % (vr(tb+4*k+r), A_OUT + 8*(2*np_+k) + 4*mm + r), ear))
            for d in range(4): ep.append(Op('v_cvt_pk_bf16_f32 %s, %s, %s' % (vr(hb+d), vr(tb+2*d), vr(tb+2*d+1)), ear))
            fr_ = mm*9 + np_
            def st(P, fr_=fr_, hb=hb):
                P.e('s_add_u32 %s, %s, %d' % (sr(S_T0), sr(S_P), fr_*1024))
                P.e('buffer_store_dwordx4 %s, %s, %s, %s offen sc1' % (vr(hb,4), vr(V_L16), sr(S_WS,4), sr(S_T0)), tag='p')
            ep.append(Op(st, ear, cost=2))
    qe = Queue(ep, 'ep', prio=True)
    allq = qs + [ph0, ph1, h0, h1, qe] + ([qf] if FIN == 3 else [])
    info['tail'] = emit_stream(P, S, [], fx, allq, A_W, NF, LAR, 0, maxslots=OPT['cap'], opt=OPT, drain_ok=True, drain_pre='s_nop 7')
    dl = {q.name: q.finish for q in allq}
    assert dl['p0'] <= 143 and dl['p1'] <= 179 and dl['p3'] < 212 and dl['ph1'] < 420 and dl['gh0'] < 326, dl
    if FIN == 3: assert dl['fset'] < 430, dl
    info['ft'] = dl
    stamp('tail')
    if dbg:
        e('s_waitcnt vmcnt(0)')
        stamp('end')
        e('s_mov_b32 s4, s94'); e('s_mov_b32 s5, s95'); e('s_mov_b32 s6, 0x100000'); e('s_mov_b32 s7, 0x20000')
        e('s_lshl_b32 s41, s2, 2'); e('s_add_u32 s41, s41, %s' % sr(S_W)); e('s_lshl_b32 s41, s41, 7')
        for k in range(len(stamps)):
            e('s_sub_u32 s42, s%d, s64' % (64+k)); e('v_mov_b32 v1, s42')
            e('buffer_store_dword v1, off, s[4:7], s41 offset:%d' % (4*k))
            e('s_sub_u32 s42, s%d, s77' % (77+k)); e('v_mov_b32 v1, s42')
            e('buffer_store_dword v1, off, s[4:7], s41 offset:%d' % (64+4*k))
        e('v_mov_b32 v1, s77'); e('buffer_store_dword v1, off, s[4:7], s41 offset:60')
    P.raw('L_%s_end:' % name)
    e('s_endpgm')
    main_end = len(P.ins)
    for val, lab in slow:
        P.raw('L_%s_slow%s:' % (name, lab))
        P.raw('s_mov_b32 %s, 0x8000' % sr(S_C))
        P.raw('L_%s_spin%s:' % (name, lab))
        P.raw('s_sleep 2')
        P.raw('buffer_load_dword %s, off, %s, %s sc1' % (vr(V_PO), sr(S_WS,4), sr(S_FLP)))
        P.raw('s_waitcnt vmcnt(0)')
        P.raw('v_readfirstlane_b32 %s, %s' % (sr(S_A), vr(V_PO)))
        P.raw('s_sub_u32 %s, %s, 1' % (sr(S_C), sr(S_C)))
        P.raw('s_cmp_eq_u32 %s, 0' % sr(S_C))
        P.raw('s_cbranch_scc1 L_%s_back%s' % (name, lab))
        P.raw('s_cmp_ge_u32 %s, %d' % (sr(S_A), val))
        P.raw('s_cbranch_scc0 L_%s_spin%s' % (name, lab))
        P.raw('s_branch L_%s_back%s' % (name, lab))
    ins = P.ins
    path = ins[:body_start] + ins[body_start:body_end]*3 + ins[body_end:main_end]
    info['stamps'] = stamps
    return P, path, info

if __name__ == '__main__':
    import collections
    P, path, info = build()
    check(path, 'k3b')
    print('barrier problems', verify_barriers(path))
    for k in ('peel', 'body', 'tail'):
        print(k, 'slots/gap hist', sorted(collections.Counter(info[k]).items()), 'est cyc/unit %.2f' % (est_cycles(info[k])/len(info[k])*2))
    print(info['fb']); print(info['ft'])
    print('instrs', len(P.ins))
```

```python
from core import *
from common import *
from stamps import Stamper

XR_END = 92160
WSLOT = 16384
PITCH = 516
LDS_BYTES = XR_END + 4*WSLOT

def build(name='k1_kernel', prefetch=None, dbg=False, pf=()):
    P = Prog(); e = P.e
    VB = [2, 3]; VBH = [4, 5]; VA, PA = 6, 20
    VW, VX, VONE = 10, 14, 16
    VWA, T = 192, 27
    BB = [40, 60]; AB = [80, 96]; ACC = 112
    S_X, S_WQ, S_WS = 8, 12, 16
    S_W, S_HG, S_MI, S_C, S_RA, S_WA, S_WB, S_SO, S_T0, S_T1, S_CNT = 20, 21, 22, 23, 24, 25, 26, 27, 28, 29, 30
    S_MASK = 32
    S_OD = 40
    def acc(i, mt): return ACC + 20*i + 4*mt
    e('s_cmp_ge_u32 s2, 256'); e('s_cbranch_scc1 L_%s_end' % name)
    stamp = Stamper(P, dbg, S_W); stamp('start')
    if 'scramble' in pf:
        e('s_lshr_b32 s3, s2, 3'); e('s_and_b32 s2, s2, 7'); e('s_lshl_b32 s2, s2, 5'); e('s_or_b32 s2, s2, s3')
    e('s_load_dwordx4 s[4:7], s[0:1], %d' % KA_X)
    e('s_load_dwordx2 s[34:35], s[0:1], %d' % KA_WS)
    e('s_load_dwordx2 s[96:97], s[0:1], %d' % KA_WO); e('s_load_dwordx2 s[98:99], s[0:1], %d' % KA_WG)
    e('v_lshrrev_b32 v1, 6, v0'); e('v_and_b32 v0, 63, v0')
    e('v_readfirstlane_b32 %s, v1' % sr(S_W))
    e('s_and_b32 %s, s2, 1' % sr(S_HG)); e('s_lshl_b32 %s, %s, 2' % (sr(S_HG), sr(S_HG)))
    e('s_bfe_u32 %s, s2, 0x20003' % sr(S_T0)); e('s_add_u32 %s, %s, %s' % (sr(S_HG), sr(S_HG), sr(S_T0)))
    e('s_bfe_u32 %s, s2, 0x20001' % sr(S_MI)); e('s_lshl_b32 %s, %s, 3' % (sr(S_MI), sr(S_MI)))
    e('s_lshr_b32 %s, s2, 5' % sr(S_T0)); e('s_add_u32 %s, %s, %s' % (sr(S_MI), sr(S_MI), sr(S_T0)))
    e('v_lshrrev_b32 v1, 3, v0'); e('v_and_b32 %s, 7, v0' % vr(T))
    e('s_and_b32 %s, %s, 1' % (sr(S_T0), sr(S_W))); e('s_lshl_b32 %s, %s, 2' % (sr(S_T0), sr(S_T0)))
    e('v_lshrrev_b32 %s, 1, v1' % vr(T+1)); e('v_add_u32 %s, %s, %s' % (vr(T+1), sr(S_T0), vr(T+1)))
    e('v_xor_b32 %s, %s, %s' % (vr(T+1), vr(T+1), vr(T))); e('v_lshlrev_b32 %s, 4, %s' % (vr(T+1), vr(T+1)))
    e('v_mul_u32_u24 %s, 1152, v1' % vr(T+2)); e('v_add_u32 %s, %s, %s' % (vr(VX), vr(T+1), vr(T+2)))
    e('s_waitcnt lgkmcnt(0)')
    for srd, lo, hi, size in ((S_X, 4, 5, S_*D_*2), (S_WQ, 6, 7, D_*3*D_*2), (S_WS, 34, 35, WS_END)):
        e('s_mov_b32 %s, s%d' % (sr(srd), lo)); e('s_mov_b32 %s, s%d' % (sr(srd+1), hi))
        e('s_mov_b32 %s, 0x%x' % (sr(srd+2), size)); e('s_mov_b32 %s, 0x%x' % (sr(srd+3), SRD3))
    stamp('setup')
    W1 = []; a = W1.append
    for t in range(4):
        d = vr(VW+t)
        a('s_lshl_b32 s31, %s, 6' % sr(S_W)); a('s_add_u32 s31, s31, %d' % (256*t))
        a('v_add_u32 %s, s31, v0' % vr(T))
        a('v_mul_u32_u24 %s, 7282, %s' % (vr(T+1), vr(T))); a('v_lshrrev_b32 %s, 16, %s' % (vr(T+1), vr(T+1)))
        a('v_mul_u32_u24 %s, 9, %s' % (vr(T+2), vr(T+1))); a('v_sub_u32 %s, %s, %s' % (vr(T+2), vr(T), vr(T+2)))
        a('v_lshrrev_b32 %s, 5, %s' % (vr(T+3), vr(T+1))); a('v_and_b32 %s, 31, %s' % (vr(T+1), vr(T+1)))
        a('v_mul_u32_u24 %s, 1152, %s' % (vr(T+3), vr(T+3))); a('v_lshl_add_u32 %s, %s, 4, %s' % (vr(T+2), vr(T+2), vr(T+3)))
        a('v_mul_u32_u24 %s, 3456, %s' % (vr(T+1), vr(T+1))); a('v_add_u32 %s, %s, %s' % (d, vr(T+2), vr(T+1)))
        a(['v_cmp_le_u32 vcc, 864, %s' % vr(T), 'v_mov_b32 %s, 0x7fff0000' % vr(T+3), 's_nop 0', 'v_cndmask_b32 %s, %s, %s, vcc' % (d, d, vr(T+3))])
    W2 = []; a = W2.append
    M = T+5; Q_ = T+6
    a('v_and_b32 %s, 15, v0' % vr(M)); a('v_lshrrev_b32 %s, 4, v0' % vr(Q_))
    a('v_lshrrev_b32 %s, 3, %s' % (vr(T+1), vr(M))); a('v_mul_u32_u24 %s, 9216, %s' % (vr(T+1), vr(T+1)))
    a('v_and_b32 %s, 7, %s' % (vr(T+2), vr(M))); a('v_lshl_add_u32 %s, %s, 7, %s' % (vr(T+1), vr(T+2), vr(T+1)))
    a('v_lshrrev_b32 %s, 1, %s' % (vr(T+2), vr(M)))
    for kp in range(2):
        a('v_add_u32 %s, %d, %s' % (vr(T+3), 4*kp, vr(Q_))); a('v_xor_b32 %s, %s, %s' % (vr(T+3), vr(T+3), vr(T+2)))
        a('v_lshl_add_u32 %s, %s, 4, %s' % (vr(VB[kp]), vr(T+3), vr(T+1))); a('v_add_u32 %s, %d, %s' % (vr(VBH[kp]), 4*18432, vr(VB[kp])))
    a('v_bfe_u32 %s, v0, 2, 2' % vr(T+2)); a('v_lshl_add_u32 %s, %s, 3, %s' % (vr(T+2), vr(Q_), vr(T+2)))
    a('v_mul_u32_u24 %s, 144, %s' % (vr(T+2), vr(T+2))); a('v_add_u32 %s, %d, %s' % (vr(T+2), XR_END, vr(T+2)))
    a('v_and_b32 %s, 3, v0' % vr(T+1)); a('v_lshlrev_b32 %s, 2, %s' % (vr(T+1), vr(T+1)))
    for i4 in range(4):
        a('s_lshl_b32 s31, %s, 6' % sr(S_W)); a('s_add_u32 s31, s31, %d' % (16*i4))
        a('v_add_u32 %s, s31, %s' % (vr(T+3), vr(T+1)))
        a('v_min_u32 %s, 212, %s' % (vr(T+3), vr(T+3)))
        a('v_mul_u32_u24 %s, 911, %s' % (vr(T+4), vr(T+3))); a('v_lshrrev_b32 %s, 16, %s' % (vr(T+4), vr(T+4)))
        a('v_mul_u32_u24 %s, %d, %s' % (vr(T+4), 4608 - 144, vr(T+4)))
        a('v_lshl_add_u32 %s, %s, 1, %s' % (vr(T+3), vr(T+3), vr(T+4))); a('v_add_u32 %s, %s, %s' % (vr(PA+i4), vr(T+3), vr(T+2)))
    for k in range(4): a('v_mov_b32 %s, 0x3f803f80' % vr(VONE+k))
    a('v_cmp_eq_u32 %s, 0, %s' % (sr(S_MASK, 2), vr(M)))
    for i4 in range(4):
        for d2 in range(2):
            d = vr(VWA + 2*i4 + d2)
            a('s_lshl_b32 s31, %s, 6' % sr(S_W)); a('s_add_u32 s31, s31, %d' % (16*i4 + 2*d2))
            a('v_lshl_add_u32 %s, %s, 2, s31' % (vr(T+1), vr(Q_)))
            a('v_mul_u32_u24 %s, 3641, %s' % (vr(T+2), vr(T+1))); a('v_lshrrev_b32 %s, 16, %s' % (vr(T+2), vr(T+2)))
            a('v_mul_u32_u24 %s, 18, %s' % (vr(T+3), vr(T+2))); a('v_sub_u32 %s, %s, %s' % (vr(T+3), vr(T+1), vr(T+3)))
            a('v_min_u32 %s, 12, %s' % (vr(T+2), vr(T+2)))
            a('v_mul_u32_u24 %s, 3200, %s' % (vr(T+2), vr(T+2))); a('v_lshl_add_u32 %s, %s, 1, %s' % (vr(T+2), vr(T+3), vr(T+2)))
            a('v_mul_u32_u24 %s, 40, %s' % (vr(T+3), vr(M))); a('v_add_u32 %s, %s, %s' % (d, vr(T+2), vr(T+3)))
    for i4 in range(4):
        for mt in range(5):
            for r in range(4): a('v_mov_b32 %s, 0' % vr(acc(i4, mt)+r))
    a('s_mul_i32 s37, %s, 72' % sr(S_HG)); a('s_mul_i32 s38, %s, 18' % sr(S_W)); a('s_add_u32 s37, s37, s38')
    for d in range(9):
        o = sr(S_OD+d)
        a('s_add_u32 s38, s37, %d' % (2*d))
        a('s_lshr_b32 %s, s38, 5' % o); a('s_lshl_b32 %s, %s, 10' % (o, o))
        a('s_bfe_u32 s39, s38, 0x20002'); a('s_lshl_b32 s39, s39, 8'); a('s_add_u32 %s, %s, s39' % (o, o))
        a('s_bfe_u32 s39, s38, 0x10004'); a('s_lshl_b32 s39, s39, 3'); a('s_add_u32 %s, %s, s39' % (o, o))
        a('s_bfe_u32 s39, s38, 0x10001'); a('s_lshl_b32 s39, s39, 2'); a('s_add_u32 %s, %s, s39' % (o, o))
    def work(lst, n):
        for _ in range(n):
            if not lst: return
            x = lst.pop(0)
            for t in (x if isinstance(x, list) else [x]): e(t)
    n1 = len(W1)
    for bi in range(3):
        if bi == 2:
            work(W1, 999)
            e('s_cmp_ge_u32 %s, 2' % sr(S_W)); e('s_cbranch_scc1 L_%s_nox' % name)
        e('s_add_u32 %s, %s, %d' % (sr(S_T0), sr(S_W), 4*bi))
        e('s_lshl_b32 %s, %s, 3' % (sr(S_T1), sr(S_MI))); e('s_add_u32 %s, %s, %s' % (sr(S_T1), sr(S_T1), sr(S_T0)))
        e('s_sub_u32 %s, %s, 2' % (sr(S_T1), sr(S_T1))); e('s_max_i32 %s, %s, 0' % (sr(S_T1), sr(S_T1)))
        e('s_mul_i32 %s, %s, %d' % (sr(S_T1), sr(S_T1), 8*1152))
        e('s_mul_i32 %s, %s, 9216' % (sr(S_T0), sr(S_T0)))
        for lam in range(9):
            P.raw('s_add_u32 m0, %s, %d' % (sr(S_T0), lam*1024))
            P.raw('s_add_u32 s36, %s, %d' % (sr(S_T1), lam*128))
            P.raw('buffer_load_dwordx4 %s, %s, s36 offen lds' % (vr(VX), sr(S_X,4)))
            if bi < 2: work(W1, (n1 + 17)//18)
    P.raw('L_%s_nox:' % name)
    e('s_mul_i32 %s, %s, 144' % (sr(S_SO), sr(S_HG)))
    e('s_lshl_b32 %s, %s, 10' % (sr(S_WB), sr(S_W))); e('s_add_u32 %s, %s, %d' % (sr(S_WB), sr(S_WB), XR_END))
    n2 = len(W2)
    for ks in range(4):
        for t in range(4):
            e('s_add_u32 m0, %s, %d' % (sr(S_WB), ks*WSLOT + t*4096))
            if t == 0: e('s_add_u32 %s, %s, %d' % (sr(S_T0), sr(S_SO), ks*32*3456))
            else: e('s_nop 0')
            e('buffer_load_dwordx4 %s, %s, %s offen lds' % (vr(VW+t), sr(S_WQ,4), sr(S_T0)), tag='w%d' % ks)
            work(W2, (n2 + 15)//16)
    work(W2, 999)
    e('s_add_u32 %s, %s, %d' % (sr(S_SO), sr(S_SO), 4*32*3456))
    VP = 36
    if 'code' in pf or 'wq' in pf or 'wo' in pf or 'wg' in pf:
        e('s_lshr_b32 s60, s2, 3'); e('s_and_b32 s61, s2, 7')
        e('s_lshl_b32 s50, %s, 6' % sr(S_W)); e('v_add_u32 %s, s50, v0' % vr(VP))
    if 'code' in pf:
        P.raw('s_getpc_b64 s[52:53]'); P.raw('L_%s_pc:' % name)
        P.raw('s_sub_u32 s52, s52, L_%s_pc - %s' % (name, name)); P.raw('s_subb_u32 s53, s53, 0')
        P.raw('s_mov_b32 s54, L_text_end - %s' % name); e('s_mov_b32 s55, 0x%x' % SRD3)
        e('s_mul_i32 s50, s60, 14'); e('v_add_u32 %s, s50, %s' % (vr(VP+1), vr(VP))); e('v_lshlrev_b32 %s, 7, %s' % (vr(VP+1), vr(VP+1)))
        e('v_cmp_gt_u32 vcc, 14, %s' % vr(VP)); e('v_mov_b32 %s, 0x7fff0000' % vr(VP+2)); e('s_nop 0'); e('v_cndmask_b32 %s, %s, %s, vcc' % (vr(VP+1), vr(VP+2), vr(VP+1)))
        P.raw('buffer_load_dword %s, %s, s[52:55], 0 offen' % (vr(VP+2), vr(VP+1)))
    if 'wq' in pf:
        e('v_mul_u32_u24 %s, 4370, %s' % (vr(VP+1), vr(VP))); e('v_lshrrev_b32 %s, 16, %s' % (vr(VP+1), vr(VP+1)))
        e('v_mul_u32_u24 %s, 15, %s' % (vr(VP+3), vr(VP+1))); e('v_sub_u32 %s, %s, %s' % (vr(VP+3), vr(VP), vr(VP+3)))
        e('s_mul_i32 s50, s60, 14'); e('s_add_u32 s50, s50, 128'); e('v_add_u32 %s, s50, %s' % (vr(VP+1), vr(VP+1))); e('v_mul_u32_u24 %s, 3456, %s' % (vr(VP+1), vr(VP+1)))
        e('v_mul_u32_u24 %s, 52, %s' % (vr(T), vr(VP+3))); e('v_lshrrev_b32 %s, 8, %s' % (vr(T), vr(T)))
        e('v_mul_u32_u24 %s, 5, %s' % (vr(T+1), vr(T))); e('v_sub_u32 %s, %s, %s' % (vr(VP+3), vr(VP+3), vr(T+1)))
        e('v_mul_u32_u24 %s, 1152, %s' % (vr(T), vr(T))); e('v_add_u32 %s, %s, %s' % (vr(VP+1), vr(VP+1), vr(T)))
        e('v_lshl_add_u32 %s, %s, 7, %s' % (vr(VP+1), vr(VP+3), vr(VP+1)))
        e('v_cmp_gt_u32 vcc, 210, %s' % vr(VP)); e('v_mov_b32 %s, 0x7fff0000' % vr(T)); e('s_and_b32 s50, s61, 1'); e('s_lshl_b32 s50, s50, 9')
        e('v_cndmask_b32 %s, %s, %s, vcc' % (vr(VP+1), vr(T), vr(VP+1)))
        P.raw('buffer_load_dword %s, %s, %s, s50 offen' % (vr(VP+3), vr(VP+1), sr(S_WQ,4)))
    stamp('issued')
    if prefetch: prefetch(P)
    def reads(st, kp, ni):
        l = []
        for mt in range(5):
            rd = VB[kp] if mt < 4 else VBH[kp]
            l.append('ds_read_b128 %s, %s offset:%d' % (vr(BB[st]+4*mt, 4), vr(rd), mt*18432 if mt < 4 else 0))
        for i in range(ni):
            for u in range(2):
                l.append('ds_read_b64_tr_b16 %s, %s offset:%d' % (vr(AB[st]+4*i+2*u, 2), vr(VA+i), u*576))
        return l
    def ones_fix(st):
        for d in range(4): e('v_cndmask_b32 %s, %s, %s, %s' % (vr(BB[st]+d), vr(BB[st]+d), vr(VONE), sr(S_MASK, 2)))
    P.wait_vm_tag('w0'); e('s_barrier')
    stamp('w0')
    for i in range(4): e('v_mov_b32 %s, %s' % (vr(VA+i), vr(PA+i)))
    for t in reads(0, 0, 4): e(t)
    e('s_mov_b32 %s, 0' % sr(S_C)); e('s_mov_b32 %s, 9' % sr(S_CNT))
    e('s_waitcnt lgkmcnt(0)')
    ones_fix(0)
    e('s_cmp_eq_u32 %s, 3' % sr(S_W)); e('s_cbranch_scc1 L_%s_loop3' % name)
    spans = {}
    def loop(lab, stats_wave):
        P.raw('.p2align 6'); P.raw('L_%s_%s:' % (name, lab))
        a0 = len(P.ins)
        for kp in range(2):
            cur, nxt = kp, 1-kp
            ni = 2 if stats_wave else 4
            e('s_waitcnt vmcnt(8)')
            if 'nobar' not in pf: e('s_barrier')
            rd = reads(nxt, 1-kp, ni)
            SC = {0: 's_lshl_b32 %s, %s, 14' % (sr(S_T0), sr(S_C)), 1: 's_add_u32 %s, %s, %s' % (sr(S_WA), sr(S_WB), sr(S_T0)),
                  2: 's_add_u32 %s, %s, 1' % (sr(S_C), sr(S_C)), 3: 's_and_b32 %s, %s, 3' % (sr(S_C), sr(S_C)), 4: 's_lshl_b32 %s, %s, 14' % (sr(S_RA), sr(S_C)),
                  12: 's_waitcnt lgkmcnt(%d)' % min(15, (5 + 2*ni if ni == 4 else 5 + 2*ni) - 2 - (1 if ni == 4 else 0)),
                  13: 's_add_u32 m0, %s, 0' % sr(S_WA), 15: 's_add_u32 m0, %s, 4096' % sr(S_WA), 17: 's_add_u32 m0, %s, 8192' % sr(S_WA), 19: 's_add_u32 m0, %s, 12288' % sr(S_WA)}
            DS = {n: rd[n] for n in range(5)}
            for k in range(2*ni): DS[6+k] = rd[5+k]
            for t, n in enumerate((14, 16, 18)): DS[n] = 'buffer_load_dwordx4 %s, %s, %s offen lds' % (vr(VW+t), sr(S_WQ,4), sr(S_SO))
            VL = {}
            for i in range(ni): VL[5+i] = ['v_add_u32 %s, %s, %s' % (vr(VA+i), sr(S_RA), vr(PA+i))]
            VL[10] = ['v_add_u32 %s, 1024, %s' % (vr(VB[kp]), vr(VB[kp]))]; VL[11] = ['v_add_u32 %s, 1024, %s' % (vr(VBH[kp]), vr(VBH[kp]))]
            fix = ['v_cndmask_b32 %s, %s, %s, %s' % (vr(BB[nxt]+d), vr(BB[nxt]+d), vr(VONE), sr(S_MASK, 2)) for d in range(4)]
            VL[15] = fix[:2]; VL[17] = fix[2:]
            n = 0
            for i in range(4):
                for mt in range(5):
                    A = vr(AB[cur]+4*i, 4)
                    if stats_wave and i == 2: A = vr(VONE, 4)
                    if stats_wave and i == 3: A = vr(BB[cur]+4*mt, 4)
                    e('v_mfma_f32_16x16x32_bf16 %s, %s, %s, %s' % (vr(acc(i, mt), 4), A, vr(BB[cur]+4*mt, 4), vr(acc(i, mt), 4)))
                    if n == 12: P.wait_lg_regs(rset('v', BB[nxt], 4))
                    elif n in SC: e(SC[n])
                    if n in DS and not ('nodma' in pf and 'lds' in DS[n].split()[-1:]): e(DS[n])
                    for t in VL.get(n, []): e(t)
                    n += 1
            e('s_nop 0')
            if 'nodma' not in pf: e('buffer_load_dwordx4 %s, %s, %s offen lds' % (vr(VW+3), sr(S_WQ,4), sr(S_SO)))
            e('s_add_u32 %s, %s, %d' % (sr(S_SO), sr(S_SO), 32*3456))
            e('s_waitcnt lgkmcnt(0)')
        e('s_sub_u32 %s, %s, 1' % (sr(S_CNT), sr(S_CNT))); e('s_cmp_lg_u32 %s, 0' % sr(S_CNT)); e('s_cbranch_scc1 L_%s_%s' % (name, lab))
        spans[lab] = (a0, len(P.ins))
    loop('loop', False)
    e('s_branch L_%s_after' % name)
    b3 = len(P.ins)
    loop('loop3', True)
    STAT = LDS_BYTES - 1024*0
    e('v_and_b32 v1, 15, v0'); e('v_lshrrev_b32 %s, 4, v0' % vr(T)); e('v_lshrrev_b32 %s, 2, v1' % vr(T+1)); e('v_and_b32 %s, 3, v1' % vr(T+2))
    e('v_cmp_eq_u32 s[50:51], %s, %s' % (vr(T), vr(T+1)))
    for r in range(1, 4): e('v_cmp_eq_u32 s[%d:%d], %d, %s' % (50+2*r, 51+2*r, r, vr(T+2)))
    e('v_lshlrev_b32 v1, 3, v1'); e('v_add_u32 v1, %d, v1' % STAT)
    e('s_mov_b32 %s, 0x%08x' % (sr(S_T0), f2u(1.0/576)))
    for mt in range(5):
        g = acc(3, mt)
        for r in range(1, 4): e('v_cndmask_b32 %s, %s, %s, s[%d:%d]' % (vr(g), vr(g), vr(g+r), 50+2*r, 51+2*r))
    for mt in range(5): e('v_mul_f32 %s, %s, %s' % (vr(acc(2, mt)), sr(S_T0), vr(acc(2, mt))))
    for mt in range(5): e('v_mul_f32 %s, %s, %s' % (vr(acc(3, mt)), sr(S_T0), vr(acc(3, mt))))
    e('s_cmp_lg_u32 %s, 0' % sr(S_HG)); e('s_cbranch_scc1 L_%s_nomx' % name)
    e('v_and_b32 %s, 15, v0' % vr(T+3)); e('v_lshlrev_b32 %s, 2, %s' % (vr(T+3), vr(T+3)))
    e('s_lshl_b32 %s, %s, 8' % (sr(S_T1), sr(S_MI))); e('s_add_u32 %s, %s, 0x%x' % (sr(S_T1), sr(S_T1), WS_MX))
    e('s_mov_b64 exec, s[50:51]')
    for mt in range(1, 5): P.raw('buffer_store_dword %s, %s, %s, %s offen offset:%d' % (vr(acc(2, mt)), vr(T+3), sr(S_WS,4), sr(S_T1), 64*(mt-1)))
    e('s_mov_b64 exec, -1')
    P.raw('L_%s_nomx:' % name)
    for mt in range(5): e('v_fma_f32 %s, -%s, %s, %s' % (vr(acc(3, mt)), vr(acc(2, mt)), vr(acc(2, mt)), vr(acc(3, mt))))
    for mt in range(5): e('v_max_f32 %s, 0, %s' % (vr(acc(3, mt)), vr(acc(3, mt))))
    for mt in range(5): e('v_add_f32 %s, 0x%08x, %s' % (vr(acc(3, mt)), f2u(1e-5), vr(acc(3, mt))))
    for mt in range(5): e('v_rsq_f32 %s, %s' % (vr(acc(3, mt)+1), vr(acc(3, mt))))
    e('s_nop 0')
    for mt in range(5): e('v_mul_f32 %s, -%s, %s' % (vr(acc(3, mt)), vr(acc(2, mt)), vr(acc(3, mt)+1)))
    e('s_mov_b64 exec, s[50:51]')
    for mt in range(5): e('ds_write_b64 v1, %s offset:%d' % (vr(acc(3, mt), 2), 128*mt))
    e('s_mov_b64 exec, -1')
    e3 = len(P.ins)
    P.raw('L_%s_after:' % name)
    after = len(P.ins)
    stamp('loop')
    if 'wo' in pf or 'wg' in pf:
        e('s_mov_b32 s52, s96'); e('s_mov_b32 s53, s97'); e('s_mov_b32 s56, s98'); e('s_mov_b32 s57, s99')
        e('v_mul_u32_u24 %s, 7282, %s' % (vr(VP+1), vr(VP))); e('v_lshrrev_b32 %s, 16, %s' % (vr(VP+1), vr(VP+1)))
        e('v_mul_u32_u24 %s, 9, %s' % (vr(VP+2), vr(VP+1))); e('v_sub_u32 %s, %s, %s' % (vr(VP+2), vr(VP), vr(VP+2)))
        e('s_mul_i32 s50, s60, 18'); e('v_add_u32 %s, s50, %s' % (vr(VP+1), vr(VP+1))); e('v_mul_u32_u24 %s, 9216, %s' % (vr(VP+1), vr(VP+1)))
        e('v_lshl_add_u32 %s, %s, 7, %s' % (vr(VP+1), vr(VP+2), vr(VP+1)))
        e('s_mul_i32 s50, s60, 162'); e('v_add_u32 %s, s50, %s' % (vr(VP+2), vr(VP))); e('v_lshlrev_b32 %s, 7, %s' % (vr(VP+2), vr(VP+2)))
        e('v_cmp_gt_u32 vcc, 162, %s' % vr(VP)); e('v_mov_b32 %s, 0x7fff0000' % vr(VP+3)); e('s_mul_i32 s51, s61, 1152')
        e('v_cndmask_b32 %s, %s, %s, vcc' % (vr(VP+1), vr(VP+3), vr(VP+1))); e('v_cndmask_b32 %s, %s, %s, vcc' % (vr(VP+2), vr(VP+3), vr(VP+2)))
        e('s_mov_b32 s54, 0x%x' % (D_*D_*2)); e('s_mov_b32 s55, 0x%x' % SRD3)
        e('s_mov_b32 s58, 0x%x' % (D_*F_*2)); e('s_mov_b32 s59, 0x%x' % SRD3)
        if 'wo' in pf: P.raw('buffer_load_dword v14, %s, s[52:55], 0 offen' % vr(VP+2))
        if 'wg' in pf: P.raw('buffer_load_dword v15, %s, s[56:59], s51 offen' % vr(VP+1))
    WB = 100
    e('s_mov_b32 s52, s96'); e('s_mov_b32 s53, s97')
    e('s_lshl_b32 s50, %s, 8' % sr(S_W)); e('s_add_u32 s62, s50, s2')
    e('v_lshlrev_b32 %s, 4, v0' % vr(WB+8)); e('v_add_u32 %s, 1024, %s' % (vr(WB+9), vr(WB+8)))
    e('v_cmp_gt_u32 vcc, 8, v0'); e('v_mov_b32 %s, 0x7fff0000' % vr(WB)); e('s_mul_i32 s51, s62, 1152')
    e('v_cndmask_b32 %s, %s, %s, vcc' % (vr(WB+9), vr(WB), vr(WB+9)))
    e('s_mov_b32 s54, 0x%x' % (D_*D_*2)); e('s_mov_b32 s55, 0x%x' % SRD3)
    e('buffer_load_dwordx4 %s, %s, s[52:55], s51 offen' % (vr(WB, 4), vr(WB+8)), tag='wb')
    e('buffer_load_dwordx4 %s, %s, s[52:55], s51 offen' % (vr(WB+4, 4), vr(WB+9)), tag='wb')
    CS = BB[0]
    e('s_nop 4')
    for i in range(4):
        for r in range(4):
            e('v_mov_b32_dpp %s, %s row_newbcast:0 row_mask:0xf bank_mask:0xf' % (vr(CS+4*i+r), vr(acc(i, 0)+r)))
    e('s_waitcnt lgkmcnt(0)'); e('s_barrier')
    ST = BB[1]
    e('v_and_b32 v1, 15, v0'); e('v_lshlrev_b32 v1, 3, v1'); e('v_add_u32 v1, %d, v1' % STAT)
    for mt in range(5): e('ds_read_b64 %s, v1 offset:%d' % (vr(ST+2*mt, 2), 128*mt))
    e('s_waitcnt lgkmcnt(0)')
    for mt in range(5):
        for i in range(4):
            a = acc(i, mt); t0 = T + 4*(i % 2)
            for r in range(4): e('v_mul_f32 %s, %s, %s' % (vr(t0+r), vr(ST+2*mt), vr(CS+4*i+r)))
            for r in range(4): e('v_fma_f32 %s, %s, %s, %s' % (vr(a+r), vr(a+r), vr(ST+2*mt+1), vr(t0+r)))
            e('v_cvt_pk_bf16_f32 %s, %s, %s' % (vr(a), vr(a), vr(a+1))); e('v_cvt_pk_bf16_f32 %s, %s, %s' % (vr(a+1), vr(a+2), vr(a+3)))
            for d2 in range(2): e('ds_write_b32 %s, %s offset:%d' % (vr(VWA+2*i+d2), vr(a+d2), 640*mt))
    e('s_waitcnt lgkmcnt(0)'); e('s_barrier')
    stamp('fix')
    AD = 2
    e('v_add_u32 v1, 2, v0'); e('v_mul_u32_u24 %s, 40, v1' % vr(AD))
    e('s_mul_i32 %s, %s, 3200' % (sr(S_T0), sr(S_W))); e('v_add_u32 %s, %s, %s' % (vr(AD), sr(S_T0), vr(AD)))
    QR = 40; KR = 112; L = 50
    def rdvec(dst, kind, w):
        for t in range(5): e('ds_read_b64 %s, %s offset:%d' % (vr(dst+2*t, 2), vr(AD), kind*12800 + (14 - 2*w)*40 + 8*t))
    def kreg(w): return KR + 10*w
    rdvec(QR, 0, 0); rdvec(kreg(0), 1, 0); rdvec(kreg(1), 1, 1)
    for w in range(0, 8, 2):
        P.wait_lg_regs(rset('v', QR, 10) + rset('v', kreg(w), 10) + rset('v', kreg(w+1), 10))
        if w + 2 < 8: rdvec(kreg(w+2), 1, w+2); rdvec(kreg(w+3), 1, w+3)
        for d in range(9):
            for ww in (w, w+1):
                e('v_dot2_f32_bf16 %s, %s, %s, %s' % (vr(L+ww), vr(QR+d), vr(kreg(ww)+d), '0' if d == 0 else vr(L+ww)))
    rdvec(kreg(0), 2, 0); rdvec(kreg(1), 2, 1); rdvec(kreg(2), 2, 2)
    e('s_lshl_b32 %s, %s, 6' % (sr(S_T0), sr(S_MI))); e('v_add_u32 %s, %s, v0' % (vr(T), sr(S_T0))); e('v_mov_b32 %s, 0x%08x' % (vr(T+1), f2u(-1e9)))
    for w in range(1, 8):
        e('v_cmp_gt_u32 vcc, %d, %s' % (2*w, vr(T))); e('s_nop 1'); e('v_cndmask_b32 %s, %s, %s, vcc' % (vr(L+w), vr(L+w), vr(T+1)))
    e('v_max3_f32 %s, %s, %s, %s' % (vr(T+2), vr(L), vr(L+1), vr(L+2))); e('v_max3_f32 %s, %s, %s, %s' % (vr(T+3), vr(L+3), vr(L+4), vr(L+5)))
    e('v_max3_f32 %s, %s, %s, %s' % (vr(T+2), vr(T+2), vr(L+6), vr(L+7))); e('v_max_f32 %s, %s, %s' % (vr(T+2), vr(T+2), vr(T+3)))
    CSC = 18**-0.5 * 1.4426950408889634
    e('s_mov_b32 %s, 0x%08x' % (sr(S_T1), f2u(CSC)))
    e('v_mul_f32 %s, %s, %s' % (vr(T+2), sr(S_T1), vr(T+2)))
    for w in range(8): e('v_fma_f32 %s, %s, %s, -%s' % (vr(L+w), vr(L+w), sr(S_T1), vr(T+2)))
    for w in range(8): e('v_exp_f32 %s, %s' % (vr(L+w), vr(L+w)))
    P.wait_lg_regs(rset('v', kreg(2), 10))
    rdvec(kreg(3), 2, 3); rdvec(kreg(4), 2, 4); rdvec(kreg(5), 2, 5)
    e('v_add_f32 %s, %s, %s' % (vr(T+2), vr(L), vr(L+1))); e('v_add_f32 %s, %s, %s' % (vr(T+3), vr(L+2), vr(L+3)))
    e('v_add_f32 %s, %s, %s' % (vr(T+4), vr(L+4), vr(L+5))); e('v_add_f32 %s, %s, %s' % (vr(T+5), vr(L+6), vr(L+7)))
    e('v_add_f32 %s, %s, %s' % (vr(T+2), vr(T+2), vr(T+3))); e('v_add_f32 %s, %s, %s' % (vr(T+4), vr(T+4), vr(T+5))); e('v_add_f32 %s, %s, %s' % (vr(T+2), vr(T+2), vr(T+4)))
    e('v_rcp_f32 %s, %s' % (vr(T+2), vr(T+2))); e('s_nop 0')
    for w in range(8): e('v_mul_f32 %s, %s, %s' % (vr(L+w), vr(L+w), vr(T+2)))
    PL, PH = 60, 68
    for w in range(8):
        e('v_cvt_pk_bf16_f32 %s, %s, 0' % (vr(PL+w), vr(L+w))); e('v_cvt_pk_bf16_f32 %s, 0, %s' % (vr(PH+w), vr(L+w)))
    OL, OH = 80, 90
    def pv(w):
        for d in range(9):
            e('v_dot2_f32_bf16 %s, %s, %s, %s' % (vr(OL+d), vr(kreg(w)+d), vr(PL+w), '0' if w == 0 else vr(OL+d)))
            e('v_dot2_f32_bf16 %s, %s, %s, %s' % (vr(OH+d), vr(kreg(w)+d), vr(PH+w), '0' if w == 0 else vr(OH+d)))
    pv(0); pv(1); pv(2)
    P.wait_lg_regs(rset('v', kreg(5), 10))
    rdvec(kreg(6), 2, 6); rdvec(kreg(7), 2, 7)
    pv(3); pv(4); pv(5)
    P.wait_lg_regs(rset('v', kreg(7), 10))
    pv(6); pv(7)
    e('v_lshrrev_b32 %s, 4, v0' % vr(T)); e('s_lshl_b32 %s, %s, 2' % (sr(S_T0), sr(S_MI))); e('v_add_u32 %s, %s, %s' % (vr(T), sr(S_T0), vr(T)))
    e('v_mul_u32_u24 %s, 18432, %s' % (vr(T), vr(T))); e('v_and_b32 %s, 15, v0' % vr(T+1)); e('v_lshl_add_u32 %s, %s, 4, %s' % (vr(T), vr(T+1), vr(T)))
    for d in range(9): e('v_cvt_pk_bf16_f32 %s, %s, %s' % (vr(QR+d), vr(OL+d), vr(OH+d)))
    for d in range(9): e('buffer_store_dword %s, %s, %s, %s offen' % (vr(QR+d), vr(T), sr(S_WS,4), sr(S_OD+d)))
    if 'flags' in pf:
        e('s_lshl_b32 s50, s2, 2'); e('s_add_u32 s50, s50, %s' % sr(S_W)); e('s_lshl_b32 s50, s50, 2'); e('s_add_u32 s50, s50, 0x%x' % WS_FLAG)
        e('v_mov_b32 %s, 0' % vr(WB+11)); e('buffer_store_dword %s, off, %s, s50' % (vr(WB+11), sr(S_WS,4)))
        e('s_min_u32 s50, s2, 21'); e('s_lshl_b32 s50, s50, 8'); e('s_add_u32 s50, s50, 0x%x' % WS_CNT)
        e('buffer_store_dword %s, off, %s, s50' % (vr(WB+11), sr(S_WS,4)))
        e('s_min_u32 s50, s2, 31'); e('s_lshl_b32 s50, s50, 8'); e('s_add_u32 s50, s50, 0x%x' % WS_CNT4)
        e('buffer_store_dword %s, off, %s, s50' % (vr(WB+11), sr(S_WS,4)))
    P.wait_vm_tag('wb')
    e('v_mov_b32 %s, 0x3f803f80' % vr(WB+8))
    for d in range(8): e('v_dot2_f32_bf16 %s, %s, %s, %s' % (vr(WB+9), vr(WB+d), vr(WB+8), '0' if d == 0 else vr(WB+9)))
    e('s_nop 2')
    for dpp in ('quad_perm:[1,0,3,2]', 'quad_perm:[2,3,0,1]', 'row_half_mirror', 'row_mirror'):
        e('v_add_f32_dpp %s, %s, %s %s row_mask:0xf bank_mask:0xf' % (vr(WB+9), vr(WB+9), vr(WB+9), dpp)); e('s_nop 1')
    for swap in ('v_permlane16_swap_b32', 'v_permlane32_swap_b32'):
        e('v_mov_b32 %s, %s' % (vr(WB+10), vr(WB+9))); e('s_nop 1')
        e('%s %s, %s' % (swap, vr(WB+9), vr(WB+10))); e('s_nop 1')
        e('v_add_f32 %s, %s, %s' % (vr(WB+9), vr(WB+9), vr(WB+10)))
    e('v_mul_f32 %s, 0x%08x, %s' % (vr(WB+9), f2u(1.0/576), vr(WB+9)))
    e('v_cvt_pk_bf16_f32 %s, %s, 0' % (vr(WB), vr(WB+9)))
    e('v_lshlrev_b32 %s, 16, %s' % (vr(WB+1), vr(WB))); e('v_sub_f32 %s, %s, %s' % (vr(WB+1), vr(WB+9), vr(WB+1)))
    e('v_cvt_pk_bf16_f32 %s, %s, 0' % (vr(WB+1), vr(WB+1)))
    e('s_lshr_b32 s50, s62, 5'); e('s_lshl_b32 s50, s50, 6')
    e('s_bfe_u32 s51, s62, 0x20002'); e('s_lshl_b32 s51, s51, 4'); e('s_add_u32 s50, s50, s51')
    e('s_bfe_u32 s51, s62, 0x10004'); e('s_lshl_b32 s51, s51, 3'); e('s_add_u32 s50, s50, s51')
    e('s_and_b32 s51, s62, 3'); e('s_lshl_b32 s51, s51, 1'); e('s_add_u32 s50, s50, s51'); e('s_add_u32 s50, s50, 0x%x' % WS_WB)
    e('s_cmp_ge_u32 s62, 576'); e('s_cbranch_scc1 L_%s_nowb' % name)
    e('s_mov_b64 exec, 1')
    P.raw('buffer_store_short %s, off, %s, s50' % (vr(WB), sr(S_WS,4)))
    P.raw('buffer_store_short %s, off, %s, s50 offset:%d' % (vr(WB+1), sr(S_WS,4), 18*64))
    P.raw('L_%s_nowb:' % name)
    stamp('attn'); stamp.finish()
    P.raw('L_%s_end:' % name)
    e('s_endpgm')
    ins = P.ins
    a0, a1 = spans['loop']; c0, c1 = spans['loop3']
    path = ins[:a0] + ins[a0:a1]*3 + ins[after:]
    path3 = ins[:a0] + ins[c0:c1]*3 + ins[c1:]
    return P, (path, path3), dict(vgpr=200, accum=200, sgpr=102 if dbg else 100, grid=256, block=256, lds=LDS_BYTES + 1024, stamps=stamp.names)

if __name__ == '__main__':
    P, paths, o = build()
    for p in paths: check(p, 'k1')
    print(len(P.ins), o)
```

```python
from core import *
from common import *
from sched import *
from stamps import Stamper

def build(name='k2_kernel', prefetch=None, dbg=False, pf=None, code_pf=False, P=None, embed=None):
    P = P or Prog(); e = P.e
    start = len(P.ins)
    LB = 73728 if embed else 0
    END = embed or ('L_%s_end' % name)
    NWG = 256 if pf == 'help' else 216
    V_L16, V_OG, V_RD, V_RD2, V_XO, V_T = 1, 2, 5, 6, 7, 8
    V_B, V_ACC, V_X, V_U = 16, 160, 192, 208
    A_W, NF, LAR = 0, 12, 12
    A_WB = 48
    V_MU, V_MX, V_WBO = 240, 248, 250
    S_WS, S_WO, S_X = 8, 12, 16
    S_W, S_MG, S_NG, S_MT, S_T0, S_T1, S_OO, S_WOFF = 20, 21, 22, 23, 24, 25, 26, 27
    if not embed: e('s_cmp_ge_u32 s2, %d' % NWG); e('s_cbranch_scc1 L_%s_end' % name)
    stamp = Stamper(P, dbg and not embed, S_W); stamp('start')
    e('s_load_dwordx2 s[4:5], s[0:1], %d' % KA_WS); e('s_load_dwordx2 s[6:7], s[0:1], %d' % KA_WO); e('s_load_dwordx2 s[28:29], s[0:1], %d' % KA_X)
    e('v_mov_b32 %s, v0' % vr(V_T+7))
    e('v_lshrrev_b32 %s, 6, v0' % vr(V_T)); e('v_and_b32 v0, 63, v0')
    e('v_readfirstlane_b32 %s, %s' % (sr(S_W), vr(V_T)))
    e('v_lshlrev_b32 %s, 4, v0' % vr(V_L16))
    e('s_lshr_b32 %s, s2, 3' % sr(S_T0)); e('s_mul_i32 %s, %s, 57' % (sr(S_T1), sr(S_T0))); e('s_lshr_b32 %s, %s, 9' % (sr(S_T1), sr(S_T1)))
    e('s_mul_i32 %s, %s, 9' % (sr(S_NG), sr(S_T1))); e('s_sub_u32 %s, %s, %s' % (sr(S_NG), sr(S_T0), sr(S_NG)))
    e('s_lshl_b32 %s, %s, 3' % (sr(S_MG), sr(S_T1))); e('s_and_b32 %s, s2, 7' % sr(S_T0)); e('s_add_u32 %s, %s, %s' % (sr(S_MG), sr(S_MG), sr(S_T0)))
    skip = (0, 0)
    if pf == 'help':
        e('s_cmp_lt_u32 s2, 216'); e('s_cbranch_scc1 L_%s_tile' % name)
        help0 = len(P.ins)
        e('s_load_dwordx2 s[44:45], s[0:1], %d' % KA_WU); e('s_load_dwordx2 s[46:47], s[0:1], %d' % KA_WD)
        e('s_lshr_b32 s50, s2, 3'); e('s_sub_u32 s50, s50, 27'); e('s_mul_i32 s50, s50, 192'); e('v_add_u32 %s, s50, %s' % (vr(V_U), vr(V_T+7)))
        if embed:
            e('v_cmp_gt_u32 vcc, 192, %s' % vr(V_T+7)); e('v_mov_b32 %s, 0x00800000' % vr(V_U+3)); e('s_nop 0'); e('v_cndmask_b32 %s, %s, %s, vcc' % (vr(V_U), vr(V_U+3), vr(V_U)))
        e('v_mul_u32_u24 %s, 7282, %s' % (vr(V_U+1), vr(V_U))); e('v_lshrrev_b32 %s, 16, %s' % (vr(V_U+1), vr(V_U+1)))
        e('v_mul_u32_u24 %s, 9, %s' % (vr(V_U+2), vr(V_U+1))); e('v_sub_u32 %s, %s, %s' % (vr(V_U+2), vr(V_U), vr(V_U+2)))
        e('v_mul_u32_u24 %s, 9216, %s' % (vr(V_U+1), vr(V_U+1))); e('v_lshl_add_u32 %s, %s, 7, %s' % (vr(V_U+1), vr(V_U+2), vr(V_U+1)))
        e('v_cmp_gt_u32 vcc, 954, %s' % vr(V_U)); e('v_mov_b32 %s, 0x7fff0000' % vr(V_U+3)); e('v_lshlrev_b32 %s, 7, %s' % (vr(V_U), vr(V_U)))
        e('v_cndmask_b32 %s, %s, %s, vcc' % (vr(V_U+1), vr(V_U+3), vr(V_U+1)))
        e('s_and_b32 s51, s2, 7'); e('s_mul_i32 s52, s51, 1152'); e('s_mul_i32 s53, s51, %d' % (576*1152))
        e('s_waitcnt lgkmcnt(0)')
        for k in range(2):
            b = 56 + 4*k
            e('s_mov_b32 s%d, s%d' % (b, 44+2*k)); e('s_mov_b32 s%d, s%d' % (b+1, 45+2*k)); e('s_mov_b32 s%d, 0x%x' % (b+2, D_*F_*2)); e('s_mov_b32 s%d, 0x%x' % (b+3, SRD3))
        if code_pf:
            P.raw('s_getpc_b64 s[64:65]'); P.raw('L_%s_pc:' % name)
            P.raw('s_add_u32 s64, s64, k3_kernel - L_%s_pc' % name); P.raw('s_addc_u32 s65, s65, 0')
            P.raw('s_mov_b32 s66, L_text_end - k3_kernel'); e('s_mov_b32 s67, 0x%x' % SRD3)
            P.raw('buffer_load_dword %s, %s, s[64:67], 0 offen' % (vr(V_B+16), vr(V_U)))
        for k in range(6):
            P.raw('buffer_load_dword %s, %s, s[56:59], s52 offen' % (vr(V_B+k), vr(V_U+1)))
            P.raw('buffer_load_dword %s, %s, s[60:63], s53 offen' % (vr(V_B+8+k), vr(V_U)))
            e('s_add_u32 s52, s52, %d' % (106*9216)); e('s_add_u32 s53, s53, %d' % (960*128))
        if embed: e('s_waitcnt vmcnt(0)')
        e('s_branch %s' % END)
        skip = (help0, len(P.ins))
        P.raw('L_%s_tile:' % name)
    if embed: e('s_waitcnt lgkmcnt(0)')
    e('s_cmp_ge_u32 %s, 22' % sr(S_MG)); e('s_cbranch_scc1 %s' % END)
    if embed:
        e('s_cmp_eq_u32 %s, 3' % sr(S_W)); e('s_cbranch_scc1 L_%s_w3' % name)
    e('s_mul_i32 %s, %s, 6' % (sr(S_MT), sr(S_MG))); e('s_lshl_b32 %s, %s, 1' % (sr(S_T0), sr(S_W))); e('s_add_u32 %s, %s, %s' % (sr(S_MT), sr(S_MT), sr(S_T0)))
    e('s_mul_i32 %s, %s, %d' % (sr(S_OO), sr(S_MT), 18*1024))
    T = V_T
    e('v_bfe_u32 %s, v0, 1, 3' % vr(T)); e('v_mul_u32_u24 %s, 1152, %s' % (vr(T), vr(T)))
    e('v_lshrrev_b32 %s, 4, v0' % vr(T+1)); e('v_lshl_add_u32 %s, %s, 5, %s' % (vr(T), vr(T+1), vr(T)))
    e('v_and_b32 %s, 1, v0' % vr(T+2)); e('v_lshl_add_u32 %s, %s, 4, %s' % (vr(V_OG), vr(T+2), vr(T)))
    e('v_add_u32 %s, %d, %s' % (vr(V_OG+1), 8*1152 - 1024, vr(V_OG))); e('v_add_u32 %s, %d, %s' % (vr(V_OG+2), 2*(8*1152 - 1024), vr(V_OG)))
    e('s_mul_i32 %s, %s, %d' % (sr(S_WOFF), sr(S_W), 64*1152)); e('s_lshl_b32 %s, %s, 7' % (sr(S_T0), sr(S_NG))); e('s_add_u32 %s, %s, %s' % (sr(S_WOFF), sr(S_WOFF), sr(S_T0)))
    e('s_lshl_b32 s30, %s, 13' % sr(S_W))
    if LB: e('s_add_u32 s30, s30, %d' % LB)
    e('s_waitcnt lgkmcnt(0)')
    for srd, lo, hi, size in ((S_WS, 4, 5, WS_END), (S_WO, 6, 7, D_*D_*2), (S_X, 28, 29, S_*D_*2)):
        e('s_mov_b32 %s, s%d' % (sr(srd), lo)); e('s_mov_b32 %s, s%d' % (sr(srd+1), hi))
        e('s_mov_b32 %s, 0x%x' % (sr(srd+2), size)); e('s_mov_b32 %s, 0x%x' % (sr(srd+3), SRD3))
    def bfrag(ks, mm): return V_B + 8*ks + 4*mm
    stamp('setup')
    def phase_items(j):
        it = []
        for g, n in ((0, 3), (3, 3), (6, 2)):
            it.append(('S', 's_add_u32 %s, %s, %d' % (sr(S_T0), sr(S_WOFF), (192*j + 8*g)*1152), None))
            it.append(('S', 's_add_u32 m0, s30, %d' % ((24*j + g)*1024), None))
            for q in range(n):
                it.append(('D', 'buffer_load_dwordx4 %s, %s, %s offen offset:%d lds' % (vr(V_OG+q), sr(S_WO,4), sr(S_T0), 1024*q), 'ph%d' % j))
        for ks in range(6*j, 6*j+6):
            for mm in range(2):
                it.append(('S', 's_add_u32 %s, %s, %d' % (sr(S_T1), sr(S_OO), (18*mm + ks)*1024), None))
                it.append(('D', 'buffer_load_dwordx4 %s, %s, %s, %s offen' % (vr(bfrag(ks, mm), 4), vr(V_L16), sr(S_WS,4), sr(S_T1)), 'ph%d' % j))
        return it
    WB_LDS = LB + 73728
    e('v_and_b32 %s, 1, v0' % vr(V_WBO)); e('v_mul_u32_u24 %s, %d, %s' % (vr(V_WBO), 18*64, vr(V_WBO)))
    e('v_lshrrev_b32 %s, 4, v0' % vr(V_T)); e('v_lshl_add_u32 %s, %s, 4, %s' % (vr(V_WBO), vr(V_T), vr(V_WBO))); e('v_add_u32 %s, %d, %s' % (vr(V_WBO), WB_LDS, vr(V_WBO)))
    e('s_lshl_b32 s37, %s, 10' % sr(S_W)); e('s_add_u32 s38, s37, %d' % WB_LDS); e('s_add_u32 s37, s37, 0x%x' % WS_WB)
    def wb_items(j):
        if j: return []
        return [('S', 's_mov_b32 m0, s38', None), ('D', 'buffer_load_dwordx4 %s, %s, s37 offen lds' % (vr(V_L16), sr(S_WS,4)), 'ph0')]
    for j in range(2):
        for kind, text, tag in phase_items(j) + wb_items(j):
            e(text, tag=tag)
            if ' m0,' in text: e('s_nop 0')
    if not embed:
        e('s_cmp_ge_u32 s2, 8'); e('s_cbranch_scc1 L_%s_noflag' % name)
        e('v_cmp_gt_u32 vcc, 128, %s' % vr(V_T+7)); e('s_lshl_b32 %s, s2, 9' % sr(S_T0)); e('s_add_u32 %s, %s, 0x%x' % (sr(S_T0), sr(S_T0), WS_FLAG))
        e('v_lshlrev_b32 %s, 2, %s' % (vr(V_T+6), vr(V_T+7))); e('v_mov_b32 %s, 0' % vr(V_T+5))
        e('s_and_saveexec_b64 s[34:35], vcc'); e('s_cbranch_execz L_%s_noflag2' % name)
        P.raw('buffer_store_dword %s, %s, %s, %s offen' % (vr(V_T+5), vr(V_T+6), sr(S_WS,4), sr(S_T0)))
        P.raw('L_%s_noflag2:' % name)
        e('s_mov_b64 exec, s[34:35]')
        P.raw('L_%s_noflag:' % name)
    stamp('issued')
    e('v_lshrrev_b32 %s, 4, v0' % vr(T+1))
    e('v_bfe_u32 %s, v0, 2, 2' % vr(T)); e('v_lshlrev_b32 %s, 5, %s' % (vr(T), vr(T)))
    e('v_and_b32 %s, 3, v0' % vr(T+2)); e('v_lshl_add_u32 %s, %s, 3, %s' % (vr(T), vr(T+2), vr(T)))
    e('v_and_b32 %s, 1, %s' % (vr(T+2), vr(T+1))); e('v_lshl_add_u32 %s, %s, 7, %s' % (vr(T), vr(T+2), vr(T)))
    e('v_lshrrev_b32 %s, 1, %s' % (vr(T+2), vr(T+1))); e('v_lshl_add_u32 %s, %s, 10, %s' % (vr(V_RD), vr(T+2), vr(T)))
    if LB: e('v_add_u32 %s, %d, %s' % (vr(V_RD), LB, vr(V_RD)))
    e('v_add_u32 %s, 36864, %s' % (vr(V_RD2), vr(V_RD)))
    V_MXO = 251
    e('v_and_b32 %s, 15, v0' % vr(V_MXO)); e('v_lshlrev_b32 %s, 2, %s' % (vr(V_MXO), vr(V_MXO)))
    e('v_and_b32 %s, 15, v0' % vr(T)); e('v_mul_u32_u24 %s, 1152, %s' % (vr(T), vr(T))); e('v_lshl_add_u32 %s, %s, 3, %s' % (vr(V_XO), vr(T+1), vr(T)))
    e('s_mul_i32 s31, %s, %d' % (sr(S_MT), 16*1152)); e('s_lshl_b32 %s, %s, 7' % (sr(S_T0), sr(S_NG))); e('s_add_u32 s31, s31, %s' % sr(S_T0))
    e('s_mov_b32 s32, 0x3f80'); e('s_mov_b32 s33, 0x3f800000')
    if prefetch: prefetch(P, V_U, V_T)
    P.wait_vm_tag('ph0'); i = e('s_barrier'); i.meta = dict(needs='ph0')
    stamp('ph0')
    for ks in range(18):
        e('ds_read_b128 %s, %s offset:%d' % (ar(A_WB + 4*ks, 4), vr(V_WBO), 64*ks))
        if ks == 8: e('s_waitcnt lgkmcnt(0)')
    e('s_waitcnt lgkmcnt(0)')
    S = Stream()
    def acc(nt, mm): return vr(V_ACC + 8*nt + 4*mm, 4)
    for j in range(3):
        fr = []; mf = []
        for mm in range(2):
            for t in range(6):
                ks = 6*j + t
                mf.append(MF(vr(V_MU + 4*mm, 4), None, vr(bfrag(ks, mm), 4), '0' if ks == 0 else vr(V_MU + 4*mm, 4), None, A=ar(A_WB + 4*ks, 4)))
        for nt in range(4):
            for g in range(2):
                f0 = len(fr)
                for t in range(3):
                    ks = 6*j + 3*g + t; kl = ks % 9
                    fr.append(Frag(V_RD if ks < 9 else V_RD2, (4*kl)*1024 + nt*256, (4*kl+2)*1024 + nt*256))
                for mm in range(2):
                    for t in range(3):
                        ks = 6*j + 3*g + t
                        mf.append(MF(acc(nt, mm), f0+t, vr(bfrag(ks, mm), 4), '0' if ks == 0 else acc(nt, mm), [f0, f0+1, f0+2] if (mm == 0 and t == 0) else None))
        S.add(fr, mf)
    fx = Fixed()
    ch = []; g = 0
    for kind, text, tag in phase_items(2) + wb_items(2):
        ch.append((g, kind, text, tag)); g += 1 if kind == 'S' else 1
    ch.append((58, 'S', 's_lshl_b32 s38, %s, 6' % sr(S_MT), None)); ch.append((58, 'S', 's_add_u32 s38, s38, 0x%x' % WS_MX, None))
    for mm in range(2):
        ch.append((60, 'D', 'buffer_load_dword %s, %s, %s, s38 offen offset:%d' % (vr(V_MX+mm), vr(V_MXO), sr(S_WS,4), 64*mm), 'x'))
    for mm in range(2):
        ch.append((60, 'S', 's_add_u32 s36, s31, %d' % (16*1152*mm), None))
        for nt in range(4):
            ch.append((60, 'D', 'buffer_load_dwordx2 %s, %s, %s, s36 offen offset:%d' % (vr(V_X + 8*mm + 2*nt, 2), vr(V_XO), sr(S_X,4), 32*nt), 'x'))
    fx.chain(ch)
    for j in (1, 2):
        fx.put(60*j - LAR - 2, 'L', '@waitvm', 'ph%d' % j); fx.put(60*j - LAR - 2, 'B', 's_barrier', 'ph%d' % j)
    emit_stream(P, S, [], fx, [], A_W, NF, LAR, first_reads=True)
    stamp('gemm')
    e('s_cmp_ge_u32 %s, 128' % sr(S_MT)); e('s_cbranch_scc1 L_%s_%s' % (name, 'join' if embed else 'end'))
    P.wait_vm_tag('x')
    e('s_nop 4')
    for mm in range(2):
        for nt in range(4):
            for r in range(4):
                a = V_ACC + 8*nt + 4*mm + r
                e('v_dot2_f32_bf16 %s, %s, s%d, %s' % (vr(a), vr(V_X + 8*mm + 2*nt + r//2), 32 + (r % 2), vr(a)))
    for mm in range(2):
        e('v_add_f32 %s, %s, %s' % (vr(V_MU+4*mm), vr(V_MU+4*mm), vr(V_MU+4*mm+1)))
    for mm in range(2):
        e('v_add_f32 %s, %s, %s' % (vr(V_MU+4*mm), vr(V_MU+4*mm), vr(V_MX+mm)))
    U = V_U
    H = V_U + 8
    def frag_store(mm, ws_off):
        e('s_add_u32 %s, %s, %d' % (sr(S_T0), sr(S_MT), mm)); e('s_mul_i32 %s, %s, 18' % (sr(S_T0), sr(S_T0)))
        e('s_lshl_b32 %s, %s, 1' % (sr(S_T1), sr(S_NG))); e('s_add_u32 %s, %s, %s' % (sr(S_T0), sr(S_T0), sr(S_T1)))
        e('s_lshl_b32 %s, %s, 10' % (sr(S_T0), sr(S_T0))); e('s_add_u32 %s, %s, 0x%x' % (sr(S_T0), sr(S_T0), ws_off))
        for p in range(2):
            hb = H + 8*((mm + (ws_off == WS_HC)) % 2) + 4*p
            for k in range(2):
                a = V_ACC + 8*(2*p+k) + 4*mm
                e('v_cvt_pk_bf16_f32 %s, %s, %s' % (vr(hb+2*k), vr(a), vr(a+1))); e('v_cvt_pk_bf16_f32 %s, %s, %s' % (vr(hb+2*k+1), vr(a+2), vr(a+3)))
            e('buffer_store_dwordx4 %s, %s, %s, %s offen offset:%d sc1' % (vr(hb,4), vr(V_L16), sr(S_WS,4), sr(S_T0), 1024*p))
    for mm in range(2):
        for nt in range(4):
            for r in range(4):
                a = vr(V_ACC + 8*nt + 4*mm + r)
                e('v_sub_f32 %s, %s, %s' % (vr(V_B + 16*mm + 4*nt + r), a, vr(V_MU+4*mm)))
    for mm in range(2):
        e('s_add_u32 %s, %s, %d' % (sr(S_T0), sr(S_MT), mm)); e('s_mul_i32 %s, %s, 18' % (sr(S_T0), sr(S_T0)))
        e('s_lshl_b32 %s, %s, 1' % (sr(S_T1), sr(S_NG))); e('s_add_u32 %s, %s, %s' % (sr(S_T0), sr(S_T0), sr(S_T1)))
        e('s_lshl_b32 %s, %s, 10' % (sr(S_T0), sr(S_T0))); e('s_add_u32 s39, %s, 0x%x' % (sr(S_T0), WS_HC))
        for p in range(2):
            hb = V_B + 32 + 8*mm + 4*p
            for k in range(2):
                a = V_B + 16*mm + 4*(2*p+k)
                e('v_cvt_pk_bf16_f32 %s, %s, %s' % (vr(hb+2*k), vr(a), vr(a+1))); e('v_cvt_pk_bf16_f32 %s, %s, %s' % (vr(hb+2*k+1), vr(a+2), vr(a+3)))
            e('buffer_store_dwordx4 %s, %s, %s, s39 offen offset:%d sc1' % (vr(hb,4), vr(V_L16), sr(S_WS,4), 1024*p))
    for mm in range(2):
        first = True
        for nt in range(4):
            for r in range(4):
                a = vr(V_B + 16*mm + 4*nt + r)
                if first: e('v_mul_f32 %s, %s, %s' % (vr(U+2*mm+1), a, a)); first = False
                else: e('v_fma_f32 %s, %s, %s, %s' % (vr(U+2*mm+1), a, a, vr(U+2*mm+1)))
    for swap in ('v_permlane32_swap_b32', 'v_permlane16_swap_b32'):
        for k in (1, 3): e('v_mov_b32 %s, %s' % (vr(U+4+k), vr(U+k)))
        e('s_nop 1')
        for k in (1, 3): e('%s %s, %s' % (swap, vr(U+k), vr(U+4+k)))
        e('s_nop 1')
        for k in (1, 3): e('v_add_f32 %s, %s, %s' % (vr(U+k), vr(U+k), vr(U+4+k)))
    for mm in range(2): e('v_mov_b32 %s, %s' % (vr(U+2*mm), vr(V_MU+4*mm)))
    e('v_and_b32 %s, 15, v0' % vr(T)); e('v_lshlrev_b32 %s, 3, %s' % (vr(T), vr(T)))
    e('s_lshl_b32 %s, %s, 11' % (sr(S_T0), sr(S_NG))); e('s_lshl_b32 %s, %s, 4' % (sr(S_T1), sr(S_MT))); e('s_add_u32 %s, %s, %s' % (sr(S_T0), sr(S_T0), sr(S_T1)))
    e('s_lshl_b32 %s, %s, 3' % (sr(S_T0), sr(S_T0))); e('s_add_u32 %s, %s, 0x%x' % (sr(S_T0), sr(S_T0), WS_ST))
    e('s_mov_b64 exec, 0xffff')
    for mm in range(2):
        e('buffer_store_dwordx2 %s, %s, %s, %s offen offset:%d %s' % (vr(U+2*mm, 2), vr(T), sr(S_WS,4), sr(S_T0), 128*mm, 'sc1' if embed else ''))
    if embed:
        P.raw('L_%s_join:' % name)
        e('s_mov_b64 exec, -1')
        P.raw('s_waitcnt vmcnt(0)'); P.vmq = []
        e('s_barrier')
        e('s_cmp_lg_u32 %s, 0' % sr(S_W)); e('s_cbranch_scc1 %s' % END)
        e('s_lshl_b32 %s, %s, 8' % (sr(S_T0), sr(S_MG))); e('s_add_u32 %s, %s, 0x%x' % (sr(S_T0), sr(S_T0), WS_CNT)); e('v_mov_b32 %s, 1' % vr(V_T))
        e('s_mov_b64 exec, 1')
        P.raw('buffer_atomic_add %s, off, %s, %s' % (vr(V_T), sr(S_WS,4), sr(S_T0)))
        e('s_mov_b64 exec, -1')
        e('s_branch %s' % END)
        w3 = len(P.ins)
        P.raw('L_%s_w3:' % name)
        for _ in range(4): e('s_barrier')
        P.segs = dict(start=start, skip=skip, w3=w3, end=len(P.ins))
        return P, None
    stamp('epi'); stamp.finish()
    P.raw('L_%s_end:' % name)
    e('s_endpgm')
    P.path = P.ins[:skip[0]] + P.ins[skip[1]:]
    return P, dict(stamps=stamp.names, vgpr=256+120, accum=256, sgpr=102 if dbg else (72 if pf else 40), grid=NWG, block=192, lds=73728 + 3072)

if __name__ == '__main__':
    P, o = build(); check(P.ins, 'k2'); print(verify_barriers(P.ins))
```

```python
from core import *
from common import *
from sched import *
import k2

SLOT = 36864
NF, LAR = 12, 12
def set_lar(x):
    global LAR
    LAR = x
V_RD, V_RD2 = 3, 4
V_PG, V_PH, V_PDE, V_PDO = 5, 6, 7, 8
V_OG, V_OH, V_OD = 9, 12, 15
V_C0, V_C1, V_K = 24, 26, 28
V_L16, V_FL = 30, 31
V_PO = 1
V_T = 32
V_H, V_HH = 40, 56
V_G, V_U = 64, 96
V_X = 128
A_OUT, A_X, A_W, A_HP = 0, 144, 160, 208
S_WG, S_WU, S_WD, S_WS = 8, 12, 16, 20
S_W = 24
S_GCOL, S_HCOL, S_DROW = 25, 26, 27
S_E = 28
S_HXO, S_HXP, S_P = 33, 34, 35
S_WR, S_WRAP, S_WOFF, S_RD = 36, 37, 38, 39
S_CNT, S_T0, S_T1 = 40, 41, 42
S_FLO, S_FLP, S_FVAL = 43, 44, 45
S_LO, S_HI = 46, 47
S_XO = 48
S_A, S_B, S_C, S_D = 50, 51, 52, 53
S_JP, S_S, S_I, S_FB, S_HB = 58, 59, 60, 61, 62
OPT = dict(no_dma=False, no_bar=False, no_valu=False, cap=3)

def xi_reg(ks, mm):
    xi = 2*ks + mm
    return ('v', V_X + 4*xi) if xi < 32 else ('a', A_X + 4*(xi-32))
def xfrag(ks, mm):
    k, b = xi_reg(ks, mm); return vr(b, 4) if k == 'v' else ar(b, 4)
def hpfrag(th, mm):
    x = 2*th + mm
    return ar(A_HP + 4*x, 4) if x < 12 else vr(V_X + 4*(x-12), 4)
def acc(base, ft, mm): return vr(base + 8*ft + 4*mm, 4)
def out(nt, mm): return ar(A_OUT + 8*nt + 4*mm, 4)

def st_GU(base, kh, first, fts=(0,1,2,3), rd=V_RD):
    fr = []; mf = []
    for ft in fts:
        for g in range(3):
            f0 = len(fr)
            for t in range(3):
                kl = 3*g + t
                fr.append(Frag(rd, (4*kl)*1024 + ft*256, (4*kl+2)*1024 + ft*256))
            for mm in range(2):
                for t in range(3):
                    kl = 3*g + t
                    C = '0' if (first and kl == 0) else acc(base, ft, mm)
                    mf.append(MF(acc(base, ft, mm), f0+t, xfrag(9*kh+kl, mm), C, [f0, f0+1, f0+2] if (mm == 0 and t == 0) else None))
    return fr, mf
def st_half(base):
    fr = []; mf = []
    for ft in range(2):
        for g in range(6):
            f0 = len(fr)
            for t in range(3):
                ks = 3*g + t
                fr.append(Frag(V_RD, (2*ks)*1024 + ft*512, (2*ks+1)*1024 + ft*512))
            for mm in range(2):
                for t in range(3):
                    ks = 3*g + t
                    C = '0' if ks == 0 else acc(base, ft, mm)
                    mf.append(MF(acc(base, ft, mm), f0+t, xfrag(ks, mm), C, [f0, f0+1, f0+2] if (mm == 0 and t == 0) else None))
    return fr, mf
def st_D(bf):
    fr = []; mf = []
    for nt in range(18):
        f0 = len(fr); rd = V_RD if nt % 2 == 0 else V_RD2
        for kq in range(2): fr.append(Frag(rd, (2*kq)*9216 + nt*128, (2*kq+1)*9216 + nt*128))
        for mm in range(2):
            for kq in range(2):
                w = [f0, f0+1, f0+2, f0+3] if (nt % 2 == 0 and mm == 0 and kq == 0) else None
                mf.append(MF(out(nt, mm), f0+kq, bf[kq][mm], out(nt, mm), w))
    return fr, mf
def st_final(bf, rdA, rdB):
    fr = []; mf = []
    for nt in range(18):
        f0 = len(fr)
        for k in range(4):
            rd = (rdA if k < 2 else rdB)[nt % 2]; kq = k % 2
            fr.append(Frag(rd, (2*kq)*9216 + nt*128, (2*kq+1)*9216 + nt*128))
        for mm in range(2):
            for k in range(4):
                w = [f0, f0+1, f0+2, f0+3] if (mm == 0 and k == 0) else None
                mf.append(MF(out(nt, mm), f0+k, bf[k][mm], out(nt, mm), w))
    return fr, mf

V_OF, V_PF = 160, 169
def st_F(bf, nh):
    fr = []; mf = []
    for ntl in range(9):
        f0 = len(fr); nt = 9*nh + ntl
        for k in range(4): fr.append(Frag(V_RD, k*9216 + ntl*128, k*9216 + 4608 + ntl*128))
        for mm in range(2):
            for k in range(4):
                w = [f0, f0+1, f0+2, f0+3] if (mm == 0 and k == 0) else None
                mf.append(MF(out(nt, mm), f0+k, bf[k][mm], out(nt, mm), w))
    return fr, mf
def dma_F(srow, tag):
    it = []
    for q in range(9):
        it.append(('S', 's_add_u32 m0, %s, %d' % (sr(S_WR), 1024*q) if q else 's_mov_b32 m0, %s' % sr(S_WR), None))
        it.append(('D', 'buffer_load_dwordx4 %s, %s, %s offen lds' % (vr(V_OF+q), sr(S_WD,4), srow), tag))
    return it + [('S', t, None) for t in rot_wr()]
def f_setup_ops():
    a = []; t0, t1, t2, t3 = 170, 171, 172, 173
    a.append('v_bfe_u32 %s, v0, 1, 2' % vr(t0)); a.append('v_mul_u32_u24 %s, 1152, %s' % (vr(t0), vr(t0)))
    a.append('v_and_b32 %s, 1, v0' % vr(t1)); a.append('v_lshl_add_u32 %s, %s, 4, %s' % (vr(t0), vr(t1), vr(t0))); a.append('v_lshrrev_b32 %s, 3, v0' % vr(t1))
    for p in range(9):
        d = vr(V_OF+p)
        a.append('v_add_u32 %s, %d, %s' % (d, 8*p, vr(t1)))
        a.append('v_mul_u32_u24 %s, 57, %s' % (vr(t2), d)); a.append('v_lshrrev_b32 %s, 9, %s' % (vr(t2), vr(t2)))
        a.append('v_mul_u32_u24 %s, 9, %s' % (vr(t3), vr(t2))); a.append('v_sub_u32 %s, %s, %s' % (d, d, vr(t3)))
        a.append('v_mul_u32_u24 %s, 4608, %s' % (vr(t2), vr(t2))); a.append('v_lshl_add_u32 %s, %s, 5, %s' % (d, d, vr(t2)))
        a.append('v_add_u32 %s, %s, %s' % (d, d, vr(t0)))
    a.append('v_lshrrev_b32 %s, 4, v0' % vr(t1)); a.append('v_mul_u32_u24 %s, 1152, %s' % (vr(t1), vr(t1)))
    a.append('v_bfe_u32 %s, v0, 2, 2' % vr(t2)); a.append('v_lshl_add_u32 %s, %s, 5, %s' % (vr(t1), vr(t2), vr(t1)))
    a.append('v_and_b32 %s, 3, v0' % vr(t2)); a.append('v_lshl_add_u32 %s, %s, 3, %s' % (vr(V_PF), vr(t2), vr(t1)))
    return a
assert all((b*57) >> 9 == b//9 for b in range(72))

def gelu_ops(ft, vals, tb):
    ops = []
    for g0 in range(0, len(vals), 4):
        grp = vals[g0:g0+4]
        def G(v): return vr(V_G + 8*ft + 4*v[0] + v[1])
        steps = [lambda v, t: 'v_mul_f32 %s, %s, %s' % (t, G(v), G(v)),
                 lambda v, t: 'v_fma_f32 %s, %s, %s, %s' % (t, t, vr(V_C1+v[0]), vr(V_C0+v[0])),
                 lambda v, t: 'v_mul_f32 %s, %s, %s' % (t, G(v), t),
                 lambda v, t: 'v_exp_f32 %s, %s' % (t, t),
                 lambda v, t: 'v_fma_f32 %s, %s, %s, %s' % (t, t, vr(V_K+v[0]), vr(V_K+v[0])),
                 lambda v, t: 'v_rcp_f32 %s, %s' % (t, t),
                 lambda v, t: 'v_mul_f32 %s, %s, %s' % (G(v), G(v), t)]
        for st in steps:
            for n, v in enumerate(grp): ops.append(Op(st(v, vr(tb+n))))
    return ops
ALLV = [(mm, r) for mm in range(2) for r in range(4)]
def gelu_q(ft, name, tb): return Queue(gelu_ops(ft, ALLV, tb), name)
def prod_q(ft, H, name, store=None):
    ops = []
    for mm in range(2):
        for r in range(4):
            g = vr(V_G + 8*ft + 4*mm + r)
            ops.append(Op('v_mul_f32 %s, %s, %s' % (g, g, vr(V_U + 8*ft + 4*mm + r))))
    for mm in range(2):
        for d in range(2):
            g = V_G + 8*ft + 4*mm + 2*d
            ops.append(Op('v_cvt_pk_bf16_f32 %s, %s, %s' % (vr(H + 4*mm + 2*(ft % 2) + d), vr(g), vr(g+1))))
    if store:
        soff, imm0, tag = store
        for mm in range(2):
            ops.append(Op('buffer_store_dwordx4 %s, %s, %s, %s offen offset:%d %s' % (vr(H + 4*mm, 4), vr(V_L16), sr(S_WS,4), soff, imm0 + 1024*mm, OPT.get('hst_flags', 'sc1')), tag=tag))
    return Queue(ops, name, prio=True)

S_CW, S_CR = 96, 97
S_CPF = 99
S_GCOL2, S_XO2 = 100, 101
def rot_wr(): return ['s_add_u32 %s, %s, 1' % (sr(S_CW), sr(S_CW)), 's_and_b32 %s, %s, 3' % (sr(S_CW), sr(S_CW)),
                      's_mul_i32 %s, %s, %d' % (sr(S_WR), sr(S_CW), SLOT), 's_add_u32 %s, %s, %s' % (sr(S_WR), sr(S_WR), sr(S_WOFF))]
def rot_rd(): return ['s_add_u32 %s, %s, 1' % (sr(S_CR), sr(S_CR)), 's_and_b32 %s, %s, 3' % (sr(S_CR), sr(S_CR)),
                      's_mul_i32 %s, %s, %d' % (sr(S_RD), sr(S_CR), SLOT)]
def dma_G(srd, scol, kh, tag, step_rows=8):
    it = []
    vo = V_OG if step_rows == 8 else V_OH
    for g in range(3):
        const = 3*g*step_rows*9216
        if step_rows == 8 and kh == 1: scol = sr(S_GCOL2)
        it.append(('S', 's_add_u32 %s, %s, 0x%x' % (sr(S_T0), scol, const) if const else 's_mov_b32 %s, %s' % (sr(S_T0), scol), None))
        it.append(('S', 's_add_u32 m0, %s, %d' % (sr(S_WR), 3072*g) if g else 's_mov_b32 m0, %s' % sr(S_WR), None))
        for q in range(3):
            it.append(('D', 'buffer_load_dwordx4 %s, %s, %s offen offset:%d %s lds' % (vr(vo+q), sr(srd,4), sr(S_T0), 1024*q, OPT.get('dma_flags', '')), tag))
    return it + [('S', t, None) for t in rot_wr()]
def dma_D(srow, tag):
    it = []
    for q in range(9):
        it.append(('S', 's_add_u32 m0, %s, %d' % (sr(S_WR), 1024*q) if q else 's_mov_b32 m0, %s' % sr(S_WR), None))
        it.append(('D', 'buffer_load_dwordx4 %s, %s, %s offen %s lds' % (vr(V_OD+q), sr(S_WD,4), srow, OPT.get('dma_flags', '')), tag))
    return it + [('S', t, None) for t in rot_wr()]
def put_dma(chain, g0, items, step=None):
    step = step or OPT.get('dma_step', 7)
    k = 0; pend = []
    for kind, text, tag in items:
        if kind == 'S': pend.append(text)
        else:
            due = g0 + step*k; k += 1
            for n, t in enumerate(pend): chain.append((max(0, due - 2*len(pend) + 2*n - 1), 'S', t, None))
            pend = []
            chain.append((due, 'D', text, tag))
    for n, t in enumerate(pend): chain.append((g0 + step*(k-1) + 1, 'S', t, None))
def put_bar(fx, end, tags, pats, rot=True):
    gb = end - LAR - 2
    if rot: fx.chain([(gb - 12, 'S', t, None) for t in rot_rd()])
    tag = tags if not isinstance(tags, (list, tuple)) else tags[-1]
    fx.put(gb, 'L', '@waitvm', tag)
    fx.put(gb, 'B', 's_barrier', tags)
    for rd, pat in pats: fx.put(gb+1, 'R', 'v_add_u32 %s, %s, %s' % (vr(rd), sr(S_RD), vr(pat)))
PAT_G = [(V_RD, V_PG)]; PAT_H = [(V_RD, V_PH)]; PAT_D = [(V_RD, V_PDE), (V_RD2, V_PDO)]

def build(name='k3_kernel', dbg=False):
    P = Prog(); e = P.e
    stamps = []
    def stamp(label):
        if not dbg: return
        k = len(stamps); stamps.append(label); assert k < 13
        P.raw('s_memtime s[92:93]'); P.raw('s_memrealtime s[90:91]'); P.raw('s_waitcnt lgkmcnt(0)')
        P.raw('s_mov_b32 s%d, s92' % (64+k)); P.raw('s_mov_b32 s%d, s90' % (77+k))
    info = {}
    FUSE = OPT.get('fuse2', False)
    e('s_cmp_ge_u32 s2, 256'); e('s_cbranch_scc1 L_%s_end' % name)
    stamp('start')
    if FUSE:
        k2.build(name + '_p1', pf='help', P=P, embed='L_%s_mlp' % name)
        segs = P.segs
        P.raw('L_%s_mlp:' % name)
        P.vmq = []; P.lgq = []
        e('s_mov_b32 %s, s20' % sr(S_W))
        stamp('k2')
    if dbg: e('s_load_dwordx2 s[94:95], s[0:1], %d' % KA_DBG)
    e('s_load_dwordx2 s[56:57], s[0:1], %d' % KA_WS)
    e('s_load_dwordx4 s[4:7], s[0:1], %d' % KA_WG)
    e('s_load_dwordx2 s[54:55], s[0:1], %d' % KA_WD)
    if not FUSE:
        e('v_lshrrev_b32 v1, 6, v0'); e('v_and_b32 v0, 63, v0')
        e('v_readfirstlane_b32 %s, v1' % sr(S_W))
    e('v_lshlrev_b32 %s, 4, v0' % vr(V_L16))
    e('v_lshrrev_b32 v2, 4, v0'); e('v_and_b32 v1, 15, v0'); e('v_lshl_add_u32 v1, v2, 11, v1'); e('v_lshlrev_b32 v1, 3, v1')
    if OPT.get('map', 0) == 0:
        e('s_and_b32 %s, s2, 7' % sr(S_JP))
        e('s_lshr_b32 %s, s2, 3' % sr(S_I)); e('s_and_b32 %s, %s, 1' % (sr(S_S), sr(S_I))); e('s_lshr_b32 %s, %s, 1' % (sr(S_I), sr(S_I)))
    else:
        e('s_bfe_u32 %s, s2, 0x20001' % sr(S_JP)); e('s_lshl_b32 %s, %s, 1' % (sr(S_JP), sr(S_JP)))
        e('s_bfe_u32 %s, s2, 0x10004' % sr(S_T0)); e('s_add_u32 %s, %s, %s' % (sr(S_JP), sr(S_JP), sr(S_T0)))
        e('s_bfe_u32 %s, s2, 0x10003' % sr(S_S))
        e('s_and_b32 %s, s2, 1' % sr(S_I)); e('s_lshl_b32 %s, %s, 3' % (sr(S_I), sr(S_I)))
        e('s_lshr_b32 %s, s2, 5' % sr(S_T0)); e('s_add_u32 %s, %s, %s' % (sr(S_I), sr(S_I), sr(S_T0)))
    e('s_lshl_b32 %s, %s, 2' % (sr(S_T0), sr(S_I))); e('s_add_u32 %s, %s, %s' % (sr(S_T0), sr(S_T0), sr(S_W)))
    e('s_mul_i32 %s, %s, %d' % (sr(S_XO), sr(S_T0), 2*18*1024)); e('s_add_u32 %s, %s, 0x%x' % (sr(S_XO), sr(S_XO), WS_HC))
    e('s_lshl_b32 %s, %s, 8' % (sr(S_D), sr(S_T0)))
    e('s_mul_i32 %s, %s, %d' % (sr(S_T1), sr(S_S), 9216 if OPT.get('kswap', False) else 0)); e('s_sub_u32 %s, %s, %s' % (sr(S_XO2), sr(S_XO), sr(S_T1))); e('s_add_u32 %s, %s, %s' % (sr(S_XO), sr(S_XO), sr(S_T1)))
    e('s_waitcnt lgkmcnt(0)')
    def mksrd(srd, lo, hi, size):
        e('s_mov_b32 %s, s%d' % (sr(srd), lo)); e('s_mov_b32 %s, s%d' % (sr(srd+1), hi))
        e('s_mov_b32 %s, 0x%x' % (sr(srd+2), size)); e('s_mov_b32 %s, 0x%x' % (sr(srd+3), SRD3))
    mksrd(S_WS, 56, 57, WS_END); mksrd(S_WG, 4, 5, D_*F_*2); mksrd(S_WU, 6, 7, D_*F_*2)
    e('s_add_u32 s4, s56, 0x%x' % WS_ST); e('s_addc_u32 s5, s57, 0'); e('s_mov_b32 s6, %d' % (9*2048*8)); e('s_mov_b32 s7, 0x%x' % SRD3)
    e('v_mov_b32 %s, v1' % vr(V_HH))
    def xload(P, ks):
        for mm in range(2):
            P.e('s_add_u32 %s, %s, %d' % (sr(S_T1), sr(S_XO if ks < 9 else S_XO2), (18*mm+ks)*1024))
            P.e('buffer_load_dwordx4 %s, %s, %s, %s offen %s' % (xfrag(ks, mm), vr(V_L16), sr(S_WS,4), sr(S_T1), 'sc1' if FUSE else ''), tag='x%d' % ks)
    def stload(P):
        for t in range(3):
            P.e('s_add_u32 %s, %s, %d' % (sr(S_T1), sr(S_D), t*4*2048*8 + 4))
            for mm in range(2):
                P.e('buffer_load_dword %s, %s, s[4:7], %s offen offset:%d %s' % (vr(V_H + 2*t + mm), vr(V_HH), sr(S_T1), 128*mm, 'sc1' if FUSE else ''), tag='st')
    def dma_now(items):
        for kind, text, tag in items:
            e(text, tag=tag)
            if text.startswith('s_add_u32 m0') or text.startswith('s_mov_b32 m0'): e('s_nop 0')
    if OPT.get('pro_stamps'): stamp('karg')
    if not FUSE: xload(P, 0); xload(P, 1)
    mksrd(S_WD, 54, 55, D_*F_*2)
    e('v_bfe_u32 v1, v0, 1, 3'); e('v_mul_u32_u24 v1, 9216, v1')
    e('v_lshl_add_u32 v1, v2, 5, v1')
    e('v_and_b32 %s, 1, v0' % vr(V_T)); e('v_lshl_add_u32 %s, %s, 4, v1' % (vr(V_OG), vr(V_T)))
    e('v_add_u32 %s, %d, %s' % (vr(V_OG+1), 8*9216 - 1024, vr(V_OG))); e('v_add_u32 %s, %d, %s' % (vr(V_OG+2), 2*(8*9216 - 1024), vr(V_OG)))
    e('s_mul_i32 %s, %s, 576' % (sr(S_T0), sr(S_JP)))
    e('s_mul_i32 %s, %s, 320' % (sr(S_T1), sr(S_S))); e('s_add_u32 %s, %s, %s' % (sr(S_FB), sr(S_T0), sr(S_T1)))
    e('s_lshl_b32 %s, %s, 5' % (sr(S_T1), sr(S_S))); e('s_add_u32 %s, %s, %s' % (sr(S_HB), sr(S_T0), sr(S_T1))); e('s_add_u32 %s, %s, 256' % (sr(S_HB), sr(S_HB)))
    e('s_mul_i32 %s, %s, %d' % (sr(S_T0), sr(S_W), 9*8*9216)); e('s_lshl_b32 %s, %s, 1' % (sr(S_T1), sr(S_FB)))
    e('s_add_u32 %s, %s, %s' % (sr(S_GCOL), sr(S_T0), sr(S_T1)))
    e('s_mul_i32 %s, %s, %d' % (sr(S_T1), sr(S_S), 288*9216 if OPT.get('kswap', False) else 0))
    e('s_add_u32 %s, %s, %d' % (sr(S_GCOL2), sr(S_GCOL), 288*9216)); e('s_sub_u32 %s, %s, %s' % (sr(S_GCOL2), sr(S_GCOL2), sr(S_T1))); e('s_add_u32 %s, %s, %s' % (sr(S_GCOL), sr(S_GCOL), sr(S_T1)))
    e('s_mul_i32 %s, %s, 9216' % (sr(S_WOFF), sr(S_W))); e('s_mov_b32 %s, 0' % sr(S_CW)); e('s_mov_b32 %s, 1' % sr(S_CR))
    e('s_mov_b32 %s, %s' % (sr(S_WR), sr(S_WOFF)))
    T = V_T
    pat = []; a = pat.append
    a('v_bfe_u32 %s, v0, 2, 2' % vr(T)); a('v_lshlrev_b32 %s, 5, %s' % (vr(T), vr(T)))
    a('v_and_b32 %s, 3, v0' % vr(T+1)); a('v_lshl_add_u32 %s, %s, 3, %s' % (vr(T), vr(T+1), vr(T)))
    a('v_lshl_add_u32 %s, v2, 7, %s' % (vr(V_PH), vr(T)))
    a('v_and_b32 %s, 1, v2' % vr(T+1)); a('v_lshlrev_b32 %s, 7, %s' % (vr(T+1), vr(T+1)))
    a('v_lshrrev_b32 %s, 1, v2' % vr(T+2)); a('v_lshl_add_u32 %s, %s, 10, %s' % (vr(T+2), vr(T+2), vr(T)))
    a('v_add_u32 %s, %s, %s' % (vr(V_PG), vr(T+2), vr(T+1)))
    a('v_mul_u32_u24 %s, 2304, v2' % vr(T+2)); a('v_add_u32 %s, %s, %s' % (vr(T+2), vr(T+2), vr(T)))
    a('v_add_u32 %s, %s, %s' % (vr(V_PDE), vr(T+2), vr(T+1))); a('v_sub_u32 %s, %s, %s' % (vr(V_PDO), vr(T+2), vr(T+1)))
    rest = []
    a = rest.append
    a('v_and_b32 v1, 1, v0'); a('v_bfe_u32 v2, v0, 1, 4'); a('v_mul_u32_u24 v2, 9216, v2'); a('v_lshl_add_u32 v2, v1, 4, v2')
    a('v_lshrrev_b32 v1, 5, v0'); a('v_lshl_add_u32 %s, v1, 5, v2' % vr(V_OH))
    a('v_add_u32 %s, %d, %s' % (vr(V_OH+1), 16*9216 - 1024, vr(V_OH))); a('v_add_u32 %s, %d, %s' % (vr(V_OH+2), 2*(16*9216 - 1024), vr(V_OH)))
    T2 = V_T + 4
    a('v_bfe_u32 v1, v0, 1, 2'); a('v_mul_u32_u24 v1, 1152, v1'); a('v_and_b32 v2, 1, v0'); a('v_lshl_add_u32 v1, v2, 4, v1'); a('v_lshrrev_b32 v2, 3, v0')
    for p in range(9):
        d = vr(V_OD+p)
        a('v_add_u32 %s, %d, v2' % (d, 8*p))
        a('v_mul_u32_u24 %s, 57, %s' % (vr(T2), d)); a('v_lshrrev_b32 %s, 10, %s' % (vr(T2), vr(T2)))
        a('v_mul_u32_u24 %s, 18, %s' % (vr(T2+1), vr(T2))); a('v_sub_u32 %s, %s, %s' % (d, d, vr(T2+1)))
        a('v_and_b32 %s, 1, %s' % (vr(T2+1), vr(T2))); a('v_xor_b32 %s, %s, %s' % (d, d, vr(T2+1)))
        a('v_mul_u32_u24 %s, 4608, %s' % (vr(T2), vr(T2))); a('v_lshl_add_u32 %s, %s, 5, %s' % (d, d, vr(T2)))
        a('v_add_u32 %s, %s, v1' % (d, d))
    for r in range(144): a('v_accvgpr_write_b32 a%d, 0' % (A_OUT + r))
    s_ = []
    b = s_.append
    b('s_mul_i32 %s, %s, %d' % (sr(S_A), sr(S_W), 9*16*9216)); b('s_lshl_b32 %s, %s, 1' % (sr(S_B), sr(S_HB))); b('s_add_u32 %s, %s, %s' % (sr(S_HCOL), sr(S_A), sr(S_B)))
    if OPT.get('kswap', False):
        b('s_mul_i32 %s, %s, %d' % (sr(S_A), sr(S_S), 288*9216)); b('s_sub_u32 %s, 0, %s' % (sr(S_B), sr(S_A)))
        s_.append(['s_cmp_lt_u32 %s, 2' % sr(S_W), 's_cselect_b32 %s, %s, %s' % (sr(S_A), sr(S_A), sr(S_B))])
        b('s_add_u32 %s, %s, %s' % (sr(S_HCOL), sr(S_HCOL), sr(S_A)))
    b('s_mul_i32 s63, %s, 576' % sr(S_S))
    b('s_lshl_b32 %s, %s, 4' % (sr(S_C), sr(S_W)))
    b('s_add_u32 %s, %s, %s' % (sr(S_A), sr(S_FB), sr(S_C))); b('s_mul_i32 %s, %s, 1152' % (sr(S_A), sr(S_A))); b('s_add_u32 %s, %s, s63' % (sr(S_DROW), sr(S_A)))
    b('s_xor_b32 %s, %s, 1' % (sr(S_B), sr(S_S))); b('s_mul_i32 %s, %s, 576' % (sr(S_A), sr(S_JP)))
    b('s_mul_i32 s54, %s, 320' % sr(S_B)); b('s_add_u32 s54, s54, %s' % sr(S_A))
    b('s_lshl_b32 s55, %s, 5' % sr(S_B)); b('s_add_u32 s55, s55, %s' % sr(S_A)); b('s_add_u32 s55, s55, 256')
    b('s_and_b32 s56, %s, 1' % sr(S_W)); b('s_lshl_b32 s56, s56, 4')
    b('s_lshr_b32 s57, %s, 1' % sr(S_W))
    for ee, th0 in enumerate((0, 2, 4, 5, 7)):
        d = sr(S_E+ee)
        b('s_lshl_b32 %s, s57, 5' % d); b('s_add_u32 %s, %s, s54' % (d, d))
        b('s_add_u32 %s, %s, %d' % (d, d, 32*th0))
        if ee == 3: s_.append(['s_cmp_eq_u32 s57, 0', 's_cselect_b32 %s, %s, %s' % (d, sr(S_HB), d)])
        if ee == 4: s_.append(['s_cmp_eq_u32 s57, 1', 's_cselect_b32 %s, s55, %s' % (d, d)])
        b('s_add_u32 %s, %s, s56' % (d, d)); b('s_mul_i32 %s, %s, 1152' % (d, d)); b('s_add_u32 %s, %s, s63' % (d, d))
    if OPT.get('final', 3) == 3:
        d = sr(S_E+3)
        b('s_add_u32 %s, s54, 192' % d)
        s_.append(['s_cmp_eq_u32 %s, 2' % sr(S_W), 's_cselect_b32 %s, 32, 0' % sr(S_A)]); b('s_add_u32 %s, %s, %s' % (d, d, sr(S_A)))
        s_.append(['s_cmp_eq_u32 %s, 0' % sr(S_W), 's_cselect_b32 %s, %s, %s' % (d, sr(S_HB), d)])
        s_.append(['s_cmp_eq_u32 %s, 3' % sr(S_W), 's_cselect_b32 %s, s55, %s' % (d, d)])
        b('s_mul_i32 %s, %s, 1152' % (d, d)); b('s_add_u32 %s, %s, s63' % (d, d)); b('s_add_u32 %s, %s, 288' % (sr(S_E+4), d))
    b('s_lshl_b32 %s, s2, 2' % sr(S_A)); b('s_add_u32 %s, %s, %s' % (sr(S_A), sr(S_A), sr(S_W)))
    b('s_lshl_b32 %s, %s, 2' % (sr(S_FLO), sr(S_A))); b('s_add_u32 %s, %s, 0x%x' % (sr(S_FLO), sr(S_FLO), WS_FLAG))
    b('s_mul_i32 %s, %s, 18432' % (sr(S_HXO), sr(S_A))); b('s_add_u32 %s, %s, 0x%x' % (sr(S_HXO), sr(S_HXO), WS_HX))
    b('s_xor_b32 %s, s2, 8' % sr(S_A)); b('s_lshl_b32 %s, %s, 2' % (sr(S_A), sr(S_A))); b('s_add_u32 %s, %s, %s' % (sr(S_A), sr(S_A), sr(S_W)))
    b('s_lshl_b32 %s, %s, 2' % (sr(S_FLP), sr(S_A))); b('s_add_u32 %s, %s, 0x%x' % (sr(S_FLP), sr(S_FLP), WS_FLAG))
    b('s_mul_i32 %s, %s, 18432' % (sr(S_HXP), sr(S_A))); b('s_add_u32 %s, %s, 0x%x' % (sr(S_HXP), sr(S_HXP), WS_HX))
    b('s_lshl_b32 %s, %s, 1' % (sr(S_A), sr(S_I))); b('s_add_u32 %s, %s, %s' % (sr(S_A), sr(S_A), sr(S_S)))
    b('s_lshl_b32 %s, %s, 3' % (sr(S_A), sr(S_A))); b('s_add_u32 %s, %s, %s' % (sr(S_A), sr(S_A), sr(S_JP)))
    b('s_lshl_b32 %s, %s, 2' % (sr(S_A), sr(S_A))); b('s_add_u32 %s, %s, %s' % (sr(S_A), sr(S_A), sr(S_W)))
    b('s_mul_i32 %s, %s, 18432' % (sr(S_P), sr(S_A))); b('s_add_u32 %s, %s, 0x%x' % (sr(S_P), sr(S_P), WS_P))
    b('s_mov_b32 %s, 0x3f80' % sr(S_LO)); b('s_mov_b32 %s, 0x3f800000' % sr(S_HI))
    b('s_mov_b32 %s, 3' % sr(S_CNT)); b('s_mov_b32 %s, 1' % sr(S_FVAL))
    LATE = OPT.get('late_setup', True)
    work = (pat if LATE else pat + rest + s_)
    def do_work(n):
        for _ in range(n):
            if not work: return
            x = work.pop(0)
            for t in (x if isinstance(x, list) else [x]): e(t)
    XLA = OPT.get('xla', 6)
    first = dma_G(S_WG, sr(S_GCOL), 0, 'Ga') + ([('X', k, None) for k in range(2, XLA)] if not FUSE else [])
    if not LATE: first += dma_G(S_WG, sr(S_GCOL), 1, 'Gb') + [('T', 0, None)]
    nvm = sum(1 for k in first if k[0] in 'DXT'); per = (len(work) + nvm - 1)//nvm
    for kind, text, tag in first:
        if kind == 'X': xload(P, text); do_work(per)
        elif kind == 'T': stload(P); do_work(per)
        else:
            e(text, tag=tag)
            if ' m0,' in text: e('s_nop 0')
            if kind == 'D': do_work(per)
    do_work(9999)
    if FUSE:
        e('s_cmp_lg_u32 %s, 0' % sr(S_W)); e('s_cbranch_scc1 L_%s_go' % name)
        e('s_lshl_b32 %s, %s, 2' % (sr(S_A), sr(S_I))); e('s_mul_i32 %s, %s, 171' % (sr(S_A), sr(S_A))); e('s_lshr_b32 %s, %s, 9' % (sr(S_A), sr(S_A)))
        e('s_lshl_b32 %s, %s, 8' % (sr(S_A), sr(S_A))); e('s_add_u32 %s, %s, 0x%x' % (sr(S_A), sr(S_A), WS_CNT))
        e('s_mov_b32 %s, 0x4000' % sr(S_C))
        P.raw('L_%s_wait:' % name)
        P.raw('buffer_load_dword v2, off, %s, %s sc1' % (sr(S_WS,4), sr(S_A)))
        P.raw('buffer_load_dword v3, off, %s, %s offset:256 sc1' % (sr(S_WS,4), sr(S_A)))
        P.raw('s_waitcnt vmcnt(0)')
        P.raw('v_min_u32 v2, v2, v3'); P.raw('s_nop 0')
        P.raw('v_readfirstlane_b32 %s, v2' % sr(S_B)); P.raw('s_sub_u32 %s, %s, 1' % (sr(S_C), sr(S_C)))
        P.raw('s_cmp_eq_u32 %s, 0' % sr(S_C)); P.raw('s_cbranch_scc1 L_%s_go' % name)
        P.raw('s_cmp_ge_u32 %s, 9' % sr(S_B)); P.raw('s_cbranch_scc1 L_%s_go' % name)
        P.raw('s_sleep %d' % OPT.get('poll_sleep', 6)); P.raw('s_branch L_%s_wait' % name)
        P.raw('L_%s_go:' % name)
        e('s_barrier')
        for k in range(XLA): xload(P, k)
    if OPT.get('pro_stamps'): stamp('setup')
    def stats_block(P):
        e = P.e; Q = V_H; T = V_H + 8
        P.wait_vm_tag('st')
        for mm in range(2): e('v_add_f32 %s, %s, %s' % (vr(Q+mm), vr(Q+mm), vr(Q+2+mm)))
        for mm in range(2): e('v_add_f32 %s, %s, %s' % (vr(Q+mm), vr(Q+mm), vr(Q+4+mm)))
        for swap in ('v_permlane32_swap_b32', 'v_permlane16_swap_b32'):
            for k in range(2): e('v_mov_b32 %s, %s' % (vr(Q+2+k), vr(Q+k)))
            e('s_nop 1')
            for k in range(2): e('%s %s, %s' % (swap, vr(Q+k), vr(Q+2+k)))
            e('s_nop 1')
            for k in range(2): e('v_add_f32 %s, %s, %s' % (vr(Q+k), vr(Q+k), vr(Q+2+k)))
        e('s_mov_b32 s99, 0x%08x' % f2u(1.0/576))
        CC = -2.0*0.7978845608028654*1.4426950408889634
        for mm in range(2): e('v_mul_f32 %s, s99, %s' % (vr(V_K+mm), vr(Q+mm)))
        for mm in range(2): e('v_add_f32 %s, 0x%08x, %s' % (vr(V_K+mm), f2u(1e-5), vr(V_K+mm)))
        for mm in range(2): e('v_rsq_f32 %s, %s' % (vr(T+mm), vr(V_K+mm)))
        e('s_nop 0')
        for mm in range(2):
            e('v_mul_f32 %s, 0x%08x, %s' % (vr(V_C0+mm), f2u(CC), vr(T+mm)))
            e('v_mul_f32 %s, %s, %s' % (vr(T+2+mm), vr(T+mm), vr(T+mm)))
        for mm in range(2): e('v_mul_f32 %s, 0x%08x, %s' % (vr(T+2+mm), f2u(0.044715), vr(T+2+mm)))
        for mm in range(2): e('v_mul_f32 %s, %s, %s' % (vr(V_C1+mm), vr(V_C0+mm), vr(T+2+mm)))
    e('v_mov_b32 %s, %s' % (vr(V_RD), vr(V_PG))); e('v_add_u32 %s, %d, %s' % (vr(V_RD2), SLOT, vr(V_PG)))
    P.wait_vm(lambda x: x.tag in ('Ga', 'x0')); i = e('s_barrier'); i.meta = dict(needs='Ga')
    stamp('bar0')
    S = Stream()
    P4 = OPT.get('pass4', True)
    fr = []; mf = []
    if P4:
        def step(ks, fts):
            rd = V_RD if ks < 9 else V_RD2; kl = ks % 9
            f0 = len(fr)
            for ft in fts: fr.append(Frag(rd, (4*kl)*1024 + ft*256, (4*kl+2)*1024 + ft*256))
            for n, ft in enumerate(fts):
                for mm in range(2):
                    mf.append(MF(acc(V_G, ft, mm), f0+n, xfrag(ks, mm), '0' if ks == 0 else acc(V_G, ft, mm), [f0+n, f0+n+1] if (n % 2 == 0 and mm == 0) else None))
        for ks in range(15): step(ks, (0, 1, 2, 3))
        for ks in range(15, 18): step(ks, (0, 1))
        for ks in range(15, 18): step(ks, (2, 3))
        S.add(fr, mf)
    else:
        for ks in range(18):
            rd = V_RD if ks < 9 else V_RD2; kl = ks % 9
            f0 = len(fr)
            for ft in range(2): fr.append(Frag(rd, (4*kl)*1024 + ft*256, (4*kl+2)*1024 + ft*256))
            for ft in range(2):
                for mm in range(2):
                    mf.append(MF(acc(V_G, ft, mm), f0+ft, xfrag(ks, mm), '0' if ks == 0 else acc(V_G, ft, mm), [f0, f0+1] if (ft == 0 and mm == 0) else None))
        S.add(fr, mf)
        fr = []; mf = []
        for ft in (2, 3):
            for g in range(6):
                f0 = len(fr)
                for t in range(3):
                    ks = 3*g + t; kl = ks % 9
                    fr.append(Frag(V_RD if ks < 9 else V_RD2, (4*kl)*1024 + ft*256, (4*kl+2)*1024 + ft*256))
                for mm in range(2):
                    for t in range(3):
                        ks = 3*g + t
                        mf.append(MF(acc(V_G, ft, mm), f0+t, xfrag(ks, mm), '0' if ks == 0 else acc(V_G, ft, mm), [f0, f0+1, f0+2] if (mm == 0 and t == 0) else None))
        S.add(fr, mf)
    fx = Fixed()
    G = 8 if P4 else 4
    for ks in range(18):
        g0 = G*ks if (not P4 or ks < 15) else 120 + 4*(ks-15)
        g1 = g0 + (G if (not P4 or ks < 15) else 4) - 1
        if ks + XLA < 18: fx.put(g0, 'X', (lambda P, k=ks+XLA: xload(P, k)), cost=4)
        if ks + 1 < 18: fx.put(g1, 'X', (lambda P, k=ks+1: P.wait_vm_tag('x%d' % k)))
    fx.put(100 if P4 else 61, 'X', stats_block, cost=8)
    ch = []
    late_q = []
    if LATE:
        put_dma(ch, 1, dma_G(S_WG, sr(S_GCOL), 1, 'Gb'), step=2)
        fx.put(30, 'X', stload, cost=9)
        late_q = [Queue([Op(x) for x in rest], 'rest').window(0, 0, 110),
                  Queue([Op((lambda P, x=x: [P.e(t) for t in x]), cost=1) if isinstance(x, list) else Op(x) for x in s_], 'srest').window(0, 0, 110)]
    if P4:
        put_dma(ch, 62, dma_G(S_WU, sr(S_GCOL), 0, 'Ua'), step=3)
        put_dma(ch, 100, dma_G(S_WU, sr(S_GCOL), 1, 'Ub'), step=3)
        ch.append((136, 'S', 's_add_u32 %s, %s, 128' % (sr(S_GCOL), sr(S_GCOL)), None)); ch.append((137, 'S', 's_add_u32 %s, %s, 128' % (sr(S_GCOL2), sr(S_GCOL2)), None))
        gbw = 9*8 - LAR - 2
    else:
        put_dma(ch, 57, dma_G(S_WU, sr(S_GCOL), 0, 'Ua'), step=2)
        put_dma(ch, 78, dma_G(S_WU, sr(S_GCOL), 1, 'Ub'), step=5)
        ch.append((126, 'S', 's_add_u32 %s, %s, 128' % (sr(S_GCOL), sr(S_GCOL)), None)); ch.append((127, 'S', 's_add_u32 %s, %s, 128' % (sr(S_GCOL2), sr(S_GCOL2)), None))
        gbw = 22
    fx.chain(ch)
    if dbg and OPT.get('pro_stamps'):
        for g in ((39, 79, 119) if P4 else (23, 47, 71)): fx.put(g, 'X', (lambda P, g=g: stamp('p%d' % g)), cost=0)
    fx.put(gbw, 'L', '@waitvm', 'Gb'); fx.put(gbw, 'B', 's_barrier', 'Gb')
    if P4: qa = gelu_q(0, 'g0', V_T).window(134, 134, 140); qb = gelu_q(1, 'g1', V_T+4).window(135, 135, 141)
    else: qa = gelu_q(0, 'g0', V_T).window(75, 75, 108); qb = gelu_q(1, 'g1', V_T+4).window(92, 100, 142)
    if late_q: qa.after([late_q[0]]); qb.after([late_q[0]])
    put_bar(fx, 144, 'Ua', PAT_G)
    ua = st_GU(V_U, 0, True)
    info['peel'] = emit_stream(P, S, ua[0][:LAR//2], fx, late_q + [qa, qb], A_W, NF, LAR, 0, maxslots=9, opt=OPT, first_reads=True, drain_ok=True, drain_interleave=True)
    if OPT.get('code_pf'):
        P.raw('s_getpc_b64 s[4:5]'); P.raw('L_%s_pc:' % name)
        P.raw('s_add_u32 s4, s4, L_%s_tail - L_%s_pc' % (name, name)); P.raw('s_addc_u32 s5, s5, 0')
        P.raw('s_mov_b32 s6, L_text_end - L_%s_tail' % name); e('s_mov_b32 s7, 0x%x' % SRD3)
        e('s_lshl_b32 %s, %s, 13' % (sr(S_CPF), sr(S_W)))
    stamp('peel')
    P.raw('.p2align 6'); P.raw('L_%s_loop:' % name)
    body_start = len(P.ins)
    def flagstore(tag, val):
        def f(P):
            if not OPT.get('no_flagwait'): P.wait_vm_tag(tag)
            P.e('v_mov_b32 %s, %s' % (vr(V_FL), val))
            P.e('buffer_store_dword %s, off, %s, %s sc1' % (vr(V_FL), sr(S_WS,4), sr(S_FLO)), tag='fl')
        f.cost = 3
        return f
    def front(fx, ch, tail):
        S = Stream().add(*st_GU(V_U, 0, True)).add(*st_GU(V_U, 1, False))
        G0 = OPT.get('dma_g0', 2)
        if not tail:
            put_dma(ch, G0, dma_G(S_WG, sr(S_GCOL), 0, 'Ga')); put_dma(ch, 72+G0, dma_G(S_WG, sr(S_GCOL), 1, 'Gb'))
            put_bar(fx, 72, 'Ub', PAT_G); put_bar(fx, 144, 'Ga', PAT_G)
        else:
            put_dma(ch, G0, dma_G(S_WG, sr(S_HCOL), 0, 'Gh', 16)); put_dma(ch, 72+G0, dma_D(sr(S_DROW), 'D'))
            put_bar(fx, 72, 'Ub', PAT_G); put_bar(fx, 144, 'Gh', PAT_H)
        W = OPT.get('win', dict())
        def win(k, kind): return W.get(k + ('T' if tail else ''), W.get(k, kind))
        g2 = gelu_q(2, 'g2', V_T).window(0, *win('g2', (18, 85))); g3 = gelu_q(3, 'g3', V_T+4).window(0, *win('g3', (51, 148)))
        p0 = prod_q(0, V_H, 'p0').window(92, *win('p0', (130, 143)))
        p1 = prod_q(1, V_H, 'p1', (sr(S_HXO), 0, 'h0')).window(110, *win('p1', (135, 149))).after([p0])
        p2 = prod_q(2, V_H+8, 'p2').window(128, *win('p2', (165, 178))).after([g2, p1])
        p3 = prod_q(3, V_H+8, 'p3', (sr(S_HXO), 2048, 'h1')).window(146, *win('p3', (172, 188))).after([g3, p2])
        return S, [p0, p1, p2, p3, g2, g3]
    G0 = OPT.get('dma_g0', 2)
    Hf = [[vr(V_H + 8*kq + 4*mm, 4) for mm in range(2)] for kq in range(2)]
    fx = Fixed(); ch = []
    S, qs = front(fx, ch, False)
    S.add(*st_GU(V_G, 0, True)).add(*st_GU(V_G, 1, False)).add(*st_D(Hf))
    put_dma(ch, 144+G0, dma_D(sr(S_DROW), 'D')); put_dma(ch, 216+G0, dma_G(S_WU, sr(S_GCOL), 0, 'Ua')); put_dma(ch, 288+G0, dma_G(S_WU, sr(S_GCOL), 1, 'Ub'))
    fx.chain(ch)
    put_bar(fx, 216, 'Gb', PAT_G); put_bar(fx, 288, 'D', PAT_D); put_bar(fx, 360, 'Ua', PAT_G)
    p3 = qs[3]
    W = OPT.get('win', dict())
    n0 = gelu_q(0, 'g0n', V_T).window(237, *W.get('n0', (252, 318))).after([p3]); n1 = gelu_q(1, 'g1n', V_T+4).window(255, *W.get('n1', (295, 359))).after([p3])
    if OPT.get('code_pf'):
        def cpf(P):
            P.e('v_lshlrev_b32 v2, 7, v0')
            P.e('buffer_load_dword v2, v2, s[4:7], %s offen' % sr(S_CPF), tag='cpf')
        fx.put(OPT.get('cpf_gap', 132), 'X', cpf, cost=3)
    fx.put(277, 'X', flagstore('h1', sr(S_FVAL)), cost=3)
    fx.chain([(285, 'S', 's_add_u32 %s, %s, 1' % (sr(S_FVAL), sr(S_FVAL)), None), (286, 'S', 's_add_u32 %s, %s, 4096' % (sr(S_HXO), sr(S_HXO)), None),
              (287, 'S', 's_add_u32 %s, %s, %d' % (sr(S_DROW), sr(S_DROW), 64*1152), None)])
    info['body'] = emit_stream(P, S, ua[0][:LAR//2], fx, qs + [n0, n1], A_W, NF, LAR, 0, maxslots=OPT['cap'], opt=OPT)
    dl = {q.name: q.finish for q in qs + [n0, n1]}
    assert dl['p0'] <= 143 and dl['p1'] <= 161 and dl['p2'] <= 179 and dl['p3'] <= 197, dl
    info['fb'] = dl
    e('s_add_u32 %s, %s, 128' % (sr(S_GCOL), sr(S_GCOL))); e('s_add_u32 %s, %s, 128' % (sr(S_GCOL2), sr(S_GCOL2)))
    e('s_sub_u32 %s, %s, 1' % (sr(S_CNT), sr(S_CNT))); e('s_cmp_lg_u32 %s, 0' % sr(S_CNT))
    e('s_cbranch_scc1 L_%s_loop' % name)
    body_end = len(P.ins)
    P.raw('L_%s_tail:' % name)
    stamp('loop')
    fx = Fixed(); ch = []
    S, qs = front(fx, ch, True)
    S.add(*st_half(V_G)).add(*st_D(Hf)).add(*st_half(V_U))
    HHf = [vr(V_HH + 4*mm, 4) for mm in range(2)]
    hp = [[hpfrag(th, mm) for mm in range(2)] for th in range(9)]
    FIN = OPT.get('final', 3)
    F2 = FIN in (2, 3)
    RA = (V_RD, V_RD2); RB = (V_T, V_T+1)
    put_dma(ch, 144+G0, dma_G(S_WU, sr(S_HCOL), 0, 'Uh', 16))
    if FIN == 1:
        for pair in ([hp[0], hp[1]], [hp[2], hp[3]], [hp[4], hp[5]], [HHf, hp[6]], [hp[7], hp[8]]): S.add(*st_D(pair))
        for k in range(5): put_dma(ch, 216+72*k+G0, dma_D(sr(S_E+k), 'E%d' % k))
        fx.chain(ch)
        put_bar(fx, 216, 'D', PAT_D); put_bar(fx, 288, 'Uh', PAT_H)
        for k in range(5): put_bar(fx, 360+72*k, 'E%d' % k, PAT_D)
    elif FIN == 3:
        for pair in ([hp[0], hp[1]], [hp[2], hp[3]], [hp[4], hp[5]]): S.add(*st_D(pair))
        last = [HHf, hp[6], hp[7], hp[8]]
        S.add(*st_F(last, 0)).add(*st_F(last, 1))
        for k in range(3): put_dma(ch, 216+72*k+G0, dma_D(sr(S_E+k), 'E%d' % k))
        put_dma(ch, 432+G0, dma_F(sr(S_E+3), 'F0')); put_dma(ch, 504+G0, dma_F(sr(S_E+4), 'F1'))
        fx.chain(ch)
        put_bar(fx, 216, 'D', PAT_D); put_bar(fx, 288, 'Uh', PAT_H)
        for k in range(3): put_bar(fx, 360+72*k, 'E%d' % k, PAT_D)
        put_bar(fx, 576, 'F0', [(V_RD, V_PF)]); put_bar(fx, 648, 'F1', [(V_RD, V_PF)])
        qf = Queue([Op(x) for x in f_setup_ops()], 'fset').window(362, 362, 425)
    else:
        for pair in ([hp[0], hp[1]], [hp[2], hp[3]], [hp[4], hp[5]]): S.add(*st_D(pair))
        S.add(*st_final([HHf, hp[6], hp[7], hp[8]], RA, RB))
        for k in range(3): put_dma(ch, 216+72*k+G0, dma_D(sr(S_E+k), 'E%d' % k))
        put_dma(ch, 421, dma_D(sr(S_E+3), 'E3'), step=6); put_dma(ch, 475, dma_D(sr(S_E+4), 'E4'), step=6)
        fx.chain(ch)
        put_bar(fx, 216, 'D', PAT_D); put_bar(fx, 288, 'Uh', PAT_H)
        for k in range(3): put_bar(fx, 360+72*k, 'E%d' % k, PAT_D)
        fx.put(436, 'B', 's_barrier', None)
        put_bar(fx, 576, ['E3', 'E4'], PAT_D)
        def second_base(P):
            P.e('s_add_u32 %s, %s, 1' % (sr(S_A), sr(S_CR))); P.e('s_and_b32 %s, %s, 3' % (sr(S_A), sr(S_A))); P.e('s_mul_i32 %s, %s, %d' % (sr(S_A), sr(S_A), SLOT))
            P.e('v_add_u32 %s, %s, %s' % (vr(RB[0]), sr(S_A), vr(V_PDE))); P.e('v_add_u32 %s, %s, %s' % (vr(RB[1]), sr(S_A), vr(V_PDO)))
        fx.put(576-LAR-3, 'X', second_base, cost=5)
    p3 = qs[3]
    h0 = gelu_q(0, 'gh0', V_T).window(183, 195, 265).after([p3]); h1 = gelu_q(1, 'gh1', V_T+4).window(219, 255, 330).after([p3])
    fx.chain([(340, 'S', 's_add_u32 %s, %s, 4096' % (sr(S_T1), sr(S_HXO)), None)])
    ph0 = prod_q(0, V_HH, 'ph0').window(327, 330, 350).after([h0])
    ph1 = prod_q(1, V_HH, 'ph1', (sr(S_T1), 0, 'hh')).window(363, 364, 384).after([h1, ph0])
    def poll_issue(P): P.e('buffer_load_dword %s, off, %s, %s sc1' % (vr(V_PO), sr(S_WS,4), sr(S_FLP)), tag='poll')
    slow = []
    def poll_check(val, lab):
        def f(P):
            P.wait_vm_tag('poll')
            P.e('v_readfirstlane_b32 %s, %s' % (sr(S_A), vr(V_PO)))
            P.e('s_nop 0')
            P.e('s_cmp_ge_u32 %s, %d' % (sr(S_A), val))
            P.e('s_cbranch_scc0 L_%s_slow%s' % (name, lab))
            P.raw('L_%s_back%s:' % (name, lab))
            slow.append((val, lab))
        f.cost = 5
        return f
    def hp_load(x):
        def f(P):
            if x % 4 == 0: P.e('s_add_u32 %s, %s, %d' % (sr(S_B), sr(S_HXP), (x//4)*4096))
            th, mm = divmod(x, 2)
            P.e('buffer_load_dwordx4 %s, %s, %s, %s offen offset:%d sc1' % (hpfrag(th, mm), vr(V_L16), sr(S_WS,4), sr(S_B), (x % 4)*1024), tag='hp%d' % x)
        return f
    if dbg and OPT.get('tail_stamps'):
        for g in OPT['tail_stamps']: fx.put(g, 'X', (lambda P, g=g: stamp('t%d' % g)), cost=0)
    fx.put(144, 'X', poll_issue, cost=2); fx.put(277, 'X', poll_check(3, 'a'), cost=5)
    for x in range(4): fx.put(279 + 2*x, 'X', hp_load(x), cost=2)
    for x in range(4, 8): fx.put(350 + 2*(x-4), 'X', hp_load(x), cost=2)
    for x in range(8, 12): fx.put(422 + 2*(x-8), 'X', hp_load(x), cost=2)
    fx.put(279, 'X', flagstore('h1', '4'), cost=3)
    fx.put(440, 'X', flagstore('hh', '5'), cost=3)
    if not F2:
        fx.put(360, 'X', poll_issue, cost=2); fx.put(493, 'X', poll_check(4, 'b'), cost=5)
        for x in range(12, 16): fx.put(495 + 2*(x-12), 'X', hp_load(x), cost=2)
        fx.put(504, 'X', poll_issue, cost=2); fx.put(565, 'X', poll_check(5, 'c'), cost=5)
        for x in range(16, 18): fx.put(567 + 2*(x-16), 'X', hp_load(x), cost=2)
    else:
        fx.put(478, 'X', poll_issue, cost=2); fx.put(513, 'X', poll_check(5, 'b'), cost=5)
        for x in range(12, 18): fx.put(515 + 2*(x-12), 'X', hp_load(x), cost=2)
    def hp_wait(xs):
        def f(P): P.wait_vm(lambda i: i.tag in ['hp%d' % t for t in xs])
        return f
    fx.put(360-4, 'X', hp_wait(range(4)))
    fx.put(432-4, 'X', hp_wait(range(4, 8)))
    fx.put(504-4, 'X', hp_wait(range(8, 12)))
    if not F2:
        fx.put(576-4, 'X', hp_wait(range(12, 14)))
        fx.put(648-4, 'X', hp_wait(range(14, 18)))
    else: fx.put(576-2, 'X', hp_wait(range(12, 18)))
    ep = []
    for np_ in range(9):
        ear = (576 + 16*(np_+1) + 2) if F2 else (648 + 8*(np_+1) + 2)
        for mm in range(2):
            tb = V_G + 16*((2*np_+mm) % 4); hb = V_H + 4*((2*np_+mm) % 4)
            for k in range(2):
                for r in range(4): ep.append(Op('v_accvgpr_read_b32 %s, a%d' % (vr(tb+4*k+r), A_OUT + 8*(2*np_+k) + 4*mm + r), ear))
            for d in range(4): ep.append(Op('v_cvt_pk_bf16_f32 %s, %s, %s' % (vr(hb+d), vr(tb+2*d), vr(tb+2*d+1)), ear))
            fr_ = mm*9 + np_
            def st(P, fr_=fr_, hb=hb):
                P.e('s_add_u32 %s, %s, %d' % (sr(S_T0), sr(S_P), fr_*1024))
                P.e('buffer_store_dwordx4 %s, %s, %s, %s offen sc1' % (vr(hb,4), vr(V_L16), sr(S_WS,4), sr(S_T0)), tag='p')
            ep.append(Op(st, ear, cost=2))
    qe = Queue(ep, 'ep', prio=True)
    allq = qs + [ph0, ph1, h0, h1, qe] + ([qf] if FIN == 3 else [])
    info['tail'] = emit_stream(P, S, [], fx, allq, A_W, NF, LAR, 0, maxslots=OPT['cap'], opt=OPT, drain_ok=True, drain_pre='s_nop 7')
    dl = {q.name: q.finish for q in allq}
    assert dl['p0'] <= 143 and dl['p1'] <= 179 and dl['p3'] < 212 and dl['ph1'] < 420 and dl['gh0'] < 326, dl
    if FIN == 3: assert dl['fset'] < 430, dl
    info['ft'] = dl
    stamp('tail')
    if dbg:
        e('s_waitcnt vmcnt(0)')
        stamp('end')
        e('s_mov_b32 s4, s94'); e('s_mov_b32 s5, s95'); e('s_mov_b32 s6, 0x100000'); e('s_mov_b32 s7, 0x20000')
        e('s_lshl_b32 s41, s2, 2'); e('s_add_u32 s41, s41, %s' % sr(S_W)); e('s_lshl_b32 s41, s41, 7')
        for k in range(len(stamps)):
            e('s_sub_u32 s42, s%d, s64' % (64+k)); e('v_mov_b32 v1, s42')
            e('buffer_store_dword v1, off, s[4:7], s41 offset:%d' % (4*k))
            e('s_sub_u32 s42, s%d, s77' % (77+k)); e('v_mov_b32 v1, s42')
            e('buffer_store_dword v1, off, s[4:7], s41 offset:%d' % (64+4*k))
        e('v_mov_b32 v1, s77'); e('buffer_store_dword v1, off, s[4:7], s41 offset:60')
    P.raw('L_%s_end:' % name)
    e('s_endpgm')
    main_end = len(P.ins)
    for val, lab in slow:
        P.raw('L_%s_slow%s:' % (name, lab))
        P.raw('s_mov_b32 %s, 0x8000' % sr(S_C))
        P.raw('L_%s_spin%s:' % (name, lab))
        P.raw('s_sleep 2')
        P.raw('buffer_load_dword %s, off, %s, %s sc1' % (vr(V_PO), sr(S_WS,4), sr(S_FLP)))
        P.raw('s_waitcnt vmcnt(0)')
        P.raw('v_readfirstlane_b32 %s, %s' % (sr(S_A), vr(V_PO)))
        P.raw('s_sub_u32 %s, %s, 1' % (sr(S_C), sr(S_C)))
        P.raw('s_cmp_eq_u32 %s, 0' % sr(S_C))
        P.raw('s_cbranch_scc1 L_%s_back%s' % (name, lab))
        P.raw('s_cmp_ge_u32 %s, %d' % (sr(S_A), val))
        P.raw('s_cbranch_scc0 L_%s_spin%s' % (name, lab))
        P.raw('s_branch L_%s_back%s' % (name, lab))
    ins = P.ins
    path = ins[:body_start] + ins[body_start:body_end]*3 + ins[body_end:main_end]
    if FUSE:
        a, (h0, h1), w3, en = segs['start'], segs['skip'], segs['w3'], segs['end']
        rest_ = ins[en:body_start] + ins[body_start:body_end]*3 + ins[body_end:main_end]
        path = ins[:h0] + ins[h1:w3] + rest_
        info['paths'] = [ins[:h1] + rest_, ins[w3:en] + rest_]
    info['stamps'] = stamps
    return P, path, info

if __name__ == '__main__':
    import collections
    P, path, info = build()
    check(path, 'k3b')
    print('barrier problems', verify_barriers(path))
    for k in ('peel', 'body', 'tail'):
        print(k, 'slots/gap hist', sorted(collections.Counter(info[k]).items()), 'est cyc/unit %.2f' % (est_cycles(info[k])/len(info[k])*2))
    print(info['fb']); print(info['ft'])
    print('instrs', len(P.ins))
```

```python
import sys, os; sys.path.insert(0,'gen')
import build_all as B
for n, o in (('fuse', dict(fuse2=True)), ('fuse_s2', dict(fuse2=True, poll_sleep=2)), ('fuse_s16', dict(fuse2=True, poll_sleep=16))):
    t, ks = B.make(opts=o); B.assemble(t, ks, n); open('variants/%s.s' % n, 'w').write(t)
L = open('fuse.s').read().split('\n')
a = L.index('k3_kernel:'); j = L.index('L_k3_kernel_p1_w3:'); m = L.index('L_k3_kernel_mlp:')
print('barriers in tile path', sum(1 for l in L[a:j] if l == 's_barrier'), 'stub', sum(1 for l in L[j:m] if l == 's_barrier'))
w = L.index('L_k3_kernel_wait:'); print('\n'.join(L[w-9:w+18]))
```

```python
from core import *
from common import *
from sched import *
import k2

SLOT = 36864
NF, LAR = 12, 12
def set_lar(x):
    global LAR
    LAR = x
V_RD, V_RD2 = 3, 4
V_PG, V_PH, V_PDE, V_PDO = 5, 6, 7, 8
V_OG, V_OH, V_OD = 9, 12, 15
V_C0, V_C1, V_K = 24, 26, 28
V_L16, V_FL = 30, 31
V_PO = 1
V_T = 32
V_H, V_HH = 40, 56
V_G, V_U = 64, 96
V_X = 128
A_OUT, A_X, A_W, A_HP = 0, 144, 160, 208
S_WG, S_WU, S_WD, S_WS = 8, 12, 16, 20
S_W = 24
S_GCOL, S_HCOL, S_DROW = 25, 26, 27
S_E = 28
S_HXO, S_HXP, S_P = 33, 34, 35
S_WR, S_WRAP, S_WOFF, S_RD = 36, 37, 38, 39
S_CNT, S_T0, S_T1 = 40, 41, 42
S_FLO, S_FLP, S_FVAL = 43, 44, 45
S_LO, S_HI = 46, 47
S_XO = 48
S_A, S_B, S_C, S_D = 50, 51, 52, 53
S_JP, S_S, S_I, S_FB, S_HB = 58, 59, 60, 61, 62
OPT = dict(no_dma=False, no_bar=False, no_valu=False, cap=3)

def xi_reg(ks, mm):
    xi = 2*ks + mm
    return ('v', V_X + 4*xi) if xi < 32 else ('a', A_X + 4*(xi-32))
def xfrag(ks, mm):
    k, b = xi_reg(ks, mm); return vr(b, 4) if k == 'v' else ar(b, 4)
def hpfrag(th, mm):
    x = 2*th + mm
    return ar(A_HP + 4*x, 4) if x < 12 else vr(V_X + 4*(x-12), 4)
def acc(base, ft, mm): return vr(base + 8*ft + 4*mm, 4)
def out(nt, mm): return ar(A_OUT + 8*nt + 4*mm, 4)

def st_GU(base, kh, first, fts=(0,1,2,3), rd=V_RD):
    fr = []; mf = []
    for ft in fts:
        for g in range(3):
            f0 = len(fr)
            for t in range(3):
                kl = 3*g + t
                fr.append(Frag(rd, (4*kl)*1024 + ft*256, (4*kl+2)*1024 + ft*256))
            for mm in range(2):
                for t in range(3):
                    kl = 3*g + t
                    C = '0' if (first and kl == 0) else acc(base, ft, mm)
                    mf.append(MF(acc(base, ft, mm), f0+t, xfrag(9*kh+kl, mm), C, [f0, f0+1, f0+2] if (mm == 0 and t == 0) else None))
    return fr, mf
def st_half(base):
    fr = []; mf = []
    for ft in range(2):
        for g in range(6):
            f0 = len(fr)
            for t in range(3):
                ks = 3*g + t
                fr.append(Frag(V_RD, (2*ks)*1024 + ft*512, (2*ks+1)*1024 + ft*512))
            for mm in range(2):
                for t in range(3):
                    ks = 3*g + t
                    C = '0' if ks == 0 else acc(base, ft, mm)
                    mf.append(MF(acc(base, ft, mm), f0+t, xfrag(ks, mm), C, [f0, f0+1, f0+2] if (mm == 0 and t == 0) else None))
    return fr, mf
def st_D(bf):
    fr = []; mf = []
    for nt in range(18):
        f0 = len(fr); rd = V_RD if nt % 2 == 0 else V_RD2
        for kq in range(2): fr.append(Frag(rd, (2*kq)*9216 + nt*128, (2*kq+1)*9216 + nt*128))
        for mm in range(2):
            for kq in range(2):
                w = [f0, f0+1, f0+2, f0+3] if (nt % 2 == 0 and mm == 0 and kq == 0) else None
                mf.append(MF(out(nt, mm), f0+kq, bf[kq][mm], out(nt, mm), w))
    return fr, mf
def st_final(bf, rdA, rdB):
    fr = []; mf = []
    for nt in range(18):
        f0 = len(fr)
        for k in range(4):
            rd = (rdA if k < 2 else rdB)[nt % 2]; kq = k % 2
            fr.append(Frag(rd, (2*kq)*9216 + nt*128, (2*kq+1)*9216 + nt*128))
        for mm in range(2):
            for k in range(4):
                w = [f0, f0+1, f0+2, f0+3] if (mm == 0 and k == 0) else None
                mf.append(MF(out(nt, mm), f0+k, bf[k][mm], out(nt, mm), w))
    return fr, mf

V_OF, V_PF = 160, 169
def st_F(bf, nh):
    fr = []; mf = []
    for ntl in range(9):
        f0 = len(fr); nt = 9*nh + ntl
        for k in range(4): fr.append(Frag(V_RD, k*9216 + ntl*128, k*9216 + 4608 + ntl*128))
        for mm in range(2):
            for k in range(4):
                w = [f0, f0+1, f0+2, f0+3] if (mm == 0 and k == 0) else None
                mf.append(MF(out(nt, mm), f0+k, bf[k][mm], out(nt, mm), w))
    return fr, mf
def dma_F(srow, tag):
    it = []
    for q in range(9):
        it.append(('S', 's_add_u32 m0, %s, %d' % (sr(S_WR), 1024*q) if q else 's_mov_b32 m0, %s' % sr(S_WR), None))
        it.append(('D', 'buffer_load_dwordx4 %s, %s, %s offen lds' % (vr(V_OF+q), sr(S_WD,4), srow), tag))
    return it + [('S', t, None) for t in rot_wr()]
def f_setup_ops():
    a = []; t0, t1, t2, t3 = 170, 171, 172, 173
    a.append('v_bfe_u32 %s, v0, 1, 2' % vr(t0)); a.append('v_mul_u32_u24 %s, 1152, %s' % (vr(t0), vr(t0)))
    a.append('v_and_b32 %s, 1, v0' % vr(t1)); a.append('v_lshl_add_u32 %s, %s, 4, %s' % (vr(t0), vr(t1), vr(t0))); a.append('v_lshrrev_b32 %s, 3, v0' % vr(t1))
    for p in range(9):
        d = vr(V_OF+p)
        a.append('v_add_u32 %s, %d, %s' % (d, 8*p, vr(t1)))
        a.append('v_mul_u32_u24 %s, 57, %s' % (vr(t2), d)); a.append('v_lshrrev_b32 %s, 9, %s' % (vr(t2), vr(t2)))
        a.append('v_mul_u32_u24 %s, 9, %s' % (vr(t3), vr(t2))); a.append('v_sub_u32 %s, %s, %s' % (d, d, vr(t3)))
        a.append('v_mul_u32_u24 %s, 4608, %s' % (vr(t2), vr(t2))); a.append('v_lshl_add_u32 %s, %s, 5, %s' % (d, d, vr(t2)))
        a.append('v_add_u32 %s, %s, %s' % (d, d, vr(t0)))
    a.append('v_lshrrev_b32 %s, 4, v0' % vr(t1)); a.append('v_mul_u32_u24 %s, 1152, %s' % (vr(t1), vr(t1)))
    a.append('v_bfe_u32 %s, v0, 2, 2' % vr(t2)); a.append('v_lshl_add_u32 %s, %s, 5, %s' % (vr(t1), vr(t2), vr(t1)))
    a.append('v_and_b32 %s, 3, v0' % vr(t2)); a.append('v_lshl_add_u32 %s, %s, 3, %s' % (vr(V_PF), vr(t2), vr(t1)))
    return a
assert all((b*57) >> 9 == b//9 for b in range(72))

def gelu_ops(ft, vals, tb):
    ops = []
    for g0 in range(0, len(vals), 4):
        grp = vals[g0:g0+4]
        def G(v): return vr(V_G + 8*ft + 4*v[0] + v[1])
        steps = [lambda v, t: 'v_mul_f32 %s, %s, %s' % (t, G(v), G(v)),
                 lambda v, t: 'v_fma_f32 %s, %s, %s, %s' % (t, t, vr(V_C1+v[0]), vr(V_C0+v[0])),
                 lambda v, t: 'v_mul_f32 %s, %s, %s' % (t, G(v), t),
                 lambda v, t: 'v_exp_f32 %s, %s' % (t, t),
                 lambda v, t: 'v_fma_f32 %s, %s, %s, %s' % (t, t, vr(V_K+v[0]), vr(V_K+v[0])),
                 lambda v, t: 'v_rcp_f32 %s, %s' % (t, t),
                 lambda v, t: 'v_mul_f32 %s, %s, %s' % (G(v), G(v), t)]
        for st in steps:
            for n, v in enumerate(grp): ops.append(Op(st(v, vr(tb+n))))
    return ops
ALLV = [(mm, r) for mm in range(2) for r in range(4)]
def gelu_q(ft, name, tb): return Queue(gelu_ops(ft, ALLV, tb), name)
def prod_q(ft, H, name, store=None):
    ops = []
    for mm in range(2):
        for r in range(4):
            g = vr(V_G + 8*ft + 4*mm + r)
            ops.append(Op('v_mul_f32 %s, %s, %s' % (g, g, vr(V_U + 8*ft + 4*mm + r))))
    for mm in range(2):
        for d in range(2):
            g = V_G + 8*ft + 4*mm + 2*d
            ops.append(Op('v_cvt_pk_bf16_f32 %s, %s, %s' % (vr(H + 4*mm + 2*(ft % 2) + d), vr(g), vr(g+1))))
    if store:
        soff, imm0, tag = store
        for mm in range(2):
            ops.append(Op('buffer_store_dwordx4 %s, %s, %s, %s offen offset:%d %s' % (vr(H + 4*mm, 4), vr(V_L16), sr(S_WS,4), soff, imm0 + 1024*mm, OPT.get('hst_flags', 'sc1')), tag=tag))
    return Queue(ops, name, prio=True)

S_CW, S_CR = 96, 97
S_CPF = 99
S_GCOL2, S_XO2 = 100, 101
def rot_wr(): return ['s_add_u32 %s, %s, 1' % (sr(S_CW), sr(S_CW)), 's_and_b32 %s, %s, 3' % (sr(S_CW), sr(S_CW)),
                      's_mul_i32 %s, %s, %d' % (sr(S_WR), sr(S_CW), SLOT), 's_add_u32 %s, %s, %s' % (sr(S_WR), sr(S_WR), sr(S_WOFF))]
def rot_rd(): return ['s_add_u32 %s, %s, 1' % (sr(S_CR), sr(S_CR)), 's_and_b32 %s, %s, 3' % (sr(S_CR), sr(S_CR)),
                      's_mul_i32 %s, %s, %d' % (sr(S_RD), sr(S_CR), SLOT)]
def dma_G(srd, scol, kh, tag, step_rows=8):
    it = []
    vo = V_OG if step_rows == 8 else V_OH
    for g in range(3):
        const = 3*g*step_rows*9216
        if step_rows == 8 and kh == 1: scol = sr(S_GCOL2)
        it.append(('S', 's_add_u32 %s, %s, 0x%x' % (sr(S_T0), scol, const) if const else 's_mov_b32 %s, %s' % (sr(S_T0), scol), None))
        it.append(('S', 's_add_u32 m0, %s, %d' % (sr(S_WR), 3072*g) if g else 's_mov_b32 m0, %s' % sr(S_WR), None))
        for q in range(3):
            it.append(('D', 'buffer_load_dwordx4 %s, %s, %s offen offset:%d %s lds' % (vr(vo+q), sr(srd,4), sr(S_T0), 1024*q, OPT.get('dma_flags', '')), tag))
    return it + [('S', t, None) for t in rot_wr()]
def dma_D(srow, tag):
    it = []
    for q in range(9):
        it.append(('S', 's_add_u32 m0, %s, %d' % (sr(S_WR), 1024*q) if q else 's_mov_b32 m0, %s' % sr(S_WR), None))
        it.append(('D', 'buffer_load_dwordx4 %s, %s, %s offen %s lds' % (vr(V_OD+q), sr(S_WD,4), srow, OPT.get('dma_flags', '')), tag))
    return it + [('S', t, None) for t in rot_wr()]
def put_dma(chain, g0, items, step=None):
    step = step or OPT.get('dma_step', 7)
    k = 0; pend = []
    for kind, text, tag in items:
        if kind == 'S': pend.append(text)
        else:
            due = g0 + step*k; k += 1
            for n, t in enumerate(pend): chain.append((max(0, due - 2*len(pend) + 2*n - 1), 'S', t, None))
            pend = []
            chain.append((due, 'D', text, tag))
    for n, t in enumerate(pend): chain.append((g0 + step*(k-1) + 1, 'S', t, None))
def put_bar(fx, end, tags, pats, rot=True):
    gb = end - LAR - 2
    if rot: fx.chain([(gb - 12, 'S', t, None) for t in rot_rd()])
    tag = tags if not isinstance(tags, (list, tuple)) else tags[-1]
    fx.put(gb, 'L', '@waitvm', tag)
    fx.put(gb, 'B', 's_barrier', tags)
    for rd, pat in pats: fx.put(gb+1, 'R', 'v_add_u32 %s, %s, %s' % (vr(rd), sr(S_RD), vr(pat)))
PAT_G = [(V_RD, V_PG)]; PAT_H = [(V_RD, V_PH)]; PAT_D = [(V_RD, V_PDE), (V_RD2, V_PDO)]

def build(name='k3_kernel', dbg=False):
    P = Prog(); e = P.e
    stamps = []
    def stamp(label):
        if not dbg: return
        k = len(stamps); stamps.append(label); assert k < 13
        P.raw('s_memtime s[92:93]'); P.raw('s_memrealtime s[90:91]'); P.raw('s_waitcnt lgkmcnt(0)')
        P.raw('s_mov_b32 s%d, s92' % (64+k)); P.raw('s_mov_b32 s%d, s90' % (77+k))
    info = {}
    FUSE = OPT.get('fuse2', False)
    e('s_cmp_ge_u32 s2, 256'); e('s_cbranch_scc1 L_%s_end' % name)
    stamp('start')
    if FUSE:
        k2.build(name + '_p1', pf='help', P=P, embed='L_%s_mlp' % name)
        segs = P.segs
        P.raw('L_%s_mlp:' % name)
        P.vmq = []; P.lgq = []
        e('s_mov_b32 %s, s20' % sr(S_W))
        stamp('k2')
    if dbg: e('s_load_dwordx2 s[94:95], s[0:1], %d' % KA_DBG)
    e('s_load_dwordx2 s[56:57], s[0:1], %d' % KA_WS)
    e('s_load_dwordx4 s[4:7], s[0:1], %d' % KA_WG)
    e('s_load_dwordx2 s[54:55], s[0:1], %d' % KA_WD)
    if not FUSE:
        e('v_lshrrev_b32 v1, 6, v0'); e('v_and_b32 v0, 63, v0')
        e('v_readfirstlane_b32 %s, v1' % sr(S_W))
    e('v_lshlrev_b32 %s, 4, v0' % vr(V_L16))
    e('v_lshrrev_b32 v2, 4, v0'); e('v_and_b32 v1, 15, v0'); e('v_lshl_add_u32 v1, v2, 11, v1'); e('v_lshlrev_b32 v1, 3, v1')
    if OPT.get('map', 0) == 0:
        e('s_and_b32 %s, s2, 7' % sr(S_JP))
        e('s_lshr_b32 %s, s2, 3' % sr(S_I)); e('s_and_b32 %s, %s, 1' % (sr(S_S), sr(S_I))); e('s_lshr_b32 %s, %s, 1' % (sr(S_I), sr(S_I)))
    else:
        e('s_bfe_u32 %s, s2, 0x20001' % sr(S_JP)); e('s_lshl_b32 %s, %s, 1' % (sr(S_JP), sr(S_JP)))
        e('s_bfe_u32 %s, s2, 0x10004' % sr(S_T0)); e('s_add_u32 %s, %s, %s' % (sr(S_JP), sr(S_JP), sr(S_T0)))
        e('s_bfe_u32 %s, s2, 0x10003' % sr(S_S))
        e('s_and_b32 %s, s2, 1' % sr(S_I)); e('s_lshl_b32 %s, %s, 3' % (sr(S_I), sr(S_I)))
        e('s_lshr_b32 %s, s2, 5' % sr(S_T0)); e('s_add_u32 %s, %s, %s' % (sr(S_I), sr(S_I), sr(S_T0)))
    e('s_lshl_b32 %s, %s, 2' % (sr(S_T0), sr(S_I))); e('s_add_u32 %s, %s, %s' % (sr(S_T0), sr(S_T0), sr(S_W)))
    e('s_mul_i32 %s, %s, %d' % (sr(S_XO), sr(S_T0), 2*18*1024)); e('s_add_u32 %s, %s, 0x%x' % (sr(S_XO), sr(S_XO), WS_HC))
    e('s_lshl_b32 %s, %s, 8' % (sr(S_D), sr(S_T0)))
    e('s_mul_i32 %s, %s, %d' % (sr(S_T1), sr(S_S), 9216 if OPT.get('kswap', False) else 0)); e('s_sub_u32 %s, %s, %s' % (sr(S_XO2), sr(S_XO), sr(S_T1))); e('s_add_u32 %s, %s, %s' % (sr(S_XO), sr(S_XO), sr(S_T1)))
    e('s_waitcnt lgkmcnt(0)')
    def mksrd(srd, lo, hi, size):
        e('s_mov_b32 %s, s%d' % (sr(srd), lo)); e('s_mov_b32 %s, s%d' % (sr(srd+1), hi))
        e('s_mov_b32 %s, 0x%x' % (sr(srd+2), size)); e('s_mov_b32 %s, 0x%x' % (sr(srd+3), SRD3))
    mksrd(S_WS, 56, 57, WS_END); mksrd(S_WG, 4, 5, D_*F_*2); mksrd(S_WU, 6, 7, D_*F_*2)
    e('s_add_u32 s4, s56, 0x%x' % WS_ST); e('s_addc_u32 s5, s57, 0'); e('s_mov_b32 s6, %d' % (9*2048*8)); e('s_mov_b32 s7, 0x%x' % SRD3)
    e('v_mov_b32 %s, v1' % vr(V_HH))
    def xload(P, ks):
        for mm in range(2):
            P.e('s_add_u32 %s, %s, %d' % (sr(S_T1), sr(S_XO if ks < 9 else S_XO2), (18*mm+ks)*1024))
            P.e('buffer_load_dwordx4 %s, %s, %s, %s offen %s' % (xfrag(ks, mm), vr(V_L16), sr(S_WS,4), sr(S_T1), 'sc1' if FUSE else ''), tag='x%d' % ks)
    def stload(P):
        for t in range(3):
            P.e('s_add_u32 %s, %s, %d' % (sr(S_T1), sr(S_D), t*4*2048*8 + 4))
            for mm in range(2):
                P.e('buffer_load_dword %s, %s, s[4:7], %s offen offset:%d %s' % (vr(V_H + 2*t + mm), vr(V_HH), sr(S_T1), 128*mm, 'sc1' if FUSE else ''), tag='st')
    def dma_now(items):
        for kind, text, tag in items:
            e(text, tag=tag)
            if text.startswith('s_add_u32 m0') or text.startswith('s_mov_b32 m0'): e('s_nop 0')
    if OPT.get('pro_stamps'): stamp('karg')
    if not FUSE: xload(P, 0); xload(P, 1)
    mksrd(S_WD, 54, 55, D_*F_*2)
    e('v_bfe_u32 v1, v0, 1, 3'); e('v_mul_u32_u24 v1, 9216, v1')
    e('v_lshl_add_u32 v1, v2, 5, v1')
    e('v_and_b32 %s, 1, v0' % vr(V_T)); e('v_lshl_add_u32 %s, %s, 4, v1' % (vr(V_OG), vr(V_T)))
    e('v_add_u32 %s, %d, %s' % (vr(V_OG+1), 8*9216 - 1024, vr(V_OG))); e('v_add_u32 %s, %d, %s' % (vr(V_OG+2), 2*(8*9216 - 1024), vr(V_OG)))
    e('s_mul_i32 %s, %s, 576' % (sr(S_T0), sr(S_JP)))
    e('s_mul_i32 %s, %s, 320' % (sr(S_T1), sr(S_S))); e('s_add_u32 %s, %s, %s' % (sr(S_FB), sr(S_T0), sr(S_T1)))
    e('s_lshl_b32 %s, %s, 5' % (sr(S_T1), sr(S_S))); e('s_add_u32 %s, %s, %s' % (sr(S_HB), sr(S_T0), sr(S_T1))); e('s_add_u32 %s, %s, 256' % (sr(S_HB), sr(S_HB)))
    e('s_mul_i32 %s, %s, %d' % (sr(S_T0), sr(S_W), 9*8*9216)); e('s_lshl_b32 %s, %s, 1' % (sr(S_T1), sr(S_FB)))
    e('s_add_u32 %s, %s, %s' % (sr(S_GCOL), sr(S_T0), sr(S_T1)))
    e('s_mul_i32 %s, %s, %d' % (sr(S_T1), sr(S_S), 288*9216 if OPT.get('kswap', False) else 0))
    e('s_add_u32 %s, %s, %d' % (sr(S_GCOL2), sr(S_GCOL), 288*9216)); e('s_sub_u32 %s, %s, %s' % (sr(S_GCOL2), sr(S_GCOL2), sr(S_T1))); e('s_add_u32 %s, %s, %s' % (sr(S_GCOL), sr(S_GCOL), sr(S_T1)))
    e('s_mul_i32 %s, %s, 9216' % (sr(S_WOFF), sr(S_W))); e('s_mov_b32 %s, 0' % sr(S_CW)); e('s_mov_b32 %s, 1' % sr(S_CR))
    e('s_mov_b32 %s, %s' % (sr(S_WR), sr(S_WOFF)))
    T = V_T
    pat = []; a = pat.append
    a('v_bfe_u32 %s, v0, 2, 2' % vr(T)); a('v_lshlrev_b32 %s, 5, %s' % (vr(T), vr(T)))
    a('v_and_b32 %s, 3, v0' % vr(T+1)); a('v_lshl_add_u32 %s, %s, 3, %s' % (vr(T), vr(T+1), vr(T)))
    a('v_lshl_add_u32 %s, v2, 7, %s' % (vr(V_PH), vr(T)))
    a('v_and_b32 %s, 1, v2' % vr(T+1)); a('v_lshlrev_b32 %s, 7, %s' % (vr(T+1), vr(T+1)))
    a('v_lshrrev_b32 %s, 1, v2' % vr(T+2)); a('v_lshl_add_u32 %s, %s, 10, %s' % (vr(T+2), vr(T+2), vr(T)))
    a('v_add_u32 %s, %s, %s' % (vr(V_PG), vr(T+2), vr(T+1)))
    a('v_mul_u32_u24 %s, 2304, v2' % vr(T+2)); a('v_add_u32 %s, %s, %s' % (vr(T+2), vr(T+2), vr(T)))
    a('v_add_u32 %s, %s, %s' % (vr(V_PDE), vr(T+2), vr(T+1))); a('v_sub_u32 %s, %s, %s' % (vr(V_PDO), vr(T+2), vr(T+1)))
    rest = []
    a = rest.append
    a('v_and_b32 v1, 1, v0'); a('v_bfe_u32 v2, v0, 1, 4'); a('v_mul_u32_u24 v2, 9216, v2'); a('v_lshl_add_u32 v2, v1, 4, v2')
    a('v_lshrrev_b32 v1, 5, v0'); a('v_lshl_add_u32 %s, v1, 5, v2' % vr(V_OH))
    a('v_add_u32 %s, %d, %s' % (vr(V_OH+1), 16*9216 - 1024, vr(V_OH))); a('v_add_u32 %s, %d, %s' % (vr(V_OH+2), 2*(16*9216 - 1024), vr(V_OH)))
    T2 = V_T + 4
    a('v_bfe_u32 v1, v0, 1, 2'); a('v_mul_u32_u24 v1, 1152, v1'); a('v_and_b32 v2, 1, v0'); a('v_lshl_add_u32 v1, v2, 4, v1'); a('v_lshrrev_b32 v2, 3, v0')
    for p in range(9):
        d = vr(V_OD+p)
        a('v_add_u32 %s, %d, v2' % (d, 8*p))
        a('v_mul_u32_u24 %s, 57, %s' % (vr(T2), d)); a('v_lshrrev_b32 %s, 10, %s' % (vr(T2), vr(T2)))
        a('v_mul_u32_u24 %s, 18, %s' % (vr(T2+1), vr(T2))); a('v_sub_u32 %s, %s, %s' % (d, d, vr(T2+1)))
        a('v_and_b32 %s, 1, %s' % (vr(T2+1), vr(T2))); a('v_xor_b32 %s, %s, %s' % (d, d, vr(T2+1)))
        a('v_mul_u32_u24 %s, 4608, %s' % (vr(T2), vr(T2))); a('v_lshl_add_u32 %s, %s, 5, %s' % (d, d, vr(T2)))
        a('v_add_u32 %s, %s, v1' % (d, d))
    for r in range(144): a('v_accvgpr_write_b32 a%d, 0' % (A_OUT + r))
    s_ = []
    b = s_.append
    b('s_mul_i32 %s, %s, %d' % (sr(S_A), sr(S_W), 9*16*9216)); b('s_lshl_b32 %s, %s, 1' % (sr(S_B), sr(S_HB))); b('s_add_u32 %s, %s, %s' % (sr(S_HCOL), sr(S_A), sr(S_B)))
    if OPT.get('kswap', False):
        b('s_mul_i32 %s, %s, %d' % (sr(S_A), sr(S_S), 288*9216)); b('s_sub_u32 %s, 0, %s' % (sr(S_B), sr(S_A)))
        s_.append(['s_cmp_lt_u32 %s, 2' % sr(S_W), 's_cselect_b32 %s, %s, %s' % (sr(S_A), sr(S_A), sr(S_B))])
        b('s_add_u32 %s, %s, %s' % (sr(S_HCOL), sr(S_HCOL), sr(S_A)))
    b('s_mul_i32 s63, %s, 576' % sr(S_S))
    b('s_lshl_b32 %s, %s, 4' % (sr(S_C), sr(S_W)))
    b('s_add_u32 %s, %s, %s' % (sr(S_A), sr(S_FB), sr(S_C))); b('s_mul_i32 %s, %s, 1152' % (sr(S_A), sr(S_A))); b('s_add_u32 %s, %s, s63' % (sr(S_DROW), sr(S_A)))
    b('s_xor_b32 %s, %s, 1' % (sr(S_B), sr(S_S))); b('s_mul_i32 %s, %s, 576' % (sr(S_A), sr(S_JP)))
    b('s_mul_i32 s54, %s, 320' % sr(S_B)); b('s_add_u32 s54, s54, %s' % sr(S_A))
    b('s_lshl_b32 s55, %s, 5' % sr(S_B)); b('s_add_u32 s55, s55, %s' % sr(S_A)); b('s_add_u32 s55, s55, 256')
    b('s_and_b32 s56, %s, 1' % sr(S_W)); b('s_lshl_b32 s56, s56, 4')
    b('s_lshr_b32 s57, %s, 1' % sr(S_W))
    for ee, th0 in enumerate((0, 2, 4, 5, 7)):
        d = sr(S_E+ee)
        b('s_lshl_b32 %s, s57, 5' % d); b('s_add_u32 %s, %s, s54' % (d, d))
        b('s_add_u32 %s, %s, %d' % (d, d, 32*th0))
        if ee == 3: s_.append(['s_cmp_eq_u32 s57, 0', 's_cselect_b32 %s, %s, %s' % (d, sr(S_HB), d)])
        if ee == 4: s_.append(['s_cmp_eq_u32 s57, 1', 's_cselect_b32 %s, s55, %s' % (d, d)])
        b('s_add_u32 %s, %s, s56' % (d, d)); b('s_mul_i32 %s, %s, 1152' % (d, d)); b('s_add_u32 %s, %s, s63' % (d, d))
    if OPT.get('final', 3) == 3:
        d = sr(S_E+3)
        b('s_add_u32 %s, s54, 192' % d)
        s_.append(['s_cmp_eq_u32 %s, 2' % sr(S_W), 's_cselect_b32 %s, 32, 0' % sr(S_A)]); b('s_add_u32 %s, %s, %s' % (d, d, sr(S_A)))
        s_.append(['s_cmp_eq_u32 %s, 0' % sr(S_W), 's_cselect_b32 %s, %s, %s' % (d, sr(S_HB), d)])
        s_.append(['s_cmp_eq_u32 %s, 3' % sr(S_W), 's_cselect_b32 %s, s55, %s' % (d, d)])
        b('s_mul_i32 %s, %s, 1152' % (d, d)); b('s_add_u32 %s, %s, s63' % (d, d)); b('s_add_u32 %s, %s, 288' % (sr(S_E+4), d))
    b('s_lshl_b32 %s, s2, 2' % sr(S_A)); b('s_add_u32 %s, %s, %s' % (sr(S_A), sr(S_A), sr(S_W)))
    b('s_lshl_b32 %s, %s, 2' % (sr(S_FLO), sr(S_A))); b('s_add_u32 %s, %s, 0x%x' % (sr(S_FLO), sr(S_FLO), WS_FLAG))
    b('s_mul_i32 %s, %s, 18432' % (sr(S_HXO), sr(S_A))); b('s_add_u32 %s, %s, 0x%x' % (sr(S_HXO), sr(S_HXO), WS_HX))
    b('s_xor_b32 %s, s2, 8' % sr(S_A)); b('s_lshl_b32 %s, %s, 2' % (sr(S_A), sr(S_A))); b('s_add_u32 %s, %s, %s' % (sr(S_A), sr(S_A), sr(S_W)))
    b('s_lshl_b32 %s, %s, 2' % (sr(S_FLP), sr(S_A))); b('s_add_u32 %s, %s, 0x%x' % (sr(S_FLP), sr(S_FLP), WS_FLAG))
    b('s_mul_i32 %s, %s, 18432' % (sr(S_HXP), sr(S_A))); b('s_add_u32 %s, %s, 0x%x' % (sr(S_HXP), sr(S_HXP), WS_HX))
    b('s_lshl_b32 %s, %s, 1' % (sr(S_A), sr(S_I))); b('s_add_u32 %s, %s, %s' % (sr(S_A), sr(S_A), sr(S_S)))
    b('s_lshl_b32 %s, %s, 3' % (sr(S_A), sr(S_A))); b('s_add_u32 %s, %s, %s' % (sr(S_A), sr(S_A), sr(S_JP)))
    b('s_lshl_b32 %s, %s, 2' % (sr(S_A), sr(S_A))); b('s_add_u32 %s, %s, %s' % (sr(S_A), sr(S_A), sr(S_W)))
    b('s_mul_i32 %s, %s, 18432' % (sr(S_P), sr(S_A))); b('s_add_u32 %s, %s, 0x%x' % (sr(S_P), sr(S_P), WS_P))
    b('s_mov_b32 %s, 0x3f80' % sr(S_LO)); b('s_mov_b32 %s, 0x3f800000' % sr(S_HI))
    b('s_mov_b32 %s, 3' % sr(S_CNT)); b('s_mov_b32 %s, 1' % sr(S_FVAL))
    LATE = OPT.get('late_setup', True)
    work = (pat if LATE else pat + rest + s_)
    def do_work(n):
        for _ in range(n):
            if not work: return
            x = work.pop(0)
            for t in (x if isinstance(x, list) else [x]): e(t)
    XLA = OPT.get('xla', 6)
    first = dma_G(S_WG, sr(S_GCOL), 0, 'Ga') + ([('X', k, None) for k in range(2, XLA)] if not FUSE else [])
    if not LATE: first += dma_G(S_WG, sr(S_GCOL), 1, 'Gb') + [('T', 0, None)]
    nvm = sum(1 for k in first if k[0] in 'DXT'); per = (len(work) + nvm - 1)//nvm
    for kind, text, tag in first:
        if kind == 'X': xload(P, text); do_work(per)
        elif kind == 'T': stload(P); do_work(per)
        else:
            e(text, tag=tag)
            if ' m0,' in text: e('s_nop 0')
            if kind == 'D': do_work(per)
    do_work(9999)
    if FUSE:
        e('s_cmp_lg_u32 %s, 0' % sr(S_W)); e('s_cbranch_scc1 L_%s_go' % name)
        e('s_lshl_b32 %s, %s, 2' % (sr(S_A), sr(S_I))); e('s_mul_i32 %s, %s, 171' % (sr(S_A), sr(S_A))); e('s_lshr_b32 %s, %s, 9' % (sr(S_A), sr(S_A)))
        e('s_lshl_b32 %s, %s, 8' % (sr(S_A), sr(S_A))); e('s_add_u32 %s, %s, 0x%x' % (sr(S_A), sr(S_A), WS_CNT))
        e('s_mov_b32 %s, 0x4000' % sr(S_C))
        P.raw('L_%s_wait:' % name)
        P.raw('buffer_load_dword v2, off, %s, %s sc1' % (sr(S_WS,4), sr(S_A)))
        P.raw('buffer_load_dword v3, off, %s, %s offset:256 sc1' % (sr(S_WS,4), sr(S_A)))
        P.raw('s_waitcnt vmcnt(0)')
        P.raw('v_min_u32 v2, v2, v3'); P.raw('s_nop 0')
        P.raw('v_readfirstlane_b32 %s, v2' % sr(S_B)); P.raw('s_sub_u32 %s, %s, 1' % (sr(S_C), sr(S_C)))
        P.raw('s_cmp_eq_u32 %s, 0' % sr(S_C)); P.raw('s_cbranch_scc1 L_%s_go' % name)
        P.raw('s_cmp_ge_u32 %s, 9' % sr(S_B)); P.raw('s_cbranch_scc1 L_%s_go' % name)
        P.raw('s_sleep %d' % OPT.get('poll_sleep', 6)); P.raw('s_branch L_%s_wait' % name)
        P.raw('L_%s_go:' % name)
        e('s_barrier')
        for k in range(XLA): xload(P, k)
    if OPT.get('pro_stamps'): stamp('setup')
    def stats_block(P):
        e = P.e; Q = V_H; T = V_H + 8
        P.wait_vm_tag('st')
        for mm in range(2): e('v_add_f32 %s, %s, %s' % (vr(Q+mm), vr(Q+mm), vr(Q+2+mm)))
        for mm in range(2): e('v_add_f32 %s, %s, %s' % (vr(Q+mm), vr(Q+mm), vr(Q+4+mm)))
        for swap in ('v_permlane32_swap_b32', 'v_permlane16_swap_b32'):
            for k in range(2): e('v_mov_b32 %s, %s' % (vr(Q+2+k), vr(Q+k)))
            e('s_nop 1')
            for k in range(2): e('%s %s, %s' % (swap, vr(Q+k), vr(Q+2+k)))
            e('s_nop 1')
            for k in range(2): e('v_add_f32 %s, %s, %s' % (vr(Q+k), vr(Q+k), vr(Q+2+k)))
        e('s_mov_b32 s99, 0x%08x' % f2u(1.0/576))
        CC = -2.0*0.7978845608028654*1.4426950408889634
        for mm in range(2): e('v_mul_f32 %s, s99, %s' % (vr(V_K+mm), vr(Q+mm)))
        for mm in range(2): e('v_add_f32 %s, 0x%08x, %s' % (vr(V_K+mm), f2u(1e-5), vr(V_K+mm)))
        for mm in range(2): e('v_rsq_f32 %s, %s' % (vr(T+mm), vr(V_K+mm)))
        e('s_nop 0')
        for mm in range(2):
            e('v_mul_f32 %s, 0x%08x, %s' % (vr(V_C0+mm), f2u(CC), vr(T+mm)))
            e('v_mul_f32 %s, %s, %s' % (vr(T+2+mm), vr(T+mm), vr(T+mm)))
        for mm in range(2): e('v_mul_f32 %s, 0x%08x, %s' % (vr(T+2+mm), f2u(0.044715), vr(T+2+mm)))
        for mm in range(2): e('v_mul_f32 %s, %s, %s' % (vr(V_C1+mm), vr(V_C0+mm), vr(T+2+mm)))
    e('v_mov_b32 %s, %s' % (vr(V_RD), vr(V_PG))); e('v_add_u32 %s, %d, %s' % (vr(V_RD2), SLOT, vr(V_PG)))
    P.wait_vm(lambda x: x.tag in ('Ga', 'x0')); i = e('s_barrier'); i.meta = dict(needs='Ga')
    stamp('bar0')
    S = Stream()
    P4 = OPT.get('pass4', True)
    fr = []; mf = []
    if P4:
        def step(ks, fts):
            rd = V_RD if ks < 9 else V_RD2; kl = ks % 9
            f0 = len(fr)
            for ft in fts: fr.append(Frag(rd, (4*kl)*1024 + ft*256, (4*kl+2)*1024 + ft*256))
            for n, ft in enumerate(fts):
                for mm in range(2):
                    mf.append(MF(acc(V_G, ft, mm), f0+n, xfrag(ks, mm), '0' if ks == 0 else acc(V_G, ft, mm), [f0+n, f0+n+1] if (n % 2 == 0 and mm == 0) else None))
        for ks in range(15): step(ks, (0, 1, 2, 3))
        for ks in range(15, 18): step(ks, (0, 1))
        for ks in range(15, 18): step(ks, (2, 3))
        S.add(fr, mf)
    else:
        for ks in range(18):
            rd = V_RD if ks < 9 else V_RD2; kl = ks % 9
            f0 = len(fr)
            for ft in range(2): fr.append(Frag(rd, (4*kl)*1024 + ft*256, (4*kl+2)*1024 + ft*256))
            for ft in range(2):
                for mm in range(2):
                    mf.append(MF(acc(V_G, ft, mm), f0+ft, xfrag(ks, mm), '0' if ks == 0 else acc(V_G, ft, mm), [f0, f0+1] if (ft == 0 and mm == 0) else None))
        S.add(fr, mf)
        fr = []; mf = []
        for ft in (2, 3):
            for g in range(6):
                f0 = len(fr)
                for t in range(3):
                    ks = 3*g + t; kl = ks % 9
                    fr.append(Frag(V_RD if ks < 9 else V_RD2, (4*kl)*1024 + ft*256, (4*kl+2)*1024 + ft*256))
                for mm in range(2):
                    for t in range(3):
                        ks = 3*g + t
                        mf.append(MF(acc(V_G, ft, mm), f0+t, xfrag(ks, mm), '0' if ks == 0 else acc(V_G, ft, mm), [f0, f0+1, f0+2] if (mm == 0 and t == 0) else None))
        S.add(fr, mf)
    fx = Fixed()
    G = 8 if P4 else 4
    for ks in range(18):
        g0 = G*ks if (not P4 or ks < 15) else 120 + 4*(ks-15)
        g1 = g0 + (G if (not P4 or ks < 15) else 4) - 1
        if ks + XLA < 18: fx.put(g0, 'X', (lambda P, k=ks+XLA: xload(P, k)), cost=4)
        if ks + 1 < 18: fx.put(g1, 'X', (lambda P, k=ks+1: P.wait_vm_tag('x%d' % k)))
    fx.put(100 if P4 else 61, 'X', stats_block, cost=8)
    ch = []
    late_q = []
    if LATE:
        put_dma(ch, 1, dma_G(S_WG, sr(S_GCOL), 1, 'Gb'), step=2)
        fx.put(30, 'X', stload, cost=9)
        late_q = [Queue([Op(x) for x in rest], 'rest').window(0, 0, 110),
                  Queue([Op((lambda P, x=x: [P.e(t) for t in x]), cost=1) if isinstance(x, list) else Op(x) for x in s_], 'srest').window(0, 0, 110)]
    if P4:
        put_dma(ch, 62, dma_G(S_WU, sr(S_GCOL), 0, 'Ua'), step=3)
        put_dma(ch, 100, dma_G(S_WU, sr(S_GCOL), 1, 'Ub'), step=3)
        ch.append((136, 'S', 's_add_u32 %s, %s, 128' % (sr(S_GCOL), sr(S_GCOL)), None)); ch.append((137, 'S', 's_add_u32 %s, %s, 128' % (sr(S_GCOL2), sr(S_GCOL2)), None))
        gbw = 9*8 - LAR - 2
    else:
        put_dma(ch, 57, dma_G(S_WU, sr(S_GCOL), 0, 'Ua'), step=2)
        put_dma(ch, 78, dma_G(S_WU, sr(S_GCOL), 1, 'Ub'), step=5)
        ch.append((126, 'S', 's_add_u32 %s, %s, 128' % (sr(S_GCOL), sr(S_GCOL)), None)); ch.append((127, 'S', 's_add_u32 %s, %s, 128' % (sr(S_GCOL2), sr(S_GCOL2)), None))
        gbw = 22
    fx.chain(ch)
    if dbg and OPT.get('pro_stamps'):
        for g in ((39, 79, 119) if P4 else (23, 47, 71)): fx.put(g, 'X', (lambda P, g=g: stamp('p%d' % g)), cost=0)
    fx.put(gbw, 'L', '@waitvm', 'Gb'); fx.put(gbw, 'B', 's_barrier', 'Gb')
    if P4: qa = gelu_q(0, 'g0', V_T).window(134, 134, 140); qb = gelu_q(1, 'g1', V_T+4).window(135, 135, 141)
    else: qa = gelu_q(0, 'g0', V_T).window(75, 75, 108); qb = gelu_q(1, 'g1', V_T+4).window(92, 100, 142)
    if late_q: qa.after([late_q[0]]); qb.after([late_q[0]])
    put_bar(fx, 144, 'Ua', PAT_G)
    ua = st_GU(V_U, 0, True)
    info['peel'] = emit_stream(P, S, ua[0][:LAR//2], fx, late_q + [qa, qb], A_W, NF, LAR, 0, maxslots=9, opt=OPT, first_reads=True, drain_ok=True, drain_interleave=True)
    if OPT.get('code_pf'):
        P.raw('s_getpc_b64 s[4:5]'); P.raw('L_%s_pc:' % name)
        P.raw('s_add_u32 s4, s4, L_%s_tail - L_%s_pc' % (name, name)); P.raw('s_addc_u32 s5, s5, 0')
        P.raw('s_mov_b32 s6, L_text_end - L_%s_tail' % name); e('s_mov_b32 s7, 0x%x' % SRD3)
        e('s_lshl_b32 %s, %s, 13' % (sr(S_CPF), sr(S_W)))
    stamp('peel')
    P.raw('.p2align 6'); P.raw('L_%s_loop:' % name)
    body_start = len(P.ins)
    def flagstore(tag, val):
        def f(P):
            if not OPT.get('no_flagwait'): P.wait_vm_tag(tag)
            P.e('v_mov_b32 %s, %s' % (vr(V_FL), val))
            P.e('buffer_store_dword %s, off, %s, %s sc1' % (vr(V_FL), sr(S_WS,4), sr(S_FLO)), tag='fl')
        f.cost = 3
        return f
    def front(fx, ch, tail):
        S = Stream().add(*st_GU(V_U, 0, True)).add(*st_GU(V_U, 1, False))
        G0 = OPT.get('dma_g0', 2)
        if not tail:
            put_dma(ch, G0, dma_G(S_WG, sr(S_GCOL), 0, 'Ga')); put_dma(ch, 72+G0, dma_G(S_WG, sr(S_GCOL), 1, 'Gb'))
            put_bar(fx, 72, 'Ub', PAT_G); put_bar(fx, 144, 'Ga', PAT_G)
        else:
            put_dma(ch, G0, dma_G(S_WG, sr(S_HCOL), 0, 'Gh', 16)); put_dma(ch, 72+G0, dma_D(sr(S_DROW), 'D'))
            put_bar(fx, 72, 'Ub', PAT_G); put_bar(fx, 144, 'Gh', PAT_H)
        W = OPT.get('win', dict())
        def win(k, kind): return W.get(k + ('T' if tail else ''), W.get(k, kind))
        g2 = gelu_q(2, 'g2', V_T).window(0, *win('g2', (18, 85))); g3 = gelu_q(3, 'g3', V_T+4).window(0, *win('g3', (51, 148)))
        p0 = prod_q(0, V_H, 'p0').window(92, *win('p0', (130, 143)))
        p1 = prod_q(1, V_H, 'p1', (sr(S_HXO), 0, 'h0')).window(110, *win('p1', (135, 149))).after([p0])
        p2 = prod_q(2, V_H+8, 'p2').window(128, *win('p2', (165, 178))).after([g2, p1])
        p3 = prod_q(3, V_H+8, 'p3', (sr(S_HXO), 2048, 'h1')).window(146, *win('p3', (172, 188))).after([g3, p2])
        return S, [p0, p1, p2, p3, g2, g3]
    G0 = OPT.get('dma_g0', 2)
    Hf = [[vr(V_H + 8*kq + 4*mm, 4) for mm in range(2)] for kq in range(2)]
    fx = Fixed(); ch = []
    S, qs = front(fx, ch, False)
    S.add(*st_GU(V_G, 0, True)).add(*st_GU(V_G, 1, False)).add(*st_D(Hf))
    put_dma(ch, 144+G0, dma_D(sr(S_DROW), 'D')); put_dma(ch, 216+G0, dma_G(S_WU, sr(S_GCOL), 0, 'Ua')); put_dma(ch, 288+G0, dma_G(S_WU, sr(S_GCOL), 1, 'Ub'))
    fx.chain(ch)
    put_bar(fx, 216, 'Gb', PAT_G); put_bar(fx, 288, 'D', PAT_D); put_bar(fx, 360, 'Ua', PAT_G)
    p3 = qs[3]
    W = OPT.get('win', dict())
    n0 = gelu_q(0, 'g0n', V_T).window(237, *W.get('n0', (252, 318))).after([p3]); n1 = gelu_q(1, 'g1n', V_T+4).window(255, *W.get('n1', (295, 359))).after([p3])
    if OPT.get('code_pf'):
        def cpf(P):
            P.e('v_lshlrev_b32 v2, 7, v0')
            P.e('buffer_load_dword v2, v2, s[4:7], %s offen' % sr(S_CPF), tag='cpf')
        fx.put(OPT.get('cpf_gap', 132), 'X', cpf, cost=3)
    fx.put(277, 'X', flagstore('h1', sr(S_FVAL)), cost=3)
    fx.chain([(285, 'S', 's_add_u32 %s, %s, 1' % (sr(S_FVAL), sr(S_FVAL)), None), (286, 'S', 's_add_u32 %s, %s, 4096' % (sr(S_HXO), sr(S_HXO)), None),
              (287, 'S', 's_add_u32 %s, %s, %d' % (sr(S_DROW), sr(S_DROW), 64*1152), None)])
    info['body'] = emit_stream(P, S, ua[0][:LAR//2], fx, qs + [n0, n1], A_W, NF, LAR, 0, maxslots=OPT['cap'], opt=OPT)
    dl = {q.name: q.finish for q in qs + [n0, n1]}
    assert dl['p0'] <= 143 and dl['p1'] <= 161 and dl['p2'] <= 179 and dl['p3'] <= 197, dl
    info['fb'] = dl
    e('s_add_u32 %s, %s, 128' % (sr(S_GCOL), sr(S_GCOL))); e('s_add_u32 %s, %s, 128' % (sr(S_GCOL2), sr(S_GCOL2)))
    e('s_sub_u32 %s, %s, 1' % (sr(S_CNT), sr(S_CNT))); e('s_cmp_lg_u32 %s, 0' % sr(S_CNT))
    e('s_cbranch_scc1 L_%s_loop' % name)
    body_end = len(P.ins)
    P.raw('L_%s_tail:' % name)
    stamp('loop')
    fx = Fixed(); ch = []
    S, qs = front(fx, ch, True)
    S.add(*st_half(V_G)).add(*st_D(Hf)).add(*st_half(V_U))
    HHf = [vr(V_HH + 4*mm, 4) for mm in range(2)]
    hp = [[hpfrag(th, mm) for mm in range(2)] for th in range(9)]
    FIN = OPT.get('final', 3)
    F2 = FIN in (2, 3)
    RA = (V_RD, V_RD2); RB = (V_T, V_T+1)
    put_dma(ch, 144+G0, dma_G(S_WU, sr(S_HCOL), 0, 'Uh', 16))
    if FIN == 1:
        for pair in ([hp[0], hp[1]], [hp[2], hp[3]], [hp[4], hp[5]], [HHf, hp[6]], [hp[7], hp[8]]): S.add(*st_D(pair))
        for k in range(5): put_dma(ch, 216+72*k+G0, dma_D(sr(S_E+k), 'E%d' % k))
        fx.chain(ch)
        put_bar(fx, 216, 'D', PAT_D); put_bar(fx, 288, 'Uh', PAT_H)
        for k in range(5): put_bar(fx, 360+72*k, 'E%d' % k, PAT_D)
    elif FIN == 3:
        for pair in ([hp[0], hp[1]], [hp[2], hp[3]], [hp[4], hp[5]]): S.add(*st_D(pair))
        last = [HHf, hp[6], hp[7], hp[8]]
        S.add(*st_F(last, 0)).add(*st_F(last, 1))
        for k in range(3): put_dma(ch, 216+72*k+G0, dma_D(sr(S_E+k), 'E%d' % k))
        put_dma(ch, 432+G0, dma_F(sr(S_E+3), 'F0')); put_dma(ch, 504+G0, dma_F(sr(S_E+4), 'F1'))
        fx.chain(ch)
        put_bar(fx, 216, 'D', PAT_D); put_bar(fx, 288, 'Uh', PAT_H)
        for k in range(3): put_bar(fx, 360+72*k, 'E%d' % k, PAT_D)
        put_bar(fx, 576, 'F0', [(V_RD, V_PF)]); put_bar(fx, 648, 'F1', [(V_RD, V_PF)])
        qf = Queue([Op(x) for x in f_setup_ops()], 'fset').window(362, 362, 425)
    else:
        for pair in ([hp[0], hp[1]], [hp[2], hp[3]], [hp[4], hp[5]]): S.add(*st_D(pair))
        S.add(*st_final([HHf, hp[6], hp[7], hp[8]], RA, RB))
        for k in range(3): put_dma(ch, 216+72*k+G0, dma_D(sr(S_E+k), 'E%d' % k))
        put_dma(ch, 421, dma_D(sr(S_E+3), 'E3'), step=6); put_dma(ch, 475, dma_D(sr(S_E+4), 'E4'), step=6)
        fx.chain(ch)
        put_bar(fx, 216, 'D', PAT_D); put_bar(fx, 288, 'Uh', PAT_H)
        for k in range(3): put_bar(fx, 360+72*k, 'E%d' % k, PAT_D)
        fx.put(436, 'B', 's_barrier', None)
        put_bar(fx, 576, ['E3', 'E4'], PAT_D)
        def second_base(P):
            P.e('s_add_u32 %s, %s, 1' % (sr(S_A), sr(S_CR))); P.e('s_and_b32 %s, %s, 3' % (sr(S_A), sr(S_A))); P.e('s_mul_i32 %s, %s, %d' % (sr(S_A), sr(S_A), SLOT))
            P.e('v_add_u32 %s, %s, %s' % (vr(RB[0]), sr(S_A), vr(V_PDE))); P.e('v_add_u32 %s, %s, %s' % (vr(RB[1]), sr(S_A), vr(V_PDO)))
        fx.put(576-LAR-3, 'X', second_base, cost=5)
    p3 = qs[3]
    h0 = gelu_q(0, 'gh0', V_T).window(183, 195, 265).after([p3]); h1 = gelu_q(1, 'gh1', V_T+4).window(219, 255, 330).after([p3])
    fx.chain([(340, 'S', 's_add_u32 %s, %s, 4096' % (sr(S_T1), sr(S_HXO)), None)])
    ph0 = prod_q(0, V_HH, 'ph0').window(327, 330, 350).after([h0])
    ph1 = prod_q(1, V_HH, 'ph1', (sr(S_T1), 0, 'hh')).window(363, 364, 384).after([h1, ph0])
    def poll_issue(P): P.e('buffer_load_dword %s, off, %s, %s sc1' % (vr(V_PO), sr(S_WS,4), sr(S_FLP)), tag='poll')
    slow = []
    def poll_check(val, lab):
        def f(P):
            P.wait_vm_tag('poll')
            P.e('v_readfirstlane_b32 %s, %s' % (sr(S_A), vr(V_PO)))
            P.e('s_nop 0')
            P.e('s_cmp_ge_u32 %s, %d' % (sr(S_A), val))
            P.e('s_cbranch_scc0 L_%s_slow%s' % (name, lab))
            P.raw('L_%s_back%s:' % (name, lab))
            slow.append((val, lab))
        f.cost = 5
        return f
    def hp_load(x):
        def f(P):
            if x % 4 == 0: P.e('s_add_u32 %s, %s, %d' % (sr(S_B), sr(S_HXP), (x//4)*4096))
            th, mm = divmod(x, 2)
            P.e('buffer_load_dwordx4 %s, %s, %s, %s offen offset:%d sc1' % (hpfrag(th, mm), vr(V_L16), sr(S_WS,4), sr(S_B), (x % 4)*1024), tag='hp%d' % x)
        return f
    if dbg and OPT.get('tail_stamps'):
        for g in OPT['tail_stamps']: fx.put(g, 'X', (lambda P, g=g: stamp('t%d' % g)), cost=0)
    fx.put(144, 'X', poll_issue, cost=2); fx.put(277, 'X', poll_check(3, 'a'), cost=5)
    for x in range(4): fx.put(279 + 2*x, 'X', hp_load(x), cost=2)
    for x in range(4, 8): fx.put(350 + 2*(x-4), 'X', hp_load(x), cost=2)
    for x in range(8, 12): fx.put(422 + 2*(x-8), 'X', hp_load(x), cost=2)
    fx.put(279, 'X', flagstore('h1', '4'), cost=3)
    fx.put(440, 'X', flagstore('hh', '5'), cost=3)
    if not F2:
        fx.put(360, 'X', poll_issue, cost=2); fx.put(493, 'X', poll_check(4, 'b'), cost=5)
        for x in range(12, 16): fx.put(495 + 2*(x-12), 'X', hp_load(x), cost=2)
        fx.put(504, 'X', poll_issue, cost=2); fx.put(565, 'X', poll_check(5, 'c'), cost=5)
        for x in range(16, 18): fx.put(567 + 2*(x-16), 'X', hp_load(x), cost=2)
    else:
        fx.put(478, 'X', poll_issue, cost=2); fx.put(513, 'X', poll_check(5, 'b'), cost=5)
        for x in range(12, 18): fx.put(515 + 2*(x-12), 'X', hp_load(x), cost=2)
    def hp_wait(xs):
        def f(P): P.wait_vm(lambda i: i.tag in ['hp%d' % t for t in xs])
        return f
    fx.put(360-4, 'X', hp_wait(range(4)))
    fx.put(432-4, 'X', hp_wait(range(4, 8)))
    fx.put(504-4, 'X', hp_wait(range(8, 12)))
    if not F2:
        fx.put(576-4, 'X', hp_wait(range(12, 14)))
        fx.put(648-4, 'X', hp_wait(range(14, 18)))
    else: fx.put(576-2, 'X', hp_wait(range(12, 18)))
    ep = []
    for np_ in range(9):
        ear = (576 + 16*(np_+1) + 2) if F2 else (648 + 8*(np_+1) + 2)
        for mm in range(2):
            tb = V_G + 16*((2*np_+mm) % 4); hb = V_H + 4*((2*np_+mm) % 4)
            for k in range(2):
                for r in range(4): ep.append(Op('v_accvgpr_read_b32 %s, a%d' % (vr(tb+4*k+r), A_OUT + 8*(2*np_+k) + 4*mm + r), ear))
            for d in range(4): ep.append(Op('v_cvt_pk_bf16_f32 %s, %s, %s' % (vr(hb+d), vr(tb+2*d), vr(tb+2*d+1)), ear))
            fr_ = mm*9 + np_
            def st(P, fr_=fr_, hb=hb):
                P.e('s_add_u32 %s, %s, %d' % (sr(S_T0), sr(S_P), fr_*1024))
                P.e('buffer_store_dwordx4 %s, %s, %s, %s offen sc1' % (vr(hb,4), vr(V_L16), sr(S_WS,4), sr(S_T0)), tag='p')
            ep.append(Op(st, ear, cost=2))
    qe = Queue(ep, 'ep', prio=True)
    allq = qs + [ph0, ph1, h0, h1, qe] + ([qf] if FIN == 3 else [])
    info['tail'] = emit_stream(P, S, [], fx, allq, A_W, NF, LAR, 0, maxslots=OPT['cap'], opt=OPT, drain_ok=True, drain_pre='s_nop 7')
    dl = {q.name: q.finish for q in allq}
    assert dl['p0'] <= 143 and dl['p1'] <= 179 and dl['p3'] < 212 and dl['ph1'] < 420 and dl['gh0'] < 326, dl
    if FIN == 3: assert dl['fset'] < 430, dl
    info['ft'] = dl
    stamp('tail')
    if OPT.get('fuse4'):
        P.raw('s_load_dwordx2 s[4:5], s[0:1], %d' % KA_OUT)
        P.raw('s_waitcnt vmcnt(0) lgkmcnt(0)'); P.vmq = []; P.lgq = []
        e('s_barrier')
        e('s_lshl_b32 %s, %s, 1' % (sr(S_A), sr(S_I))); e('s_add_u32 %s, %s, %s' % (sr(S_A), sr(S_A), sr(S_S)))
        e('s_cmp_lg_u32 %s, 0' % sr(S_W)); e('s_cbranch_scc1 L_%s_rgo' % name)
        e('s_lshl_b32 %s, %s, 8' % (sr(S_B), sr(S_A))); e('s_add_u32 %s, %s, 0x%x' % (sr(S_B), sr(S_B), WS_CNT4))
        e('v_mov_b32 v2, 1'); e('s_mov_b64 exec, 1')
        P.raw('buffer_atomic_add v2, off, %s, %s' % (sr(S_WS,4), sr(S_B)))
        e('s_mov_b64 exec, -1'); e('s_mov_b32 %s, 0x4000' % sr(S_C))
        P.raw('L_%s_rwait:' % name)
        P.raw('buffer_load_dword v3, off, %s, %s sc1' % (sr(S_WS,4), sr(S_B)))
        P.raw('s_waitcnt vmcnt(0)')
        P.raw('v_readfirstlane_b32 %s, v3' % sr(S_D)); P.raw('s_sub_u32 %s, %s, 1' % (sr(S_C), sr(S_C)))
        P.raw('s_cmp_eq_u32 %s, 0' % sr(S_C)); P.raw('s_cbranch_scc1 L_%s_rgo' % name)
        P.raw('s_cmp_ge_u32 %s, 8' % sr(S_D)); P.raw('s_cbranch_scc1 L_%s_rgo' % name)
        P.raw('s_sleep %d' % OPT.get('rpoll_sleep', 2)); P.raw('s_branch L_%s_rwait' % name)
        P.raw('L_%s_rgo:' % name)
        e('s_barrier')
        e('s_mov_b32 s6, %d' % (S_*D_*2)); e('s_mov_b32 s7, 0x%x' % SRD3)
        e('s_lshl_b32 %s, %s, 3' % (sr(S_B), sr(S_I))); e('s_add_u32 %s, %s, %s' % (sr(S_B), sr(S_B), sr(S_JP)))
        e('s_lshl_b32 %s, %s, 6' % (sr(S_A), sr(S_A))); e('s_add_u32 %s, %s, %s' % (sr(S_A), sr(S_A), sr(S_JP)))
        e('s_mul_i32 %s, %s, 9' % (sr(S_A), sr(S_A))); e('s_add_u32 %s, %s, %s' % (sr(S_A), sr(S_A), sr(S_W)))
        e('s_lshl_b32 %s, %s, 10' % (sr(S_A), sr(S_A))); e('s_add_u32 %s, %s, 0x%x' % (sr(S_A), sr(S_A), WS_P))
        e('s_mul_i32 %s, %s, 9' % (sr(S_C), sr(S_S))); e('s_add_u32 %s, %s, %s' % (sr(S_C), sr(S_C), sr(S_W)))
        e('s_mul_i32 %s, %s, 18' % (sr(S_D), sr(S_B))); e('s_add_u32 %s, %s, %s' % (sr(S_D), sr(S_D), sr(S_C)))
        e('s_lshl_b32 %s, %s, 10' % (sr(S_D), sr(S_D))); e('s_add_u32 %s, %s, 0x%x' % (sr(S_D), sr(S_D), WS_HC))
        e('v_and_b32 v2, 15, v0'); e('v_lshlrev_b32 v3, 3, v2')
        e('s_lshl_b32 %s, %s, 7' % (sr(S_T0), sr(S_B))); e('s_add_u32 %s, %s, 0x%x' % (sr(S_T0), sr(S_T0), WS_ST))
        e('buffer_load_dword v4, v3, %s, %s offen sc1' % (sr(S_WS,4), sr(S_T0)), tag='mu')
        RB = 64
        def rloads(k):
            e('s_add_u32 %s, %s, %d' % (sr(S_T0), sr(S_D), 4096*k))
            e('buffer_load_dwordx4 %s, %s, %s, %s offen sc1' % (vr(RB+36*k, 4), vr(V_L16), sr(S_WS,4), sr(S_T0)), tag='r%d' % k)
            for jp in range(8):
                e('s_add_u32 %s, %s, %d' % (sr(S_T0), sr(S_A), 4096*k + 73728*jp))
                e('buffer_load_dwordx4 %s, %s, %s, %s offen sc1' % (vr(RB+36*k+4*(jp+1), 4), vr(V_L16), sr(S_WS,4), sr(S_T0)), tag='r%d_%d' % (k, jp))
        def rsum(k, P_wait):
            acc_ = 176 + 8*k; o = 200 + 4*k
            for src in range(9):
                P_wait('r%d' % k if src == 0 else 'r%d_%d' % (k, src-1))
                b_ = RB + 36*k + 4*src
                for d in range(4):
                    for hi in range(2):
                        e('v_dot2_f32_bf16 %s, %s, %s, %s' % (vr(acc_+2*d+hi), vr(b_+d), sr(S_LO if hi == 0 else S_HI), 'v4' if src == 0 else vr(acc_+2*d+hi)))
            e('s_nop 2')
            for d in range(4): e('v_cvt_pk_bf16_f32 %s, %s, %s' % (vr(o+d), vr(acc_+2*d), vr(acc_+2*d+1)))
            e('s_nop 1')
            e('v_permlane16_swap_b32 %s, %s' % (vr(o), vr(o+2))); e('v_permlane16_swap_b32 %s, %s' % (vr(o+1), vr(o+3)))
            e('s_add_u32 %s, %s, %d' % (sr(S_T0), sr(S_C), 4*k)); e('s_lshl_b32 %s, %s, 6' % (sr(S_T0), sr(S_T0)))
            e('buffer_store_dwordx4 %s, v5, s[4:7], %s offen' % (vr(o, 4), sr(S_T0)))
        rloads(0); rloads(1)
        e('s_lshl_b32 %s, %s, 4' % (sr(S_T1), sr(S_B))); e('v_add_u32 v5, %s, v2' % sr(S_T1)); e('v_mul_u32_u24 v5, 1152, v5')
        e('v_bfe_u32 v3, v0, 4, 1'); e('v_lshl_add_u32 v5, v3, 5, v5'); e('v_bfe_u32 v3, v0, 5, 1'); e('v_lshl_add_u32 v5, v3, 4, v5')
        r2a = len(P.ins)
        e('s_cmp_lg_u32 %s, 0' % sr(S_W)); e('s_cbranch_scc1 L_%s_r2' % name)
        rloads(2)
        saved = list(P.vmq)
        rsum(2 - 2, P.wait_vm_tag); rsum(1, P.wait_vm_tag); rsum(2, P.wait_vm_tag)
        e('s_branch L_%s_rend' % name)
        r2b = len(P.ins)
        P.raw('L_%s_r2:' % name)
        P.vmq = [x for x in saved if not (x.tag or '').startswith('r2')]
        rsum(0, P.wait_vm_tag); rsum(1, P.wait_vm_tag)
        P.raw('L_%s_rend:' % name)
        info['rsplit'] = (r2a, r2b, len(P.ins))
    if dbg:
        e('s_waitcnt vmcnt(0)')
        stamp('end')
        e('s_mov_b32 s4, s94'); e('s_mov_b32 s5, s95'); e('s_mov_b32 s6, 0x100000'); e('s_mov_b32 s7, 0x20000')
        e('s_lshl_b32 s41, s2, 2'); e('s_add_u32 s41, s41, %s' % sr(S_W)); e('s_lshl_b32 s41, s41, 7')
        for k in range(len(stamps)):
            e('s_sub_u32 s42, s%d, s64' % (64+k)); e('v_mov_b32 v1, s42')
            e('buffer_store_dword v1, off, s[4:7], s41 offset:%d' % (4*k))
            e('s_sub_u32 s42, s%d, s77' % (77+k)); e('v_mov_b32 v1, s42')
            e('buffer_store_dword v1, off, s[4:7], s41 offset:%d' % (64+4*k))
        e('v_mov_b32 v1, s77'); e('buffer_store_dword v1, off, s[4:7], s41 offset:60')
    P.raw('L_%s_end:' % name)
    e('s_endpgm')
    main_end = len(P.ins)
    for val, lab in slow:
        P.raw('L_%s_slow%s:' % (name, lab))
        P.raw('s_mov_b32 %s, 0x8000' % sr(S_C))
        P.raw('L_%s_spin%s:' % (name, lab))
        P.raw('s_sleep 2')
        P.raw('buffer_load_dword %s, off, %s, %s sc1' % (vr(V_PO), sr(S_WS,4), sr(S_FLP)))
        P.raw('s_waitcnt vmcnt(0)')
        P.raw('v_readfirstlane_b32 %s, %s' % (sr(S_A), vr(V_PO)))
        P.raw('s_sub_u32 %s, %s, 1' % (sr(S_C), sr(S_C)))
        P.raw('s_cmp_eq_u32 %s, 0' % sr(S_C))
        P.raw('s_cbranch_scc1 L_%s_back%s' % (name, lab))
        P.raw('s_cmp_ge_u32 %s, %d' % (sr(S_A), val))
        P.raw('s_cbranch_scc0 L_%s_spin%s' % (name, lab))
        P.raw('s_branch L_%s_back%s' % (name, lab))
    ins = P.ins
    path = ins[:body_start] + ins[body_start:body_end]*3 + ins[body_end:main_end]
    if OPT.get('fuse4'):
        ra, rb, rc = info['rsplit']
        tail0 = ins[body_end:rb] + ins[rc:main_end]; tail1 = ins[body_end:ra] + ins[rb:main_end]
        path = ins[:body_start] + ins[body_start:body_end]*3 + tail0
        info['paths4'] = [ins[:body_start] + ins[body_start:body_end]*3 + tail1]
    if FUSE:
        a, (h0, h1), w3, en = segs['start'], segs['skip'], segs['w3'], segs['end']
        rest_ = ins[en:body_start] + ins[body_start:body_end]*3 + (tail0 if OPT.get('fuse4') else ins[body_end:main_end])
        path = ins[:h0] + ins[h1:w3] + rest_
        info['paths'] = [ins[:h1] + rest_, ins[w3:en] + rest_]
    info['stamps'] = stamps
    return P, path, info

if __name__ == '__main__':
    import collections
    P, path, info = build()
    check(path, 'k3b')
    print('barrier problems', verify_barriers(path))
    for k in ('peel', 'body', 'tail'):
        print(k, 'slots/gap hist', sorted(collections.Counter(info[k]).items()), 'est cyc/unit %.2f' % (est_cycles(info[k])/len(info[k])*2))
    print(info['fb']); print(info['ft'])
    print('instrs', len(P.ins))
```

```python
import sys, os; sys.path.insert(0,'gen')
import build_all as B
for n, o in (('fuse4', dict(fuse4=True)), ('fuse4_s8', dict(fuse4=True, rpoll_sleep=8))):
    t, ks = B.make(opts=o); B.assemble(t, ks, n); open('variants/%s.s' % n, 'w').write(t)
    print([(n_, o_['grid'], o_['block'], o_['lds']) for n_, P, o_ in ks])
L = open('fuse4.s').read().split('\n')
w = L.index('L_k3_kernel_rwait:'); print('\n'.join(L[w-16:w+50]))
```

```python
from core import *
from common import *
from stamps import Stamper

XR_END = 92160
WSLOT = 16384
PITCH = 516
LDS_BYTES = XR_END + 4*WSLOT

def build(name='k1_kernel', prefetch=None, dbg=False, pf=(), P=None, embed=None, entry=None):
    P = P or Prog(); e = P.e
    start = len(P.ins); entry = entry or name
    VB = [2, 3]; VBH = [4, 5]; VA, PA = 6, 20
    VW, VX, VONE = 10, 14, 16
    VWA, T = 192, 27
    BB = [40, 60]; AB = [80, 96]; ACC = 112
    S_X, S_WQ, S_WS = 8, 12, 16
    S_W, S_HG, S_MI, S_C, S_RA, S_WA, S_WB, S_SO, S_T0, S_T1, S_CNT = 20, 21, 22, 23, 24, 25, 26, 27, 28, 29, 30
    S_MASK = 32
    S_OD = 40
    def acc(i, mt): return ACC + 20*i + 4*mt
    if not embed: e('s_cmp_ge_u32 s2, 256'); e('s_cbranch_scc1 L_%s_end' % name)
    stamp = Stamper(P, dbg and not embed, S_W); stamp('start')
    if embed: e('s_load_dwordx2 s[100:101], s[0:1], %d' % KA_DBG)
    if 'scramble' in pf:
        e('s_lshr_b32 s3, s2, 3'); e('s_and_b32 s2, s2, 7'); e('s_lshl_b32 s2, s2, 5'); e('s_or_b32 s2, s2, s3')
    e('s_load_dwordx4 s[4:7], s[0:1], %d' % KA_X)
    e('s_load_dwordx2 s[34:35], s[0:1], %d' % KA_WS)
    e('s_load_dwordx2 s[96:97], s[0:1], %d' % KA_WO); e('s_load_dwordx2 s[98:99], s[0:1], %d' % KA_WG)
    e('v_lshrrev_b32 v1, 6, v0'); e('v_and_b32 v0, 63, v0')
    e('v_readfirstlane_b32 %s, v1' % sr(S_W))
    e('s_and_b32 %s, s2, 1' % sr(S_HG)); e('s_lshl_b32 %s, %s, 2' % (sr(S_HG), sr(S_HG)))
    e('s_bfe_u32 %s, s2, 0x20003' % sr(S_T0)); e('s_add_u32 %s, %s, %s' % (sr(S_HG), sr(S_HG), sr(S_T0)))
    e('s_bfe_u32 %s, s2, 0x20001' % sr(S_MI)); e('s_lshl_b32 %s, %s, 3' % (sr(S_MI), sr(S_MI)))
    e('s_lshr_b32 %s, s2, 5' % sr(S_T0)); e('s_add_u32 %s, %s, %s' % (sr(S_MI), sr(S_MI), sr(S_T0)))
    e('v_lshrrev_b32 v1, 3, v0'); e('v_and_b32 %s, 7, v0' % vr(T))
    e('s_and_b32 %s, %s, 1' % (sr(S_T0), sr(S_W))); e('s_lshl_b32 %s, %s, 2' % (sr(S_T0), sr(S_T0)))
    e('v_lshrrev_b32 %s, 1, v1' % vr(T+1)); e('v_add_u32 %s, %s, %s' % (vr(T+1), sr(S_T0), vr(T+1)))
    e('v_xor_b32 %s, %s, %s' % (vr(T+1), vr(T+1), vr(T))); e('v_lshlrev_b32 %s, 4, %s' % (vr(T+1), vr(T+1)))
    e('v_mul_u32_u24 %s, 1152, v1' % vr(T+2)); e('v_add_u32 %s, %s, %s' % (vr(VX), vr(T+1), vr(T+2)))
    e('s_waitcnt lgkmcnt(0)')
    for srd, lo, hi, size in ((S_X, 4, 5, S_*D_*2), (S_WQ, 6, 7, D_*3*D_*2), (S_WS, 34, 35, WS_END)):
        e('s_mov_b32 %s, s%d' % (sr(srd), lo)); e('s_mov_b32 %s, s%d' % (sr(srd+1), hi))
        e('s_mov_b32 %s, 0x%x' % (sr(srd+2), size)); e('s_mov_b32 %s, 0x%x' % (sr(srd+3), SRD3))
    if embed:
        e('s_cmp_lg_u32 s2, 0'); e('s_cbranch_scc1 L_%s_noinit' % name)
        e('s_lshl_b32 s50, %s, 6' % sr(S_W)); e('v_add_u32 %s, s50, v0' % vr(T+3))
        for k in range(4): e('v_mov_b32 %s, 0' % vr(40+k))
        e('v_lshlrev_b32 %s, 4, %s' % (vr(T+4), vr(T+3))); e('s_mov_b32 s50, 0x%x' % WS_FLAG)
        P.raw('buffer_store_dwordx4 v[40:43], %s, %s, s50 offen sc1' % (vr(T+4), sr(S_WS,4)))
        e('v_lshlrev_b32 %s, 8, %s' % (vr(T+4), vr(T+3))); e('v_cmp_gt_u32 vcc, 104, %s' % vr(T+3)); e('v_mov_b32 %s, 0x7fff0000' % vr(T+5))
        e('s_mov_b32 s50, 0x%x' % WS_CNT); e('v_cndmask_b32 %s, %s, %s, vcc' % (vr(T+4), vr(T+5), vr(T+4)))
        P.raw('buffer_store_dword v40, %s, %s, s50 offen sc1' % (vr(T+4), sr(S_WS,4)))
        P.raw('L_%s_noinit:' % name)
    stamp('setup')
    W1 = []; a = W1.append
    for t in range(4):
        d = vr(VW+t)
        a('s_lshl_b32 s31, %s, 6' % sr(S_W)); a('s_add_u32 s31, s31, %d' % (256*t))
        a('v_add_u32 %s, s31, v0' % vr(T))
        a('v_mul_u32_u24 %s, 7282, %s' % (vr(T+1), vr(T))); a('v_lshrrev_b32 %s, 16, %s' % (vr(T+1), vr(T+1)))
        a('v_mul_u32_u24 %s, 9, %s' % (vr(T+2), vr(T+1))); a('v_sub_u32 %s, %s, %s' % (vr(T+2), vr(T), vr(T+2)))
        a('v_lshrrev_b32 %s, 5, %s' % (vr(T+3), vr(T+1))); a('v_and_b32 %s, 31, %s' % (vr(T+1), vr(T+1)))
        a('v_mul_u32_u24 %s, 1152, %s' % (vr(T+3), vr(T+3))); a('v_lshl_add_u32 %s, %s, 4, %s' % (vr(T+2), vr(T+2), vr(T+3)))
        a('v_mul_u32_u24 %s, 3456, %s' % (vr(T+1), vr(T+1))); a('v_add_u32 %s, %s, %s' % (d, vr(T+2), vr(T+1)))
        a(['v_cmp_le_u32 vcc, 864, %s' % vr(T), 'v_mov_b32 %s, 0x7fff0000' % vr(T+3), 's_nop 0', 'v_cndmask_b32 %s, %s, %s, vcc' % (d, d, vr(T+3))])
    W2 = []; a = W2.append
    M = T+5; Q_ = T+6
    a('v_and_b32 %s, 15, v0' % vr(M)); a('v_lshrrev_b32 %s, 4, v0' % vr(Q_))
    a('v_lshrrev_b32 %s, 3, %s' % (vr(T+1), vr(M))); a('v_mul_u32_u24 %s, 9216, %s' % (vr(T+1), vr(T+1)))
    a('v_and_b32 %s, 7, %s' % (vr(T+2), vr(M))); a('v_lshl_add_u32 %s, %s, 7, %s' % (vr(T+1), vr(T+2), vr(T+1)))
    a('v_lshrrev_b32 %s, 1, %s' % (vr(T+2), vr(M)))
    for kp in range(2):
        a('v_add_u32 %s, %d, %s' % (vr(T+3), 4*kp, vr(Q_))); a('v_xor_b32 %s, %s, %s' % (vr(T+3), vr(T+3), vr(T+2)))
        a('v_lshl_add_u32 %s, %s, 4, %s' % (vr(VB[kp]), vr(T+3), vr(T+1))); a('v_add_u32 %s, %d, %s' % (vr(VBH[kp]), 4*18432, vr(VB[kp])))
    a('v_bfe_u32 %s, v0, 2, 2' % vr(T+2)); a('v_lshl_add_u32 %s, %s, 3, %s' % (vr(T+2), vr(Q_), vr(T+2)))
    a('v_mul_u32_u24 %s, 144, %s' % (vr(T+2), vr(T+2))); a('v_add_u32 %s, %d, %s' % (vr(T+2), XR_END, vr(T+2)))
    a('v_and_b32 %s, 3, v0' % vr(T+1)); a('v_lshlrev_b32 %s, 2, %s' % (vr(T+1), vr(T+1)))
    for i4 in range(4):
        a('s_lshl_b32 s31, %s, 6' % sr(S_W)); a('s_add_u32 s31, s31, %d' % (16*i4))
        a('v_add_u32 %s, s31, %s' % (vr(T+3), vr(T+1)))
        a('v_min_u32 %s, 212, %s' % (vr(T+3), vr(T+3)))
        a('v_mul_u32_u24 %s, 911, %s' % (vr(T+4), vr(T+3))); a('v_lshrrev_b32 %s, 16, %s' % (vr(T+4), vr(T+4)))
        a('v_mul_u32_u24 %s, %d, %s' % (vr(T+4), 4608 - 144, vr(T+4)))
        a('v_lshl_add_u32 %s, %s, 1, %s' % (vr(T+3), vr(T+3), vr(T+4))); a('v_add_u32 %s, %s, %s' % (vr(PA+i4), vr(T+3), vr(T+2)))
    for k in range(4): a('v_mov_b32 %s, 0x3f803f80' % vr(VONE+k))
    a('v_cmp_eq_u32 %s, 0, %s' % (sr(S_MASK, 2), vr(M)))
    for i4 in range(4):
        for d2 in range(2):
            d = vr(VWA + 2*i4 + d2)
            a('s_lshl_b32 s31, %s, 6' % sr(S_W)); a('s_add_u32 s31, s31, %d' % (16*i4 + 2*d2))
            a('v_lshl_add_u32 %s, %s, 2, s31' % (vr(T+1), vr(Q_)))
            a('v_mul_u32_u24 %s, 3641, %s' % (vr(T+2), vr(T+1))); a('v_lshrrev_b32 %s, 16, %s' % (vr(T+2), vr(T+2)))
            a('v_mul_u32_u24 %s, 18, %s' % (vr(T+3), vr(T+2))); a('v_sub_u32 %s, %s, %s' % (vr(T+3), vr(T+1), vr(T+3)))
            a('v_min_u32 %s, 12, %s' % (vr(T+2), vr(T+2)))
            a('v_mul_u32_u24 %s, 3200, %s' % (vr(T+2), vr(T+2))); a('v_lshl_add_u32 %s, %s, 1, %s' % (vr(T+2), vr(T+3), vr(T+2)))
            a('v_mul_u32_u24 %s, 40, %s' % (vr(T+3), vr(M))); a('v_add_u32 %s, %s, %s' % (d, vr(T+2), vr(T+3)))
    for i4 in range(4):
        for mt in range(5):
            for r in range(4): a('v_mov_b32 %s, 0' % vr(acc(i4, mt)+r))
    a('s_mul_i32 s37, %s, 72' % sr(S_HG)); a('s_lshl_b32 s38, %s, 2' % sr(S_W)); a('s_add_u32 s37, s37, s38')
    for t in range(5):
        o = sr(S_OD+t)
        a('s_add_u32 s38, s37, %d' % (16*t))
        a('s_lshr_b32 %s, s38, 5' % o); a('s_lshl_b32 %s, %s, 10' % (o, o))
        a('s_bfe_u32 s39, s38, 0x20002'); a('s_lshl_b32 s39, s39, 8'); a('s_add_u32 %s, %s, s39' % (o, o))
        a('s_bfe_u32 s39, s38, 0x10004'); a('s_lshl_b32 s39, s39, 3'); a('s_add_u32 %s, %s, s39' % (o, o))
    def work(lst, n):
        for _ in range(n):
            if not lst: return
            x = lst.pop(0)
            for t in (x if isinstance(x, list) else [x]): e(t)
    n1 = len(W1)
    for bi in range(3):
        if bi == 2:
            work(W1, 999)
            e('s_cmp_ge_u32 %s, 2' % sr(S_W)); e('s_cbranch_scc1 L_%s_nox' % name)
        e('s_add_u32 %s, %s, %d' % (sr(S_T0), sr(S_W), 4*bi))
        e('s_lshl_b32 %s, %s, 3' % (sr(S_T1), sr(S_MI))); e('s_add_u32 %s, %s, %s' % (sr(S_T1), sr(S_T1), sr(S_T0)))
        e('s_sub_u32 %s, %s, 2' % (sr(S_T1), sr(S_T1))); e('s_max_i32 %s, %s, 0' % (sr(S_T1), sr(S_T1)))
        e('s_mul_i32 %s, %s, %d' % (sr(S_T1), sr(S_T1), 8*1152))
        e('s_mul_i32 %s, %s, 9216' % (sr(S_T0), sr(S_T0)))
        for lam in range(9):
            P.raw('s_add_u32 m0, %s, %d' % (sr(S_T0), lam*1024))
            P.raw('s_add_u32 s36, %s, %d' % (sr(S_T1), lam*128))
            P.raw('buffer_load_dwordx4 %s, %s, s36 offen lds' % (vr(VX), sr(S_X,4)))
            if bi < 2: work(W1, (n1 + 17)//18)
    P.raw('L_%s_nox:' % name)
    e('s_mul_i32 %s, %s, 144' % (sr(S_SO), sr(S_HG)))
    e('s_lshl_b32 %s, %s, 10' % (sr(S_WB), sr(S_W))); e('s_add_u32 %s, %s, %d' % (sr(S_WB), sr(S_WB), XR_END))
    n2 = len(W2)
    for ks in range(4):
        for t in range(4):
            e('s_add_u32 m0, %s, %d' % (sr(S_WB), ks*WSLOT + t*4096))
            if t == 0: e('s_add_u32 %s, %s, %d' % (sr(S_T0), sr(S_SO), ks*32*3456))
            else: e('s_nop 0')
            e('buffer_load_dwordx4 %s, %s, %s offen lds' % (vr(VW+t), sr(S_WQ,4), sr(S_T0)), tag='w%d' % ks)
            work(W2, (n2 + 15)//16)
    work(W2, 999)
    e('s_add_u32 %s, %s, %d' % (sr(S_SO), sr(S_SO), 4*32*3456))
    VP = 36
    if 'code' in pf or 'wq' in pf or 'wo' in pf or 'wg' in pf:
        e('s_lshr_b32 s60, s2, 3'); e('s_and_b32 s61, s2, 7')
        e('s_lshl_b32 s50, %s, 6' % sr(S_W)); e('v_add_u32 %s, s50, v0' % vr(VP))
    if 'code' in pf:
        P.raw('s_getpc_b64 s[52:53]'); P.raw('L_%s_pc:' % name)
        P.raw('s_sub_u32 s52, s52, L_%s_pc - %s' % (name, entry)); P.raw('s_subb_u32 s53, s53, 0')
        P.raw('s_mov_b32 s54, L_text_end - %s' % entry); e('s_mov_b32 s55, 0x%x' % SRD3)
        e('s_mul_i32 s50, s60, 14'); e('v_add_u32 %s, s50, %s' % (vr(VP+1), vr(VP))); e('v_lshlrev_b32 %s, 7, %s' % (vr(VP+1), vr(VP+1)))
        e('v_cmp_gt_u32 vcc, 14, %s' % vr(VP)); e('v_mov_b32 %s, 0x7fff0000' % vr(VP+2)); e('s_nop 0'); e('v_cndmask_b32 %s, %s, %s, vcc' % (vr(VP+1), vr(VP+2), vr(VP+1)))
        P.raw('buffer_load_dword %s, %s, s[52:55], 0 offen' % (vr(VP+2), vr(VP+1)))
    if 'wq' in pf:
        e('v_mul_u32_u24 %s, 4370, %s' % (vr(VP+1), vr(VP))); e('v_lshrrev_b32 %s, 16, %s' % (vr(VP+1), vr(VP+1)))
        e('v_mul_u32_u24 %s, 15, %s' % (vr(VP+3), vr(VP+1))); e('v_sub_u32 %s, %s, %s' % (vr(VP+3), vr(VP), vr(VP+3)))
        e('s_mul_i32 s50, s60, 14'); e('s_add_u32 s50, s50, 128'); e('v_add_u32 %s, s50, %s' % (vr(VP+1), vr(VP+1))); e('v_mul_u32_u24 %s, 3456, %s' % (vr(VP+1), vr(VP+1)))
        e('v_mul_u32_u24 %s, 52, %s' % (vr(T), vr(VP+3))); e('v_lshrrev_b32 %s, 8, %s' % (vr(T), vr(T)))
        e('v_mul_u32_u24 %s, 5, %s' % (vr(T+1), vr(T))); e('v_sub_u32 %s, %s, %s' % (vr(VP+3), vr(VP+3), vr(T+1)))
        e('v_mul_u32_u24 %s, 1152, %s' % (vr(T), vr(T))); e('v_add_u32 %s, %s, %s' % (vr(VP+1), vr(VP+1), vr(T)))
        e('v_lshl_add_u32 %s, %s, 7, %s' % (vr(VP+1), vr(VP+3), vr(VP+1)))
        e('v_cmp_gt_u32 vcc, 210, %s' % vr(VP)); e('v_mov_b32 %s, 0x7fff0000' % vr(T)); e('s_and_b32 s50, s61, 1'); e('s_lshl_b32 s50, s50, 9')
        e('v_cndmask_b32 %s, %s, %s, vcc' % (vr(VP+1), vr(T), vr(VP+1)))
        P.raw('buffer_load_dword %s, %s, %s, s50 offen' % (vr(VP+3), vr(VP+1), sr(S_WQ,4)))
    stamp('issued')
    if prefetch: prefetch(P)
    WB = 200
    e('s_mov_b32 s52, s96'); e('s_mov_b32 s53, s97')
    e('s_lshl_b32 s50, %s, 8' % sr(S_W)); e('s_add_u32 s62, s50, s2')
    e('v_lshlrev_b32 %s, 4, v0' % vr(WB+8)); e('v_add_u32 %s, 1024, %s' % (vr(WB+9), vr(WB+8)))
    e('v_cmp_gt_u32 vcc, 8, v0'); e('v_mov_b32 %s, 0x7fff0000' % vr(WB)); e('s_mul_i32 s51, s62, 1152')
    e('v_cndmask_b32 %s, %s, %s, vcc' % (vr(WB+9), vr(WB), vr(WB+9)))
    e('s_mov_b32 s54, 0x%x' % (D_*D_*2)); e('s_mov_b32 s55, 0x%x' % SRD3)
    e('buffer_load_dwordx4 %s, %s, s[52:55], s51 offen' % (vr(WB, 4), vr(WB+8)), tag='wb')
    e('buffer_load_dwordx4 %s, %s, s[52:55], s51 offen' % (vr(WB+4, 4), vr(WB+9)), tag='wb')
    def reads(st, kp, ni):
        l = []
        for mt in range(5):
            rd = VB[kp] if mt < 4 else VBH[kp]
            l.append('ds_read_b128 %s, %s offset:%d' % (vr(BB[st]+4*mt, 4), vr(rd), mt*18432 if mt < 4 else 0))
        for i in range(ni):
            for u in range(2):
                l.append('ds_read_b64_tr_b16 %s, %s offset:%d' % (vr(AB[st]+4*i+2*u, 2), vr(VA+i), u*576))
        return l
    def ones_fix(st):
        for d in range(4): e('v_cndmask_b32 %s, %s, %s, %s' % (vr(BB[st]+d), vr(BB[st]+d), vr(VONE), sr(S_MASK, 2)))
    P.wait_vm_tag('w0'); e('s_barrier')
    if embed:
        e('s_or_b32 s50, s2, %s' % sr(S_W)); e('s_cmp_lg_u32 s50, 0'); e('s_cbranch_scc1 L_%s_noann' % name)
        e('s_mov_b32 s52, s100'); e('s_mov_b32 s53, s101'); e('s_mov_b32 s54, 256'); e('s_mov_b32 s55, 0x%x' % SRD3)
        e('v_mov_b32 %s, 1' % vr(T+3))
        P.raw('buffer_store_dword %s, off, s[52:55], 0 sc1' % vr(T+3))
        P.raw('L_%s_noann:' % name)
    stamp('w0')
    for i in range(4): e('v_mov_b32 %s, %s' % (vr(VA+i), vr(PA+i)))
    for t in reads(0, 0, 4): e(t)
    e('s_mov_b32 %s, 0' % sr(S_C)); e('s_mov_b32 %s, 9' % sr(S_CNT))
    e('s_waitcnt lgkmcnt(0)')
    ones_fix(0)
    e('s_cmp_eq_u32 %s, 3' % sr(S_W)); e('s_cbranch_scc1 L_%s_loop3' % name)
    spans = {}
    def loop(lab, stats_wave):
        P.raw('.p2align 6'); P.raw('L_%s_%s:' % (name, lab))
        a0 = len(P.ins)
        for kp in range(2):
            cur, nxt = kp, 1-kp
            ni = 2 if stats_wave else 4
            e('s_waitcnt vmcnt(8)')
            if 'nobar' not in pf: e('s_barrier')
            rd = reads(nxt, 1-kp, ni)
            SC = {0: 's_lshl_b32 %s, %s, 14' % (sr(S_T0), sr(S_C)), 1: 's_add_u32 %s, %s, %s' % (sr(S_WA), sr(S_WB), sr(S_T0)),
                  2: 's_add_u32 %s, %s, 1' % (sr(S_C), sr(S_C)), 3: 's_and_b32 %s, %s, 3' % (sr(S_C), sr(S_C)), 4: 's_lshl_b32 %s, %s, 14' % (sr(S_RA), sr(S_C)),
                  12: 's_waitcnt lgkmcnt(%d)' % min(15, (5 + 2*ni if ni == 4 else 5 + 2*ni) - 2 - (1 if ni == 4 else 0)),
                  13: 's_add_u32 m0, %s, 0' % sr(S_WA), 15: 's_add_u32 m0, %s, 4096' % sr(S_WA), 17: 's_add_u32 m0, %s, 8192' % sr(S_WA), 19: 's_add_u32 m0, %s, 12288' % sr(S_WA)}
            DS = {n: rd[n] for n in range(5)}
            for k in range(2*ni): DS[6+k] = rd[5+k]
            for t, n in enumerate((14, 16, 18)): DS[n] = 'buffer_load_dwordx4 %s, %s, %s offen lds' % (vr(VW+t), sr(S_WQ,4), sr(S_SO))
            VL = {}
            for i in range(ni): VL[5+i] = ['v_add_u32 %s, %s, %s' % (vr(VA+i), sr(S_RA), vr(PA+i))]
            VL[10] = ['v_add_u32 %s, 1024, %s' % (vr(VB[kp]), vr(VB[kp]))]; VL[11] = ['v_add_u32 %s, 1024, %s' % (vr(VBH[kp]), vr(VBH[kp]))]
            fix = ['v_cndmask_b32 %s, %s, %s, %s' % (vr(BB[nxt]+d), vr(BB[nxt]+d), vr(VONE), sr(S_MASK, 2)) for d in range(4)]
            VL[15] = fix[:2]; VL[17] = fix[2:]
            n = 0
            for i in range(4):
                for mt in range(5):
                    A = vr(AB[cur]+4*i, 4)
                    if stats_wave and i == 2: A = vr(VONE, 4)
                    if stats_wave and i == 3: A = vr(BB[cur]+4*mt, 4)
                    e('v_mfma_f32_16x16x32_bf16 %s, %s, %s, %s' % (vr(acc(i, mt), 4), A, vr(BB[cur]+4*mt, 4), vr(acc(i, mt), 4)))
                    if n == 12: P.wait_lg_regs(rset('v', BB[nxt], 4))
                    elif n in SC: e(SC[n])
                    if n in DS and not ('nodma' in pf and 'lds' in DS[n].split()[-1:]): e(DS[n])
                    for t in VL.get(n, []): e(t)
                    n += 1
            e('s_nop 0')
            if 'nodma' not in pf: e('buffer_load_dwordx4 %s, %s, %s offen lds' % (vr(VW+3), sr(S_WQ,4), sr(S_SO)))
            e('s_add_u32 %s, %s, %d' % (sr(S_SO), sr(S_SO), 32*3456))
            e('s_waitcnt lgkmcnt(0)')
        e('s_sub_u32 %s, %s, 1' % (sr(S_CNT), sr(S_CNT))); e('s_cmp_lg_u32 %s, 0' % sr(S_CNT)); e('s_cbranch_scc1 L_%s_%s' % (name, lab))
        spans[lab] = (a0, len(P.ins))
    loop('loop', False)
    e('s_branch L_%s_after' % name)
    b3 = len(P.ins)
    loop('loop3', True)
    STAT = LDS_BYTES - 1024*0
    e('v_and_b32 v1, 15, v0'); e('v_lshrrev_b32 %s, 4, v0' % vr(T)); e('v_lshrrev_b32 %s, 2, v1' % vr(T+1)); e('v_and_b32 %s, 3, v1' % vr(T+2))
    e('v_cmp_eq_u32 s[50:51], %s, %s' % (vr(T), vr(T+1)))
    for r in range(1, 4): e('v_cmp_eq_u32 s[%d:%d], %d, %s' % (50+2*r, 51+2*r, r, vr(T+2)))
    e('v_lshlrev_b32 v1, 3, v1'); e('v_add_u32 v1, %d, v1' % STAT)
    e('s_mov_b32 %s, 0x%08x' % (sr(S_T0), f2u(1.0/576)))
    for mt in range(5):
        g = acc(3, mt)
        for r in range(1, 4): e('v_cndmask_b32 %s, %s, %s, s[%d:%d]' % (vr(g), vr(g), vr(g+r), 50+2*r, 51+2*r))
    for mt in range(5): e('v_mul_f32 %s, %s, %s' % (vr(acc(2, mt)), sr(S_T0), vr(acc(2, mt))))
    for mt in range(5): e('v_mul_f32 %s, %s, %s' % (vr(acc(3, mt)), sr(S_T0), vr(acc(3, mt))))
    e('s_cmp_lg_u32 %s, 0' % sr(S_HG)); e('s_cbranch_scc1 L_%s_nomx' % name)
    e('v_and_b32 %s, 15, v0' % vr(T+3)); e('v_lshlrev_b32 %s, 2, %s' % (vr(T+3), vr(T+3)))
    e('s_lshl_b32 %s, %s, 8' % (sr(S_T1), sr(S_MI))); e('s_add_u32 %s, %s, 0x%x' % (sr(S_T1), sr(S_T1), WS_MX))
    e('s_mov_b64 exec, s[50:51]')
    for mt in range(1, 5): P.raw('buffer_store_dword %s, %s, %s, %s offen offset:%d sc1' % (vr(acc(2, mt)), vr(T+3), sr(S_WS,4), sr(S_T1), 64*(mt-1)))
    e('s_mov_b64 exec, -1')
    P.raw('L_%s_nomx:' % name)
    for mt in range(5): e('v_fma_f32 %s, -%s, %s, %s' % (vr(acc(3, mt)), vr(acc(2, mt)), vr(acc(2, mt)), vr(acc(3, mt))))
    for mt in range(5): e('v_max_f32 %s, 0, %s' % (vr(acc(3, mt)), vr(acc(3, mt))))
    for mt in range(5): e('v_add_f32 %s, 0x%08x, %s' % (vr(acc(3, mt)), f2u(1e-5), vr(acc(3, mt))))
    for mt in range(5): e('v_rsq_f32 %s, %s' % (vr(acc(3, mt)+1), vr(acc(3, mt))))
    e('s_nop 0')
    for mt in range(5): e('v_mul_f32 %s, -%s, %s' % (vr(acc(3, mt)), vr(acc(2, mt)), vr(acc(3, mt)+1)))
    e('s_mov_b64 exec, s[50:51]')
    for mt in range(5): e('ds_write_b64 v1, %s offset:%d' % (vr(acc(3, mt), 2), 128*mt))
    e('s_mov_b64 exec, -1')
    e3 = len(P.ins)
    P.raw('L_%s_after:' % name)
    after = len(P.ins)
    stamp('loop')
    e('s_cmp_ge_u32 s62, 576'); e('s_cbranch_scc1 L_%s_nowb' % name)
    P.wait_vm_tag('wb')
    e('v_mov_b32 %s, 0x3f803f80' % vr(WB+8))
    for d in range(8): e('v_dot2_f32_bf16 %s, %s, %s, %s' % (vr(WB+9), vr(WB+d), vr(WB+8), '0' if d == 0 else vr(WB+9)))
    e('s_nop 2')
    for dpp in ('quad_perm:[1,0,3,2]', 'quad_perm:[2,3,0,1]', 'row_half_mirror', 'row_mirror'):
        e('v_add_f32_dpp %s, %s, %s %s row_mask:0xf bank_mask:0xf' % (vr(WB+9), vr(WB+9), vr(WB+9), dpp)); e('s_nop 1')
    for swap in ('v_permlane16_swap_b32', 'v_permlane32_swap_b32'):
        e('v_mov_b32 %s, %s' % (vr(WB+10), vr(WB+9))); e('s_nop 1')
        e('%s %s, %s' % (swap, vr(WB+9), vr(WB+10))); e('s_nop 1')
        e('v_add_f32 %s, %s, %s' % (vr(WB+9), vr(WB+9), vr(WB+10)))
    e('v_mul_f32 %s, 0x%08x, %s' % (vr(WB+9), f2u(1.0/576), vr(WB+9)))
    e('v_cvt_pk_bf16_f32 %s, %s, 0' % (vr(WB), vr(WB+9)))
    e('v_lshlrev_b32 %s, 16, %s' % (vr(WB+1), vr(WB))); e('v_sub_f32 %s, %s, %s' % (vr(WB+1), vr(WB+9), vr(WB+1)))
    e('v_cvt_pk_bf16_f32 %s, %s, 0' % (vr(WB+1), vr(WB+1)))
    e('s_lshr_b32 s50, s62, 5'); e('s_lshl_b32 s50, s50, 6')
    e('s_bfe_u32 s51, s62, 0x20002'); e('s_lshl_b32 s51, s51, 4'); e('s_add_u32 s50, s50, s51')
    e('s_bfe_u32 s51, s62, 0x10004'); e('s_lshl_b32 s51, s51, 3'); e('s_add_u32 s50, s50, s51')
    e('s_and_b32 s51, s62, 3'); e('s_lshl_b32 s51, s51, 1'); e('s_add_u32 s50, s50, s51'); e('s_add_u32 s50, s50, 0x%x' % WS_WB)
    e('s_mov_b64 exec, 1')
    P.raw('buffer_store_short %s, off, %s, s50 sc1' % (vr(WB), sr(S_WS,4)))
    P.raw('buffer_store_short %s, off, %s, s50 offset:%d sc1' % (vr(WB+1), sr(S_WS,4), 18*64))
    e('s_mov_b64 exec, -1')
    P.raw('L_%s_nowb:' % name)
    if embed:
        e('s_mov_b32 s52, s100'); e('s_mov_b32 s53, s101'); e('s_mov_b32 s54, 256'); e('s_mov_b32 s55, 0x%x' % SRD3)
        P.raw('buffer_load_dword v211, off, s[52:55], 0 sc1')
    if 'wo' in pf or 'wg' in pf:
        e('s_mov_b32 s52, s96'); e('s_mov_b32 s53, s97'); e('s_mov_b32 s56, s98'); e('s_mov_b32 s57, s99')
        e('v_mul_u32_u24 %s, 7282, %s' % (vr(VP+1), vr(VP))); e('v_lshrrev_b32 %s, 16, %s' % (vr(VP+1), vr(VP+1)))
        e('v_mul_u32_u24 %s, 9, %s' % (vr(VP+2), vr(VP+1))); e('v_sub_u32 %s, %s, %s' % (vr(VP+2), vr(VP), vr(VP+2)))
        e('s_mul_i32 s50, s60, 18'); e('v_add_u32 %s, s50, %s' % (vr(VP+1), vr(VP+1))); e('v_mul_u32_u24 %s, 9216, %s' % (vr(VP+1), vr(VP+1)))
        e('v_lshl_add_u32 %s, %s, 7, %s' % (vr(VP+1), vr(VP+2), vr(VP+1)))
        e('s_mul_i32 s50, s60, 162'); e('v_add_u32 %s, s50, %s' % (vr(VP+2), vr(VP))); e('v_lshlrev_b32 %s, 7, %s' % (vr(VP+2), vr(VP+2)))
        e('v_cmp_gt_u32 vcc, 162, %s' % vr(VP)); e('v_mov_b32 %s, 0x7fff0000' % vr(VP+3)); e('s_mul_i32 s51, s61, 1152')
        e('v_cndmask_b32 %s, %s, %s, vcc' % (vr(VP+1), vr(VP+3), vr(VP+1))); e('v_cndmask_b32 %s, %s, %s, vcc' % (vr(VP+2), vr(VP+3), vr(VP+2)))
        e('s_mov_b32 s54, 0x%x' % (D_*D_*2)); e('s_mov_b32 s55, 0x%x' % SRD3)
        e('s_mov_b32 s58, 0x%x' % (D_*F_*2)); e('s_mov_b32 s59, 0x%x' % SRD3)
        if 'wo' in pf: P.raw('buffer_load_dword v14, %s, s[52:55], 0 offen' % vr(VP+2))
        if 'wg' in pf: P.raw('buffer_load_dword v15, %s, s[56:59], s51 offen' % vr(VP+1))
    CS = BB[0]
    e('s_nop 4')
    for i in range(4):
        for r in range(4):
            e('v_mov_b32_dpp %s, %s row_newbcast:0 row_mask:0xf bank_mask:0xf' % (vr(CS+4*i+r), vr(acc(i, 0)+r)))
    e('s_waitcnt lgkmcnt(0)'); e('s_barrier')
    ST = BB[1]
    e('v_and_b32 v1, 15, v0'); e('v_lshlrev_b32 v1, 3, v1'); e('v_add_u32 v1, %d, v1' % STAT)
    for mt in range(5): e('ds_read_b64 %s, v1 offset:%d' % (vr(ST+2*mt, 2), 128*mt))
    e('s_waitcnt lgkmcnt(0)')
    for mt in range(5):
        for i in range(4):
            a = acc(i, mt); t0 = T + 4*(i % 2)
            for r in range(4): e('v_mul_f32 %s, %s, %s' % (vr(t0+r), vr(ST+2*mt), vr(CS+4*i+r)))
            for r in range(4): e('v_fma_f32 %s, %s, %s, %s' % (vr(a+r), vr(a+r), vr(ST+2*mt+1), vr(t0+r)))
            e('v_cvt_pk_bf16_f32 %s, %s, %s' % (vr(a), vr(a), vr(a+1))); e('v_cvt_pk_bf16_f32 %s, %s, %s' % (vr(a+1), vr(a+2), vr(a+3)))
            for d2 in range(2): e('ds_write_b32 %s, %s offset:%d' % (vr(VWA+2*i+d2), vr(a+d2), 640*mt))
    if embed:
        nlate = ('wo' in pf) + ('wg' in pf)
        P.raw('s_waitcnt vmcnt(%d)' % nlate)
    e('s_waitcnt lgkmcnt(0)'); e('s_barrier')
    if embed:
        e('s_cmp_lg_u32 %s, 0' % sr(S_W)); e('s_cbranch_scc1 L_%s_now' % name)
        P.raw('v_readfirstlane_b32 s50, v211'); e('s_nop 3'); e('s_cmp_eq_u32 s50, 1'); e('s_cbranch_scc1 L_%s_ann' % name)
        e('s_mov_b32 s52, s100'); e('s_mov_b32 s53, s101'); e('s_mov_b32 s54, 256'); e('s_mov_b32 s55, 0x%x' % SRD3)
        e('s_mov_b32 s51, 0x4000')
        P.raw('L_%s_annw:' % name)
        P.raw('s_sleep 8'); P.raw('buffer_load_dword v211, off, s[52:55], 0 sc1'); P.raw('s_waitcnt vmcnt(0)')
        P.raw('v_readfirstlane_b32 s50, v211'); P.raw('s_sub_u32 s51, s51, 1'); P.raw('s_cmp_eq_u32 s51, 0'); P.raw('s_cbranch_scc1 L_%s_ann' % name)
        P.raw('s_cmp_eq_u32 s50, 1'); P.raw('s_cbranch_scc0 L_%s_annw' % name)
        P.raw('L_%s_ann:' % name)
        e('s_and_b32 s50, s2, 7'); e('s_lshl_b32 s50, s50, 8'); e('s_add_u32 s50, s50, 0x%x' % WS_CNTW)
        e('v_mov_b32 v211, 1'); e('s_mov_b64 exec, 1')
        P.raw('buffer_atomic_add v211, off, %s, s50' % sr(S_WS,4))
        e('s_mov_b64 exec, -1')
        P.raw('L_%s_now:' % name)
    stamp('fix')
    AD = 2
    e('v_add_u32 v1, 2, v0'); e('v_mul_u32_u24 %s, 40, v1' % vr(AD))
    e('s_mul_i32 %s, %s, 3200' % (sr(S_T0), sr(S_W))); e('v_add_u32 %s, %s, %s' % (vr(AD), sr(S_T0), vr(AD)))
    QR = 40; KR = 112; L = 50
    def rdvec(dst, kind, w):
        for t in range(5): e('ds_read_b64 %s, %s offset:%d' % (vr(dst+2*t, 2), vr(AD), kind*12800 + (14 - 2*w)*40 + 8*t))
    def kreg(w): return KR + 10*w
    rdvec(QR, 0, 0); rdvec(kreg(0), 1, 0); rdvec(kreg(1), 1, 1)
    for w in range(0, 8, 2):
        P.wait_lg_regs(rset('v', QR, 10) + rset('v', kreg(w), 10) + rset('v', kreg(w+1), 10))
        if w + 2 < 8: rdvec(kreg(w+2), 1, w+2); rdvec(kreg(w+3), 1, w+3)
        for d in range(9):
            for ww in (w, w+1):
                e('v_dot2_f32_bf16 %s, %s, %s, %s' % (vr(L+ww), vr(QR+d), vr(kreg(ww)+d), '0' if d == 0 else vr(L+ww)))
    rdvec(kreg(0), 2, 0); rdvec(kreg(1), 2, 1); rdvec(kreg(2), 2, 2)
    e('s_lshl_b32 %s, %s, 6' % (sr(S_T0), sr(S_MI))); e('v_add_u32 %s, %s, v0' % (vr(T), sr(S_T0))); e('v_mov_b32 %s, 0x%08x' % (vr(T+1), f2u(-1e9)))
    for w in range(1, 8):
        e('v_cmp_gt_u32 vcc, %d, %s' % (2*w, vr(T))); e('s_nop 1'); e('v_cndmask_b32 %s, %s, %s, vcc' % (vr(L+w), vr(L+w), vr(T+1)))
    e('v_max3_f32 %s, %s, %s, %s' % (vr(T+2), vr(L), vr(L+1), vr(L+2))); e('v_max3_f32 %s, %s, %s, %s' % (vr(T+3), vr(L+3), vr(L+4), vr(L+5)))
    e('v_max3_f32 %s, %s, %s, %s' % (vr(T+2), vr(T+2), vr(L+6), vr(L+7))); e('v_max_f32 %s, %s, %s' % (vr(T+2), vr(T+2), vr(T+3)))
    CSC = 18**-0.5 * 1.4426950408889634
    e('s_mov_b32 %s, 0x%08x' % (sr(S_T1), f2u(CSC)))
    e('v_mul_f32 %s, %s, %s' % (vr(T+2), sr(S_T1), vr(T+2)))
    for w in range(8): e('v_fma_f32 %s, %s, %s, -%s' % (vr(L+w), vr(L+w), sr(S_T1), vr(T+2)))
    for w in range(8): e('v_exp_f32 %s, %s' % (vr(L+w), vr(L+w)))
    P.wait_lg_regs(rset('v', kreg(2), 10))
    rdvec(kreg(3), 2, 3); rdvec(kreg(4), 2, 4); rdvec(kreg(5), 2, 5)
    e('v_add_f32 %s, %s, %s' % (vr(T+2), vr(L), vr(L+1))); e('v_add_f32 %s, %s, %s' % (vr(T+3), vr(L+2), vr(L+3)))
    e('v_add_f32 %s, %s, %s' % (vr(T+4), vr(L+4), vr(L+5))); e('v_add_f32 %s, %s, %s' % (vr(T+5), vr(L+6), vr(L+7)))
    e('v_add_f32 %s, %s, %s' % (vr(T+2), vr(T+2), vr(T+3))); e('v_add_f32 %s, %s, %s' % (vr(T+4), vr(T+4), vr(T+5))); e('v_add_f32 %s, %s, %s' % (vr(T+2), vr(T+2), vr(T+4)))
    e('v_rcp_f32 %s, %s' % (vr(T+2), vr(T+2))); e('s_nop 0')
    for w in range(8): e('v_mul_f32 %s, %s, %s' % (vr(L+w), vr(L+w), vr(T+2)))
    PL, PH = 60, 68
    for w in range(8):
        e('v_cvt_pk_bf16_f32 %s, %s, 0' % (vr(PL+w), vr(L+w))); e('v_cvt_pk_bf16_f32 %s, 0, %s' % (vr(PH+w), vr(L+w)))
    OL, OH = 80, 90
    def pv(w):
        for d in range(9):
            e('v_dot2_f32_bf16 %s, %s, %s, %s' % (vr(OL+d), vr(kreg(w)+d), vr(PL+w), '0' if w == 0 else vr(OL+d)))
            e('v_dot2_f32_bf16 %s, %s, %s, %s' % (vr(OH+d), vr(kreg(w)+d), vr(PH+w), '0' if w == 0 else vr(OH+d)))
    pv(0); pv(1); pv(2)
    P.wait_lg_regs(rset('v', kreg(5), 10))
    rdvec(kreg(6), 2, 6); rdvec(kreg(7), 2, 7)
    pv(3); pv(4); pv(5)
    P.wait_lg_regs(rset('v', kreg(7), 10))
    pv(6); pv(7)
    e('v_lshrrev_b32 %s, 4, v0' % vr(T)); e('s_lshl_b32 %s, %s, 2' % (sr(S_T0), sr(S_MI))); e('v_add_u32 %s, %s, %s' % (vr(T), sr(S_T0), vr(T)))
    e('v_mul_u32_u24 %s, 18432, %s' % (vr(T), vr(T))); e('v_and_b32 %s, 15, v0' % vr(T+1)); e('v_lshl_add_u32 %s, %s, 4, %s' % (vr(T), vr(T+1), vr(T)))
    for d in range(9): e('v_cvt_pk_bf16_f32 %s, %s, %s' % (vr(QR+d), vr(OL+d), vr(OH+d)))
    OA = 49152
    e('v_mul_u32_u24 %s, 152, v0' % vr(T+2)); e('s_mul_i32 %s, %s, 36' % (sr(S_T0), sr(S_W))); e('s_add_u32 %s, %s, %d' % (sr(S_T0), sr(S_T0), OA))
    e('v_add_u32 %s, %s, %s' % (vr(T+3), sr(S_T0), vr(T+2)))
    for d in range(9): e('ds_write_b32 %s, %s offset:%d' % (vr(T+3), vr(QR+d), 4*d))
    e('s_lshl_b32 %s, %s, 3' % (sr(S_T0), sr(S_W))); e('s_add_u32 %s, %s, %d' % (sr(S_T0), sr(S_T0), OA)); e('v_add_u32 %s, %s, %s' % (vr(T+3), sr(S_T0), vr(T+2)))
    e('s_waitcnt lgkmcnt(0)'); e('s_barrier')
    for t in range(5): e('ds_read_b64 %s, %s offset:%d' % (vr(OL+2*t, 2), vr(T+3), 32*t))
    for t in range(4):
        P.wait_lg_regs(rset('v', OL+2*t, 2))
        e('buffer_store_dwordx2 %s, %s, %s, %s offen sc1' % (vr(OL+2*t, 2), vr(T), sr(S_WS,4), sr(S_OD+t)))
    e('s_waitcnt lgkmcnt(0)')
    e('s_cmp_ge_u32 %s, 2' % sr(S_W)); e('s_cbranch_scc1 L_%s_no5' % name)
    P.raw('buffer_store_dwordx2 %s, %s, %s, %s offen sc1' % (vr(OL+8, 2), vr(T), sr(S_WS,4), sr(S_OD+4)))
    P.raw('L_%s_no5:' % name)
    if 'flags' in pf:
        e('s_lshl_b32 s50, s2, 2'); e('s_add_u32 s50, s50, %s' % sr(S_W)); e('s_lshl_b32 s50, s50, 2'); e('s_add_u32 s50, s50, 0x%x' % WS_FLAG)
        e('v_mov_b32 %s, 0' % vr(WB+11)); e('buffer_store_dword %s, off, %s, s50' % (vr(WB+11), sr(S_WS,4)))
        e('s_min_u32 s50, s2, 21'); e('s_lshl_b32 s50, s50, 8'); e('s_add_u32 s50, s50, 0x%x' % WS_CNT)
        e('buffer_store_dword %s, off, %s, s50' % (vr(WB+11), sr(S_WS,4)))
        e('s_min_u32 s50, s2, 31'); e('s_lshl_b32 s50, s50, 8'); e('s_add_u32 s50, s50, 0x%x' % WS_CNT4)
        e('buffer_store_dword %s, off, %s, s50' % (vr(WB+11), sr(S_WS,4)))
    ins = P.ins
    if embed:
        P.raw('s_waitcnt vmcnt(0)'); P.vmq = []
        e('s_barrier')
        e('s_cmp_lg_u32 %s, 0' % sr(S_W)); e('s_cbranch_scc1 L_%s_nosig' % name)
        e('s_lshl_b32 s50, %s, 8' % sr(S_MI)); e('s_add_u32 s50, s50, 0x%x' % WS_CNT1)
        e('v_mov_b32 v211, 1'); e('s_mov_b64 exec, 1')
        P.raw('buffer_atomic_add v211, off, %s, s50' % sr(S_WS,4))
        e('s_mov_b64 exec, -1')
        P.raw('L_%s_nosig:' % name)
        e('s_lshl_b32 s50, %s, 6' % sr(S_W)); e('v_add_u32 v0, s50, v0')
        a0, a1 = spans['loop']; c0, c1 = spans['loop3']; en = len(ins)
        P.k1paths = (ins[start:a0] + ins[a0:a1]*3 + ins[after:en], ins[start:a0] + ins[c0:c1]*3 + ins[c1:en])
        return P, None, None
    stamp('attn'); stamp.finish()
    P.raw('L_%s_end:' % name)
    e('s_endpgm')
    a0, a1 = spans['loop']; c0, c1 = spans['loop3']
    path = ins[:a0] + ins[a0:a1]*3 + ins[after:]
    path3 = ins[:a0] + ins[c0:c1]*3 + ins[c1:]
    return P, (path, path3), dict(vgpr=212, accum=212, sgpr=102 if dbg else 100, grid=256, block=256, lds=LDS_BYTES + 1024, stamps=stamp.names)

if __name__ == '__main__':
    P, paths, o = build()
    for p in paths: check(p, 'k1')
    print(len(P.ins), o)
```

```python
from core import *
from common import *
from sched import *
from stamps import Stamper

def build(name='k2_kernel', prefetch=None, dbg=False, pf=None, code_pf=False, P=None, embed=None, wait1=False):
    P = P or Prog(); e = P.e
    start = len(P.ins)
    LB = 73728 if embed else 0
    END = embed or ('L_%s_end' % name)
    NWG = 256 if pf == 'help' else 216
    V_L16, V_OG, V_RD, V_RD2, V_XO, V_T = 1, 2, 5, 6, 7, 8
    V_B, V_ACC, V_X, V_U = 16, 160, 192, 208
    A_W, NF, LAR = 0, 12, 12
    A_WB = 48
    V_MU, V_MX, V_WBO = 240, 248, 250
    S_WS, S_WO, S_X = 8, 12, 16
    S_W, S_MG, S_NG, S_MT, S_T0, S_T1, S_OO, S_WOFF = 20, 21, 22, 23, 24, 25, 26, 27
    if not embed: e('s_cmp_ge_u32 s2, %d' % NWG); e('s_cbranch_scc1 L_%s_end' % name)
    stamp = Stamper(P, dbg and not embed, S_W); stamp('start')
    e('s_load_dwordx2 s[4:5], s[0:1], %d' % KA_WS); e('s_load_dwordx2 s[6:7], s[0:1], %d' % KA_WO); e('s_load_dwordx2 s[28:29], s[0:1], %d' % KA_X)
    e('v_mov_b32 %s, v0' % vr(V_T+7))
    e('v_lshrrev_b32 %s, 6, v0' % vr(V_T)); e('v_and_b32 v0, 63, v0')
    e('v_readfirstlane_b32 %s, %s' % (sr(S_W), vr(V_T)))
    e('v_lshlrev_b32 %s, 4, v0' % vr(V_L16))
    e('s_lshr_b32 %s, s2, 3' % sr(S_T0)); e('s_mul_i32 %s, %s, 57' % (sr(S_T1), sr(S_T0))); e('s_lshr_b32 %s, %s, 9' % (sr(S_T1), sr(S_T1)))
    e('s_mul_i32 %s, %s, 9' % (sr(S_NG), sr(S_T1))); e('s_sub_u32 %s, %s, %s' % (sr(S_NG), sr(S_T0), sr(S_NG)))
    e('s_lshl_b32 %s, %s, 3' % (sr(S_MG), sr(S_T1))); e('s_and_b32 %s, s2, 7' % sr(S_T0)); e('s_add_u32 %s, %s, %s' % (sr(S_MG), sr(S_MG), sr(S_T0)))
    skip = (0, 0)
    if pf == 'help':
        e('s_cmp_lt_u32 s2, 216'); e('s_cbranch_scc1 L_%s_tile' % name)
        help0 = len(P.ins)
        e('s_load_dwordx2 s[44:45], s[0:1], %d' % KA_WU); e('s_load_dwordx2 s[46:47], s[0:1], %d' % KA_WD)
        e('s_lshr_b32 s50, s2, 3'); e('s_sub_u32 s50, s50, 27'); e('s_mul_i32 s50, s50, 192'); e('v_add_u32 %s, s50, %s' % (vr(V_U), vr(V_T+7)))
        if embed:
            e('v_cmp_gt_u32 vcc, 192, %s' % vr(V_T+7)); e('v_mov_b32 %s, 0x00800000' % vr(V_U+3)); e('s_nop 0'); e('v_cndmask_b32 %s, %s, %s, vcc' % (vr(V_U), vr(V_U+3), vr(V_U)))
        e('v_mul_u32_u24 %s, 7282, %s' % (vr(V_U+1), vr(V_U))); e('v_lshrrev_b32 %s, 16, %s' % (vr(V_U+1), vr(V_U+1)))
        e('v_mul_u32_u24 %s, 9, %s' % (vr(V_U+2), vr(V_U+1))); e('v_sub_u32 %s, %s, %s' % (vr(V_U+2), vr(V_U), vr(V_U+2)))
        e('v_mul_u32_u24 %s, 9216, %s' % (vr(V_U+1), vr(V_U+1))); e('v_lshl_add_u32 %s, %s, 7, %s' % (vr(V_U+1), vr(V_U+2), vr(V_U+1)))
        e('v_cmp_gt_u32 vcc, 954, %s' % vr(V_U)); e('v_mov_b32 %s, 0x7fff0000' % vr(V_U+3)); e('v_lshlrev_b32 %s, 7, %s' % (vr(V_U), vr(V_U)))
        e('v_cndmask_b32 %s, %s, %s, vcc' % (vr(V_U+1), vr(V_U+3), vr(V_U+1)))
        e('s_and_b32 s51, s2, 7'); e('s_mul_i32 s52, s51, 1152'); e('s_mul_i32 s53, s51, %d' % (576*1152))
        e('s_waitcnt lgkmcnt(0)')
        for k in range(2):
            b = 56 + 4*k
            e('s_mov_b32 s%d, s%d' % (b, 44+2*k)); e('s_mov_b32 s%d, s%d' % (b+1, 45+2*k)); e('s_mov_b32 s%d, 0x%x' % (b+2, D_*F_*2)); e('s_mov_b32 s%d, 0x%x' % (b+3, SRD3))
        if code_pf:
            P.raw('s_getpc_b64 s[64:65]'); P.raw('L_%s_pc:' % name)
            P.raw('s_add_u32 s64, s64, k3_kernel - L_%s_pc' % name); P.raw('s_addc_u32 s65, s65, 0')
            P.raw('s_mov_b32 s66, L_text_end - k3_kernel'); e('s_mov_b32 s67, 0x%x' % SRD3)
            P.raw('buffer_load_dword %s, %s, s[64:67], 0 offen' % (vr(V_B+16), vr(V_U)))
        for k in range(6):
            P.raw('buffer_load_dword %s, %s, s[56:59], s52 offen' % (vr(V_B+k), vr(V_U+1)))
            P.raw('buffer_load_dword %s, %s, s[60:63], s53 offen' % (vr(V_B+8+k), vr(V_U)))
            e('s_add_u32 s52, s52, %d' % (106*9216)); e('s_add_u32 s53, s53, %d' % (960*128))
        if embed: e('s_waitcnt vmcnt(0)')
        e('s_branch %s' % END)
        skip = (help0, len(P.ins))
        P.raw('L_%s_tile:' % name)
    if embed: e('s_waitcnt lgkmcnt(0)')
    e('s_cmp_ge_u32 %s, 22' % sr(S_MG)); e('s_cbranch_scc1 %s' % END)
    if embed:
        e('s_cmp_eq_u32 %s, 3' % sr(S_W)); e('s_cbranch_scc1 L_%s_w3' % name)
        w3br = len(P.ins)
    e('s_mul_i32 %s, %s, 6' % (sr(S_MT), sr(S_MG))); e('s_lshl_b32 %s, %s, 1' % (sr(S_T0), sr(S_W))); e('s_add_u32 %s, %s, %s' % (sr(S_MT), sr(S_MT), sr(S_T0)))
    e('s_mul_i32 %s, %s, %d' % (sr(S_OO), sr(S_MT), 18*1024))
    T = V_T
    e('v_bfe_u32 %s, v0, 1, 3' % vr(T)); e('v_mul_u32_u24 %s, 1152, %s' % (vr(T), vr(T)))
    e('v_lshrrev_b32 %s, 4, v0' % vr(T+1)); e('v_lshl_add_u32 %s, %s, 5, %s' % (vr(T), vr(T+1), vr(T)))
    e('v_and_b32 %s, 1, v0' % vr(T+2)); e('v_lshl_add_u32 %s, %s, 4, %s' % (vr(V_OG), vr(T+2), vr(T)))
    e('v_add_u32 %s, %d, %s' % (vr(V_OG+1), 8*1152 - 1024, vr(V_OG))); e('v_add_u32 %s, %d, %s' % (vr(V_OG+2), 2*(8*1152 - 1024), vr(V_OG)))
    e('s_mul_i32 %s, %s, %d' % (sr(S_WOFF), sr(S_W), 64*1152)); e('s_lshl_b32 %s, %s, 7' % (sr(S_T0), sr(S_NG))); e('s_add_u32 %s, %s, %s' % (sr(S_WOFF), sr(S_WOFF), sr(S_T0)))
    e('s_lshl_b32 s30, %s, 13' % sr(S_W))
    if LB: e('s_add_u32 s30, s30, %d' % LB)
    e('s_waitcnt lgkmcnt(0)')
    for srd, lo, hi, size in ((S_WS, 4, 5, WS_END), (S_WO, 6, 7, D_*D_*2), (S_X, 28, 29, S_*D_*2)):
        e('s_mov_b32 %s, s%d' % (sr(srd), lo)); e('s_mov_b32 %s, s%d' % (sr(srd+1), hi))
        e('s_mov_b32 %s, 0x%x' % (sr(srd+2), size)); e('s_mov_b32 %s, 0x%x' % (sr(srd+3), SRD3))
    def bfrag(ks, mm): return V_B + 8*ks + 4*mm
    stamp('setup')
    SC = 'sc1' if wait1 else ''
    def wo_items(j):
        it = []
        for g, n in ((0, 3), (3, 3), (6, 2)):
            it.append(('S', 's_add_u32 %s, %s, %d' % (sr(S_T0), sr(S_WOFF), (192*j + 8*g)*1152), None))
            it.append(('S', 's_add_u32 m0, s30, %d' % ((24*j + g)*1024), None))
            for q in range(n):
                it.append(('D', 'buffer_load_dwordx4 %s, %s, %s offen offset:%d lds' % (vr(V_OG+q), sr(S_WO,4), sr(S_T0), 1024*q), 'ph%d' % j))
        return it
    def o_items(j):
        it = []
        for ks in range(6*j, 6*j+6):
            for mm in range(2):
                it.append(('S', 's_add_u32 %s, %s, %d' % (sr(S_T1), sr(S_OO), (18*mm + ks)*1024), None))
                it.append(('D', 'buffer_load_dwordx4 %s, %s, %s, %s offen %s' % (vr(bfrag(ks, mm), 4), vr(V_L16), sr(S_WS,4), sr(S_T1), SC), 'ph%d' % j))
        return it
    def phase_items(j): return (wo_items(j) if not wait1 else []) + o_items(j)
    if wait1:
        for j in range(3):
            for kind, text, tag in wo_items(j):
                e(text, tag=tag)
                if ' m0,' in text: e('s_nop 0')
        e('s_cmp_lg_u32 %s, 0' % sr(S_W)); e('s_cbranch_scc1 L_%s_go1' % name)
        e('s_mul_i32 s40, %s, 3' % sr(S_MG)); e('s_lshr_b32 s40, s40, 1'); e('s_add_u32 s41, s40, 1'); e('s_min_u32 s41, s41, 31')
        e('s_lshl_b32 s40, s40, 8'); e('s_add_u32 s40, s40, 0x%x' % WS_CNT1); e('s_lshl_b32 s41, s41, 8'); e('s_add_u32 s41, s41, 0x%x' % WS_CNT1)
        X0, X1, X2 = V_U, V_U+1, V_U+2
        e('v_lshlrev_b32 %s, 8, v0' % vr(X0)); e('v_add_u32 %s, 0x%x, %s' % (vr(X0), WS_CNTW, vr(X0))); e('v_mov_b32 %s, 32' % vr(X1))
        e('v_cmp_le_u32 vcc, 8, v0'); e('v_mov_b32 %s, s40' % vr(X2)); e('v_mov_b32 %s, 8' % vr(V_U+3))
        e('v_cndmask_b32 %s, %s, %s, vcc' % (vr(X0), vr(X0), vr(X2))); e('v_cndmask_b32 %s, %s, %s, vcc' % (vr(X1), vr(X1), vr(V_U+3)))
        e('v_cmp_le_u32 vcc, 9, v0'); e('v_mov_b32 %s, s41' % vr(X2)); e('s_nop 0')
        e('v_cndmask_b32 %s, %s, %s, vcc' % (vr(X0), vr(X0), vr(X2)))
        e('s_mov_b32 s42, 0x4000')
        P.raw('L_%s_wait1:' % name)
        P.raw('buffer_load_dword %s, %s, %s, 0 offen sc1' % (vr(X2), vr(X0), sr(S_WS,4)))
        P.raw('s_waitcnt vmcnt(0)')
        P.raw('v_cmp_lt_u32 s[44:45], %s, %s' % (vr(X2), vr(X1))); P.raw('s_sub_u32 s42, s42, 1'); P.raw('s_cmp_eq_u32 s42, 0'); P.raw('s_cbranch_scc1 L_%s_go1' % name)
        P.raw('s_nop 3'); P.raw('s_cmp_eq_u64 s[44:45], 0'); P.raw('s_cbranch_scc1 L_%s_go1' % name)
        P.raw('s_sleep 6'); P.raw('s_branch L_%s_wait1' % name)
        P.raw('L_%s_go1:' % name)
        e('s_barrier')
    WB_LDS = LB + 73728
    e('v_and_b32 %s, 1, v0' % vr(V_WBO)); e('v_mul_u32_u24 %s, %d, %s' % (vr(V_WBO), 18*64, vr(V_WBO)))
    e('v_lshrrev_b32 %s, 4, v0' % vr(V_T)); e('v_lshl_add_u32 %s, %s, 4, %s' % (vr(V_WBO), vr(V_T), vr(V_WBO))); e('v_add_u32 %s, %d, %s' % (vr(V_WBO), WB_LDS, vr(V_WBO)))
    e('s_lshl_b32 s37, %s, 10' % sr(S_W)); e('s_add_u32 s38, s37, %d' % WB_LDS); e('s_add_u32 s37, s37, 0x%x' % WS_WB)
    def wb_items(j):
        if j: return []
        return [('S', 's_mov_b32 m0, s38', None), ('D', 'buffer_load_dwordx4 %s, %s, s37 offen %s lds' % (vr(V_L16), sr(S_WS,4), SC), 'ph0')]
    for j in range(2):
        for kind, text, tag in phase_items(j) + wb_items(j):
            e(text, tag=tag)
            if ' m0,' in text: e('s_nop 0')
    if not embed:
        e('s_cmp_ge_u32 s2, 8'); e('s_cbranch_scc1 L_%s_noflag' % name)
        e('v_cmp_gt_u32 vcc, 128, %s' % vr(V_T+7)); e('s_lshl_b32 %s, s2, 9' % sr(S_T0)); e('s_add_u32 %s, %s, 0x%x' % (sr(S_T0), sr(S_T0), WS_FLAG))
        e('v_lshlrev_b32 %s, 2, %s' % (vr(V_T+6), vr(V_T+7))); e('v_mov_b32 %s, 0' % vr(V_T+5))
        e('s_and_saveexec_b64 s[34:35], vcc'); e('s_cbranch_execz L_%s_noflag2' % name)
        P.raw('buffer_store_dword %s, %s, %s, %s offen' % (vr(V_T+5), vr(V_T+6), sr(S_WS,4), sr(S_T0)))
        P.raw('L_%s_noflag2:' % name)
        e('s_mov_b64 exec, s[34:35]')
        P.raw('L_%s_noflag:' % name)
    stamp('issued')
    e('v_lshrrev_b32 %s, 4, v0' % vr(T+1))
    e('v_bfe_u32 %s, v0, 2, 2' % vr(T)); e('v_lshlrev_b32 %s, 5, %s' % (vr(T), vr(T)))
    e('v_and_b32 %s, 3, v0' % vr(T+2)); e('v_lshl_add_u32 %s, %s, 3, %s' % (vr(T), vr(T+2), vr(T)))
    e('v_and_b32 %s, 1, %s' % (vr(T+2), vr(T+1))); e('v_lshl_add_u32 %s, %s, 7, %s' % (vr(T), vr(T+2), vr(T)))
    e('v_lshrrev_b32 %s, 1, %s' % (vr(T+2), vr(T+1))); e('v_lshl_add_u32 %s, %s, 10, %s' % (vr(V_RD), vr(T+2), vr(T)))
    if LB: e('v_add_u32 %s, %d, %s' % (vr(V_RD), LB, vr(V_RD)))
    e('v_add_u32 %s, 36864, %s' % (vr(V_RD2), vr(V_RD)))
    V_MXO = 251
    e('v_and_b32 %s, 15, v0' % vr(V_MXO)); e('v_lshlrev_b32 %s, 2, %s' % (vr(V_MXO), vr(V_MXO)))
    e('v_and_b32 %s, 15, v0' % vr(T)); e('v_mul_u32_u24 %s, 1152, %s' % (vr(T), vr(T))); e('v_lshl_add_u32 %s, %s, 3, %s' % (vr(V_XO), vr(T+1), vr(T)))
    e('s_mul_i32 s31, %s, %d' % (sr(S_MT), 16*1152)); e('s_lshl_b32 %s, %s, 7' % (sr(S_T0), sr(S_NG))); e('s_add_u32 s31, s31, %s' % sr(S_T0))
    e('s_mov_b32 s32, 0x3f80'); e('s_mov_b32 s33, 0x3f800000')
    if prefetch: prefetch(P, V_U, V_T)
    P.wait_vm_tag('ph0'); i = e('s_barrier'); i.meta = dict(needs='ph0')
    stamp('ph0')
    for ks in range(18):
        e('ds_read_b128 %s, %s offset:%d' % (ar(A_WB + 4*ks, 4), vr(V_WBO), 64*ks))
        if ks == 8: e('s_waitcnt lgkmcnt(0)')
    e('s_waitcnt lgkmcnt(0)')
    S = Stream()
    def acc(nt, mm): return vr(V_ACC + 8*nt + 4*mm, 4)
    for j in range(3):
        fr = []; mf = []
        for mm in range(2):
            for t in range(6):
                ks = 6*j + t
                mf.append(MF(vr(V_MU + 4*mm, 4), None, vr(bfrag(ks, mm), 4), '0' if ks == 0 else vr(V_MU + 4*mm, 4), None, A=ar(A_WB + 4*ks, 4)))
        for nt in range(4):
            for g in range(2):
                f0 = len(fr)
                for t in range(3):
                    ks = 6*j + 3*g + t; kl = ks % 9
                    fr.append(Frag(V_RD if ks < 9 else V_RD2, (4*kl)*1024 + nt*256, (4*kl+2)*1024 + nt*256))
                for mm in range(2):
                    for t in range(3):
                        ks = 6*j + 3*g + t
                        mf.append(MF(acc(nt, mm), f0+t, vr(bfrag(ks, mm), 4), '0' if ks == 0 else acc(nt, mm), [f0, f0+1, f0+2] if (mm == 0 and t == 0) else None))
        S.add(fr, mf)
    fx = Fixed()
    ch = []; g = 0
    for kind, text, tag in phase_items(2) + wb_items(2):
        ch.append((g, kind, text, tag)); g += 1 if kind == 'S' else 1
    ch.append((58, 'S', 's_lshl_b32 s38, %s, 6' % sr(S_MT), None)); ch.append((58, 'S', 's_add_u32 s38, s38, 0x%x' % WS_MX, None))
    for mm in range(2):
        ch.append((60, 'D', 'buffer_load_dword %s, %s, %s, s38 offen offset:%d %s' % (vr(V_MX+mm), vr(V_MXO), sr(S_WS,4), 64*mm, SC), 'x'))
    for mm in range(2):
        ch.append((60, 'S', 's_add_u32 s36, s31, %d' % (16*1152*mm), None))
        for nt in range(4):
            ch.append((60, 'D', 'buffer_load_dwordx2 %s, %s, %s, s36 offen offset:%d' % (vr(V_X + 8*mm + 2*nt, 2), vr(V_XO), sr(S_X,4), 32*nt), 'x'))
    fx.chain(ch)
    for j in (1, 2):
        fx.put(60*j - LAR - 2, 'L', '@waitvm', 'ph%d' % j); fx.put(60*j - LAR - 2, 'B', 's_barrier', 'ph%d' % j)
    emit_stream(P, S, [], fx, [], A_W, NF, LAR, first_reads=True)
    stamp('gemm')
    e('s_cmp_ge_u32 %s, 128' % sr(S_MT)); e('s_cbranch_scc1 L_%s_%s' % (name, 'join' if embed else 'end'))
    P.wait_vm_tag('x')
    e('s_nop 4')
    for mm in range(2):
        for nt in range(4):
            for r in range(4):
                a = V_ACC + 8*nt + 4*mm + r
                e('v_dot2_f32_bf16 %s, %s, s%d, %s' % (vr(a), vr(V_X + 8*mm + 2*nt + r//2), 32 + (r % 2), vr(a)))
    for mm in range(2):
        e('v_add_f32 %s, %s, %s' % (vr(V_MU+4*mm), vr(V_MU+4*mm), vr(V_MU+4*mm+1)))
    for mm in range(2):
        e('v_add_f32 %s, %s, %s' % (vr(V_MU+4*mm), vr(V_MU+4*mm), vr(V_MX+mm)))
    U = V_U
    H = V_U + 8
    def frag_store(mm, ws_off):
        e('s_add_u32 %s, %s, %d' % (sr(S_T0), sr(S_MT), mm)); e('s_mul_i32 %s, %s, 18' % (sr(S_T0), sr(S_T0)))
        e('s_lshl_b32 %s, %s, 1' % (sr(S_T1), sr(S_NG))); e('s_add_u32 %s, %s, %s' % (sr(S_T0), sr(S_T0), sr(S_T1)))
        e('s_lshl_b32 %s, %s, 10' % (sr(S_T0), sr(S_T0))); e('s_add_u32 %s, %s, 0x%x' % (sr(S_T0), sr(S_T0), ws_off))
        for p in range(2):
            hb = H + 8*((mm + (ws_off == WS_HC)) % 2) + 4*p
            for k in range(2):
                a = V_ACC + 8*(2*p+k) + 4*mm
                e('v_cvt_pk_bf16_f32 %s, %s, %s' % (vr(hb+2*k), vr(a), vr(a+1))); e('v_cvt_pk_bf16_f32 %s, %s, %s' % (vr(hb+2*k+1), vr(a+2), vr(a+3)))
            e('buffer_store_dwordx4 %s, %s, %s, %s offen offset:%d sc1' % (vr(hb,4), vr(V_L16), sr(S_WS,4), sr(S_T0), 1024*p))
    for mm in range(2):
        for nt in range(4):
            for r in range(4):
                a = vr(V_ACC + 8*nt + 4*mm + r)
                e('v_sub_f32 %s, %s, %s' % (vr(V_B + 16*mm + 4*nt + r), a, vr(V_MU+4*mm)))
    for mm in range(2):
        e('s_add_u32 %s, %s, %d' % (sr(S_T0), sr(S_MT), mm)); e('s_mul_i32 %s, %s, 18' % (sr(S_T0), sr(S_T0)))
        e('s_lshl_b32 %s, %s, 1' % (sr(S_T1), sr(S_NG))); e('s_add_u32 %s, %s, %s' % (sr(S_T0), sr(S_T0), sr(S_T1)))
        e('s_lshl_b32 %s, %s, 10' % (sr(S_T0), sr(S_T0))); e('s_add_u32 s39, %s, 0x%x' % (sr(S_T0), WS_HC))
        for p in range(2):
            hb = V_B + 32 + 8*mm + 4*p
            for k in range(2):
                a = V_B + 16*mm + 4*(2*p+k)
                e('v_cvt_pk_bf16_f32 %s, %s, %s' % (vr(hb+2*k), vr(a), vr(a+1))); e('v_cvt_pk_bf16_f32 %s, %s, %s' % (vr(hb+2*k+1), vr(a+2), vr(a+3)))
            e('buffer_store_dwordx4 %s, %s, %s, s39 offen offset:%d sc1' % (vr(hb,4), vr(V_L16), sr(S_WS,4), 1024*p))
    for mm in range(2):
        first = True
        for nt in range(4):
            for r in range(4):
                a = vr(V_B + 16*mm + 4*nt + r)
                if first: e('v_mul_f32 %s, %s, %s' % (vr(U+2*mm+1), a, a)); first = False
                else: e('v_fma_f32 %s, %s, %s, %s' % (vr(U+2*mm+1), a, a, vr(U+2*mm+1)))
    for swap in ('v_permlane32_swap_b32', 'v_permlane16_swap_b32'):
        for k in (1, 3): e('v_mov_b32 %s, %s' % (vr(U+4+k), vr(U+k)))
        e('s_nop 1')
        for k in (1, 3): e('%s %s, %s' % (swap, vr(U+k), vr(U+4+k)))
        e('s_nop 1')
        for k in (1, 3): e('v_add_f32 %s, %s, %s' % (vr(U+k), vr(U+k), vr(U+4+k)))
    for mm in range(2): e('v_mov_b32 %s, %s' % (vr(U+2*mm), vr(V_MU+4*mm)))
    e('v_and_b32 %s, 15, v0' % vr(T)); e('v_lshlrev_b32 %s, 3, %s' % (vr(T), vr(T)))
    e('s_lshl_b32 %s, %s, 11' % (sr(S_T0), sr(S_NG))); e('s_lshl_b32 %s, %s, 4' % (sr(S_T1), sr(S_MT))); e('s_add_u32 %s, %s, %s' % (sr(S_T0), sr(S_T0), sr(S_T1)))
    e('s_lshl_b32 %s, %s, 3' % (sr(S_T0), sr(S_T0))); e('s_add_u32 %s, %s, 0x%x' % (sr(S_T0), sr(S_T0), WS_ST))
    e('s_mov_b64 exec, 0xffff')
    for mm in range(2):
        e('buffer_store_dwordx2 %s, %s, %s, %s offen offset:%d %s' % (vr(U+2*mm, 2), vr(T), sr(S_WS,4), sr(S_T0), 128*mm, 'sc1' if embed else ''))
    if embed:
        P.raw('L_%s_join:' % name)
        e('s_mov_b64 exec, -1')
        P.raw('s_waitcnt vmcnt(0)'); P.vmq = []
        e('s_barrier')
        e('s_cmp_lg_u32 %s, 0' % sr(S_W)); e('s_cbranch_scc1 %s' % END)
        e('s_lshl_b32 %s, %s, 8' % (sr(S_T0), sr(S_MG))); e('s_add_u32 %s, %s, 0x%x' % (sr(S_T0), sr(S_T0), WS_CNT)); e('v_mov_b32 %s, 1' % vr(V_T))
        e('s_mov_b64 exec, 1')
        P.raw('buffer_atomic_add %s, off, %s, %s' % (vr(V_T), sr(S_WS,4), sr(S_T0)))
        e('s_mov_b64 exec, -1')
        e('s_branch %s' % END)
        w3 = len(P.ins)
        P.raw('L_%s_w3:' % name)
        for _ in range(5 if wait1 else 4): e('s_barrier')
        P.segs = dict(start=start, skip=skip, w3=w3, w3br=w3br, end=len(P.ins))
        return P, None
    stamp('epi'); stamp.finish()
    P.raw('L_%s_end:' % name)
    e('s_endpgm')
    P.path = P.ins[:skip[0]] + P.ins[skip[1]:]
    return P, dict(stamps=stamp.names, vgpr=256+120, accum=256, sgpr=102 if dbg else (72 if pf else 40), grid=NWG, block=192, lds=73728 + 3072)

if __name__ == '__main__':
    P, o = build(); check(P.ins, 'k2'); print(verify_barriers(P.ins))
```

```python
from core import *
from common import *
from sched import *
import k1, k2

SLOT = 36864
NF, LAR = 12, 12
def set_lar(x):
    global LAR
    LAR = x
V_RD, V_RD2 = 3, 4
V_PG, V_PH, V_PDE, V_PDO = 5, 6, 7, 8
V_OG, V_OH, V_OD = 9, 12, 15
V_C0, V_C1, V_K = 24, 26, 28
V_L16, V_FL = 30, 31
V_PO = 1
V_T = 32
V_H, V_HH = 40, 56
V_G, V_U = 64, 96
V_X = 128
A_OUT, A_X, A_W, A_HP = 0, 144, 160, 208
S_WG, S_WU, S_WD, S_WS = 8, 12, 16, 20
S_W = 24
S_GCOL, S_HCOL, S_DROW = 25, 26, 27
S_E = 28
S_HXO, S_HXP, S_P = 33, 34, 35
S_WR, S_WRAP, S_WOFF, S_RD = 36, 37, 38, 39
S_CNT, S_T0, S_T1 = 40, 41, 42
S_FLO, S_FLP, S_FVAL = 43, 44, 45
S_LO, S_HI = 46, 47
S_XO = 48
S_A, S_B, S_C, S_D = 50, 51, 52, 53
S_JP, S_S, S_I, S_FB, S_HB = 58, 59, 60, 61, 62
OPT = dict(no_dma=False, no_bar=False, no_valu=False, cap=3)

def xi_reg(ks, mm):
    xi = 2*ks + mm
    return ('v', V_X + 4*xi) if xi < 32 else ('a', A_X + 4*(xi-32))
def xfrag(ks, mm):
    k, b = xi_reg(ks, mm); return vr(b, 4) if k == 'v' else ar(b, 4)
def hpfrag(th, mm):
    x = 2*th + mm
    return ar(A_HP + 4*x, 4) if x < 12 else vr(V_X + 4*(x-12), 4)
def acc(base, ft, mm): return vr(base + 8*ft + 4*mm, 4)
def out(nt, mm): return ar(A_OUT + 8*nt + 4*mm, 4)

def st_GU(base, kh, first, fts=(0,1,2,3), rd=V_RD):
    fr = []; mf = []
    for ft in fts:
        for g in range(3):
            f0 = len(fr)
            for t in range(3):
                kl = 3*g + t
                fr.append(Frag(rd, (4*kl)*1024 + ft*256, (4*kl+2)*1024 + ft*256))
            for mm in range(2):
                for t in range(3):
                    kl = 3*g + t
                    C = '0' if (first and kl == 0) else acc(base, ft, mm)
                    mf.append(MF(acc(base, ft, mm), f0+t, xfrag(9*kh+kl, mm), C, [f0, f0+1, f0+2] if (mm == 0 and t == 0) else None))
    return fr, mf
def st_half(base):
    fr = []; mf = []
    for ft in range(2):
        for g in range(6):
            f0 = len(fr)
            for t in range(3):
                ks = 3*g + t
                fr.append(Frag(V_RD, (2*ks)*1024 + ft*512, (2*ks+1)*1024 + ft*512))
            for mm in range(2):
                for t in range(3):
                    ks = 3*g + t
                    C = '0' if ks == 0 else acc(base, ft, mm)
                    mf.append(MF(acc(base, ft, mm), f0+t, xfrag(ks, mm), C, [f0, f0+1, f0+2] if (mm == 0 and t == 0) else None))
    return fr, mf
def st_D(bf):
    fr = []; mf = []
    for nt in range(18):
        f0 = len(fr); rd = V_RD if nt % 2 == 0 else V_RD2
        for kq in range(2): fr.append(Frag(rd, (2*kq)*9216 + nt*128, (2*kq+1)*9216 + nt*128))
        for mm in range(2):
            for kq in range(2):
                w = [f0, f0+1, f0+2, f0+3] if (nt % 2 == 0 and mm == 0 and kq == 0) else None
                mf.append(MF(out(nt, mm), f0+kq, bf[kq][mm], out(nt, mm), w))
    return fr, mf
def st_final(bf, rdA, rdB):
    fr = []; mf = []
    for nt in range(18):
        f0 = len(fr)
        for k in range(4):
            rd = (rdA if k < 2 else rdB)[nt % 2]; kq = k % 2
            fr.append(Frag(rd, (2*kq)*9216 + nt*128, (2*kq+1)*9216 + nt*128))
        for mm in range(2):
            for k in range(4):
                w = [f0, f0+1, f0+2, f0+3] if (mm == 0 and k == 0) else None
                mf.append(MF(out(nt, mm), f0+k, bf[k][mm], out(nt, mm), w))
    return fr, mf

V_OF, V_PF = 160, 169
def st_F(bf, nh):
    fr = []; mf = []
    for ntl in range(9):
        f0 = len(fr); nt = 9*nh + ntl
        for k in range(4): fr.append(Frag(V_RD, k*9216 + ntl*128, k*9216 + 4608 + ntl*128))
        for mm in range(2):
            for k in range(4):
                w = [f0, f0+1, f0+2, f0+3] if (mm == 0 and k == 0) else None
                mf.append(MF(out(nt, mm), f0+k, bf[k][mm], out(nt, mm), w))
    return fr, mf
def dma_F(srow, tag):
    it = []
    for q in range(9):
        it.append(('S', 's_add_u32 m0, %s, %d' % (sr(S_WR), 1024*q) if q else 's_mov_b32 m0, %s' % sr(S_WR), None))
        it.append(('D', 'buffer_load_dwordx4 %s, %s, %s offen lds' % (vr(V_OF+q), sr(S_WD,4), srow), tag))
    return it + [('S', t, None) for t in rot_wr()]
def f_setup_ops():
    a = []; t0, t1, t2, t3 = 170, 171, 172, 173
    a.append('v_bfe_u32 %s, v0, 1, 2' % vr(t0)); a.append('v_mul_u32_u24 %s, 1152, %s' % (vr(t0), vr(t0)))
    a.append('v_and_b32 %s, 1, v0' % vr(t1)); a.append('v_lshl_add_u32 %s, %s, 4, %s' % (vr(t0), vr(t1), vr(t0))); a.append('v_lshrrev_b32 %s, 3, v0' % vr(t1))
    for p in range(9):
        d = vr(V_OF+p)
        a.append('v_add_u32 %s, %d, %s' % (d, 8*p, vr(t1)))
        a.append('v_mul_u32_u24 %s, 57, %s' % (vr(t2), d)); a.append('v_lshrrev_b32 %s, 9, %s' % (vr(t2), vr(t2)))
        a.append('v_mul_u32_u24 %s, 9, %s' % (vr(t3), vr(t2))); a.append('v_sub_u32 %s, %s, %s' % (d, d, vr(t3)))
        a.append('v_mul_u32_u24 %s, 4608, %s' % (vr(t2), vr(t2))); a.append('v_lshl_add_u32 %s, %s, 5, %s' % (d, d, vr(t2)))
        a.append('v_add_u32 %s, %s, %s' % (d, d, vr(t0)))
    a.append('v_lshrrev_b32 %s, 4, v0' % vr(t1)); a.append('v_mul_u32_u24 %s, 1152, %s' % (vr(t1), vr(t1)))
    a.append('v_bfe_u32 %s, v0, 2, 2' % vr(t2)); a.append('v_lshl_add_u32 %s, %s, 5, %s' % (vr(t1), vr(t2), vr(t1)))
    a.append('v_and_b32 %s, 3, v0' % vr(t2)); a.append('v_lshl_add_u32 %s, %s, 3, %s' % (vr(V_PF), vr(t2), vr(t1)))
    return a
assert all((b*57) >> 9 == b//9 for b in range(72))

def gelu_ops(ft, vals, tb):
    ops = []
    for g0 in range(0, len(vals), 4):
        grp = vals[g0:g0+4]
        def G(v): return vr(V_G + 8*ft + 4*v[0] + v[1])
        steps = [lambda v, t: 'v_mul_f32 %s, %s, %s' % (t, G(v), G(v)),
                 lambda v, t: 'v_fma_f32 %s, %s, %s, %s' % (t, t, vr(V_C1+v[0]), vr(V_C0+v[0])),
                 lambda v, t: 'v_mul_f32 %s, %s, %s' % (t, G(v), t),
                 lambda v, t: 'v_exp_f32 %s, %s' % (t, t),
                 lambda v, t: 'v_fma_f32 %s, %s, %s, %s' % (t, t, vr(V_K+v[0]), vr(V_K+v[0])),
                 lambda v, t: 'v_rcp_f32 %s, %s' % (t, t),
                 lambda v, t: 'v_mul_f32 %s, %s, %s' % (G(v), G(v), t)]
        for st in steps:
            for n, v in enumerate(grp): ops.append(Op(st(v, vr(tb+n))))
    return ops
ALLV = [(mm, r) for mm in range(2) for r in range(4)]
def gelu_q(ft, name, tb): return Queue(gelu_ops(ft, ALLV, tb), name)
def prod_q(ft, H, name, store=None):
    ops = []
    for mm in range(2):
        for r in range(4):
            g = vr(V_G + 8*ft + 4*mm + r)
            ops.append(Op('v_mul_f32 %s, %s, %s' % (g, g, vr(V_U + 8*ft + 4*mm + r))))
    for mm in range(2):
        for d in range(2):
            g = V_G + 8*ft + 4*mm + 2*d
            ops.append(Op('v_cvt_pk_bf16_f32 %s, %s, %s' % (vr(H + 4*mm + 2*(ft % 2) + d), vr(g), vr(g+1))))
    if store:
        soff, imm0, tag = store
        for mm in range(2):
            ops.append(Op('buffer_store_dwordx4 %s, %s, %s, %s offen offset:%d %s' % (vr(H + 4*mm, 4), vr(V_L16), sr(S_WS,4), soff, imm0 + 1024*mm, OPT.get('hst_flags', 'sc1')), tag=tag))
    return Queue(ops, name, prio=True)

S_CW, S_CR = 96, 97
S_CPF = 99
S_GCOL2, S_XO2 = 100, 101
def rot_wr(): return ['s_add_u32 %s, %s, 1' % (sr(S_CW), sr(S_CW)), 's_and_b32 %s, %s, 3' % (sr(S_CW), sr(S_CW)),
                      's_mul_i32 %s, %s, %d' % (sr(S_WR), sr(S_CW), SLOT), 's_add_u32 %s, %s, %s' % (sr(S_WR), sr(S_WR), sr(S_WOFF))]
def rot_rd(): return ['s_add_u32 %s, %s, 1' % (sr(S_CR), sr(S_CR)), 's_and_b32 %s, %s, 3' % (sr(S_CR), sr(S_CR)),
                      's_mul_i32 %s, %s, %d' % (sr(S_RD), sr(S_CR), SLOT)]
def dma_G(srd, scol, kh, tag, step_rows=8):
    it = []
    vo = V_OG if step_rows == 8 else V_OH
    for g in range(3):
        const = 3*g*step_rows*9216
        if step_rows == 8 and kh == 1: scol = sr(S_GCOL2)
        it.append(('S', 's_add_u32 %s, %s, 0x%x' % (sr(S_T0), scol, const) if const else 's_mov_b32 %s, %s' % (sr(S_T0), scol), None))
        it.append(('S', 's_add_u32 m0, %s, %d' % (sr(S_WR), 3072*g) if g else 's_mov_b32 m0, %s' % sr(S_WR), None))
        for q in range(3):
            it.append(('D', 'buffer_load_dwordx4 %s, %s, %s offen offset:%d %s lds' % (vr(vo+q), sr(srd,4), sr(S_T0), 1024*q, OPT.get('dma_flags', '')), tag))
    return it + [('S', t, None) for t in rot_wr()]
def dma_D(srow, tag):
    it = []
    for q in range(9):
        it.append(('S', 's_add_u32 m0, %s, %d' % (sr(S_WR), 1024*q) if q else 's_mov_b32 m0, %s' % sr(S_WR), None))
        it.append(('D', 'buffer_load_dwordx4 %s, %s, %s offen %s lds' % (vr(V_OD+q), sr(S_WD,4), srow, OPT.get('dma_flags', '')), tag))
    return it + [('S', t, None) for t in rot_wr()]
def put_dma(chain, g0, items, step=None):
    step = step or OPT.get('dma_step', 7)
    k = 0; pend = []
    for kind, text, tag in items:
        if kind == 'S': pend.append(text)
        else:
            due = g0 + step*k; k += 1
            for n, t in enumerate(pend): chain.append((max(0, due - 2*len(pend) + 2*n - 1), 'S', t, None))
            pend = []
            chain.append((due, 'D', text, tag))
    for n, t in enumerate(pend): chain.append((g0 + step*(k-1) + 1, 'S', t, None))
def put_bar(fx, end, tags, pats, rot=True):
    gb = end - LAR - 2
    if rot: fx.chain([(gb - 12, 'S', t, None) for t in rot_rd()])
    tag = tags if not isinstance(tags, (list, tuple)) else tags[-1]
    fx.put(gb, 'L', '@waitvm', tag)
    fx.put(gb, 'B', 's_barrier', tags)
    for rd, pat in pats: fx.put(gb+1, 'R', 'v_add_u32 %s, %s, %s' % (vr(rd), sr(S_RD), vr(pat)))
PAT_G = [(V_RD, V_PG)]; PAT_H = [(V_RD, V_PH)]; PAT_D = [(V_RD, V_PDE), (V_RD2, V_PDO)]

def build(name='k3_kernel', dbg=False):
    P = Prog(); e = P.e
    stamps = []
    def stamp(label):
        if not dbg: return
        k = len(stamps); stamps.append(label); assert k < 13
        P.raw('s_memtime s[92:93]'); P.raw('s_memrealtime s[90:91]'); P.raw('s_waitcnt lgkmcnt(0)')
        P.raw('s_mov_b32 s%d, s92' % (64+k)); P.raw('s_mov_b32 s%d, s90' % (77+k))
    info = {}
    FUSE = OPT.get('fuse2', False)
    e('s_cmp_ge_u32 s2, 256'); e('s_cbranch_scc1 L_%s_end' % name)
    stamp('start')
    if FUSE:
        FUSE1 = OPT.get('fuse1', False)
        if FUSE1:
            k1.build(name + '_p0', pf=tuple(OPT.get('k1pf', ())), P=P, embed=True, entry=name)
            k1paths = P.k1paths
            P.vmq = []; P.lgq = []
        k2s = len(P.ins)
        k2.build(name + '_p1', pf='help', P=P, embed='L_%s_mlp' % name, wait1=FUSE1)
        segs = P.segs
        P.raw('L_%s_mlp:' % name)
        P.vmq = []; P.lgq = []
        e('s_mov_b32 %s, s20' % sr(S_W))
        stamp('k2')
    if dbg: e('s_load_dwordx2 s[94:95], s[0:1], %d' % KA_DBG)
    e('s_load_dwordx2 s[56:57], s[0:1], %d' % KA_WS)
    e('s_load_dwordx4 s[4:7], s[0:1], %d' % KA_WG)
    e('s_load_dwordx2 s[54:55], s[0:1], %d' % KA_WD)
    if not FUSE:
        e('v_lshrrev_b32 v1, 6, v0'); e('v_and_b32 v0, 63, v0')
        e('v_readfirstlane_b32 %s, v1' % sr(S_W))
    e('v_lshlrev_b32 %s, 4, v0' % vr(V_L16))
    e('v_lshrrev_b32 v2, 4, v0'); e('v_and_b32 v1, 15, v0'); e('v_lshl_add_u32 v1, v2, 11, v1'); e('v_lshlrev_b32 v1, 3, v1')
    if OPT.get('map', 0) == 0:
        e('s_and_b32 %s, s2, 7' % sr(S_JP))
        e('s_lshr_b32 %s, s2, 3' % sr(S_I)); e('s_and_b32 %s, %s, 1' % (sr(S_S), sr(S_I))); e('s_lshr_b32 %s, %s, 1' % (sr(S_I), sr(S_I)))
    else:
        e('s_bfe_u32 %s, s2, 0x20001' % sr(S_JP)); e('s_lshl_b32 %s, %s, 1' % (sr(S_JP), sr(S_JP)))
        e('s_bfe_u32 %s, s2, 0x10004' % sr(S_T0)); e('s_add_u32 %s, %s, %s' % (sr(S_JP), sr(S_JP), sr(S_T0)))
        e('s_bfe_u32 %s, s2, 0x10003' % sr(S_S))
        e('s_and_b32 %s, s2, 1' % sr(S_I)); e('s_lshl_b32 %s, %s, 3' % (sr(S_I), sr(S_I)))
        e('s_lshr_b32 %s, s2, 5' % sr(S_T0)); e('s_add_u32 %s, %s, %s' % (sr(S_I), sr(S_I), sr(S_T0)))
    e('s_lshl_b32 %s, %s, 2' % (sr(S_T0), sr(S_I))); e('s_add_u32 %s, %s, %s' % (sr(S_T0), sr(S_T0), sr(S_W)))
    e('s_mul_i32 %s, %s, %d' % (sr(S_XO), sr(S_T0), 2*18*1024)); e('s_add_u32 %s, %s, 0x%x' % (sr(S_XO), sr(S_XO), WS_HC))
    e('s_lshl_b32 %s, %s, 8' % (sr(S_D), sr(S_T0)))
    e('s_mul_i32 %s, %s, %d' % (sr(S_T1), sr(S_S), 9216 if OPT.get('kswap', False) else 0)); e('s_sub_u32 %s, %s, %s' % (sr(S_XO2), sr(S_XO), sr(S_T1))); e('s_add_u32 %s, %s, %s' % (sr(S_XO), sr(S_XO), sr(S_T1)))
    e('s_waitcnt lgkmcnt(0)')
    def mksrd(srd, lo, hi, size):
        e('s_mov_b32 %s, s%d' % (sr(srd), lo)); e('s_mov_b32 %s, s%d' % (sr(srd+1), hi))
        e('s_mov_b32 %s, 0x%x' % (sr(srd+2), size)); e('s_mov_b32 %s, 0x%x' % (sr(srd+3), SRD3))
    mksrd(S_WS, 56, 57, WS_END); mksrd(S_WG, 4, 5, D_*F_*2); mksrd(S_WU, 6, 7, D_*F_*2)
    e('s_add_u32 s4, s56, 0x%x' % WS_ST); e('s_addc_u32 s5, s57, 0'); e('s_mov_b32 s6, %d' % (9*2048*8)); e('s_mov_b32 s7, 0x%x' % SRD3)
    e('v_mov_b32 %s, v1' % vr(V_HH))
    def xload(P, ks):
        for mm in range(2):
            P.e('s_add_u32 %s, %s, %d' % (sr(S_T1), sr(S_XO if ks < 9 else S_XO2), (18*mm+ks)*1024))
            P.e('buffer_load_dwordx4 %s, %s, %s, %s offen %s' % (xfrag(ks, mm), vr(V_L16), sr(S_WS,4), sr(S_T1), 'sc1' if FUSE else ''), tag='x%d' % ks)
    def stload(P):
        for t in range(3):
            P.e('s_add_u32 %s, %s, %d' % (sr(S_T1), sr(S_D), t*4*2048*8 + 4))
            for mm in range(2):
                P.e('buffer_load_dword %s, %s, s[4:7], %s offen offset:%d %s' % (vr(V_H + 2*t + mm), vr(V_HH), sr(S_T1), 128*mm, 'sc1' if FUSE else ''), tag='st')
    def dma_now(items):
        for kind, text, tag in items:
            e(text, tag=tag)
            if text.startswith('s_add_u32 m0') or text.startswith('s_mov_b32 m0'): e('s_nop 0')
    if OPT.get('pro_stamps'): stamp('karg')
    if not FUSE: xload(P, 0); xload(P, 1)
    mksrd(S_WD, 54, 55, D_*F_*2)
    e('v_bfe_u32 v1, v0, 1, 3'); e('v_mul_u32_u24 v1, 9216, v1')
    e('v_lshl_add_u32 v1, v2, 5, v1')
    e('v_and_b32 %s, 1, v0' % vr(V_T)); e('v_lshl_add_u32 %s, %s, 4, v1' % (vr(V_OG), vr(V_T)))
    e('v_add_u32 %s, %d, %s' % (vr(V_OG+1), 8*9216 - 1024, vr(V_OG))); e('v_add_u32 %s, %d, %s' % (vr(V_OG+2), 2*(8*9216 - 1024), vr(V_OG)))
    e('s_mul_i32 %s, %s, 576' % (sr(S_T0), sr(S_JP)))
    e('s_mul_i32 %s, %s, 320' % (sr(S_T1), sr(S_S))); e('s_add_u32 %s, %s, %s' % (sr(S_FB), sr(S_T0), sr(S_T1)))
    e('s_lshl_b32 %s, %s, 5' % (sr(S_T1), sr(S_S))); e('s_add_u32 %s, %s, %s' % (sr(S_HB), sr(S_T0), sr(S_T1))); e('s_add_u32 %s, %s, 256' % (sr(S_HB), sr(S_HB)))
    e('s_mul_i32 %s, %s, %d' % (sr(S_T0), sr(S_W), 9*8*9216)); e('s_lshl_b32 %s, %s, 1' % (sr(S_T1), sr(S_FB)))
    e('s_add_u32 %s, %s, %s' % (sr(S_GCOL), sr(S_T0), sr(S_T1)))
    e('s_mul_i32 %s, %s, %d' % (sr(S_T1), sr(S_S), 288*9216 if OPT.get('kswap', False) else 0))
    e('s_add_u32 %s, %s, %d' % (sr(S_GCOL2), sr(S_GCOL), 288*9216)); e('s_sub_u32 %s, %s, %s' % (sr(S_GCOL2), sr(S_GCOL2), sr(S_T1))); e('s_add_u32 %s, %s, %s' % (sr(S_GCOL), sr(S_GCOL), sr(S_T1)))
    e('s_mul_i32 %s, %s, 9216' % (sr(S_WOFF), sr(S_W))); e('s_mov_b32 %s, 0' % sr(S_CW)); e('s_mov_b32 %s, 1' % sr(S_CR))
    e('s_mov_b32 %s, %s' % (sr(S_WR), sr(S_WOFF)))
    T = V_T
    pat = []; a = pat.append
    a('v_bfe_u32 %s, v0, 2, 2' % vr(T)); a('v_lshlrev_b32 %s, 5, %s' % (vr(T), vr(T)))
    a('v_and_b32 %s, 3, v0' % vr(T+1)); a('v_lshl_add_u32 %s, %s, 3, %s' % (vr(T), vr(T+1), vr(T)))
    a('v_lshl_add_u32 %s, v2, 7, %s' % (vr(V_PH), vr(T)))
    a('v_and_b32 %s, 1, v2' % vr(T+1)); a('v_lshlrev_b32 %s, 7, %s' % (vr(T+1), vr(T+1)))
    a('v_lshrrev_b32 %s, 1, v2' % vr(T+2)); a('v_lshl_add_u32 %s, %s, 10, %s' % (vr(T+2), vr(T+2), vr(T)))
    a('v_add_u32 %s, %s, %s' % (vr(V_PG), vr(T+2), vr(T+1)))
    a('v_mul_u32_u24 %s, 2304, v2' % vr(T+2)); a('v_add_u32 %s, %s, %s' % (vr(T+2), vr(T+2), vr(T)))
    a('v_add_u32 %s, %s, %s' % (vr(V_PDE), vr(T+2), vr(T+1))); a('v_sub_u32 %s, %s, %s' % (vr(V_PDO), vr(T+2), vr(T+1)))
    rest = []
    a = rest.append
    a('v_and_b32 v1, 1, v0'); a('v_bfe_u32 v2, v0, 1, 4'); a('v_mul_u32_u24 v2, 9216, v2'); a('v_lshl_add_u32 v2, v1, 4, v2')
    a('v_lshrrev_b32 v1, 5, v0'); a('v_lshl_add_u32 %s, v1, 5, v2' % vr(V_OH))
    a('v_add_u32 %s, %d, %s' % (vr(V_OH+1), 16*9216 - 1024, vr(V_OH))); a('v_add_u32 %s, %d, %s' % (vr(V_OH+2), 2*(16*9216 - 1024), vr(V_OH)))
    T2 = V_T + 4
    a('v_bfe_u32 v1, v0, 1, 2'); a('v_mul_u32_u24 v1, 1152, v1'); a('v_and_b32 v2, 1, v0'); a('v_lshl_add_u32 v1, v2, 4, v1'); a('v_lshrrev_b32 v2, 3, v0')
    for p in range(9):
        d = vr(V_OD+p)
        a('v_add_u32 %s, %d, v2' % (d, 8*p))
        a('v_mul_u32_u24 %s, 57, %s' % (vr(T2), d)); a('v_lshrrev_b32 %s, 10, %s' % (vr(T2), vr(T2)))
        a('v_mul_u32_u24 %s, 18, %s' % (vr(T2+1), vr(T2))); a('v_sub_u32 %s, %s, %s' % (d, d, vr(T2+1)))
        a('v_and_b32 %s, 1, %s' % (vr(T2+1), vr(T2))); a('v_xor_b32 %s, %s, %s' % (d, d, vr(T2+1)))
        a('v_mul_u32_u24 %s, 4608, %s' % (vr(T2), vr(T2))); a('v_lshl_add_u32 %s, %s, 5, %s' % (d, d, vr(T2)))
        a('v_add_u32 %s, %s, v1' % (d, d))
    for r in range(144): a('v_accvgpr_write_b32 a%d, 0' % (A_OUT + r))
    s_ = []
    b = s_.append
    b('s_mul_i32 %s, %s, %d' % (sr(S_A), sr(S_W), 9*16*9216)); b('s_lshl_b32 %s, %s, 1' % (sr(S_B), sr(S_HB))); b('s_add_u32 %s, %s, %s' % (sr(S_HCOL), sr(S_A), sr(S_B)))
    if OPT.get('kswap', False):
        b('s_mul_i32 %s, %s, %d' % (sr(S_A), sr(S_S), 288*9216)); b('s_sub_u32 %s, 0, %s' % (sr(S_B), sr(S_A)))
        s_.append(['s_cmp_lt_u32 %s, 2' % sr(S_W), 's_cselect_b32 %s, %s, %s' % (sr(S_A), sr(S_A), sr(S_B))])
        b('s_add_u32 %s, %s, %s' % (sr(S_HCOL), sr(S_HCOL), sr(S_A)))
    b('s_mul_i32 s63, %s, 576' % sr(S_S))
    b('s_lshl_b32 %s, %s, 4' % (sr(S_C), sr(S_W)))
    b('s_add_u32 %s, %s, %s' % (sr(S_A), sr(S_FB), sr(S_C))); b('s_mul_i32 %s, %s, 1152' % (sr(S_A), sr(S_A))); b('s_add_u32 %s, %s, s63' % (sr(S_DROW), sr(S_A)))
    b('s_xor_b32 %s, %s, 1' % (sr(S_B), sr(S_S))); b('s_mul_i32 %s, %s, 576' % (sr(S_A), sr(S_JP)))
    b('s_mul_i32 s54, %s, 320' % sr(S_B)); b('s_add_u32 s54, s54, %s' % sr(S_A))
    b('s_lshl_b32 s55, %s, 5' % sr(S_B)); b('s_add_u32 s55, s55, %s' % sr(S_A)); b('s_add_u32 s55, s55, 256')
    b('s_and_b32 s56, %s, 1' % sr(S_W)); b('s_lshl_b32 s56, s56, 4')
    b('s_lshr_b32 s57, %s, 1' % sr(S_W))
    for ee, th0 in enumerate((0, 2, 4, 5, 7)):
        d = sr(S_E+ee)
        b('s_lshl_b32 %s, s57, 5' % d); b('s_add_u32 %s, %s, s54' % (d, d))
        b('s_add_u32 %s, %s, %d' % (d, d, 32*th0))
        if ee == 3: s_.append(['s_cmp_eq_u32 s57, 0', 's_cselect_b32 %s, %s, %s' % (d, sr(S_HB), d)])
        if ee == 4: s_.append(['s_cmp_eq_u32 s57, 1', 's_cselect_b32 %s, s55, %s' % (d, d)])
        b('s_add_u32 %s, %s, s56' % (d, d)); b('s_mul_i32 %s, %s, 1152' % (d, d)); b('s_add_u32 %s, %s, s63' % (d, d))
    if OPT.get('final', 3) == 3:
        d = sr(S_E+3)
        b('s_add_u32 %s, s54, 192' % d)
        s_.append(['s_cmp_eq_u32 %s, 2' % sr(S_W), 's_cselect_b32 %s, 32, 0' % sr(S_A)]); b('s_add_u32 %s, %s, %s' % (d, d, sr(S_A)))
        s_.append(['s_cmp_eq_u32 %s, 0' % sr(S_W), 's_cselect_b32 %s, %s, %s' % (d, sr(S_HB), d)])
        s_.append(['s_cmp_eq_u32 %s, 3' % sr(S_W), 's_cselect_b32 %s, s55, %s' % (d, d)])
        b('s_mul_i32 %s, %s, 1152' % (d, d)); b('s_add_u32 %s, %s, s63' % (d, d)); b('s_add_u32 %s, %s, 288' % (sr(S_E+4), d))
    b('s_lshl_b32 %s, s2, 2' % sr(S_A)); b('s_add_u32 %s, %s, %s' % (sr(S_A), sr(S_A), sr(S_W)))
    b('s_lshl_b32 %s, %s, 2' % (sr(S_FLO), sr(S_A))); b('s_add_u32 %s, %s, 0x%x' % (sr(S_FLO), sr(S_FLO), WS_FLAG))
    b('s_mul_i32 %s, %s, 18432' % (sr(S_HXO), sr(S_A))); b('s_add_u32 %s, %s, 0x%x' % (sr(S_HXO), sr(S_HXO), WS_HX))
    b('s_xor_b32 %s, s2, 8' % sr(S_A)); b('s_lshl_b32 %s, %s, 2' % (sr(S_A), sr(S_A))); b('s_add_u32 %s, %s, %s' % (sr(S_A), sr(S_A), sr(S_W)))
    b('s_lshl_b32 %s, %s, 2' % (sr(S_FLP), sr(S_A))); b('s_add_u32 %s, %s, 0x%x' % (sr(S_FLP), sr(S_FLP), WS_FLAG))
    b('s_mul_i32 %s, %s, 18432' % (sr(S_HXP), sr(S_A))); b('s_add_u32 %s, %s, 0x%x' % (sr(S_HXP), sr(S_HXP), WS_HX))
    b('s_lshl_b32 %s, %s, 1' % (sr(S_A), sr(S_I))); b('s_add_u32 %s, %s, %s' % (sr(S_A), sr(S_A), sr(S_S)))
    b('s_lshl_b32 %s, %s, 3' % (sr(S_A), sr(S_A))); b('s_add_u32 %s, %s, %s' % (sr(S_A), sr(S_A), sr(S_JP)))
    b('s_lshl_b32 %s, %s, 2' % (sr(S_A), sr(S_A))); b('s_add_u32 %s, %s, %s' % (sr(S_A), sr(S_A), sr(S_W)))
    b('s_mul_i32 %s, %s, 18432' % (sr(S_P), sr(S_A))); b('s_add_u32 %s, %s, 0x%x' % (sr(S_P), sr(S_P), WS_P))
    b('s_mov_b32 %s, 0x3f80' % sr(S_LO)); b('s_mov_b32 %s, 0x3f800000' % sr(S_HI))
    b('s_mov_b32 %s, 3' % sr(S_CNT)); b('s_mov_b32 %s, 1' % sr(S_FVAL))
    LATE = OPT.get('late_setup', True)
    work = (pat if LATE else pat + rest + s_)
    def do_work(n):
        for _ in range(n):
            if not work: return
            x = work.pop(0)
            for t in (x if isinstance(x, list) else [x]): e(t)
    XLA = OPT.get('xla', 6)
    first = dma_G(S_WG, sr(S_GCOL), 0, 'Ga') + ([('X', k, None) for k in range(2, XLA)] if not FUSE else [])
    if not LATE: first += dma_G(S_WG, sr(S_GCOL), 1, 'Gb') + [('T', 0, None)]
    nvm = sum(1 for k in first if k[0] in 'DXT'); per = (len(work) + nvm - 1)//nvm
    for kind, text, tag in first:
        if kind == 'X': xload(P, text); do_work(per)
        elif kind == 'T': stload(P); do_work(per)
        else:
            e(text, tag=tag)
            if ' m0,' in text: e('s_nop 0')
            if kind == 'D': do_work(per)
    do_work(9999)
    if FUSE:
        e('s_cmp_lg_u32 %s, 0' % sr(S_W)); e('s_cbranch_scc1 L_%s_go' % name)
        e('s_lshl_b32 %s, %s, 2' % (sr(S_A), sr(S_I))); e('s_mul_i32 %s, %s, 171' % (sr(S_A), sr(S_A))); e('s_lshr_b32 %s, %s, 9' % (sr(S_A), sr(S_A)))
        e('s_lshl_b32 %s, %s, 8' % (sr(S_A), sr(S_A))); e('s_add_u32 %s, %s, 0x%x' % (sr(S_A), sr(S_A), WS_CNT))
        e('s_mov_b32 %s, 0x4000' % sr(S_C))
        P.raw('L_%s_wait:' % name)
        P.raw('buffer_load_dword v2, off, %s, %s sc1' % (sr(S_WS,4), sr(S_A)))
        P.raw('buffer_load_dword v3, off, %s, %s offset:256 sc1' % (sr(S_WS,4), sr(S_A)))
        P.raw('s_waitcnt vmcnt(0)')
        P.raw('v_min_u32 v2, v2, v3'); P.raw('s_nop 0')
        P.raw('v_readfirstlane_b32 %s, v2' % sr(S_B)); P.raw('s_sub_u32 %s, %s, 1' % (sr(S_C), sr(S_C)))
        P.raw('s_cmp_eq_u32 %s, 0' % sr(S_C)); P.raw('s_cbranch_scc1 L_%s_go' % name)
        P.raw('s_cmp_ge_u32 %s, 9' % sr(S_B)); P.raw('s_cbranch_scc1 L_%s_go' % name)
        P.raw('s_sleep %d' % OPT.get('poll_sleep', 6)); P.raw('s_branch L_%s_wait' % name)
        P.raw('L_%s_go:' % name)
        e('s_barrier')
        for k in range(XLA): xload(P, k)
    if OPT.get('pro_stamps'): stamp('setup')
    def stats_block(P):
        e = P.e; Q = V_H; T = V_H + 8
        P.wait_vm_tag('st')
        for mm in range(2): e('v_add_f32 %s, %s, %s' % (vr(Q+mm), vr(Q+mm), vr(Q+2+mm)))
        for mm in range(2): e('v_add_f32 %s, %s, %s' % (vr(Q+mm), vr(Q+mm), vr(Q+4+mm)))
        for swap in ('v_permlane32_swap_b32', 'v_permlane16_swap_b32'):
            for k in range(2): e('v_mov_b32 %s, %s' % (vr(Q+2+k), vr(Q+k)))
            e('s_nop 1')
            for k in range(2): e('%s %s, %s' % (swap, vr(Q+k), vr(Q+2+k)))
            e('s_nop 1')
            for k in range(2): e('v_add_f32 %s, %s, %s' % (vr(Q+k), vr(Q+k), vr(Q+2+k)))
        e('s_mov_b32 s99, 0x%08x' % f2u(1.0/576))
        CC = -2.0*0.7978845608028654*1.4426950408889634
        for mm in range(2): e('v_mul_f32 %s, s99, %s' % (vr(V_K+mm), vr(Q+mm)))
        for mm in range(2): e('v_add_f32 %s, 0x%08x, %s' % (vr(V_K+mm), f2u(1e-5), vr(V_K+mm)))
        for mm in range(2): e('v_rsq_f32 %s, %s' % (vr(T+mm), vr(V_K+mm)))
        e('s_nop 0')
        for mm in range(2):
            e('v_mul_f32 %s, 0x%08x, %s' % (vr(V_C0+mm), f2u(CC), vr(T+mm)))
            e('v_mul_f32 %s, %s, %s' % (vr(T+2+mm), vr(T+mm), vr(T+mm)))
        for mm in range(2): e('v_mul_f32 %s, 0x%08x, %s' % (vr(T+2+mm), f2u(0.044715), vr(T+2+mm)))
        for mm in range(2): e('v_mul_f32 %s, %s, %s' % (vr(V_C1+mm), vr(V_C0+mm), vr(T+2+mm)))
    e('v_mov_b32 %s, %s' % (vr(V_RD), vr(V_PG))); e('v_add_u32 %s, %d, %s' % (vr(V_RD2), SLOT, vr(V_PG)))
    P.wait_vm(lambda x: x.tag in ('Ga', 'x0')); i = e('s_barrier'); i.meta = dict(needs='Ga')
    stamp('bar0')
    S = Stream()
    P4 = OPT.get('pass4', True)
    fr = []; mf = []
    if P4:
        def step(ks, fts):
            rd = V_RD if ks < 9 else V_RD2; kl = ks % 9
            f0 = len(fr)
            for ft in fts: fr.append(Frag(rd, (4*kl)*1024 + ft*256, (4*kl+2)*1024 + ft*256))
            for n, ft in enumerate(fts):
                for mm in range(2):
                    mf.append(MF(acc(V_G, ft, mm), f0+n, xfrag(ks, mm), '0' if ks == 0 else acc(V_G, ft, mm), [f0+n, f0+n+1] if (n % 2 == 0 and mm == 0) else None))
        for ks in range(15): step(ks, (0, 1, 2, 3))
        for ks in range(15, 18): step(ks, (0, 1))
        for ks in range(15, 18): step(ks, (2, 3))
        S.add(fr, mf)
    else:
        for ks in range(18):
            rd = V_RD if ks < 9 else V_RD2; kl = ks % 9
            f0 = len(fr)
            for ft in range(2): fr.append(Frag(rd, (4*kl)*1024 + ft*256, (4*kl+2)*1024 + ft*256))
            for ft in range(2):
                for mm in range(2):
                    mf.append(MF(acc(V_G, ft, mm), f0+ft, xfrag(ks, mm), '0' if ks == 0 else acc(V_G, ft, mm), [f0, f0+1] if (ft == 0 and mm == 0) else None))
        S.add(fr, mf)
        fr = []; mf = []
        for ft in (2, 3):
            for g in range(6):
                f0 = len(fr)
                for t in range(3):
                    ks = 3*g + t; kl = ks % 9
                    fr.append(Frag(V_RD if ks < 9 else V_RD2, (4*kl)*1024 + ft*256, (4*kl+2)*1024 + ft*256))
                for mm in range(2):
                    for t in range(3):
                        ks = 3*g + t
                        mf.append(MF(acc(V_G, ft, mm), f0+t, xfrag(ks, mm), '0' if ks == 0 else acc(V_G, ft, mm), [f0, f0+1, f0+2] if (mm == 0 and t == 0) else None))
        S.add(fr, mf)
    fx = Fixed()
    G = 8 if P4 else 4
    for ks in range(18):
        g0 = G*ks if (not P4 or ks < 15) else 120 + 4*(ks-15)
        g1 = g0 + (G if (not P4 or ks < 15) else 4) - 1
        if ks + XLA < 18: fx.put(g0, 'X', (lambda P, k=ks+XLA: xload(P, k)), cost=4)
        if ks + 1 < 18: fx.put(g1, 'X', (lambda P, k=ks+1: P.wait_vm_tag('x%d' % k)))
    fx.put(100 if P4 else 61, 'X', stats_block, cost=8)
    ch = []
    late_q = []
    if LATE:
        put_dma(ch, 1, dma_G(S_WG, sr(S_GCOL), 1, 'Gb'), step=2)
        fx.put(30, 'X', stload, cost=9)
        late_q = [Queue([Op(x) for x in rest], 'rest').window(0, 0, 110),
                  Queue([Op((lambda P, x=x: [P.e(t) for t in x]), cost=1) if isinstance(x, list) else Op(x) for x in s_], 'srest').window(0, 0, 110)]
    if P4:
        put_dma(ch, 62, dma_G(S_WU, sr(S_GCOL), 0, 'Ua'), step=3)
        put_dma(ch, 100, dma_G(S_WU, sr(S_GCOL), 1, 'Ub'), step=3)
        ch.append((136, 'S', 's_add_u32 %s, %s, 128' % (sr(S_GCOL), sr(S_GCOL)), None)); ch.append((137, 'S', 's_add_u32 %s, %s, 128' % (sr(S_GCOL2), sr(S_GCOL2)), None))
        gbw = 9*8 - LAR - 2
    else:
        put_dma(ch, 57, dma_G(S_WU, sr(S_GCOL), 0, 'Ua'), step=2)
        put_dma(ch, 78, dma_G(S_WU, sr(S_GCOL), 1, 'Ub'), step=5)
        ch.append((126, 'S', 's_add_u32 %s, %s, 128' % (sr(S_GCOL), sr(S_GCOL)), None)); ch.append((127, 'S', 's_add_u32 %s, %s, 128' % (sr(S_GCOL2), sr(S_GCOL2)), None))
        gbw = 22
    fx.chain(ch)
    if dbg and OPT.get('pro_stamps'):
        for g in ((39, 79, 119) if P4 else (23, 47, 71)): fx.put(g, 'X', (lambda P, g=g: stamp('p%d' % g)), cost=0)
    fx.put(gbw, 'L', '@waitvm', 'Gb'); fx.put(gbw, 'B', 's_barrier', 'Gb')
    if P4: qa = gelu_q(0, 'g0', V_T).window(134, 134, 140); qb = gelu_q(1, 'g1', V_T+4).window(135, 135, 141)
    else: qa = gelu_q(0, 'g0', V_T).window(75, 75, 108); qb = gelu_q(1, 'g1', V_T+4).window(92, 100, 142)
    if late_q: qa.after([late_q[0]]); qb.after([late_q[0]])
    put_bar(fx, 144, 'Ua', PAT_G)
    ua = st_GU(V_U, 0, True)
    info['peel'] = emit_stream(P, S, ua[0][:LAR//2], fx, late_q + [qa, qb], A_W, NF, LAR, 0, maxslots=9, opt=OPT, first_reads=True, drain_ok=True, drain_interleave=True)
    if OPT.get('code_pf'):
        P.raw('s_getpc_b64 s[4:5]'); P.raw('L_%s_pc:' % name)
        P.raw('s_add_u32 s4, s4, L_%s_tail - L_%s_pc' % (name, name)); P.raw('s_addc_u32 s5, s5, 0')
        P.raw('s_mov_b32 s6, L_text_end - L_%s_tail' % name); e('s_mov_b32 s7, 0x%x' % SRD3)
        e('s_lshl_b32 %s, %s, 13' % (sr(S_CPF), sr(S_W)))
    stamp('peel')
    P.raw('.p2align 6'); P.raw('L_%s_loop:' % name)
    body_start = len(P.ins)
    def flagstore(tag, val):
        def f(P):
            if not OPT.get('no_flagwait'): P.wait_vm_tag(tag)
            P.e('v_mov_b32 %s, %s' % (vr(V_FL), val))
            P.e('buffer_store_dword %s, off, %s, %s sc1' % (vr(V_FL), sr(S_WS,4), sr(S_FLO)), tag='fl')
        f.cost = 3
        return f
    def front(fx, ch, tail):
        S = Stream().add(*st_GU(V_U, 0, True)).add(*st_GU(V_U, 1, False))
        G0 = OPT.get('dma_g0', 2)
        if not tail:
            put_dma(ch, G0, dma_G(S_WG, sr(S_GCOL), 0, 'Ga')); put_dma(ch, 72+G0, dma_G(S_WG, sr(S_GCOL), 1, 'Gb'))
            put_bar(fx, 72, 'Ub', PAT_G); put_bar(fx, 144, 'Ga', PAT_G)
        else:
            put_dma(ch, G0, dma_G(S_WG, sr(S_HCOL), 0, 'Gh', 16)); put_dma(ch, 72+G0, dma_D(sr(S_DROW), 'D'))
            put_bar(fx, 72, 'Ub', PAT_G); put_bar(fx, 144, 'Gh', PAT_H)
        W = OPT.get('win', dict())
        def win(k, kind): return W.get(k + ('T' if tail else ''), W.get(k, kind))
        g2 = gelu_q(2, 'g2', V_T).window(0, *win('g2', (18, 85))); g3 = gelu_q(3, 'g3', V_T+4).window(0, *win('g3', (51, 148)))
        p0 = prod_q(0, V_H, 'p0').window(92, *win('p0', (130, 143)))
        p1 = prod_q(1, V_H, 'p1', (sr(S_HXO), 0, 'h0')).window(110, *win('p1', (135, 149))).after([p0])
        p2 = prod_q(2, V_H+8, 'p2').window(128, *win('p2', (165, 178))).after([g2, p1])
        p3 = prod_q(3, V_H+8, 'p3', (sr(S_HXO), 2048, 'h1')).window(146, *win('p3', (172, 188))).after([g3, p2])
        return S, [p0, p1, p2, p3, g2, g3]
    G0 = OPT.get('dma_g0', 2)
    Hf = [[vr(V_H + 8*kq + 4*mm, 4) for mm in range(2)] for kq in range(2)]
    fx = Fixed(); ch = []
    S, qs = front(fx, ch, False)
    S.add(*st_GU(V_G, 0, True)).add(*st_GU(V_G, 1, False)).add(*st_D(Hf))
    put_dma(ch, 144+G0, dma_D(sr(S_DROW), 'D')); put_dma(ch, 216+G0, dma_G(S_WU, sr(S_GCOL), 0, 'Ua')); put_dma(ch, 288+G0, dma_G(S_WU, sr(S_GCOL), 1, 'Ub'))
    fx.chain(ch)
    put_bar(fx, 216, 'Gb', PAT_G); put_bar(fx, 288, 'D', PAT_D); put_bar(fx, 360, 'Ua', PAT_G)
    p3 = qs[3]
    W = OPT.get('win', dict())
    n0 = gelu_q(0, 'g0n', V_T).window(237, *W.get('n0', (252, 318))).after([p3]); n1 = gelu_q(1, 'g1n', V_T+4).window(255, *W.get('n1', (295, 359))).after([p3])
    if OPT.get('code_pf'):
        def cpf(P):
            P.e('v_lshlrev_b32 v2, 7, v0')
            P.e('buffer_load_dword v2, v2, s[4:7], %s offen' % sr(S_CPF), tag='cpf')
        fx.put(OPT.get('cpf_gap', 132), 'X', cpf, cost=3)
    fx.put(277, 'X', flagstore('h1', sr(S_FVAL)), cost=3)
    fx.chain([(285, 'S', 's_add_u32 %s, %s, 1' % (sr(S_FVAL), sr(S_FVAL)), None), (286, 'S', 's_add_u32 %s, %s, 4096' % (sr(S_HXO), sr(S_HXO)), None),
              (287, 'S', 's_add_u32 %s, %s, %d' % (sr(S_DROW), sr(S_DROW), 64*1152), None)])
    info['body'] = emit_stream(P, S, ua[0][:LAR//2], fx, qs + [n0, n1], A_W, NF, LAR, 0, maxslots=OPT['cap'], opt=OPT)
    dl = {q.name: q.finish for q in qs + [n0, n1]}
    assert dl['p0'] <= 143 and dl['p1'] <= 161 and dl['p2'] <= 179 and dl['p3'] <= 197, dl
    info['fb'] = dl
    e('s_add_u32 %s, %s, 128' % (sr(S_GCOL), sr(S_GCOL))); e('s_add_u32 %s, %s, 128' % (sr(S_GCOL2), sr(S_GCOL2)))
    e('s_sub_u32 %s, %s, 1' % (sr(S_CNT), sr(S_CNT))); e('s_cmp_lg_u32 %s, 0' % sr(S_CNT))
    e('s_cbranch_scc1 L_%s_loop' % name)
    body_end = len(P.ins)
    P.raw('L_%s_tail:' % name)
    stamp('loop')
    fx = Fixed(); ch = []
    S, qs = front(fx, ch, True)
    S.add(*st_half(V_G)).add(*st_D(Hf)).add(*st_half(V_U))
    HHf = [vr(V_HH + 4*mm, 4) for mm in range(2)]
    hp = [[hpfrag(th, mm) for mm in range(2)] for th in range(9)]
    FIN = OPT.get('final', 3)
    F2 = FIN in (2, 3)
    RA = (V_RD, V_RD2); RB = (V_T, V_T+1)
    put_dma(ch, 144+G0, dma_G(S_WU, sr(S_HCOL), 0, 'Uh', 16))
    if FIN == 1:
        for pair in ([hp[0], hp[1]], [hp[2], hp[3]], [hp[4], hp[5]], [HHf, hp[6]], [hp[7], hp[8]]): S.add(*st_D(pair))
        for k in range(5): put_dma(ch, 216+72*k+G0, dma_D(sr(S_E+k), 'E%d' % k))
        fx.chain(ch)
        put_bar(fx, 216, 'D', PAT_D); put_bar(fx, 288, 'Uh', PAT_H)
        for k in range(5): put_bar(fx, 360+72*k, 'E%d' % k, PAT_D)
    elif FIN == 3:
        for pair in ([hp[0], hp[1]], [hp[2], hp[3]], [hp[4], hp[5]]): S.add(*st_D(pair))
        last = [HHf, hp[6], hp[7], hp[8]]
        S.add(*st_F(last, 0)).add(*st_F(last, 1))
        for k in range(3): put_dma(ch, 216+72*k+G0, dma_D(sr(S_E+k), 'E%d' % k))
        put_dma(ch, 432+G0, dma_F(sr(S_E+3), 'F0')); put_dma(ch, 504+G0, dma_F(sr(S_E+4), 'F1'))
        fx.chain(ch)
        put_bar(fx, 216, 'D', PAT_D); put_bar(fx, 288, 'Uh', PAT_H)
        for k in range(3): put_bar(fx, 360+72*k, 'E%d' % k, PAT_D)
        put_bar(fx, 576, 'F0', [(V_RD, V_PF)]); put_bar(fx, 648, 'F1', [(V_RD, V_PF)])
        qf = Queue([Op(x) for x in f_setup_ops()], 'fset').window(362, 362, 425)
    else:
        for pair in ([hp[0], hp[1]], [hp[2], hp[3]], [hp[4], hp[5]]): S.add(*st_D(pair))
        S.add(*st_final([HHf, hp[6], hp[7], hp[8]], RA, RB))
        for k in range(3): put_dma(ch, 216+72*k+G0, dma_D(sr(S_E+k), 'E%d' % k))
        put_dma(ch, 421, dma_D(sr(S_E+3), 'E3'), step=6); put_dma(ch, 475, dma_D(sr(S_E+4), 'E4'), step=6)
        fx.chain(ch)
        put_bar(fx, 216, 'D', PAT_D); put_bar(fx, 288, 'Uh', PAT_H)
        for k in range(3): put_bar(fx, 360+72*k, 'E%d' % k, PAT_D)
        fx.put(436, 'B', 's_barrier', None)
        put_bar(fx, 576, ['E3', 'E4'], PAT_D)
        def second_base(P):
            P.e('s_add_u32 %s, %s, 1' % (sr(S_A), sr(S_CR))); P.e('s_and_b32 %s, %s, 3' % (sr(S_A), sr(S_A))); P.e('s_mul_i32 %s, %s, %d' % (sr(S_A), sr(S_A), SLOT))
            P.e('v_add_u32 %s, %s, %s' % (vr(RB[0]), sr(S_A), vr(V_PDE))); P.e('v_add_u32 %s, %s, %s' % (vr(RB[1]), sr(S_A), vr(V_PDO)))
        fx.put(576-LAR-3, 'X', second_base, cost=5)
    p3 = qs[3]
    h0 = gelu_q(0, 'gh0', V_T).window(183, 195, 265).after([p3]); h1 = gelu_q(1, 'gh1', V_T+4).window(219, 255, 330).after([p3])
    fx.chain([(340, 'S', 's_add_u32 %s, %s, 4096' % (sr(S_T1), sr(S_HXO)), None)])
    ph0 = prod_q(0, V_HH, 'ph0').window(327, 330, 350).after([h0])
    ph1 = prod_q(1, V_HH, 'ph1', (sr(S_T1), 0, 'hh')).window(363, 364, 384).after([h1, ph0])
    def poll_issue(P): P.e('buffer_load_dword %s, off, %s, %s sc1' % (vr(V_PO), sr(S_WS,4), sr(S_FLP)), tag='poll')
    slow = []
    def poll_check(val, lab):
        def f(P):
            P.wait_vm_tag('poll')
            P.e('v_readfirstlane_b32 %s, %s' % (sr(S_A), vr(V_PO)))
            P.e('s_nop 0')
            P.e('s_cmp_ge_u32 %s, %d' % (sr(S_A), val))
            P.e('s_cbranch_scc0 L_%s_slow%s' % (name, lab))
            P.raw('L_%s_back%s:' % (name, lab))
            slow.append((val, lab))
        f.cost = 5
        return f
    def hp_load(x):
        def f(P):
            if x % 4 == 0: P.e('s_add_u32 %s, %s, %d' % (sr(S_B), sr(S_HXP), (x//4)*4096))
            th, mm = divmod(x, 2)
            P.e('buffer_load_dwordx4 %s, %s, %s, %s offen offset:%d sc1' % (hpfrag(th, mm), vr(V_L16), sr(S_WS,4), sr(S_B), (x % 4)*1024), tag='hp%d' % x)
        return f
    if dbg and OPT.get('tail_stamps'):
        for g in OPT['tail_stamps']: fx.put(g, 'X', (lambda P, g=g: stamp('t%d' % g)), cost=0)
    fx.put(144, 'X', poll_issue, cost=2); fx.put(277, 'X', poll_check(3, 'a'), cost=5)
    for x in range(4): fx.put(279 + 2*x, 'X', hp_load(x), cost=2)
    for x in range(4, 8): fx.put(350 + 2*(x-4), 'X', hp_load(x), cost=2)
    for x in range(8, 12): fx.put(422 + 2*(x-8), 'X', hp_load(x), cost=2)
    fx.put(279, 'X', flagstore('h1', '4'), cost=3)
    fx.put(440, 'X', flagstore('hh', '5'), cost=3)
    if not F2:
        fx.put(360, 'X', poll_issue, cost=2); fx.put(493, 'X', poll_check(4, 'b'), cost=5)
        for x in range(12, 16): fx.put(495 + 2*(x-12), 'X', hp_load(x), cost=2)
        fx.put(504, 'X', poll_issue, cost=2); fx.put(565, 'X', poll_check(5, 'c'), cost=5)
        for x in range(16, 18): fx.put(567 + 2*(x-16), 'X', hp_load(x), cost=2)
    else:
        fx.put(478, 'X', poll_issue, cost=2); fx.put(513, 'X', poll_check(5, 'b'), cost=5)
        for x in range(12, 18): fx.put(515 + 2*(x-12), 'X', hp_load(x), cost=2)
    def hp_wait(xs):
        def f(P): P.wait_vm(lambda i: i.tag in ['hp%d' % t for t in xs])
        return f
    fx.put(360-4, 'X', hp_wait(range(4)))
    fx.put(432-4, 'X', hp_wait(range(4, 8)))
    fx.put(504-4, 'X', hp_wait(range(8, 12)))
    if not F2:
        fx.put(576-4, 'X', hp_wait(range(12, 14)))
        fx.put(648-4, 'X', hp_wait(range(14, 18)))
    else: fx.put(576-2, 'X', hp_wait(range(12, 18)))
    ep = []
    for np_ in range(9):
        ear = (576 + 16*(np_+1) + 2) if F2 else (648 + 8*(np_+1) + 2)
        for mm in range(2):
            tb = V_G + 16*((2*np_+mm) % 4); hb = V_H + 4*((2*np_+mm) % 4)
            for k in range(2):
                for r in range(4): ep.append(Op('v_accvgpr_read_b32 %s, a%d' % (vr(tb+4*k+r), A_OUT + 8*(2*np_+k) + 4*mm + r), ear))
            for d in range(4): ep.append(Op('v_cvt_pk_bf16_f32 %s, %s, %s' % (vr(hb+d), vr(tb+2*d), vr(tb+2*d+1)), ear))
            fr_ = mm*9 + np_
            def st(P, fr_=fr_, hb=hb):
                P.e('s_add_u32 %s, %s, %d' % (sr(S_T0), sr(S_P), fr_*1024))
                P.e('buffer_store_dwordx4 %s, %s, %s, %s offen sc1' % (vr(hb,4), vr(V_L16), sr(S_WS,4), sr(S_T0)), tag='p')
            ep.append(Op(st, ear, cost=2))
    qe = Queue(ep, 'ep', prio=True)
    allq = qs + [ph0, ph1, h0, h1, qe] + ([qf] if FIN == 3 else [])
    info['tail'] = emit_stream(P, S, [], fx, allq, A_W, NF, LAR, 0, maxslots=OPT['cap'], opt=OPT, drain_ok=True, drain_pre='s_nop 7')
    dl = {q.name: q.finish for q in allq}
    assert dl['p0'] <= 143 and dl['p1'] <= 179 and dl['p3'] < 212 and dl['ph1'] < 420 and dl['gh0'] < 326, dl
    if FIN == 3: assert dl['fset'] < 430, dl
    info['ft'] = dl
    stamp('tail')
    if OPT.get('fuse4'):
        P.raw('s_load_dwordx2 s[4:5], s[0:1], %d' % KA_OUT)
        P.raw('s_waitcnt vmcnt(0) lgkmcnt(0)'); P.vmq = []; P.lgq = []
        e('s_barrier')
        e('s_lshl_b32 %s, %s, 1' % (sr(S_A), sr(S_I))); e('s_add_u32 %s, %s, %s' % (sr(S_A), sr(S_A), sr(S_S)))
        e('s_cmp_lg_u32 %s, 0' % sr(S_W)); e('s_cbranch_scc1 L_%s_rgo' % name)
        e('s_lshl_b32 %s, %s, 8' % (sr(S_B), sr(S_A))); e('s_add_u32 %s, %s, 0x%x' % (sr(S_B), sr(S_B), WS_CNT4))
        e('v_mov_b32 v2, 1'); e('s_mov_b64 exec, 1')
        P.raw('buffer_atomic_add v2, off, %s, %s' % (sr(S_WS,4), sr(S_B)))
        e('s_mov_b64 exec, -1'); e('s_mov_b32 %s, 0x4000' % sr(S_C))
        P.raw('L_%s_rwait:' % name)
        P.raw('buffer_load_dword v3, off, %s, %s sc1' % (sr(S_WS,4), sr(S_B)))
        P.raw('s_waitcnt vmcnt(0)')
        P.raw('v_readfirstlane_b32 %s, v3' % sr(S_D)); P.raw('s_sub_u32 %s, %s, 1' % (sr(S_C), sr(S_C)))
        P.raw('s_cmp_eq_u32 %s, 0' % sr(S_C)); P.raw('s_cbranch_scc1 L_%s_rgo' % name)
        P.raw('s_cmp_ge_u32 %s, 8' % sr(S_D)); P.raw('s_cbranch_scc1 L_%s_rgo' % name)
        P.raw('s_sleep %d' % OPT.get('rpoll_sleep', 2)); P.raw('s_branch L_%s_rwait' % name)
        P.raw('L_%s_rgo:' % name)
        e('s_barrier')
        e('s_mov_b32 s6, %d' % (S_*D_*2)); e('s_mov_b32 s7, 0x%x' % SRD3)
        e('s_lshl_b32 %s, %s, 3' % (sr(S_B), sr(S_I))); e('s_add_u32 %s, %s, %s' % (sr(S_B), sr(S_B), sr(S_JP)))
        e('s_lshl_b32 %s, %s, 6' % (sr(S_A), sr(S_A))); e('s_add_u32 %s, %s, %s' % (sr(S_A), sr(S_A), sr(S_JP)))
        e('s_mul_i32 %s, %s, 9' % (sr(S_A), sr(S_A))); e('s_add_u32 %s, %s, %s' % (sr(S_A), sr(S_A), sr(S_W)))
        e('s_lshl_b32 %s, %s, 10' % (sr(S_A), sr(S_A))); e('s_add_u32 %s, %s, 0x%x' % (sr(S_A), sr(S_A), WS_P))
        e('s_mul_i32 %s, %s, 9' % (sr(S_C), sr(S_S))); e('s_add_u32 %s, %s, %s' % (sr(S_C), sr(S_C), sr(S_W)))
        e('s_mul_i32 %s, %s, 18' % (sr(S_D), sr(S_B))); e('s_add_u32 %s, %s, %s' % (sr(S_D), sr(S_D), sr(S_C)))
        e('s_lshl_b32 %s, %s, 10' % (sr(S_D), sr(S_D))); e('s_add_u32 %s, %s, 0x%x' % (sr(S_D), sr(S_D), WS_HC))
        e('v_and_b32 v2, 15, v0'); e('v_lshlrev_b32 v3, 3, v2')
        e('s_lshl_b32 %s, %s, 7' % (sr(S_T0), sr(S_B))); e('s_add_u32 %s, %s, 0x%x' % (sr(S_T0), sr(S_T0), WS_ST))
        e('buffer_load_dword v4, v3, %s, %s offen sc1' % (sr(S_WS,4), sr(S_T0)), tag='mu')
        RB = 64
        def rloads(k):
            e('s_add_u32 %s, %s, %d' % (sr(S_T0), sr(S_D), 4096*k))
            e('buffer_load_dwordx4 %s, %s, %s, %s offen sc1' % (vr(RB+36*k, 4), vr(V_L16), sr(S_WS,4), sr(S_T0)), tag='r%d' % k)
            for jp in range(8):
                e('s_add_u32 %s, %s, %d' % (sr(S_T0), sr(S_A), 4096*k + 73728*jp))
                e('buffer_load_dwordx4 %s, %s, %s, %s offen sc1' % (vr(RB+36*k+4*(jp+1), 4), vr(V_L16), sr(S_WS,4), sr(S_T0)), tag='r%d_%d' % (k, jp))
        def rsum(k, P_wait):
            acc_ = 176 + 8*k; o = 200 + 4*k
            for src in range(9):
                P_wait('r%d' % k if src == 0 else 'r%d_%d' % (k, src-1))
                b_ = RB + 36*k + 4*src
                for d in range(4):
                    for hi in range(2):
                        e('v_dot2_f32_bf16 %s, %s, %s, %s' % (vr(acc_+2*d+hi), vr(b_+d), sr(S_LO if hi == 0 else S_HI), 'v4' if src == 0 else vr(acc_+2*d+hi)))
            e('s_nop 2')
            for d in range(4): e('v_cvt_pk_bf16_f32 %s, %s, %s' % (vr(o+d), vr(acc_+2*d), vr(acc_+2*d+1)))
            e('s_nop 1')
            e('v_permlane16_swap_b32 %s, %s' % (vr(o), vr(o+2))); e('v_permlane16_swap_b32 %s, %s' % (vr(o+1), vr(o+3)))
            e('s_add_u32 %s, %s, %d' % (sr(S_T0), sr(S_C), 4*k)); e('s_lshl_b32 %s, %s, 6' % (sr(S_T0), sr(S_T0)))
            e('buffer_store_dwordx4 %s, v5, s[4:7], %s offen' % (vr(o, 4), sr(S_T0)))
        rloads(0); rloads(1)
        e('s_lshl_b32 %s, %s, 4' % (sr(S_T1), sr(S_B))); e('v_add_u32 v5, %s, v2' % sr(S_T1)); e('v_mul_u32_u24 v5, 1152, v5')
        e('v_bfe_u32 v3, v0, 4, 1'); e('v_lshl_add_u32 v5, v3, 5, v5'); e('v_bfe_u32 v3, v0, 5, 1'); e('v_lshl_add_u32 v5, v3, 4, v5')
        r2a = len(P.ins)
        e('s_cmp_lg_u32 %s, 0' % sr(S_W)); e('s_cbranch_scc1 L_%s_r2' % name)
        rloads(2)
        saved = list(P.vmq)
        rsum(2 - 2, P.wait_vm_tag); rsum(1, P.wait_vm_tag); rsum(2, P.wait_vm_tag)
        e('s_branch L_%s_rend' % name)
        r2b = len(P.ins)
        P.raw('L_%s_r2:' % name)
        P.vmq = [x for x in saved if not (x.tag or '').startswith('r2')]
        rsum(0, P.wait_vm_tag); rsum(1, P.wait_vm_tag)
        P.raw('L_%s_rend:' % name)
        info['rsplit'] = (r2a, r2b, len(P.ins))
    if dbg:
        e('s_waitcnt vmcnt(0)')
        stamp('end')
        e('s_mov_b32 s4, s94'); e('s_mov_b32 s5, s95'); e('s_mov_b32 s6, 0x100000'); e('s_mov_b32 s7, 0x20000')
        e('s_lshl_b32 s41, s2, 2'); e('s_add_u32 s41, s41, %s' % sr(S_W)); e('s_lshl_b32 s41, s41, 7')
        for k in range(len(stamps)):
            e('s_sub_u32 s42, s%d, s64' % (64+k)); e('v_mov_b32 v1, s42')
            e('buffer_store_dword v1, off, s[4:7], s41 offset:%d' % (4*k))
            e('s_sub_u32 s42, s%d, s77' % (77+k)); e('v_mov_b32 v1, s42')
            e('buffer_store_dword v1, off, s[4:7], s41 offset:%d' % (64+4*k))
        e('v_mov_b32 v1, s77'); e('buffer_store_dword v1, off, s[4:7], s41 offset:60')
    P.raw('L_%s_end:' % name)
    e('s_endpgm')
    main_end = len(P.ins)
    for val, lab in slow:
        P.raw('L_%s_slow%s:' % (name, lab))
        P.raw('s_mov_b32 %s, 0x8000' % sr(S_C))
        P.raw('L_%s_spin%s:' % (name, lab))
        P.raw('s_sleep 2')
        P.raw('buffer_load_dword %s, off, %s, %s sc1' % (vr(V_PO), sr(S_WS,4), sr(S_FLP)))
        P.raw('s_waitcnt vmcnt(0)')
        P.raw('v_readfirstlane_b32 %s, %s' % (sr(S_A), vr(V_PO)))
        P.raw('s_sub_u32 %s, %s, 1' % (sr(S_C), sr(S_C)))
        P.raw('s_cmp_eq_u32 %s, 0' % sr(S_C))
        P.raw('s_cbranch_scc1 L_%s_back%s' % (name, lab))
        P.raw('s_cmp_ge_u32 %s, %d' % (sr(S_A), val))
        P.raw('s_cbranch_scc0 L_%s_spin%s' % (name, lab))
        P.raw('s_branch L_%s_back%s' % (name, lab))
    ins = P.ins
    path = ins[:body_start] + ins[body_start:body_end]*3 + ins[body_end:main_end]
    if OPT.get('fuse4'):
        ra, rb, rc = info['rsplit']
        tail0 = ins[body_end:rb] + ins[rc:main_end]; tail1 = ins[body_end:ra] + ins[rb:main_end]
        path = ins[:body_start] + ins[body_start:body_end]*3 + tail0
        info['paths4'] = [ins[:body_start] + ins[body_start:body_end]*3 + tail1]
    if FUSE:
        a, (h0, h1), w3, en = segs['start'], segs['skip'], segs['w3'], segs['end']
        rest_ = ins[en:body_start] + ins[body_start:body_end]*3 + (tail0 if OPT.get('fuse4') else ins[body_end:main_end])
        if FUSE1:
            path = k1paths[0] + ins[k2s:h0] + ins[h1:w3] + rest_
            info['paths'] = [k1paths[0] + ins[k2s:h1] + rest_, k1paths[1] + ins[k2s:h0] + ins[h1:segs['w3br']] + ins[w3:en] + rest_]
        else:
            path = ins[:h0] + ins[h1:w3] + rest_
            info['paths'] = [ins[:h1] + rest_, ins[w3:en] + rest_]
    info['stamps'] = stamps
    return P, path, info

if __name__ == '__main__':
    import collections
    P, path, info = build()
    check(path, 'k3b')
    print('barrier problems', verify_barriers(path))
    for k in ('peel', 'body', 'tail'):
        print(k, 'slots/gap hist', sorted(collections.Counter(info[k]).items()), 'est cyc/unit %.2f' % (est_cycles(info[k])/len(info[k])*2))
    print(info['fb']); print(info['ft'])
    print('instrs', len(P.ins))
```

```python
import sys, os; sys.path.insert(0,'gen')
import build_all as B
for n, o in (('single', dict(fuse1=True)),):
    t, ks = B.make(opts=o); B.assemble(t, ks, n); open('variants/%s.s' % n, 'w').write(t)
    print([(n_[:20], o_['grid'], o_['block'], o_['lds']) for n_, P, o_ in ks])
L = open('single.s').read().split('\n')
N = B.NAME + '_kernel'
def idx(x): return L.index('L_%s_%s:' % (N, x))
print('k2 tile barriers', sum(1 for l in L[idx('p1_tile'):idx('p1_w3')] if l == 's_barrier'), 'stub', sum(1 for l in L[idx('p1_w3'):idx('mlp')] if l == 's_barrier'))
for i, l in enumerate(L):
    if ('s_cbranch' in l or 's_branch' in l): print(i, l.replace(N, 'K'))
```

```python
from core import *
from common import *
from stamps import Stamper

XR_END = 92160
WSLOT = 16384
PITCH = 516
LDS_BYTES = XR_END + 4*WSLOT

def build(name='k1_kernel', prefetch=None, dbg=False, pf=(), P=None, embed=None, entry=None, xstamp=None):
    P = P or Prog(); e = P.e
    start = len(P.ins); entry = entry or name
    VB = [2, 3]; VBH = [4, 5]; VA, PA = 6, 20
    VW, VX, VONE = 10, 14, 16
    VWA, T = 192, 27
    BB = [40, 60]; AB = [80, 96]; ACC = 112
    S_X, S_WQ, S_WS = 8, 12, 16
    S_W, S_HG, S_MI, S_C, S_RA, S_WA, S_WB, S_SO, S_T0, S_T1, S_CNT = 20, 21, 22, 23, 24, 25, 26, 27, 28, 29, 30
    S_MASK = 32
    S_OD = 40
    def acc(i, mt): return ACC + 20*i + 4*mt
    if not embed: e('s_cmp_ge_u32 s2, 256'); e('s_cbranch_scc1 L_%s_end' % name)
    stamp = Stamper(P, dbg and not embed, S_W); stamp('start')
    if xstamp: stamp = (lambda l: xstamp(l) if l in ('loop', 'fix') else None)
    if embed: e('s_load_dwordx2 s[100:101], s[0:1], %d' % KA_DBG)
    if 'scramble' in pf:
        e('s_lshr_b32 s3, s2, 3'); e('s_and_b32 s2, s2, 7'); e('s_lshl_b32 s2, s2, 5'); e('s_or_b32 s2, s2, s3')
    e('s_load_dwordx4 s[4:7], s[0:1], %d' % KA_X)
    e('s_load_dwordx2 s[34:35], s[0:1], %d' % KA_WS)
    e('s_load_dwordx2 s[96:97], s[0:1], %d' % KA_WO); e('s_load_dwordx2 s[98:99], s[0:1], %d' % KA_WG)
    e('v_lshrrev_b32 v1, 6, v0'); e('v_and_b32 v0, 63, v0')
    e('v_readfirstlane_b32 %s, v1' % sr(S_W))
    e('s_and_b32 %s, s2, 1' % sr(S_HG)); e('s_lshl_b32 %s, %s, 2' % (sr(S_HG), sr(S_HG)))
    e('s_bfe_u32 %s, s2, 0x20003' % sr(S_T0)); e('s_add_u32 %s, %s, %s' % (sr(S_HG), sr(S_HG), sr(S_T0)))
    e('s_bfe_u32 %s, s2, 0x20001' % sr(S_MI)); e('s_lshl_b32 %s, %s, 3' % (sr(S_MI), sr(S_MI)))
    e('s_lshr_b32 %s, s2, 5' % sr(S_T0)); e('s_add_u32 %s, %s, %s' % (sr(S_MI), sr(S_MI), sr(S_T0)))
    e('v_lshrrev_b32 v1, 3, v0'); e('v_and_b32 %s, 7, v0' % vr(T))
    e('s_and_b32 %s, %s, 1' % (sr(S_T0), sr(S_W))); e('s_lshl_b32 %s, %s, 2' % (sr(S_T0), sr(S_T0)))
    e('v_lshrrev_b32 %s, 1, v1' % vr(T+1)); e('v_add_u32 %s, %s, %s' % (vr(T+1), sr(S_T0), vr(T+1)))
    e('v_xor_b32 %s, %s, %s' % (vr(T+1), vr(T+1), vr(T))); e('v_lshlrev_b32 %s, 4, %s' % (vr(T+1), vr(T+1)))
    e('v_mul_u32_u24 %s, 1152, v1' % vr(T+2)); e('v_add_u32 %s, %s, %s' % (vr(VX), vr(T+1), vr(T+2)))
    e('s_waitcnt lgkmcnt(0)')
    for srd, lo, hi, size in ((S_X, 4, 5, S_*D_*2), (S_WQ, 6, 7, D_*3*D_*2), (S_WS, 34, 35, WS_END)):
        e('s_mov_b32 %s, s%d' % (sr(srd), lo)); e('s_mov_b32 %s, s%d' % (sr(srd+1), hi))
        e('s_mov_b32 %s, 0x%x' % (sr(srd+2), size)); e('s_mov_b32 %s, 0x%x' % (sr(srd+3), SRD3))
    if embed:
        e('s_cmp_lg_u32 s2, 0'); e('s_cbranch_scc1 L_%s_noinit' % name)
        e('s_lshl_b32 s50, %s, 6' % sr(S_W)); e('v_add_u32 %s, s50, v0' % vr(T+3))
        for k in range(4): e('v_mov_b32 %s, 0' % vr(40+k))
        e('v_lshlrev_b32 %s, 4, %s' % (vr(T+4), vr(T+3))); e('s_mov_b32 s50, 0x%x' % WS_FLAG)
        P.raw('buffer_store_dwordx4 v[40:43], %s, %s, s50 offen sc1' % (vr(T+4), sr(S_WS,4)))
        e('v_lshlrev_b32 %s, 8, %s' % (vr(T+4), vr(T+3))); e('v_cmp_gt_u32 vcc, 160, %s' % vr(T+3)); e('v_mov_b32 %s, 0x7fff0000' % vr(T+5))
        e('s_mov_b32 s50, 0x%x' % WS_CNT); e('v_cndmask_b32 %s, %s, %s, vcc' % (vr(T+4), vr(T+5), vr(T+4)))
        P.raw('buffer_store_dword v40, %s, %s, s50 offen sc1' % (vr(T+4), sr(S_WS,4)))
        P.raw('L_%s_noinit:' % name)
    stamp('setup')
    W1 = []; a = W1.append
    for t in range(4):
        d = vr(VW+t)
        a('s_lshl_b32 s31, %s, 6' % sr(S_W)); a('s_add_u32 s31, s31, %d' % (256*t))
        a('v_add_u32 %s, s31, v0' % vr(T))
        a('v_mul_u32_u24 %s, 7282, %s' % (vr(T+1), vr(T))); a('v_lshrrev_b32 %s, 16, %s' % (vr(T+1), vr(T+1)))
        a('v_mul_u32_u24 %s, 9, %s' % (vr(T+2), vr(T+1))); a('v_sub_u32 %s, %s, %s' % (vr(T+2), vr(T), vr(T+2)))
        a('v_lshrrev_b32 %s, 5, %s' % (vr(T+3), vr(T+1))); a('v_and_b32 %s, 31, %s' % (vr(T+1), vr(T+1)))
        a('v_mul_u32_u24 %s, 1152, %s' % (vr(T+3), vr(T+3))); a('v_lshl_add_u32 %s, %s, 4, %s' % (vr(T+2), vr(T+2), vr(T+3)))
        a('v_mul_u32_u24 %s, 3456, %s' % (vr(T+1), vr(T+1))); a('v_add_u32 %s, %s, %s' % (d, vr(T+2), vr(T+1)))
        a(['v_cmp_le_u32 vcc, 864, %s' % vr(T), 'v_mov_b32 %s, 0x7fff0000' % vr(T+3), 's_nop 0', 'v_cndmask_b32 %s, %s, %s, vcc' % (d, d, vr(T+3))])
    W2 = []; a = W2.append
    M = T+5; Q_ = T+6
    a('v_and_b32 %s, 15, v0' % vr(M)); a('v_lshrrev_b32 %s, 4, v0' % vr(Q_))
    a('v_lshrrev_b32 %s, 3, %s' % (vr(T+1), vr(M))); a('v_mul_u32_u24 %s, 9216, %s' % (vr(T+1), vr(T+1)))
    a('v_and_b32 %s, 7, %s' % (vr(T+2), vr(M))); a('v_lshl_add_u32 %s, %s, 7, %s' % (vr(T+1), vr(T+2), vr(T+1)))
    a('v_lshrrev_b32 %s, 1, %s' % (vr(T+2), vr(M)))
    for kp in range(2):
        a('v_add_u32 %s, %d, %s' % (vr(T+3), 4*kp, vr(Q_))); a('v_xor_b32 %s, %s, %s' % (vr(T+3), vr(T+3), vr(T+2)))
        a('v_lshl_add_u32 %s, %s, 4, %s' % (vr(VB[kp]), vr(T+3), vr(T+1))); a('v_add_u32 %s, %d, %s' % (vr(VBH[kp]), 4*18432, vr(VB[kp])))
    a('v_bfe_u32 %s, v0, 2, 2' % vr(T+2)); a('v_lshl_add_u32 %s, %s, 3, %s' % (vr(T+2), vr(Q_), vr(T+2)))
    a('v_mul_u32_u24 %s, 144, %s' % (vr(T+2), vr(T+2))); a('v_add_u32 %s, %d, %s' % (vr(T+2), XR_END, vr(T+2)))
    a('v_and_b32 %s, 3, v0' % vr(T+1)); a('v_lshlrev_b32 %s, 2, %s' % (vr(T+1), vr(T+1)))
    for i4 in range(4):
        a('s_lshl_b32 s31, %s, 6' % sr(S_W)); a('s_add_u32 s31, s31, %d' % (16*i4))
        a('v_add_u32 %s, s31, %s' % (vr(T+3), vr(T+1)))
        a('v_min_u32 %s, 212, %s' % (vr(T+3), vr(T+3)))
        a('v_mul_u32_u24 %s, 911, %s' % (vr(T+4), vr(T+3))); a('v_lshrrev_b32 %s, 16, %s' % (vr(T+4), vr(T+4)))
        a('v_mul_u32_u24 %s, %d, %s' % (vr(T+4), 4608 - 144, vr(T+4)))
        a('v_lshl_add_u32 %s, %s, 1, %s' % (vr(T+3), vr(T+3), vr(T+4))); a('v_add_u32 %s, %s, %s' % (vr(PA+i4), vr(T+3), vr(T+2)))
    for k in range(4): a('v_mov_b32 %s, 0x3f803f80' % vr(VONE+k))
    a('v_cmp_eq_u32 %s, 0, %s' % (sr(S_MASK, 2), vr(M)))
    for i4 in range(4):
        for d2 in range(2):
            d = vr(VWA + 2*i4 + d2)
            a('s_lshl_b32 s31, %s, 6' % sr(S_W)); a('s_add_u32 s31, s31, %d' % (16*i4 + 2*d2))
            a('v_lshl_add_u32 %s, %s, 2, s31' % (vr(T+1), vr(Q_)))
            a('v_mul_u32_u24 %s, 3641, %s' % (vr(T+2), vr(T+1))); a('v_lshrrev_b32 %s, 16, %s' % (vr(T+2), vr(T+2)))
            a('v_mul_u32_u24 %s, 18, %s' % (vr(T+3), vr(T+2))); a('v_sub_u32 %s, %s, %s' % (vr(T+3), vr(T+1), vr(T+3)))
            a('v_min_u32 %s, 12, %s' % (vr(T+2), vr(T+2)))
            a('v_mul_u32_u24 %s, 3200, %s' % (vr(T+2), vr(T+2))); a('v_lshl_add_u32 %s, %s, 1, %s' % (vr(T+2), vr(T+3), vr(T+2)))
            a('v_mul_u32_u24 %s, 40, %s' % (vr(T+3), vr(M))); a('v_add_u32 %s, %s, %s' % (d, vr(T+2), vr(T+3)))
    for i4 in range(4):
        for mt in range(5):
            for r in range(4): a('v_mov_b32 %s, 0' % vr(acc(i4, mt)+r))
    a('s_mul_i32 s37, %s, 72' % sr(S_HG)); a('s_lshl_b32 s38, %s, 2' % sr(S_W)); a('s_add_u32 s37, s37, s38')
    for t in range(5):
        o = sr(S_OD+t)
        a('s_add_u32 s38, s37, %d' % (16*t))
        a('s_lshr_b32 %s, s38, 5' % o); a('s_lshl_b32 %s, %s, 10' % (o, o))
        a('s_bfe_u32 s39, s38, 0x20002'); a('s_lshl_b32 s39, s39, 8'); a('s_add_u32 %s, %s, s39' % (o, o))
        a('s_bfe_u32 s39, s38, 0x10004'); a('s_lshl_b32 s39, s39, 3'); a('s_add_u32 %s, %s, s39' % (o, o))
    def work(lst, n):
        for _ in range(n):
            if not lst: return
            x = lst.pop(0)
            for t in (x if isinstance(x, list) else [x]): e(t)
    n1 = len(W1)
    for bi in range(3):
        if bi == 2:
            work(W1, 999)
            e('s_cmp_ge_u32 %s, 2' % sr(S_W)); e('s_cbranch_scc1 L_%s_nox' % name)
        e('s_add_u32 %s, %s, %d' % (sr(S_T0), sr(S_W), 4*bi))
        e('s_lshl_b32 %s, %s, 3' % (sr(S_T1), sr(S_MI))); e('s_add_u32 %s, %s, %s' % (sr(S_T1), sr(S_T1), sr(S_T0)))
        e('s_sub_u32 %s, %s, 2' % (sr(S_T1), sr(S_T1))); e('s_max_i32 %s, %s, 0' % (sr(S_T1), sr(S_T1)))
        e('s_mul_i32 %s, %s, %d' % (sr(S_T1), sr(S_T1), 8*1152))
        e('s_mul_i32 %s, %s, 9216' % (sr(S_T0), sr(S_T0)))
        for lam in range(9):
            P.raw('s_add_u32 m0, %s, %d' % (sr(S_T0), lam*1024))
            P.raw('s_add_u32 s36, %s, %d' % (sr(S_T1), lam*128))
            P.raw('buffer_load_dwordx4 %s, %s, s36 offen lds' % (vr(VX), sr(S_X,4)))
            if bi < 2: work(W1, (n1 + 17)//18)
    P.raw('L_%s_nox:' % name)
    e('s_mul_i32 %s, %s, 144' % (sr(S_SO), sr(S_HG)))
    e('s_lshl_b32 %s, %s, 10' % (sr(S_WB), sr(S_W))); e('s_add_u32 %s, %s, %d' % (sr(S_WB), sr(S_WB), XR_END))
    n2 = len(W2)
    for ks in range(4):
        for t in range(4):
            e('s_add_u32 m0, %s, %d' % (sr(S_WB), ks*WSLOT + t*4096))
            if t == 0: e('s_add_u32 %s, %s, %d' % (sr(S_T0), sr(S_SO), ks*32*3456))
            else: e('s_nop 0')
            e('buffer_load_dwordx4 %s, %s, %s offen lds' % (vr(VW+t), sr(S_WQ,4), sr(S_T0)), tag='w%d' % ks)
            work(W2, (n2 + 15)//16)
    work(W2, 999)
    e('s_add_u32 %s, %s, %d' % (sr(S_SO), sr(S_SO), 4*32*3456))
    VP = 36
    if 'code' in pf or 'wq' in pf or 'wo' in pf or 'wg' in pf:
        e('s_lshr_b32 s60, s2, 3'); e('s_and_b32 s61, s2, 7')
        e('s_lshl_b32 s50, %s, 6' % sr(S_W)); e('v_add_u32 %s, s50, v0' % vr(VP))
    if 'code' in pf:
        P.raw('s_getpc_b64 s[52:53]'); P.raw('L_%s_pc:' % name)
        P.raw('s_sub_u32 s52, s52, L_%s_pc - %s' % (name, entry)); P.raw('s_subb_u32 s53, s53, 0')
        P.raw('s_mov_b32 s54, L_text_end - %s' % entry); e('s_mov_b32 s55, 0x%x' % SRD3)
        e('s_mul_i32 s50, s60, 14'); e('v_add_u32 %s, s50, %s' % (vr(VP+1), vr(VP))); e('v_lshlrev_b32 %s, 7, %s' % (vr(VP+1), vr(VP+1)))
        e('v_cmp_gt_u32 vcc, 14, %s' % vr(VP)); e('v_mov_b32 %s, 0x7fff0000' % vr(VP+2)); e('s_nop 0'); e('v_cndmask_b32 %s, %s, %s, vcc' % (vr(VP+1), vr(VP+2), vr(VP+1)))
        P.raw('buffer_load_dword %s, %s, s[52:55], 0 offen' % (vr(VP+2), vr(VP+1)))
    if 'wq' in pf:
        e('v_mul_u32_u24 %s, 4370, %s' % (vr(VP+1), vr(VP))); e('v_lshrrev_b32 %s, 16, %s' % (vr(VP+1), vr(VP+1)))
        e('v_mul_u32_u24 %s, 15, %s' % (vr(VP+3), vr(VP+1))); e('v_sub_u32 %s, %s, %s' % (vr(VP+3), vr(VP), vr(VP+3)))
        e('s_mul_i32 s50, s60, 14'); e('s_add_u32 s50, s50, 128'); e('v_add_u32 %s, s50, %s' % (vr(VP+1), vr(VP+1))); e('v_mul_u32_u24 %s, 3456, %s' % (vr(VP+1), vr(VP+1)))
        e('v_mul_u32_u24 %s, 52, %s' % (vr(T), vr(VP+3))); e('v_lshrrev_b32 %s, 8, %s' % (vr(T), vr(T)))
        e('v_mul_u32_u24 %s, 5, %s' % (vr(T+1), vr(T))); e('v_sub_u32 %s, %s, %s' % (vr(VP+3), vr(VP+3), vr(T+1)))
        e('v_mul_u32_u24 %s, 1152, %s' % (vr(T), vr(T))); e('v_add_u32 %s, %s, %s' % (vr(VP+1), vr(VP+1), vr(T)))
        e('v_lshl_add_u32 %s, %s, 7, %s' % (vr(VP+1), vr(VP+3), vr(VP+1)))
        e('v_cmp_gt_u32 vcc, 210, %s' % vr(VP)); e('v_mov_b32 %s, 0x7fff0000' % vr(T)); e('s_and_b32 s50, s61, 1'); e('s_lshl_b32 s50, s50, 9')
        e('v_cndmask_b32 %s, %s, %s, vcc' % (vr(VP+1), vr(T), vr(VP+1)))
        P.raw('buffer_load_dword %s, %s, %s, s50 offen' % (vr(VP+3), vr(VP+1), sr(S_WQ,4)))
    stamp('issued')
    if prefetch: prefetch(P)
    WB = 200
    e('s_mov_b32 s52, s96'); e('s_mov_b32 s53, s97')
    e('s_lshl_b32 s50, %s, 8' % sr(S_W)); e('s_add_u32 s62, s50, s2')
    e('v_lshlrev_b32 %s, 4, v0' % vr(WB+8)); e('v_add_u32 %s, 1024, %s' % (vr(WB+9), vr(WB+8)))
    e('v_cmp_gt_u32 vcc, 8, v0'); e('v_mov_b32 %s, 0x7fff0000' % vr(WB)); e('s_mul_i32 s51, s62, 1152')
    e('v_cndmask_b32 %s, %s, %s, vcc' % (vr(WB+9), vr(WB), vr(WB+9)))
    e('s_mov_b32 s54, 0x%x' % (D_*D_*2)); e('s_mov_b32 s55, 0x%x' % SRD3)
    e('buffer_load_dwordx4 %s, %s, s[52:55], s51 offen' % (vr(WB, 4), vr(WB+8)), tag='wb')
    e('buffer_load_dwordx4 %s, %s, s[52:55], s51 offen' % (vr(WB+4, 4), vr(WB+9)), tag='wb')
    def reads(st, kp, ni):
        l = []
        for mt in range(5):
            rd = VB[kp] if mt < 4 else VBH[kp]
            l.append('ds_read_b128 %s, %s offset:%d' % (vr(BB[st]+4*mt, 4), vr(rd), mt*18432 if mt < 4 else 0))
        for i in range(ni):
            for u in range(2):
                l.append('ds_read_b64_tr_b16 %s, %s offset:%d' % (vr(AB[st]+4*i+2*u, 2), vr(VA+i), u*576))
        return l
    def ones_fix(st):
        for d in range(4): e('v_cndmask_b32 %s, %s, %s, %s' % (vr(BB[st]+d), vr(BB[st]+d), vr(VONE), sr(S_MASK, 2)))
    P.wait_vm_tag('w0'); e('s_barrier')
    if embed:
        e('s_or_b32 s50, s2, %s' % sr(S_W)); e('s_cmp_lg_u32 s50, 0'); e('s_cbranch_scc1 L_%s_noann' % name)
        e('s_mov_b32 s52, s100'); e('s_mov_b32 s53, s101'); e('s_mov_b32 s54, 256'); e('s_mov_b32 s55, 0x%x' % SRD3)
        e('v_mov_b32 %s, 1' % vr(T+3))
        P.raw('buffer_store_dword %s, off, s[52:55], 0 sc1' % vr(T+3))
        P.raw('L_%s_noann:' % name)
    stamp('w0')
    for i in range(4): e('v_mov_b32 %s, %s' % (vr(VA+i), vr(PA+i)))
    for t in reads(0, 0, 4): e(t)
    e('s_mov_b32 %s, 0' % sr(S_C)); e('s_mov_b32 %s, 9' % sr(S_CNT))
    e('s_waitcnt lgkmcnt(0)')
    ones_fix(0)
    e('s_cmp_eq_u32 %s, 3' % sr(S_W)); e('s_cbranch_scc1 L_%s_loop3' % name)
    spans = {}
    def loop(lab, stats_wave):
        P.raw('.p2align 6'); P.raw('L_%s_%s:' % (name, lab))
        a0 = len(P.ins)
        for kp in range(2):
            cur, nxt = kp, 1-kp
            ni = 2 if stats_wave else 4
            e('s_waitcnt vmcnt(8)')
            if 'nobar' not in pf: e('s_barrier')
            rd = reads(nxt, 1-kp, ni)
            SC = {0: 's_lshl_b32 %s, %s, 14' % (sr(S_T0), sr(S_C)), 1: 's_add_u32 %s, %s, %s' % (sr(S_WA), sr(S_WB), sr(S_T0)),
                  2: 's_add_u32 %s, %s, 1' % (sr(S_C), sr(S_C)), 3: 's_and_b32 %s, %s, 3' % (sr(S_C), sr(S_C)), 4: 's_lshl_b32 %s, %s, 14' % (sr(S_RA), sr(S_C)),
                  12: 's_waitcnt lgkmcnt(%d)' % min(15, (5 + 2*ni if ni == 4 else 5 + 2*ni) - 2 - (1 if ni == 4 else 0)),
                  13: 's_add_u32 m0, %s, 0' % sr(S_WA), 15: 's_add_u32 m0, %s, 4096' % sr(S_WA), 17: 's_add_u32 m0, %s, 8192' % sr(S_WA), 19: 's_add_u32 m0, %s, 12288' % sr(S_WA)}
            DS = {n: rd[n] for n in range(5)}
            for k in range(2*ni): DS[6+k] = rd[5+k]
            for t, n in enumerate((14, 16, 18)): DS[n] = 'buffer_load_dwordx4 %s, %s, %s offen lds' % (vr(VW+t), sr(S_WQ,4), sr(S_SO))
            VL = {}
            for i in range(ni): VL[5+i] = ['v_add_u32 %s, %s, %s' % (vr(VA+i), sr(S_RA), vr(PA+i))]
            VL[10] = ['v_add_u32 %s, 1024, %s' % (vr(VB[kp]), vr(VB[kp]))]; VL[11] = ['v_add_u32 %s, 1024, %s' % (vr(VBH[kp]), vr(VBH[kp]))]
            fix = ['v_cndmask_b32 %s, %s, %s, %s' % (vr(BB[nxt]+d), vr(BB[nxt]+d), vr(VONE), sr(S_MASK, 2)) for d in range(4)]
            VL[15] = fix[:2]; VL[17] = fix[2:]
            n = 0
            for i in range(4):
                for mt in range(5):
                    A = vr(AB[cur]+4*i, 4)
                    if stats_wave and i == 2: A = vr(VONE, 4)
                    if stats_wave and i == 3: A = vr(BB[cur]+4*mt, 4)
                    e('v_mfma_f32_16x16x32_bf16 %s, %s, %s, %s' % (vr(acc(i, mt), 4), A, vr(BB[cur]+4*mt, 4), vr(acc(i, mt), 4)))
                    if n == 12: P.wait_lg_regs(rset('v', BB[nxt], 4))
                    elif n in SC: e(SC[n])
                    if n in DS and not ('nodma' in pf and 'lds' in DS[n].split()[-1:]): e(DS[n])
                    for t in VL.get(n, []): e(t)
                    n += 1
            e('s_nop 0')
            if 'nodma' not in pf: e('buffer_load_dwordx4 %s, %s, %s offen lds' % (vr(VW+3), sr(S_WQ,4), sr(S_SO)))
            e('s_add_u32 %s, %s, %d' % (sr(S_SO), sr(S_SO), 32*3456))
            e('s_waitcnt lgkmcnt(0)')
        e('s_sub_u32 %s, %s, 1' % (sr(S_CNT), sr(S_CNT))); e('s_cmp_lg_u32 %s, 0' % sr(S_CNT)); e('s_cbranch_scc1 L_%s_%s' % (name, lab))
        spans[lab] = (a0, len(P.ins))
        if embed: e('s_waitcnt vmcnt(0)')
    loop('loop', False)
    e('s_branch L_%s_after' % name)
    b3 = len(P.ins)
    loop('loop3', True)
    STAT = LDS_BYTES - 1024*0
    e('v_and_b32 v1, 15, v0'); e('v_lshrrev_b32 %s, 4, v0' % vr(T)); e('v_lshrrev_b32 %s, 2, v1' % vr(T+1)); e('v_and_b32 %s, 3, v1' % vr(T+2))
    e('v_cmp_eq_u32 s[50:51], %s, %s' % (vr(T), vr(T+1)))
    for r in range(1, 4): e('v_cmp_eq_u32 s[%d:%d], %d, %s' % (50+2*r, 51+2*r, r, vr(T+2)))
    e('v_lshlrev_b32 v1, 3, v1'); e('v_add_u32 v1, %d, v1' % STAT)
    e('s_mov_b32 %s, 0x%08x' % (sr(S_T0), f2u(1.0/576)))
    for mt in range(5):
        g = acc(3, mt)
        for r in range(1, 4): e('v_cndmask_b32 %s, %s, %s, s[%d:%d]' % (vr(g), vr(g), vr(g+r), 50+2*r, 51+2*r))
    for mt in range(5): e('v_mul_f32 %s, %s, %s' % (vr(acc(2, mt)), sr(S_T0), vr(acc(2, mt))))
    for mt in range(5): e('v_mul_f32 %s, %s, %s' % (vr(acc(3, mt)), sr(S_T0), vr(acc(3, mt))))
    e('s_cmp_lg_u32 %s, 0' % sr(S_HG)); e('s_cbranch_scc1 L_%s_nomx' % name)
    e('v_and_b32 %s, 15, v0' % vr(T+3)); e('v_lshlrev_b32 %s, 2, %s' % (vr(T+3), vr(T+3)))
    e('s_lshl_b32 %s, %s, 8' % (sr(S_T1), sr(S_MI))); e('s_add_u32 %s, %s, 0x%x' % (sr(S_T1), sr(S_T1), WS_MX))
    e('s_mov_b64 exec, s[50:51]')
    for mt in range(1, 5): P.raw('buffer_store_dword %s, %s, %s, %s offen offset:%d sc1' % (vr(acc(2, mt)), vr(T+3), sr(S_WS,4), sr(S_T1), 64*(mt-1)))
    e('s_mov_b64 exec, -1')
    P.raw('L_%s_nomx:' % name)
    for mt in range(5): e('v_fma_f32 %s, -%s, %s, %s' % (vr(acc(3, mt)), vr(acc(2, mt)), vr(acc(2, mt)), vr(acc(3, mt))))
    for mt in range(5): e('v_max_f32 %s, 0, %s' % (vr(acc(3, mt)), vr(acc(3, mt))))
    for mt in range(5): e('v_add_f32 %s, 0x%08x, %s' % (vr(acc(3, mt)), f2u(1e-5), vr(acc(3, mt))))
    for mt in range(5): e('v_rsq_f32 %s, %s' % (vr(acc(3, mt)+1), vr(acc(3, mt))))
    e('s_nop 0')
    for mt in range(5): e('v_mul_f32 %s, -%s, %s' % (vr(acc(3, mt)), vr(acc(2, mt)), vr(acc(3, mt)+1)))
    e('s_mov_b64 exec, s[50:51]')
    for mt in range(5): e('ds_write_b64 v1, %s offset:%d' % (vr(acc(3, mt), 2), 128*mt))
    e('s_mov_b64 exec, -1')
    e3 = len(P.ins)
    P.raw('L_%s_after:' % name)
    after = len(P.ins)
    stamp('loop')
    e('s_cmp_ge_u32 s62, 576'); e('s_cbranch_scc1 L_%s_nowb' % name)
    P.wait_vm_tag('wb')
    e('v_mov_b32 %s, 0x3f803f80' % vr(WB+8))
    for d in range(8): e('v_dot2_f32_bf16 %s, %s, %s, %s' % (vr(WB+9), vr(WB+d), vr(WB+8), '0' if d == 0 else vr(WB+9)))
    e('s_nop 2')
    for dpp in ('quad_perm:[1,0,3,2]', 'quad_perm:[2,3,0,1]', 'row_half_mirror', 'row_mirror'):
        e('v_add_f32_dpp %s, %s, %s %s row_mask:0xf bank_mask:0xf' % (vr(WB+9), vr(WB+9), vr(WB+9), dpp)); e('s_nop 1')
    for swap in ('v_permlane16_swap_b32', 'v_permlane32_swap_b32'):
        e('v_mov_b32 %s, %s' % (vr(WB+10), vr(WB+9))); e('s_nop 1')
        e('%s %s, %s' % (swap, vr(WB+9), vr(WB+10))); e('s_nop 1')
        e('v_add_f32 %s, %s, %s' % (vr(WB+9), vr(WB+9), vr(WB+10)))
    e('v_mul_f32 %s, 0x%08x, %s' % (vr(WB+9), f2u(1.0/576), vr(WB+9)))
    e('v_cvt_pk_bf16_f32 %s, %s, 0' % (vr(WB), vr(WB+9)))
    e('v_lshlrev_b32 %s, 16, %s' % (vr(WB+1), vr(WB))); e('v_sub_f32 %s, %s, %s' % (vr(WB+1), vr(WB+9), vr(WB+1)))
    e('v_cvt_pk_bf16_f32 %s, %s, 0' % (vr(WB+1), vr(WB+1)))
    e('s_lshr_b32 s50, s62, 5'); e('s_lshl_b32 s50, s50, 6')
    e('s_bfe_u32 s51, s62, 0x20002'); e('s_lshl_b32 s51, s51, 4'); e('s_add_u32 s50, s50, s51')
    e('s_bfe_u32 s51, s62, 0x10004'); e('s_lshl_b32 s51, s51, 3'); e('s_add_u32 s50, s50, s51')
    e('s_and_b32 s51, s62, 3'); e('s_lshl_b32 s51, s51, 1'); e('s_add_u32 s50, s50, s51'); e('s_add_u32 s50, s50, 0x%x' % WS_WB)
    e('s_mov_b64 exec, 1')
    P.raw('buffer_store_short %s, off, %s, s50 sc1' % (vr(WB), sr(S_WS,4)))
    P.raw('buffer_store_short %s, off, %s, s50 offset:%d sc1' % (vr(WB+1), sr(S_WS,4), 18*64))
    e('s_mov_b64 exec, -1')
    P.raw('L_%s_nowb:' % name)
    if embed:
        e('s_mov_b32 s52, s100'); e('s_mov_b32 s53, s101'); e('s_mov_b32 s54, 256'); e('s_mov_b32 s55, 0x%x' % SRD3)
        P.raw('buffer_load_dword v211, off, s[52:55], 0 sc1')
    if 'wo' in pf or 'wg' in pf:
        e('s_mov_b32 s52, s96'); e('s_mov_b32 s53, s97'); e('s_mov_b32 s56, s98'); e('s_mov_b32 s57, s99')
        e('v_mul_u32_u24 %s, 7282, %s' % (vr(VP+1), vr(VP))); e('v_lshrrev_b32 %s, 16, %s' % (vr(VP+1), vr(VP+1)))
        e('v_mul_u32_u24 %s, 9, %s' % (vr(VP+2), vr(VP+1))); e('v_sub_u32 %s, %s, %s' % (vr(VP+2), vr(VP), vr(VP+2)))
        e('s_mul_i32 s50, s60, 18'); e('v_add_u32 %s, s50, %s' % (vr(VP+1), vr(VP+1))); e('v_mul_u32_u24 %s, 9216, %s' % (vr(VP+1), vr(VP+1)))
        e('v_lshl_add_u32 %s, %s, 7, %s' % (vr(VP+1), vr(VP+2), vr(VP+1)))
        e('s_mul_i32 s50, s60, 162'); e('v_add_u32 %s, s50, %s' % (vr(VP+2), vr(VP))); e('v_lshlrev_b32 %s, 7, %s' % (vr(VP+2), vr(VP+2)))
        e('v_cmp_gt_u32 vcc, 162, %s' % vr(VP)); e('v_mov_b32 %s, 0x7fff0000' % vr(VP+3)); e('s_mul_i32 s51, s61, 1152')
        e('v_cndmask_b32 %s, %s, %s, vcc' % (vr(VP+1), vr(VP+3), vr(VP+1))); e('v_cndmask_b32 %s, %s, %s, vcc' % (vr(VP+2), vr(VP+3), vr(VP+2)))
        e('s_mov_b32 s54, 0x%x' % (D_*D_*2)); e('s_mov_b32 s55, 0x%x' % SRD3)
        e('s_mov_b32 s58, 0x%x' % (D_*F_*2)); e('s_mov_b32 s59, 0x%x' % SRD3)
        if 'wo' in pf: P.raw('buffer_load_dword v14, %s, s[52:55], 0 offen' % vr(VP+2))
        if 'wg' in pf: P.raw('buffer_load_dword v15, %s, s[56:59], s51 offen' % vr(VP+1))
    CS = BB[0]
    e('s_nop 4')
    for i in range(4):
        for r in range(4):
            e('v_mov_b32_dpp %s, %s row_newbcast:0 row_mask:0xf bank_mask:0xf' % (vr(CS+4*i+r), vr(acc(i, 0)+r)))
    e('s_waitcnt lgkmcnt(0)'); e('s_barrier')
    ST = BB[1]
    e('v_and_b32 v1, 15, v0'); e('v_lshlrev_b32 v1, 3, v1'); e('v_add_u32 v1, %d, v1' % STAT)
    for mt in range(5): e('ds_read_b64 %s, v1 offset:%d' % (vr(ST+2*mt, 2), 128*mt))
    e('s_waitcnt lgkmcnt(0)')
    for mt in range(5):
        for i in range(4):
            a = acc(i, mt); t0 = T + 4*(i % 2)
            for r in range(4): e('v_mul_f32 %s, %s, %s' % (vr(t0+r), vr(ST+2*mt), vr(CS+4*i+r)))
            for r in range(4): e('v_fma_f32 %s, %s, %s, %s' % (vr(a+r), vr(a+r), vr(ST+2*mt+1), vr(t0+r)))
            e('v_cvt_pk_bf16_f32 %s, %s, %s' % (vr(a), vr(a), vr(a+1))); e('v_cvt_pk_bf16_f32 %s, %s, %s' % (vr(a+1), vr(a+2), vr(a+3)))
            for d2 in range(2): e('ds_write_b32 %s, %s offset:%d' % (vr(VWA+2*i+d2), vr(a+d2), 640*mt))
    e('s_waitcnt lgkmcnt(0)'); e('s_barrier')
    stamp('fix')
    AD = 2
    e('v_add_u32 v1, 2, v0'); e('v_mul_u32_u24 %s, 40, v1' % vr(AD))
    e('s_mul_i32 %s, %s, 3200' % (sr(S_T0), sr(S_W))); e('v_add_u32 %s, %s, %s' % (vr(AD), sr(S_T0), vr(AD)))
    QR = 40; KR = 112; L = 50
    def rdvec(dst, kind, w):
        for t in range(5): e('ds_read_b64 %s, %s offset:%d' % (vr(dst+2*t, 2), vr(AD), kind*12800 + (14 - 2*w)*40 + 8*t))
    def kreg(w): return KR + 10*w
    rdvec(QR, 0, 0); rdvec(kreg(0), 1, 0); rdvec(kreg(1), 1, 1)
    for w in range(0, 8, 2):
        P.wait_lg_regs(rset('v', QR, 10) + rset('v', kreg(w), 10) + rset('v', kreg(w+1), 10))
        if w + 2 < 8: rdvec(kreg(w+2), 1, w+2); rdvec(kreg(w+3), 1, w+3)
        for d in range(9):
            for ww in (w, w+1):
                e('v_dot2_f32_bf16 %s, %s, %s, %s' % (vr(L+ww), vr(QR+d), vr(kreg(ww)+d), '0' if d == 0 else vr(L+ww)))
    rdvec(kreg(0), 2, 0); rdvec(kreg(1), 2, 1); rdvec(kreg(2), 2, 2)
    e('s_lshl_b32 %s, %s, 6' % (sr(S_T0), sr(S_MI))); e('v_add_u32 %s, %s, v0' % (vr(T), sr(S_T0))); e('v_mov_b32 %s, 0x%08x' % (vr(T+1), f2u(-1e9)))
    for w in range(1, 8):
        e('v_cmp_gt_u32 vcc, %d, %s' % (2*w, vr(T))); e('s_nop 1'); e('v_cndmask_b32 %s, %s, %s, vcc' % (vr(L+w), vr(L+w), vr(T+1)))
    e('v_max3_f32 %s, %s, %s, %s' % (vr(T+2), vr(L), vr(L+1), vr(L+2))); e('v_max3_f32 %s, %s, %s, %s' % (vr(T+3), vr(L+3), vr(L+4), vr(L+5)))
    e('v_max3_f32 %s, %s, %s, %s' % (vr(T+2), vr(T+2), vr(L+6), vr(L+7))); e('v_max_f32 %s, %s, %s' % (vr(T+2), vr(T+2), vr(T+3)))
    CSC = 18**-0.5 * 1.4426950408889634
    e('s_mov_b32 %s, 0x%08x' % (sr(S_T1), f2u(CSC)))
    e('v_mul_f32 %s, %s, %s' % (vr(T+2), sr(S_T1), vr(T+2)))
    for w in range(8): e('v_fma_f32 %s, %s, %s, -%s' % (vr(L+w), vr(L+w), sr(S_T1), vr(T+2)))
    for w in range(8): e('v_exp_f32 %s, %s' % (vr(L+w), vr(L+w)))
    P.wait_lg_regs(rset('v', kreg(2), 10))
    rdvec(kreg(3), 2, 3); rdvec(kreg(4), 2, 4); rdvec(kreg(5), 2, 5)
    e('v_add_f32 %s, %s, %s' % (vr(T+2), vr(L), vr(L+1))); e('v_add_f32 %s, %s, %s' % (vr(T+3), vr(L+2), vr(L+3)))
    e('v_add_f32 %s, %s, %s' % (vr(T+4), vr(L+4), vr(L+5))); e('v_add_f32 %s, %s, %s' % (vr(T+5), vr(L+6), vr(L+7)))
    e('v_add_f32 %s, %s, %s' % (vr(T+2), vr(T+2), vr(T+3))); e('v_add_f32 %s, %s, %s' % (vr(T+4), vr(T+4), vr(T+5))); e('v_add_f32 %s, %s, %s' % (vr(T+2), vr(T+2), vr(T+4)))
    e('v_rcp_f32 %s, %s' % (vr(T+2), vr(T+2))); e('s_nop 0')
    for w in range(8): e('v_mul_f32 %s, %s, %s' % (vr(L+w), vr(L+w), vr(T+2)))
    PL, PH = 60, 68
    for w in range(8):
        e('v_cvt_pk_bf16_f32 %s, %s, 0' % (vr(PL+w), vr(L+w))); e('v_cvt_pk_bf16_f32 %s, 0, %s' % (vr(PH+w), vr(L+w)))
    OL, OH = 80, 90
    def pv(w):
        for d in range(9):
            e('v_dot2_f32_bf16 %s, %s, %s, %s' % (vr(OL+d), vr(kreg(w)+d), vr(PL+w), '0' if w == 0 else vr(OL+d)))
            e('v_dot2_f32_bf16 %s, %s, %s, %s' % (vr(OH+d), vr(kreg(w)+d), vr(PH+w), '0' if w == 0 else vr(OH+d)))
    extra = []
    if embed:
        nlate = ('wo' in pf) + ('wg' in pf)
        e('s_cmp_ge_u32 s62, 576'); e('s_cbranch_scc1 L_%s_now' % name)
        P.raw('s_waitcnt vmcnt(%d)' % nlate)
        P.raw('v_readfirstlane_b32 s50, v211'); e('s_nop 3'); e('s_cmp_eq_u32 s50, 1'); e('s_cbranch_scc1 L_%s_ann' % name)
        e('s_mov_b32 s52, s100'); e('s_mov_b32 s53, s101'); e('s_mov_b32 s54, 256'); e('s_mov_b32 s55, 0x%x' % SRD3)
        e('s_mov_b32 s51, 0x4000')
        P.raw('L_%s_annw:' % name)
        P.raw('s_sleep 8'); P.raw('buffer_load_dword v211, off, s[52:55], 0 sc1'); P.raw('s_waitcnt vmcnt(0)')
        P.raw('v_readfirstlane_b32 s50, v211'); P.raw('s_sub_u32 s51, s51, 1'); P.raw('s_cmp_eq_u32 s51, 0'); P.raw('s_cbranch_scc1 L_%s_ann' % name)
        P.raw('s_cmp_eq_u32 s50, 1'); P.raw('s_cbranch_scc0 L_%s_annw' % name)
        P.raw('L_%s_ann:' % name)
        e('s_and_b32 s50, s2, 7'); e('s_lshl_b32 s50, s50, 8'); e('s_add_u32 s50, s50, 0x%x' % WS_CNTW)
        e('v_mov_b32 v211, 1'); e('s_mov_b64 exec, 1')
        P.raw('buffer_atomic_add v211, off, %s, s50' % sr(S_WS,4))
        e('s_mov_b64 exec, -1')
        P.raw('L_%s_now:' % name)
        if 'wotile' in pf:
            e('s_lshr_b32 s50, s2, 3'); e('s_mul_i32 s51, s50, 57'); e('s_lshr_b32 s51, s51, 9'); e('s_mul_i32 s51, s51, 9'); e('s_sub_u32 s50, s50, s51')
            e('s_lshl_b32 s50, s50, 7'); e('s_mul_i32 s51, %s, %d' % (sr(S_W), 18*8*1152)); e('s_add_u32 s63, s50, s51')
            e('s_mul_i32 s49, %s, %d' % (sr(S_W), 18*1024)); e('s_add_u32 s49, s49, 73728')
            e('s_mov_b32 s56, s96'); e('s_mov_b32 s57, s97'); e('s_mov_b32 s58, 0x%x' % (D_*D_*2)); e('s_mov_b32 s59, 0x%x' % SRD3)
            e('v_bfe_u32 v200, v0, 1, 3'); e('v_mul_u32_u24 v200, 1152, v200'); e('v_lshrrev_b32 v201, 4, v0'); e('v_lshl_add_u32 v200, v201, 5, v200')
            e('v_and_b32 v201, 1, v0'); e('v_lshl_add_u32 v200, v201, 4, v200')
            e('v_add_u32 v201, %d, v200' % (8*1152 - 1024)); e('v_add_u32 v202, %d, v200' % (2*(8*1152 - 1024)))
            for g in range(6):
                extra.append(['s_add_u32 s50, s63, %d' % (3*g*8*1152), 's_add_u32 m0, s49, %d' % (3*g*1024)])
                for q in range(3): extra.append(['buffer_load_dwordx4 v%d, s[56:59], s50 offen offset:%d lds' % (200+q, 1024*q)])
    pv_start = len(P.ins)
    pv(0); pv(1); pv(2)
    P.wait_lg_regs(rset('v', kreg(5), 10))
    rdvec(kreg(6), 2, 6); rdvec(kreg(7), 2, 7)
    pv(3); pv(4); pv(5)
    P.wait_lg_regs(rset('v', kreg(7), 10))
    pv(6); pv(7)
    if extra:
        seg = P.ins[pv_start:]; del P.ins[pv_start:]
        step = max(1, (len(seg) - 4)//(len(extra) + 1)); k = 0
        for n, i in enumerate(seg):
            P.ins.append(i)
            if n % step == step - 1 and k < len(extra):
                for t in extra[k]: P.ins.append(Ins(t))
                k += 1
        assert k == len(extra)
    e('v_lshrrev_b32 %s, 4, v0' % vr(T)); e('s_lshl_b32 %s, %s, 2' % (sr(S_T0), sr(S_MI))); e('v_add_u32 %s, %s, %s' % (vr(T), sr(S_T0), vr(T)))
    e('v_mul_u32_u24 %s, 18432, %s' % (vr(T), vr(T))); e('v_and_b32 %s, 15, v0' % vr(T+1)); e('v_lshl_add_u32 %s, %s, 4, %s' % (vr(T), vr(T+1), vr(T)))
    for d in range(9): e('v_cvt_pk_bf16_f32 %s, %s, %s' % (vr(QR+d), vr(OL+d), vr(OH+d)))
    OA = 49152
    e('v_mul_u32_u24 %s, 152, v0' % vr(T+2)); e('s_mul_i32 %s, %s, 36' % (sr(S_T0), sr(S_W))); e('s_add_u32 %s, %s, %d' % (sr(S_T0), sr(S_T0), OA))
    e('v_add_u32 %s, %s, %s' % (vr(T+3), sr(S_T0), vr(T+2)))
    for d in range(9): e('ds_write_b32 %s, %s offset:%d' % (vr(T+3), vr(QR+d), 4*d))
    e('s_lshl_b32 %s, %s, 3' % (sr(S_T0), sr(S_W))); e('s_add_u32 %s, %s, %d' % (sr(S_T0), sr(S_T0), OA)); e('v_add_u32 %s, %s, %s' % (vr(T+3), sr(S_T0), vr(T+2)))
    e('s_waitcnt lgkmcnt(0)'); e('s_barrier')
    for t in range(5): e('ds_read_b64 %s, %s offset:%d' % (vr(OL+2*t, 2), vr(T+3), 32*t))
    for t in range(4):
        P.wait_lg_regs(rset('v', OL+2*t, 2))
        e('buffer_store_dwordx2 %s, %s, %s, %s offen sc1' % (vr(OL+2*t, 2), vr(T), sr(S_WS,4), sr(S_OD+t)))
    e('s_waitcnt lgkmcnt(0)')
    e('s_cmp_ge_u32 %s, 2' % sr(S_W)); e('s_cbranch_scc1 L_%s_no5' % name)
    P.raw('buffer_store_dwordx2 %s, %s, %s, %s offen sc1' % (vr(OL+8, 2), vr(T), sr(S_WS,4), sr(S_OD+4)))
    P.raw('L_%s_no5:' % name)
    if 'flags' in pf:
        e('s_lshl_b32 s50, s2, 2'); e('s_add_u32 s50, s50, %s' % sr(S_W)); e('s_lshl_b32 s50, s50, 2'); e('s_add_u32 s50, s50, 0x%x' % WS_FLAG)
        e('v_mov_b32 %s, 0' % vr(WB+11)); e('buffer_store_dword %s, off, %s, s50' % (vr(WB+11), sr(S_WS,4)))
        e('s_min_u32 s50, s2, 21'); e('s_lshl_b32 s50, s50, 8'); e('s_add_u32 s50, s50, 0x%x' % WS_CNT)
        e('buffer_store_dword %s, off, %s, s50' % (vr(WB+11), sr(S_WS,4)))
        e('s_min_u32 s50, s2, 31'); e('s_lshl_b32 s50, s50, 8'); e('s_add_u32 s50, s50, 0x%x' % WS_CNT4)
        e('buffer_store_dword %s, off, %s, s50' % (vr(WB+11), sr(S_WS,4)))
    ins = P.ins
    if embed:
        P.raw('s_waitcnt vmcnt(0)'); P.vmq = []
        e('s_barrier')
        e('s_cmp_lg_u32 %s, 0' % sr(S_W)); e('s_cbranch_scc1 L_%s_nosig' % name)
        e('s_lshl_b32 s50, %s, 8' % sr(S_MI)); e('s_add_u32 s50, s50, 0x%x' % WS_CNT1)
        e('v_mov_b32 v211, 1'); e('s_mov_b64 exec, 1')
        P.raw('buffer_atomic_add v211, off, %s, s50' % sr(S_WS,4))
        e('s_mov_b64 exec, -1')
        P.raw('L_%s_nosig:' % name)
        if xstamp: xstamp('k1end')
        e('s_lshl_b32 s50, %s, 6' % sr(S_W)); e('v_add_u32 v0, s50, v0')
        a0, a1 = spans['loop']; c0, c1 = spans['loop3']; en = len(ins)
        P.k1paths = (ins[start:a0] + ins[a0:a1]*3 + ins[after:en], ins[start:a0] + ins[c0:c1]*3 + ins[c1:en])
        return P, None, None
    stamp('attn'); stamp.finish()
    P.raw('L_%s_end:' % name)
    e('s_endpgm')
    a0, a1 = spans['loop']; c0, c1 = spans['loop3']
    path = ins[:a0] + ins[a0:a1]*3 + ins[after:]
    path3 = ins[:a0] + ins[c0:c1]*3 + ins[c1:]
    return P, (path, path3), dict(vgpr=212, accum=212, sgpr=102 if dbg else 100, grid=256, block=256, lds=LDS_BYTES + 1024, stamps=stamp.names)

if __name__ == '__main__':
    P, paths, o = build()
    for p in paths: check(p, 'k1')
    print(len(P.ins), o)
```

```python
from core import *
from common import *
from sched import *
from stamps import Stamper

def build(name='k2_kernel', prefetch=None, dbg=False, pf=None, code_pf=False, P=None, embed=None, wait1=False, xstamp=None, sleep1=6, wo_done=False):
    P = P or Prog(); e = P.e
    start = len(P.ins)
    LB = 73728 if embed else 0
    END = embed or ('L_%s_end' % name)
    NWG = 256 if pf == 'help' else 216
    V_L16, V_OG, V_RD, V_RD2, V_XO, V_T = 1, 2, 5, 6, 7, 8
    V_B, V_ACC, V_X, V_U = 16, 160, 192, 208
    A_W, NF, LAR = 0, 12, 12
    A_WB = 48
    V_MU, V_MX, V_WBO = 240, 248, 250
    S_WS, S_WO, S_X = 8, 12, 16
    S_W, S_MG, S_NG, S_MT, S_T0, S_T1, S_OO, S_WOFF = 20, 21, 22, 23, 24, 25, 26, 27
    if not embed: e('s_cmp_ge_u32 s2, %d' % NWG); e('s_cbranch_scc1 L_%s_end' % name)
    stamp = Stamper(P, dbg and not embed, S_W); stamp('start')
    e('s_load_dwordx2 s[4:5], s[0:1], %d' % KA_WS); e('s_load_dwordx2 s[6:7], s[0:1], %d' % KA_WO); e('s_load_dwordx2 s[28:29], s[0:1], %d' % KA_X)
    e('v_mov_b32 %s, v0' % vr(V_T+7))
    e('v_lshrrev_b32 %s, 6, v0' % vr(V_T)); e('v_and_b32 v0, 63, v0')
    e('v_readfirstlane_b32 %s, %s' % (sr(S_W), vr(V_T)))
    e('v_lshlrev_b32 %s, 4, v0' % vr(V_L16))
    e('s_lshr_b32 %s, s2, 3' % sr(S_T0)); e('s_mul_i32 %s, %s, 57' % (sr(S_T1), sr(S_T0))); e('s_lshr_b32 %s, %s, 9' % (sr(S_T1), sr(S_T1)))
    e('s_mul_i32 %s, %s, 9' % (sr(S_NG), sr(S_T1))); e('s_sub_u32 %s, %s, %s' % (sr(S_NG), sr(S_T0), sr(S_NG)))
    e('s_lshl_b32 %s, %s, 3' % (sr(S_MG), sr(S_T1))); e('s_and_b32 %s, s2, 7' % sr(S_T0)); e('s_add_u32 %s, %s, %s' % (sr(S_MG), sr(S_MG), sr(S_T0)))
    skip = (0, 0)
    if pf == 'help':
        e('s_cmp_lt_u32 s2, 216'); e('s_cbranch_scc1 L_%s_tile' % name)
        help0 = len(P.ins)
        e('s_load_dwordx2 s[44:45], s[0:1], %d' % KA_WU); e('s_load_dwordx2 s[46:47], s[0:1], %d' % KA_WD)
        e('s_lshr_b32 s50, s2, 3'); e('s_sub_u32 s50, s50, 27'); e('s_mul_i32 s50, s50, 192'); e('v_add_u32 %s, s50, %s' % (vr(V_U), vr(V_T+7)))
        if embed:
            e('v_cmp_gt_u32 vcc, 192, %s' % vr(V_T+7)); e('v_mov_b32 %s, 0x00800000' % vr(V_U+3)); e('s_nop 0'); e('v_cndmask_b32 %s, %s, %s, vcc' % (vr(V_U), vr(V_U+3), vr(V_U)))
        e('v_mul_u32_u24 %s, 7282, %s' % (vr(V_U+1), vr(V_U))); e('v_lshrrev_b32 %s, 16, %s' % (vr(V_U+1), vr(V_U+1)))
        e('v_mul_u32_u24 %s, 9, %s' % (vr(V_U+2), vr(V_U+1))); e('v_sub_u32 %s, %s, %s' % (vr(V_U+2), vr(V_U), vr(V_U+2)))
        e('v_mul_u32_u24 %s, 9216, %s' % (vr(V_U+1), vr(V_U+1))); e('v_lshl_add_u32 %s, %s, 7, %s' % (vr(V_U+1), vr(V_U+2), vr(V_U+1)))
        e('v_cmp_gt_u32 vcc, 954, %s' % vr(V_U)); e('v_mov_b32 %s, 0x7fff0000' % vr(V_U+3)); e('v_lshlrev_b32 %s, 7, %s' % (vr(V_U), vr(V_U)))
        e('v_cndmask_b32 %s, %s, %s, vcc' % (vr(V_U+1), vr(V_U+3), vr(V_U+1)))
        e('s_and_b32 s51, s2, 7'); e('s_mul_i32 s52, s51, 1152'); e('s_mul_i32 s53, s51, %d' % (576*1152))
        e('s_waitcnt lgkmcnt(0)')
        for k in range(2):
            b = 56 + 4*k
            e('s_mov_b32 s%d, s%d' % (b, 44+2*k)); e('s_mov_b32 s%d, s%d' % (b+1, 45+2*k)); e('s_mov_b32 s%d, 0x%x' % (b+2, D_*F_*2)); e('s_mov_b32 s%d, 0x%x' % (b+3, SRD3))
        if code_pf:
            P.raw('s_getpc_b64 s[64:65]'); P.raw('L_%s_pc:' % name)
            P.raw('s_add_u32 s64, s64, k3_kernel - L_%s_pc' % name); P.raw('s_addc_u32 s65, s65, 0')
            P.raw('s_mov_b32 s66, L_text_end - k3_kernel'); e('s_mov_b32 s67, 0x%x' % SRD3)
            P.raw('buffer_load_dword %s, %s, s[64:67], 0 offen' % (vr(V_B+16), vr(V_U)))
        for k in range(6):
            P.raw('buffer_load_dword %s, %s, s[56:59], s52 offen' % (vr(V_B+k), vr(V_U+1)))
            P.raw('buffer_load_dword %s, %s, s[60:63], s53 offen' % (vr(V_B+8+k), vr(V_U)))
            e('s_add_u32 s52, s52, %d' % (106*9216)); e('s_add_u32 s53, s53, %d' % (960*128))
        if embed: e('s_waitcnt vmcnt(0)')
        e('s_branch %s' % END)
        skip = (help0, len(P.ins))
        P.raw('L_%s_tile:' % name)
    if embed: e('s_waitcnt lgkmcnt(0)')
    e('s_cmp_ge_u32 %s, 22' % sr(S_MG)); e('s_cbranch_scc1 %s' % END)
    if embed:
        e('s_cmp_eq_u32 %s, 3' % sr(S_W)); e('s_cbranch_scc1 L_%s_w3' % name)
        w3br = len(P.ins)
    e('s_mul_i32 %s, %s, 6' % (sr(S_MT), sr(S_MG))); e('s_lshl_b32 %s, %s, 1' % (sr(S_T0), sr(S_W))); e('s_add_u32 %s, %s, %s' % (sr(S_MT), sr(S_MT), sr(S_T0)))
    e('s_mul_i32 %s, %s, %d' % (sr(S_OO), sr(S_MT), 18*1024))
    T = V_T
    e('v_bfe_u32 %s, v0, 1, 3' % vr(T)); e('v_mul_u32_u24 %s, 1152, %s' % (vr(T), vr(T)))
    e('v_lshrrev_b32 %s, 4, v0' % vr(T+1)); e('v_lshl_add_u32 %s, %s, 5, %s' % (vr(T), vr(T+1), vr(T)))
    e('v_and_b32 %s, 1, v0' % vr(T+2)); e('v_lshl_add_u32 %s, %s, 4, %s' % (vr(V_OG), vr(T+2), vr(T)))
    e('v_add_u32 %s, %d, %s' % (vr(V_OG+1), 8*1152 - 1024, vr(V_OG))); e('v_add_u32 %s, %d, %s' % (vr(V_OG+2), 2*(8*1152 - 1024), vr(V_OG)))
    e('s_mul_i32 %s, %s, %d' % (sr(S_WOFF), sr(S_W), 64*1152)); e('s_lshl_b32 %s, %s, 7' % (sr(S_T0), sr(S_NG))); e('s_add_u32 %s, %s, %s' % (sr(S_WOFF), sr(S_WOFF), sr(S_T0)))
    e('s_lshl_b32 s30, %s, 13' % sr(S_W))
    if LB: e('s_add_u32 s30, s30, %d' % LB)
    e('s_waitcnt lgkmcnt(0)')
    for srd, lo, hi, size in ((S_WS, 4, 5, WS_END), (S_WO, 6, 7, D_*D_*2), (S_X, 28, 29, S_*D_*2)):
        e('s_mov_b32 %s, s%d' % (sr(srd), lo)); e('s_mov_b32 %s, s%d' % (sr(srd+1), hi))
        e('s_mov_b32 %s, 0x%x' % (sr(srd+2), size)); e('s_mov_b32 %s, 0x%x' % (sr(srd+3), SRD3))
    def bfrag(ks, mm): return V_B + 8*ks + 4*mm
    stamp('setup')
    SC = 'sc1' if wait1 else ''
    def wo_items(j):
        it = []
        for g, n in ((0, 3), (3, 3), (6, 2)):
            it.append(('S', 's_add_u32 %s, %s, %d' % (sr(S_T0), sr(S_WOFF), (192*j + 8*g)*1152), None))
            it.append(('S', 's_add_u32 m0, s30, %d' % ((24*j + g)*1024), None))
            for q in range(n):
                it.append(('D', 'buffer_load_dwordx4 %s, %s, %s offen offset:%d lds' % (vr(V_OG+q), sr(S_WO,4), sr(S_T0), 1024*q), 'ph%d' % j))
        return it
    def o_items(j):
        it = []
        for ks in range(6*j, 6*j+6):
            for mm in range(2):
                it.append(('S', 's_add_u32 %s, %s, %d' % (sr(S_T1), sr(S_OO), (18*mm + ks)*1024), None))
                it.append(('D', 'buffer_load_dwordx4 %s, %s, %s, %s offen %s' % (vr(bfrag(ks, mm), 4), vr(V_L16), sr(S_WS,4), sr(S_T1), SC), 'ph%d' % j))
        return it
    def phase_items(j): return (wo_items(j) if not wait1 else []) + o_items(j)
    if wait1:
        for j in range(3 if not wo_done else 0):
            for kind, text, tag in wo_items(j):
                e(text, tag=tag)
                if ' m0,' in text: e('s_nop 0')
        e('s_cmp_lg_u32 %s, 0' % sr(S_W)); e('s_cbranch_scc1 L_%s_go1' % name)
        e('s_mul_i32 s40, %s, 3' % sr(S_MG)); e('s_lshr_b32 s40, s40, 1'); e('s_add_u32 s41, s40, 1'); e('s_min_u32 s41, s41, 31')
        e('s_lshl_b32 s40, s40, 8'); e('s_add_u32 s40, s40, 0x%x' % WS_CNT1); e('s_lshl_b32 s41, s41, 8'); e('s_add_u32 s41, s41, 0x%x' % WS_CNT1)
        X0, X1, X2 = V_U, V_U+1, V_U+2
        e('v_lshlrev_b32 %s, 8, v0' % vr(X0)); e('v_add_u32 %s, 0x%x, %s' % (vr(X0), WS_CNTW, vr(X0))); e('v_mov_b32 %s, 72' % vr(X1))
        e('v_cmp_le_u32 vcc, 8, v0'); e('v_mov_b32 %s, s40' % vr(X2)); e('v_mov_b32 %s, 8' % vr(V_U+3))
        e('v_cndmask_b32 %s, %s, %s, vcc' % (vr(X0), vr(X0), vr(X2))); e('v_cndmask_b32 %s, %s, %s, vcc' % (vr(X1), vr(X1), vr(V_U+3)))
        e('v_cmp_le_u32 vcc, 9, v0'); e('v_mov_b32 %s, s41' % vr(X2)); e('s_nop 0')
        e('v_cndmask_b32 %s, %s, %s, vcc' % (vr(X0), vr(X0), vr(X2)))
        e('s_mov_b32 s42, 0x4000')
        P.raw('L_%s_wait1:' % name)
        P.raw('buffer_load_dword %s, %s, %s, 0 offen sc1' % (vr(X2), vr(X0), sr(S_WS,4)))
        P.raw('s_waitcnt vmcnt(0)')
        P.raw('v_cmp_lt_u32 s[44:45], %s, %s' % (vr(X2), vr(X1))); P.raw('s_sub_u32 s42, s42, 1'); P.raw('s_cmp_eq_u32 s42, 0'); P.raw('s_cbranch_scc1 L_%s_go1' % name)
        P.raw('s_nop 3'); P.raw('s_cmp_eq_u64 s[44:45], 0'); P.raw('s_cbranch_scc1 L_%s_go1' % name)
        P.raw('s_sleep %d' % sleep1); P.raw('s_branch L_%s_wait1' % name)
        P.raw('L_%s_go1:' % name)
        e('s_barrier')
        if xstamp: xstamp('go1')
    WB_LDS = LB + 73728
    e('v_and_b32 %s, 1, v0' % vr(V_WBO)); e('v_mul_u32_u24 %s, %d, %s' % (vr(V_WBO), 18*64, vr(V_WBO)))
    e('v_lshrrev_b32 %s, 4, v0' % vr(V_T)); e('v_lshl_add_u32 %s, %s, 4, %s' % (vr(V_WBO), vr(V_T), vr(V_WBO))); e('v_add_u32 %s, %d, %s' % (vr(V_WBO), WB_LDS, vr(V_WBO)))
    e('s_lshl_b32 s37, %s, 10' % sr(S_W)); e('s_add_u32 s38, s37, %d' % WB_LDS); e('s_add_u32 s37, s37, 0x%x' % WS_WB)
    def wb_items(j):
        if j: return []
        if wait1:
            return [('D', 'buffer_load_dwordx4 %s, %s, %s, s37 offen sc1' % (vr(V_U+4, 4), vr(V_L16), sr(S_WS,4)), 'ph0')]
        return [('S', 's_mov_b32 m0, s38', None), ('D', 'buffer_load_dwordx4 %s, %s, s37 offen lds' % (vr(V_L16), sr(S_WS,4)), 'ph0')]
    for j in range(2):
        for kind, text, tag in phase_items(j) + wb_items(j):
            e(text, tag=tag)
            if ' m0,' in text: e('s_nop 0')
    if not embed:
        e('s_cmp_ge_u32 s2, 8'); e('s_cbranch_scc1 L_%s_noflag' % name)
        e('v_cmp_gt_u32 vcc, 128, %s' % vr(V_T+7)); e('s_lshl_b32 %s, s2, 9' % sr(S_T0)); e('s_add_u32 %s, %s, 0x%x' % (sr(S_T0), sr(S_T0), WS_FLAG))
        e('v_lshlrev_b32 %s, 2, %s' % (vr(V_T+6), vr(V_T+7))); e('v_mov_b32 %s, 0' % vr(V_T+5))
        e('s_and_saveexec_b64 s[34:35], vcc'); e('s_cbranch_execz L_%s_noflag2' % name)
        P.raw('buffer_store_dword %s, %s, %s, %s offen' % (vr(V_T+5), vr(V_T+6), sr(S_WS,4), sr(S_T0)))
        P.raw('L_%s_noflag2:' % name)
        e('s_mov_b64 exec, s[34:35]')
        P.raw('L_%s_noflag:' % name)
    stamp('issued')
    e('v_lshrrev_b32 %s, 4, v0' % vr(T+1))
    e('v_bfe_u32 %s, v0, 2, 2' % vr(T)); e('v_lshlrev_b32 %s, 5, %s' % (vr(T), vr(T)))
    e('v_and_b32 %s, 3, v0' % vr(T+2)); e('v_lshl_add_u32 %s, %s, 3, %s' % (vr(T), vr(T+2), vr(T)))
    e('v_and_b32 %s, 1, %s' % (vr(T+2), vr(T+1))); e('v_lshl_add_u32 %s, %s, 7, %s' % (vr(T), vr(T+2), vr(T)))
    e('v_lshrrev_b32 %s, 1, %s' % (vr(T+2), vr(T+1))); e('v_lshl_add_u32 %s, %s, 10, %s' % (vr(V_RD), vr(T+2), vr(T)))
    if LB: e('v_add_u32 %s, %d, %s' % (vr(V_RD), LB, vr(V_RD)))
    e('v_add_u32 %s, 36864, %s' % (vr(V_RD2), vr(V_RD)))
    V_MXO = 251
    e('v_and_b32 %s, 15, v0' % vr(V_MXO)); e('v_lshlrev_b32 %s, 2, %s' % (vr(V_MXO), vr(V_MXO)))
    e('v_and_b32 %s, 15, v0' % vr(T)); e('v_mul_u32_u24 %s, 1152, %s' % (vr(T), vr(T))); e('v_lshl_add_u32 %s, %s, 3, %s' % (vr(V_XO), vr(T+1), vr(T)))
    e('s_mul_i32 s31, %s, %d' % (sr(S_MT), 16*1152)); e('s_lshl_b32 %s, %s, 7' % (sr(S_T0), sr(S_NG))); e('s_add_u32 s31, s31, %s' % sr(S_T0))
    e('s_mov_b32 s32, 0x3f80'); e('s_mov_b32 s33, 0x3f800000')
    if prefetch: prefetch(P, V_U, V_T)
    P.wait_vm_tag('ph0')
    if wait1:
        e('v_add_u32 %s, s38, %s' % (vr(V_U+8), vr(V_L16))); e('ds_write_b128 %s, %s' % (vr(V_U+8), vr(V_U+4, 4))); e('s_waitcnt lgkmcnt(0)')
    i = e('s_barrier'); i.meta = dict(needs='ph0')
    stamp('ph0')
    for ks in range(18):
        e('ds_read_b128 %s, %s offset:%d' % (ar(A_WB + 4*ks, 4), vr(V_WBO), 64*ks))
        if ks == 8: e('s_waitcnt lgkmcnt(0)')
    e('s_waitcnt lgkmcnt(0)')
    S = Stream()
    def acc(nt, mm): return vr(V_ACC + 8*nt + 4*mm, 4)
    for j in range(3):
        fr = []; mf = []
        for mm in range(2):
            for t in range(6):
                ks = 6*j + t
                mf.append(MF(vr(V_MU + 4*mm, 4), None, vr(bfrag(ks, mm), 4), '0' if ks == 0 else vr(V_MU + 4*mm, 4), None, A=ar(A_WB + 4*ks, 4)))
        for nt in range(4):
            for g in range(2):
                f0 = len(fr)
                for t in range(3):
                    ks = 6*j + 3*g + t; kl = ks % 9
                    fr.append(Frag(V_RD if ks < 9 else V_RD2, (4*kl)*1024 + nt*256, (4*kl+2)*1024 + nt*256))
                for mm in range(2):
                    for t in range(3):
                        ks = 6*j + 3*g + t
                        mf.append(MF(acc(nt, mm), f0+t, vr(bfrag(ks, mm), 4), '0' if ks == 0 else acc(nt, mm), [f0, f0+1, f0+2] if (mm == 0 and t == 0) else None))
        S.add(fr, mf)
    fx = Fixed()
    ch = []; g = 0
    for kind, text, tag in phase_items(2) + wb_items(2):
        ch.append((g, kind, text, tag)); g += 1 if kind == 'S' else 1
    ch.append((58, 'S', 's_lshl_b32 s38, %s, 6' % sr(S_MT), None)); ch.append((58, 'S', 's_add_u32 s38, s38, 0x%x' % WS_MX, None))
    for mm in range(2):
        ch.append((60, 'D', 'buffer_load_dword %s, %s, %s, s38 offen offset:%d %s' % (vr(V_MX+mm), vr(V_MXO), sr(S_WS,4), 64*mm, SC), 'x'))
    for mm in range(2):
        ch.append((60, 'S', 's_add_u32 s36, s31, %d' % (16*1152*mm), None))
        for nt in range(4):
            ch.append((60, 'D', 'buffer_load_dwordx2 %s, %s, %s, s36 offen offset:%d' % (vr(V_X + 8*mm + 2*nt, 2), vr(V_XO), sr(S_X,4), 32*nt), 'x'))
    fx.chain(ch)
    for j in (1, 2):
        fx.put(60*j - LAR - 2, 'L', '@waitvm', 'ph%d' % j); fx.put(60*j - LAR - 2, 'B', 's_barrier', 'ph%d' % j)
    emit_stream(P, S, [], fx, [], A_W, NF, LAR, first_reads=True)
    stamp('gemm')
    e('s_cmp_ge_u32 %s, 128' % sr(S_MT)); e('s_cbranch_scc1 L_%s_%s' % (name, 'join' if embed else 'end'))
    P.wait_vm_tag('x')
    e('s_nop 4')
    for mm in range(2):
        for nt in range(4):
            for r in range(4):
                a = V_ACC + 8*nt + 4*mm + r
                e('v_dot2_f32_bf16 %s, %s, s%d, %s' % (vr(a), vr(V_X + 8*mm + 2*nt + r//2), 32 + (r % 2), vr(a)))
    for mm in range(2):
        e('v_add_f32 %s, %s, %s' % (vr(V_MU+4*mm), vr(V_MU+4*mm), vr(V_MU+4*mm+1)))
    for mm in range(2):
        e('v_add_f32 %s, %s, %s' % (vr(V_MU+4*mm), vr(V_MU+4*mm), vr(V_MX+mm)))
    U = V_U
    H = V_U + 8
    def frag_store(mm, ws_off):
        e('s_add_u32 %s, %s, %d' % (sr(S_T0), sr(S_MT), mm)); e('s_mul_i32 %s, %s, 18' % (sr(S_T0), sr(S_T0)))
        e('s_lshl_b32 %s, %s, 1' % (sr(S_T1), sr(S_NG))); e('s_add_u32 %s, %s, %s' % (sr(S_T0), sr(S_T0), sr(S_T1)))
        e('s_lshl_b32 %s, %s, 10' % (sr(S_T0), sr(S_T0))); e('s_add_u32 %s, %s, 0x%x' % (sr(S_T0), sr(S_T0), ws_off))
        for p in range(2):
            hb = H + 8*((mm + (ws_off == WS_HC)) % 2) + 4*p
            for k in range(2):
                a = V_ACC + 8*(2*p+k) + 4*mm
                e('v_cvt_pk_bf16_f32 %s, %s, %s' % (vr(hb+2*k), vr(a), vr(a+1))); e('v_cvt_pk_bf16_f32 %s, %s, %s' % (vr(hb+2*k+1), vr(a+2), vr(a+3)))
            e('buffer_store_dwordx4 %s, %s, %s, %s offen offset:%d sc1' % (vr(hb,4), vr(V_L16), sr(S_WS,4), sr(S_T0), 1024*p))
    for mm in range(2):
        for nt in range(4):
            for r in range(4):
                a = vr(V_ACC + 8*nt + 4*mm + r)
                e('v_sub_f32 %s, %s, %s' % (vr(V_B + 16*mm + 4*nt + r), a, vr(V_MU+4*mm)))
    for mm in range(2):
        e('s_add_u32 %s, %s, %d' % (sr(S_T0), sr(S_MT), mm)); e('s_mul_i32 %s, %s, 18' % (sr(S_T0), sr(S_T0)))
        e('s_lshl_b32 %s, %s, 1' % (sr(S_T1), sr(S_NG))); e('s_add_u32 %s, %s, %s' % (sr(S_T0), sr(S_T0), sr(S_T1)))
        e('s_lshl_b32 %s, %s, 10' % (sr(S_T0), sr(S_T0))); e('s_add_u32 s39, %s, 0x%x' % (sr(S_T0), WS_HC))
        for p in range(2):
            hb = V_B + 32 + 8*mm + 4*p
            for k in range(2):
                a = V_B + 16*mm + 4*(2*p+k)
                e('v_cvt_pk_bf16_f32 %s, %s, %s' % (vr(hb+2*k), vr(a), vr(a+1))); e('v_cvt_pk_bf16_f32 %s, %s, %s' % (vr(hb+2*k+1), vr(a+2), vr(a+3)))
            e('buffer_store_dwordx4 %s, %s, %s, s39 offen offset:%d sc1' % (vr(hb,4), vr(V_L16), sr(S_WS,4), 1024*p))
    for mm in range(2):
        first = True
        for nt in range(4):
            for r in range(4):
                a = vr(V_B + 16*mm + 4*nt + r)
                if first: e('v_mul_f32 %s, %s, %s' % (vr(U+2*mm+1), a, a)); first = False
                else: e('v_fma_f32 %s, %s, %s, %s' % (vr(U+2*mm+1), a, a, vr(U+2*mm+1)))
    for swap in ('v_permlane32_swap_b32', 'v_permlane16_swap_b32'):
        for k in (1, 3): e('v_mov_b32 %s, %s' % (vr(U+4+k), vr(U+k)))
        e('s_nop 1')
        for k in (1, 3): e('%s %s, %s' % (swap, vr(U+k), vr(U+4+k)))
        e('s_nop 1')
        for k in (1, 3): e('v_add_f32 %s, %s, %s' % (vr(U+k), vr(U+k), vr(U+4+k)))
    for mm in range(2): e('v_mov_b32 %s, %s' % (vr(U+2*mm), vr(V_MU+4*mm)))
    e('v_and_b32 %s, 15, v0' % vr(T)); e('v_lshlrev_b32 %s, 3, %s' % (vr(T), vr(T)))
    e('s_lshl_b32 %s, %s, 11' % (sr(S_T0), sr(S_NG))); e('s_lshl_b32 %s, %s, 4' % (sr(S_T1), sr(S_MT))); e('s_add_u32 %s, %s, %s' % (sr(S_T0), sr(S_T0), sr(S_T1)))
    e('s_lshl_b32 %s, %s, 3' % (sr(S_T0), sr(S_T0))); e('s_add_u32 %s, %s, 0x%x' % (sr(S_T0), sr(S_T0), WS_ST))
    e('s_mov_b64 exec, 0xffff')
    for mm in range(2):
        e('buffer_store_dwordx2 %s, %s, %s, %s offen offset:%d %s' % (vr(U+2*mm, 2), vr(T), sr(S_WS,4), sr(S_T0), 128*mm, 'sc1' if embed else ''))
    if embed:
        P.raw('L_%s_join:' % name)
        e('s_mov_b64 exec, -1')
        P.raw('s_waitcnt vmcnt(0)'); P.vmq = []
        e('s_barrier')
        e('s_cmp_lg_u32 %s, 0' % sr(S_W)); e('s_cbranch_scc1 %s' % END)
        e('s_lshl_b32 %s, %s, 8' % (sr(S_T0), sr(S_MG))); e('s_add_u32 %s, %s, 0x%x' % (sr(S_T0), sr(S_T0), WS_CNT)); e('v_mov_b32 %s, 1' % vr(V_T))
        e('s_mov_b64 exec, 1')
        P.raw('buffer_atomic_add %s, off, %s, %s' % (vr(V_T), sr(S_WS,4), sr(S_T0)))
        e('s_mov_b64 exec, -1')
        e('s_branch %s' % END)
        w3 = len(P.ins)
        P.raw('L_%s_w3:' % name)
        for _ in range(5 if wait1 else 4): e('s_barrier')
        P.segs = dict(start=start, skip=skip, w3=w3, w3br=w3br, end=len(P.ins))
        return P, None
    stamp('epi'); stamp.finish()
    P.raw('L_%s_end:' % name)
    e('s_endpgm')
    P.path = P.ins[:skip[0]] + P.ins[skip[1]:]
    return P, dict(stamps=stamp.names, vgpr=256+120, accum=256, sgpr=102 if dbg else (72 if pf else 40), grid=NWG, block=192, lds=73728 + 3072)

if __name__ == '__main__':
    P, o = build(); check(P.ins, 'k2'); print(verify_barriers(P.ins))
```

```python
from core import *
from common import *
from sched import *
import k1, k2

SLOT = 36864
NF, LAR = 12, 12
def set_lar(x):
    global LAR
    LAR = x
V_RD, V_RD2 = 3, 4
V_PG, V_PH, V_PDE, V_PDO = 5, 6, 7, 8
V_OG, V_OH, V_OD = 9, 12, 15
V_C0, V_C1, V_K = 24, 26, 28
V_L16, V_FL = 30, 31
V_PO = 1
V_T = 32
V_H, V_HH = 40, 56
V_G, V_U = 64, 96
V_X = 128
A_OUT, A_X, A_W, A_HP = 0, 144, 160, 208
S_WG, S_WU, S_WD, S_WS = 8, 12, 16, 20
S_W = 24
S_GCOL, S_HCOL, S_DROW = 25, 26, 27
S_E = 28
S_HXO, S_HXP, S_P = 33, 34, 35
S_WR, S_WRAP, S_WOFF, S_RD = 36, 37, 38, 39
S_CNT, S_T0, S_T1 = 40, 41, 42
S_FLO, S_FLP, S_FVAL = 43, 44, 45
S_LO, S_HI = 46, 47
S_XO = 48
S_A, S_B, S_C, S_D = 50, 51, 52, 53
S_JP, S_S, S_I, S_FB, S_HB = 58, 59, 60, 61, 62
OPT = dict(no_dma=False, no_bar=False, no_valu=False, cap=3)

def xi_reg(ks, mm):
    xi = 2*ks + mm
    return ('v', V_X + 4*xi) if xi < 32 else ('a', A_X + 4*(xi-32))
def xfrag(ks, mm):
    k, b = xi_reg(ks, mm); return vr(b, 4) if k == 'v' else ar(b, 4)
def hpfrag(th, mm):
    x = 2*th + mm
    return ar(A_HP + 4*x, 4) if x < 12 else vr(V_X + 4*(x-12), 4)
def acc(base, ft, mm): return vr(base + 8*ft + 4*mm, 4)
def out(nt, mm): return ar(A_OUT + 8*nt + 4*mm, 4)

def st_GU(base, kh, first, fts=(0,1,2,3), rd=V_RD):
    fr = []; mf = []
    for ft in fts:
        for g in range(3):
            f0 = len(fr)
            for t in range(3):
                kl = 3*g + t
                fr.append(Frag(rd, (4*kl)*1024 + ft*256, (4*kl+2)*1024 + ft*256))
            for mm in range(2):
                for t in range(3):
                    kl = 3*g + t
                    C = '0' if (first and kl == 0) else acc(base, ft, mm)
                    mf.append(MF(acc(base, ft, mm), f0+t, xfrag(9*kh+kl, mm), C, [f0, f0+1, f0+2] if (mm == 0 and t == 0) else None))
    return fr, mf
def st_half(base):
    fr = []; mf = []
    for ft in range(2):
        for g in range(6):
            f0 = len(fr)
            for t in range(3):
                ks = 3*g + t
                fr.append(Frag(V_RD, (2*ks)*1024 + ft*512, (2*ks+1)*1024 + ft*512))
            for mm in range(2):
                for t in range(3):
                    ks = 3*g + t
                    C = '0' if ks == 0 else acc(base, ft, mm)
                    mf.append(MF(acc(base, ft, mm), f0+t, xfrag(ks, mm), C, [f0, f0+1, f0+2] if (mm == 0 and t == 0) else None))
    return fr, mf
def st_D(bf):
    fr = []; mf = []
    for nt in range(18):
        f0 = len(fr); rd = V_RD if nt % 2 == 0 else V_RD2
        for kq in range(2): fr.append(Frag(rd, (2*kq)*9216 + nt*128, (2*kq+1)*9216 + nt*128))
        for mm in range(2):
            for kq in range(2):
                w = [f0, f0+1, f0+2, f0+3] if (nt % 2 == 0 and mm == 0 and kq == 0) else None
                mf.append(MF(out(nt, mm), f0+kq, bf[kq][mm], out(nt, mm), w))
    return fr, mf
def st_final(bf, rdA, rdB):
    fr = []; mf = []
    for nt in range(18):
        f0 = len(fr)
        for k in range(4):
            rd = (rdA if k < 2 else rdB)[nt % 2]; kq = k % 2
            fr.append(Frag(rd, (2*kq)*9216 + nt*128, (2*kq+1)*9216 + nt*128))
        for mm in range(2):
            for k in range(4):
                w = [f0, f0+1, f0+2, f0+3] if (mm == 0 and k == 0) else None
                mf.append(MF(out(nt, mm), f0+k, bf[k][mm], out(nt, mm), w))
    return fr, mf

V_OF, V_PF = 160, 169
def st_F(bf, nh):
    fr = []; mf = []
    for ntl in range(9):
        f0 = len(fr); nt = 9*nh + ntl
        for k in range(4): fr.append(Frag(V_RD, k*9216 + ntl*128, k*9216 + 4608 + ntl*128))
        for mm in range(2):
            for k in range(4):
                w = [f0, f0+1, f0+2, f0+3] if (mm == 0 and k == 0) else None
                mf.append(MF(out(nt, mm), f0+k, bf[k][mm], out(nt, mm), w))
    return fr, mf
def dma_F(srow, tag):
    it = []
    for q in range(9):
        it.append(('S', 's_add_u32 m0, %s, %d' % (sr(S_WR), 1024*q) if q else 's_mov_b32 m0, %s' % sr(S_WR), None))
        it.append(('D', 'buffer_load_dwordx4 %s, %s, %s offen lds' % (vr(V_OF+q), sr(S_WD,4), srow), tag))
    return it + [('S', t, None) for t in rot_wr()]
def f_setup_ops():
    a = []; t0, t1, t2, t3 = 170, 171, 172, 173
    a.append('v_bfe_u32 %s, v0, 1, 2' % vr(t0)); a.append('v_mul_u32_u24 %s, 1152, %s' % (vr(t0), vr(t0)))
    a.append('v_and_b32 %s, 1, v0' % vr(t1)); a.append('v_lshl_add_u32 %s, %s, 4, %s' % (vr(t0), vr(t1), vr(t0))); a.append('v_lshrrev_b32 %s, 3, v0' % vr(t1))
    for p in range(9):
        d = vr(V_OF+p)
        a.append('v_add_u32 %s, %d, %s' % (d, 8*p, vr(t1)))
        a.append('v_mul_u32_u24 %s, 57, %s' % (vr(t2), d)); a.append('v_lshrrev_b32 %s, 9, %s' % (vr(t2), vr(t2)))
        a.append('v_mul_u32_u24 %s, 9, %s' % (vr(t3), vr(t2))); a.append('v_sub_u32 %s, %s, %s' % (d, d, vr(t3)))
        a.append('v_mul_u32_u24 %s, 4608, %s' % (vr(t2), vr(t2))); a.append('v_lshl_add_u32 %s, %s, 5, %s' % (d, d, vr(t2)))
        a.append('v_add_u32 %s, %s, %s' % (d, d, vr(t0)))
    a.append('v_lshrrev_b32 %s, 4, v0' % vr(t1)); a.append('v_mul_u32_u24 %s, 1152, %s' % (vr(t1), vr(t1)))
    a.append('v_bfe_u32 %s, v0, 2, 2' % vr(t2)); a.append('v_lshl_add_u32 %s, %s, 5, %s' % (vr(t1), vr(t2), vr(t1)))
    a.append('v_and_b32 %s, 3, v0' % vr(t2)); a.append('v_lshl_add_u32 %s, %s, 3, %s' % (vr(V_PF), vr(t2), vr(t1)))
    return a
assert all((b*57) >> 9 == b//9 for b in range(72))

def gelu_ops(ft, vals, tb):
    ops = []
    for g0 in range(0, len(vals), 4):
        grp = vals[g0:g0+4]
        def G(v): return vr(V_G + 8*ft + 4*v[0] + v[1])
        steps = [lambda v, t: 'v_mul_f32 %s, %s, %s' % (t, G(v), G(v)),
                 lambda v, t: 'v_fma_f32 %s, %s, %s, %s' % (t, t, vr(V_C1+v[0]), vr(V_C0+v[0])),
                 lambda v, t: 'v_mul_f32 %s, %s, %s' % (t, G(v), t),
                 lambda v, t: 'v_exp_f32 %s, %s' % (t, t),
                 lambda v, t: 'v_fma_f32 %s, %s, %s, %s' % (t, t, vr(V_K+v[0]), vr(V_K+v[0])),
                 lambda v, t: 'v_rcp_f32 %s, %s' % (t, t),
                 lambda v, t: 'v_mul_f32 %s, %s, %s' % (G(v), G(v), t)]
        for st in steps:
            for n, v in enumerate(grp): ops.append(Op(st(v, vr(tb+n))))
    return ops
ALLV = [(mm, r) for mm in range(2) for r in range(4)]
def gelu_q(ft, name, tb): return Queue(gelu_ops(ft, ALLV, tb), name)
def prod_q(ft, H, name, store=None):
    ops = []
    for mm in range(2):
        for r in range(4):
            g = vr(V_G + 8*ft + 4*mm + r)
            ops.append(Op('v_mul_f32 %s, %s, %s' % (g, g, vr(V_U + 8*ft + 4*mm + r))))
    for mm in range(2):
        for d in range(2):
            g = V_G + 8*ft + 4*mm + 2*d
            ops.append(Op('v_cvt_pk_bf16_f32 %s, %s, %s' % (vr(H + 4*mm + 2*(ft % 2) + d), vr(g), vr(g+1))))
    if store:
        soff, imm0, tag = store
        for mm in range(2):
            ops.append(Op('buffer_store_dwordx4 %s, %s, %s, %s offen offset:%d %s' % (vr(H + 4*mm, 4), vr(V_L16), sr(S_WS,4), soff, imm0 + 1024*mm, OPT.get('hst_flags', 'sc1')), tag=tag))
    return Queue(ops, name, prio=True)

S_CW, S_CR = 96, 97
S_CPF = 99
S_GCOL2, S_XO2 = 100, 101
def rot_wr(): return ['s_add_u32 %s, %s, 1' % (sr(S_CW), sr(S_CW)), 's_and_b32 %s, %s, 3' % (sr(S_CW), sr(S_CW)),
                      's_mul_i32 %s, %s, %d' % (sr(S_WR), sr(S_CW), SLOT), 's_add_u32 %s, %s, %s' % (sr(S_WR), sr(S_WR), sr(S_WOFF))]
def rot_rd(): return ['s_add_u32 %s, %s, 1' % (sr(S_CR), sr(S_CR)), 's_and_b32 %s, %s, 3' % (sr(S_CR), sr(S_CR)),
                      's_mul_i32 %s, %s, %d' % (sr(S_RD), sr(S_CR), SLOT)]
def dma_G(srd, scol, kh, tag, step_rows=8):
    it = []
    vo = V_OG if step_rows == 8 else V_OH
    for g in range(3):
        const = 3*g*step_rows*9216
        if step_rows == 8 and kh == 1: scol = sr(S_GCOL2)
        it.append(('S', 's_add_u32 %s, %s, 0x%x' % (sr(S_T0), scol, const) if const else 's_mov_b32 %s, %s' % (sr(S_T0), scol), None))
        it.append(('S', 's_add_u32 m0, %s, %d' % (sr(S_WR), 3072*g) if g else 's_mov_b32 m0, %s' % sr(S_WR), None))
        for q in range(3):
            it.append(('D', 'buffer_load_dwordx4 %s, %s, %s offen offset:%d %s lds' % (vr(vo+q), sr(srd,4), sr(S_T0), 1024*q, OPT.get('dma_flags', '')), tag))
    return it + [('S', t, None) for t in rot_wr()]
def dma_D(srow, tag):
    it = []
    for q in range(9):
        it.append(('S', 's_add_u32 m0, %s, %d' % (sr(S_WR), 1024*q) if q else 's_mov_b32 m0, %s' % sr(S_WR), None))
        it.append(('D', 'buffer_load_dwordx4 %s, %s, %s offen %s lds' % (vr(V_OD+q), sr(S_WD,4), srow, OPT.get('dma_flags', '')), tag))
    return it + [('S', t, None) for t in rot_wr()]
def put_dma(chain, g0, items, step=None):
    step = step or OPT.get('dma_step', 7)
    k = 0; pend = []
    for kind, text, tag in items:
        if kind == 'S': pend.append(text)
        else:
            due = g0 + step*k; k += 1
            for n, t in enumerate(pend): chain.append((max(0, due - 2*len(pend) + 2*n - 1), 'S', t, None))
            pend = []
            chain.append((due, 'D', text, tag))
    for n, t in enumerate(pend): chain.append((g0 + step*(k-1) + 1, 'S', t, None))
def put_bar(fx, end, tags, pats, rot=True):
    gb = end - LAR - 2
    if rot: fx.chain([(gb - 12, 'S', t, None) for t in rot_rd()])
    tag = tags if not isinstance(tags, (list, tuple)) else tags[-1]
    fx.put(gb, 'L', '@waitvm', tag)
    fx.put(gb, 'B', 's_barrier', tags)
    for rd, pat in pats: fx.put(gb+1, 'R', 'v_add_u32 %s, %s, %s' % (vr(rd), sr(S_RD), vr(pat)))
PAT_G = [(V_RD, V_PG)]; PAT_H = [(V_RD, V_PH)]; PAT_D = [(V_RD, V_PDE), (V_RD2, V_PDO)]

def build(name='k3_kernel', dbg=False):
    P = Prog(); e = P.e
    stamps = []
    def stamp(label):
        if not dbg: return
        k = len(stamps); stamps.append(label); assert k < 13
        P.raw('s_memtime s[92:93]'); P.raw('s_memrealtime s[90:91]'); P.raw('s_waitcnt lgkmcnt(0)')
        P.raw('s_mov_b32 s%d, s92' % (64+k)); P.raw('s_mov_b32 s%d, s90' % (77+k))
    info = {}
    FUSE = OPT.get('fuse2', False)
    e('s_cmp_ge_u32 s2, 256'); e('s_cbranch_scc1 L_%s_end' % name)
    stamp('start')
    if FUSE:
        FUSE1 = OPT.get('fuse1', False)
        if FUSE1:
            k1.build(name + '_p0', pf=tuple(OPT.get('k1pf', ())) + (('wotile',) if OPT.get('wotile', False) else ()), P=P, embed=True, entry=name, xstamp=stamp if dbg else None)
            k1paths = P.k1paths
            P.vmq = []; P.lgq = []
        k2s = len(P.ins)
        k2.build(name + '_p1', pf='help', P=P, embed='L_%s_mlp' % name, wait1=FUSE1, xstamp=stamp if dbg else None, sleep1=OPT.get('sleep1', 6), wo_done=FUSE1 and OPT.get('wotile', False))
        segs = P.segs
        P.raw('L_%s_mlp:' % name)
        P.vmq = []; P.lgq = []
        e('s_mov_b32 %s, s20' % sr(S_W))
        stamp('k2')
    if dbg: e('s_load_dwordx2 s[94:95], s[0:1], %d' % KA_DBG)
    e('s_load_dwordx2 s[56:57], s[0:1], %d' % KA_WS)
    e('s_load_dwordx4 s[4:7], s[0:1], %d' % KA_WG)
    e('s_load_dwordx2 s[54:55], s[0:1], %d' % KA_WD)
    if not FUSE:
        e('v_lshrrev_b32 v1, 6, v0'); e('v_and_b32 v0, 63, v0')
        e('v_readfirstlane_b32 %s, v1' % sr(S_W))
    e('v_lshlrev_b32 %s, 4, v0' % vr(V_L16))
    e('v_lshrrev_b32 v2, 4, v0'); e('v_and_b32 v1, 15, v0'); e('v_lshl_add_u32 v1, v2, 11, v1'); e('v_lshlrev_b32 v1, 3, v1')
    if OPT.get('map', 0) == 0:
        e('s_and_b32 %s, s2, 7' % sr(S_JP))
        e('s_lshr_b32 %s, s2, 3' % sr(S_I)); e('s_and_b32 %s, %s, 1' % (sr(S_S), sr(S_I))); e('s_lshr_b32 %s, %s, 1' % (sr(S_I), sr(S_I)))
    else:
        e('s_bfe_u32 %s, s2, 0x20001' % sr(S_JP)); e('s_lshl_b32 %s, %s, 1' % (sr(S_JP), sr(S_JP)))
        e('s_bfe_u32 %s, s2, 0x10004' % sr(S_T0)); e('s_add_u32 %s, %s, %s' % (sr(S_JP), sr(S_JP), sr(S_T0)))
        e('s_bfe_u32 %s, s2, 0x10003' % sr(S_S))
        e('s_and_b32 %s, s2, 1' % sr(S_I)); e('s_lshl_b32 %s, %s, 3' % (sr(S_I), sr(S_I)))
        e('s_lshr_b32 %s, s2, 5' % sr(S_T0)); e('s_add_u32 %s, %s, %s' % (sr(S_I), sr(S_I), sr(S_T0)))
    e('s_lshl_b32 %s, %s, 2' % (sr(S_T0), sr(S_I))); e('s_add_u32 %s, %s, %s' % (sr(S_T0), sr(S_T0), sr(S_W)))
    e('s_mul_i32 %s, %s, %d' % (sr(S_XO), sr(S_T0), 2*18*1024)); e('s_add_u32 %s, %s, 0x%x' % (sr(S_XO), sr(S_XO), WS_HC))
    e('s_lshl_b32 %s, %s, 8' % (sr(S_D), sr(S_T0)))
    e('s_mul_i32 %s, %s, %d' % (sr(S_T1), sr(S_S), 9216 if OPT.get('kswap', False) else 0)); e('s_sub_u32 %s, %s, %s' % (sr(S_XO2), sr(S_XO), sr(S_T1))); e('s_add_u32 %s, %s, %s' % (sr(S_XO), sr(S_XO), sr(S_T1)))
    e('s_waitcnt lgkmcnt(0)')
    def mksrd(srd, lo, hi, size):
        e('s_mov_b32 %s, s%d' % (sr(srd), lo)); e('s_mov_b32 %s, s%d' % (sr(srd+1), hi))
        e('s_mov_b32 %s, 0x%x' % (sr(srd+2), size)); e('s_mov_b32 %s, 0x%x' % (sr(srd+3), SRD3))
    mksrd(S_WS, 56, 57, WS_END); mksrd(S_WG, 4, 5, D_*F_*2); mksrd(S_WU, 6, 7, D_*F_*2)
    e('s_add_u32 s4, s56, 0x%x' % WS_ST); e('s_addc_u32 s5, s57, 0'); e('s_mov_b32 s6, %d' % (9*2048*8)); e('s_mov_b32 s7, 0x%x' % SRD3)
    e('v_mov_b32 %s, v1' % vr(V_HH))
    def xload(P, ks):
        for mm in range(2):
            P.e('s_add_u32 %s, %s, %d' % (sr(S_T1), sr(S_XO if ks < 9 else S_XO2), (18*mm+ks)*1024))
            P.e('buffer_load_dwordx4 %s, %s, %s, %s offen %s' % (xfrag(ks, mm), vr(V_L16), sr(S_WS,4), sr(S_T1), 'sc1' if FUSE else ''), tag='x%d' % ks)
    def stload(P):
        for t in range(3):
            P.e('s_add_u32 %s, %s, %d' % (sr(S_T1), sr(S_D), t*4*2048*8 + 4))
            for mm in range(2):
                P.e('buffer_load_dword %s, %s, s[4:7], %s offen offset:%d %s' % (vr(V_H + 2*t + mm), vr(V_HH), sr(S_T1), 128*mm, 'sc1' if FUSE else ''), tag='st')
    def dma_now(items):
        for kind, text, tag in items:
            e(text, tag=tag)
            if text.startswith('s_add_u32 m0') or text.startswith('s_mov_b32 m0'): e('s_nop 0')
    if OPT.get('pro_stamps'): stamp('karg')
    if not FUSE: xload(P, 0); xload(P, 1)
    mksrd(S_WD, 54, 55, D_*F_*2)
    e('v_bfe_u32 v1, v0, 1, 3'); e('v_mul_u32_u24 v1, 9216, v1')
    e('v_lshl_add_u32 v1, v2, 5, v1')
    e('v_and_b32 %s, 1, v0' % vr(V_T)); e('v_lshl_add_u32 %s, %s, 4, v1' % (vr(V_OG), vr(V_T)))
    e('v_add_u32 %s, %d, %s' % (vr(V_OG+1), 8*9216 - 1024, vr(V_OG))); e('v_add_u32 %s, %d, %s' % (vr(V_OG+2), 2*(8*9216 - 1024), vr(V_OG)))
    e('s_mul_i32 %s, %s, 576' % (sr(S_T0), sr(S_JP)))
    e('s_mul_i32 %s, %s, 320' % (sr(S_T1), sr(S_S))); e('s_add_u32 %s, %s, %s' % (sr(S_FB), sr(S_T0), sr(S_T1)))
    e('s_lshl_b32 %s, %s, 5' % (sr(S_T1), sr(S_S))); e('s_add_u32 %s, %s, %s' % (sr(S_HB), sr(S_T0), sr(S_T1))); e('s_add_u32 %s, %s, 256' % (sr(S_HB), sr(S_HB)))
    e('s_mul_i32 %s, %s, %d' % (sr(S_T0), sr(S_W), 9*8*9216)); e('s_lshl_b32 %s, %s, 1' % (sr(S_T1), sr(S_FB)))
    e('s_add_u32 %s, %s, %s' % (sr(S_GCOL), sr(S_T0), sr(S_T1)))
    e('s_mul_i32 %s, %s, %d' % (sr(S_T1), sr(S_S), 288*9216 if OPT.get('kswap', False) else 0))
    e('s_add_u32 %s, %s, %d' % (sr(S_GCOL2), sr(S_GCOL), 288*9216)); e('s_sub_u32 %s, %s, %s' % (sr(S_GCOL2), sr(S_GCOL2), sr(S_T1))); e('s_add_u32 %s, %s, %s' % (sr(S_GCOL), sr(S_GCOL), sr(S_T1)))
    e('s_mul_i32 %s, %s, 9216' % (sr(S_WOFF), sr(S_W))); e('s_mov_b32 %s, 0' % sr(S_CW)); e('s_mov_b32 %s, 1' % sr(S_CR))
    e('s_mov_b32 %s, %s' % (sr(S_WR), sr(S_WOFF)))
    T = V_T
    pat = []; a = pat.append
    a('v_bfe_u32 %s, v0, 2, 2' % vr(T)); a('v_lshlrev_b32 %s, 5, %s' % (vr(T), vr(T)))
    a('v_and_b32 %s, 3, v0' % vr(T+1)); a('v_lshl_add_u32 %s, %s, 3, %s' % (vr(T), vr(T+1), vr(T)))
    a('v_lshl_add_u32 %s, v2, 7, %s' % (vr(V_PH), vr(T)))
    a('v_and_b32 %s, 1, v2' % vr(T+1)); a('v_lshlrev_b32 %s, 7, %s' % (vr(T+1), vr(T+1)))
    a('v_lshrrev_b32 %s, 1, v2' % vr(T+2)); a('v_lshl_add_u32 %s, %s, 10, %s' % (vr(T+2), vr(T+2), vr(T)))
    a('v_add_u32 %s, %s, %s' % (vr(V_PG), vr(T+2), vr(T+1)))
    a('v_mul_u32_u24 %s, 2304, v2' % vr(T+2)); a('v_add_u32 %s, %s, %s' % (vr(T+2), vr(T+2), vr(T)))
    a('v_add_u32 %s, %s, %s' % (vr(V_PDE), vr(T+2), vr(T+1))); a('v_sub_u32 %s, %s, %s' % (vr(V_PDO), vr(T+2), vr(T+1)))
    rest = []
    a = rest.append
    a('v_and_b32 v1, 1, v0'); a('v_bfe_u32 v2, v0, 1, 4'); a('v_mul_u32_u24 v2, 9216, v2'); a('v_lshl_add_u32 v2, v1, 4, v2')
    a('v_lshrrev_b32 v1, 5, v0'); a('v_lshl_add_u32 %s, v1, 5, v2' % vr(V_OH))
    a('v_add_u32 %s, %d, %s' % (vr(V_OH+1), 16*9216 - 1024, vr(V_OH))); a('v_add_u32 %s, %d, %s' % (vr(V_OH+2), 2*(16*9216 - 1024), vr(V_OH)))
    T2 = V_T + 4
    a('v_bfe_u32 v1, v0, 1, 2'); a('v_mul_u32_u24 v1, 1152, v1'); a('v_and_b32 v2, 1, v0'); a('v_lshl_add_u32 v1, v2, 4, v1'); a('v_lshrrev_b32 v2, 3, v0')
    for p in range(9):
        d = vr(V_OD+p)
        a('v_add_u32 %s, %d, v2' % (d, 8*p))
        a('v_mul_u32_u24 %s, 57, %s' % (vr(T2), d)); a('v_lshrrev_b32 %s, 10, %s' % (vr(T2), vr(T2)))
        a('v_mul_u32_u24 %s, 18, %s' % (vr(T2+1), vr(T2))); a('v_sub_u32 %s, %s, %s' % (d, d, vr(T2+1)))
        a('v_and_b32 %s, 1, %s' % (vr(T2+1), vr(T2))); a('v_xor_b32 %s, %s, %s' % (d, d, vr(T2+1)))
        a('v_mul_u32_u24 %s, 4608, %s' % (vr(T2), vr(T2))); a('v_lshl_add_u32 %s, %s, 5, %s' % (d, d, vr(T2)))
        a('v_add_u32 %s, %s, v1' % (d, d))
    for r in range(144): a('v_accvgpr_write_b32 a%d, 0' % (A_OUT + r))
    s_ = []
    b = s_.append
    b('s_mul_i32 %s, %s, %d' % (sr(S_A), sr(S_W), 9*16*9216)); b('s_lshl_b32 %s, %s, 1' % (sr(S_B), sr(S_HB))); b('s_add_u32 %s, %s, %s' % (sr(S_HCOL), sr(S_A), sr(S_B)))
    if OPT.get('kswap', False):
        b('s_mul_i32 %s, %s, %d' % (sr(S_A), sr(S_S), 288*9216)); b('s_sub_u32 %s, 0, %s' % (sr(S_B), sr(S_A)))
        s_.append(['s_cmp_lt_u32 %s, 2' % sr(S_W), 's_cselect_b32 %s, %s, %s' % (sr(S_A), sr(S_A), sr(S_B))])
        b('s_add_u32 %s, %s, %s' % (sr(S_HCOL), sr(S_HCOL), sr(S_A)))
    b('s_mul_i32 s63, %s, 576' % sr(S_S))
    b('s_lshl_b32 %s, %s, 4' % (sr(S_C), sr(S_W)))
    b('s_add_u32 %s, %s, %s' % (sr(S_A), sr(S_FB), sr(S_C))); b('s_mul_i32 %s, %s, 1152' % (sr(S_A), sr(S_A))); b('s_add_u32 %s, %s, s63' % (sr(S_DROW), sr(S_A)))
    b('s_xor_b32 %s, %s, 1' % (sr(S_B), sr(S_S))); b('s_mul_i32 %s, %s, 576' % (sr(S_A), sr(S_JP)))
    b('s_mul_i32 s54, %s, 320' % sr(S_B)); b('s_add_u32 s54, s54, %s' % sr(S_A))
    b('s_lshl_b32 s55, %s, 5' % sr(S_B)); b('s_add_u32 s55, s55, %s' % sr(S_A)); b('s_add_u32 s55, s55, 256')
    b('s_and_b32 s56, %s, 1' % sr(S_W)); b('s_lshl_b32 s56, s56, 4')
    b('s_lshr_b32 s57, %s, 1' % sr(S_W))
    for ee, th0 in enumerate((0, 2, 4, 5, 7)):
        d = sr(S_E+ee)
        b('s_lshl_b32 %s, s57, 5' % d); b('s_add_u32 %s, %s, s54' % (d, d))
        b('s_add_u32 %s, %s, %d' % (d, d, 32*th0))
        if ee == 3: s_.append(['s_cmp_eq_u32 s57, 0', 's_cselect_b32 %s, %s, %s' % (d, sr(S_HB), d)])
        if ee == 4: s_.append(['s_cmp_eq_u32 s57, 1', 's_cselect_b32 %s, s55, %s' % (d, d)])
        b('s_add_u32 %s, %s, s56' % (d, d)); b('s_mul_i32 %s, %s, 1152' % (d, d)); b('s_add_u32 %s, %s, s63' % (d, d))
    if OPT.get('final', 3) == 3:
        d = sr(S_E+3)
        b('s_add_u32 %s, s54, 192' % d)
        s_.append(['s_cmp_eq_u32 %s, 2' % sr(S_W), 's_cselect_b32 %s, 32, 0' % sr(S_A)]); b('s_add_u32 %s, %s, %s' % (d, d, sr(S_A)))
        s_.append(['s_cmp_eq_u32 %s, 0' % sr(S_W), 's_cselect_b32 %s, %s, %s' % (d, sr(S_HB), d)])
        s_.append(['s_cmp_eq_u32 %s, 3' % sr(S_W), 's_cselect_b32 %s, s55, %s' % (d, d)])
        b('s_mul_i32 %s, %s, 1152' % (d, d)); b('s_add_u32 %s, %s, s63' % (d, d)); b('s_add_u32 %s, %s, 288' % (sr(S_E+4), d))
    b('s_lshl_b32 %s, s2, 2' % sr(S_A)); b('s_add_u32 %s, %s, %s' % (sr(S_A), sr(S_A), sr(S_W)))
    b('s_lshl_b32 %s, %s, 2' % (sr(S_FLO), sr(S_A))); b('s_add_u32 %s, %s, 0x%x' % (sr(S_FLO), sr(S_FLO), WS_FLAG))
    b('s_mul_i32 %s, %s, 18432' % (sr(S_HXO), sr(S_A))); b('s_add_u32 %s, %s, 0x%x' % (sr(S_HXO), sr(S_HXO), WS_HX))
    b('s_xor_b32 %s, s2, 8' % sr(S_A)); b('s_lshl_b32 %s, %s, 2' % (sr(S_A), sr(S_A))); b('s_add_u32 %s, %s, %s' % (sr(S_A), sr(S_A), sr(S_W)))
    b('s_lshl_b32 %s, %s, 2' % (sr(S_FLP), sr(S_A))); b('s_add_u32 %s, %s, 0x%x' % (sr(S_FLP), sr(S_FLP), WS_FLAG))
    b('s_mul_i32 %s, %s, 18432' % (sr(S_HXP), sr(S_A))); b('s_add_u32 %s, %s, 0x%x' % (sr(S_HXP), sr(S_HXP), WS_HX))
    b('s_lshl_b32 %s, %s, 1' % (sr(S_A), sr(S_I))); b('s_add_u32 %s, %s, %s' % (sr(S_A), sr(S_A), sr(S_S)))
    b('s_lshl_b32 %s, %s, 3' % (sr(S_A), sr(S_A))); b('s_add_u32 %s, %s, %s' % (sr(S_A), sr(S_A), sr(S_JP)))
    b('s_lshl_b32 %s, %s, 2' % (sr(S_A), sr(S_A))); b('s_add_u32 %s, %s, %s' % (sr(S_A), sr(S_A), sr(S_W)))
    b('s_mul_i32 %s, %s, 18432' % (sr(S_P), sr(S_A))); b('s_add_u32 %s, %s, 0x%x' % (sr(S_P), sr(S_P), WS_P))
    b('s_mov_b32 %s, 0x3f80' % sr(S_LO)); b('s_mov_b32 %s, 0x3f800000' % sr(S_HI))
    b('s_mov_b32 %s, 3' % sr(S_CNT)); b('s_mov_b32 %s, 1' % sr(S_FVAL))
    LATE = OPT.get('late_setup', True)
    work = (pat if LATE else pat + rest + s_)
    def do_work(n):
        for _ in range(n):
            if not work: return
            x = work.pop(0)
            for t in (x if isinstance(x, list) else [x]): e(t)
    XLA = OPT.get('xla', 6)
    first = dma_G(S_WG, sr(S_GCOL), 0, 'Ga') + ([('X', k, None) for k in range(2, XLA)] if not FUSE else [])
    if not LATE: first += dma_G(S_WG, sr(S_GCOL), 1, 'Gb') + [('T', 0, None)]
    nvm = sum(1 for k in first if k[0] in 'DXT'); per = (len(work) + nvm - 1)//nvm
    for kind, text, tag in first:
        if kind == 'X': xload(P, text); do_work(per)
        elif kind == 'T': stload(P); do_work(per)
        else:
            e(text, tag=tag)
            if ' m0,' in text: e('s_nop 0')
            if kind == 'D': do_work(per)
    do_work(9999)
    if FUSE:
        e('s_cmp_lg_u32 %s, 0' % sr(S_W)); e('s_cbranch_scc1 L_%s_go' % name)
        e('s_lshl_b32 %s, %s, 2' % (sr(S_A), sr(S_I))); e('s_mul_i32 %s, %s, 171' % (sr(S_A), sr(S_A))); e('s_lshr_b32 %s, %s, 9' % (sr(S_A), sr(S_A)))
        e('s_lshl_b32 %s, %s, 8' % (sr(S_A), sr(S_A))); e('s_add_u32 %s, %s, 0x%x' % (sr(S_A), sr(S_A), WS_CNT))
        e('s_mov_b32 %s, 0x4000' % sr(S_C))
        P.raw('L_%s_wait:' % name)
        P.raw('buffer_load_dword v2, off, %s, %s sc1' % (sr(S_WS,4), sr(S_A)))
        P.raw('buffer_load_dword v3, off, %s, %s offset:256 sc1' % (sr(S_WS,4), sr(S_A)))
        P.raw('s_waitcnt vmcnt(0)')
        P.raw('v_min_u32 v2, v2, v3'); P.raw('s_nop 0')
        P.raw('v_readfirstlane_b32 %s, v2' % sr(S_B)); P.raw('s_sub_u32 %s, %s, 1' % (sr(S_C), sr(S_C)))
        P.raw('s_cmp_eq_u32 %s, 0' % sr(S_C)); P.raw('s_cbranch_scc1 L_%s_go' % name)
        P.raw('s_cmp_ge_u32 %s, 9' % sr(S_B)); P.raw('s_cbranch_scc1 L_%s_go' % name)
        P.raw('s_sleep %d' % OPT.get('poll_sleep', 6)); P.raw('s_branch L_%s_wait' % name)
        P.raw('L_%s_go:' % name)
        e('s_barrier')
        stamp('go2')
        for k in range(XLA): xload(P, k)
    if OPT.get('pro_stamps'): stamp('setup')
    def stats_block(P):
        e = P.e; Q = V_H; T = V_H + 8
        P.wait_vm_tag('st')
        for mm in range(2): e('v_add_f32 %s, %s, %s' % (vr(Q+mm), vr(Q+mm), vr(Q+2+mm)))
        for mm in range(2): e('v_add_f32 %s, %s, %s' % (vr(Q+mm), vr(Q+mm), vr(Q+4+mm)))
        for swap in ('v_permlane32_swap_b32', 'v_permlane16_swap_b32'):
            for k in range(2): e('v_mov_b32 %s, %s' % (vr(Q+2+k), vr(Q+k)))
            e('s_nop 1')
            for k in range(2): e('%s %s, %s' % (swap, vr(Q+k), vr(Q+2+k)))
            e('s_nop 1')
            for k in range(2): e('v_add_f32 %s, %s, %s' % (vr(Q+k), vr(Q+k), vr(Q+2+k)))
        e('s_mov_b32 s99, 0x%08x' % f2u(1.0/576))
        CC = -2.0*0.7978845608028654*1.4426950408889634
        for mm in range(2): e('v_mul_f32 %s, s99, %s' % (vr(V_K+mm), vr(Q+mm)))
        for mm in range(2): e('v_add_f32 %s, 0x%08x, %s' % (vr(V_K+mm), f2u(1e-5), vr(V_K+mm)))
        for mm in range(2): e('v_rsq_f32 %s, %s' % (vr(T+mm), vr(V_K+mm)))
        e('s_nop 0')
        for mm in range(2):
            e('v_mul_f32 %s, 0x%08x, %s' % (vr(V_C0+mm), f2u(CC), vr(T+mm)))
            e('v_mul_f32 %s, %s, %s' % (vr(T+2+mm), vr(T+mm), vr(T+mm)))
        for mm in range(2): e('v_mul_f32 %s, 0x%08x, %s' % (vr(T+2+mm), f2u(0.044715), vr(T+2+mm)))
        for mm in range(2): e('v_mul_f32 %s, %s, %s' % (vr(V_C1+mm), vr(V_C0+mm), vr(T+2+mm)))
    e('v_mov_b32 %s, %s' % (vr(V_RD), vr(V_PG))); e('v_add_u32 %s, %d, %s' % (vr(V_RD2), SLOT, vr(V_PG)))
    P.wait_vm(lambda x: x.tag in ('Ga', 'x0')); i = e('s_barrier'); i.meta = dict(needs='Ga')
    if not OPT.get('fuse1'): stamp('bar0')
    S = Stream()
    P4 = OPT.get('pass4', True)
    fr = []; mf = []
    if P4:
        def step(ks, fts):
            rd = V_RD if ks < 9 else V_RD2; kl = ks % 9
            f0 = len(fr)
            for ft in fts: fr.append(Frag(rd, (4*kl)*1024 + ft*256, (4*kl+2)*1024 + ft*256))
            for n, ft in enumerate(fts):
                for mm in range(2):
                    mf.append(MF(acc(V_G, ft, mm), f0+n, xfrag(ks, mm), '0' if ks == 0 else acc(V_G, ft, mm), [f0+n, f0+n+1] if (n % 2 == 0 and mm == 0) else None))
        for ks in range(15): step(ks, (0, 1, 2, 3))
        for ks in range(15, 18): step(ks, (0, 1))
        for ks in range(15, 18): step(ks, (2, 3))
        S.add(fr, mf)
    else:
        for ks in range(18):
            rd = V_RD if ks < 9 else V_RD2; kl = ks % 9
            f0 = len(fr)
            for ft in range(2): fr.append(Frag(rd, (4*kl)*1024 + ft*256, (4*kl+2)*1024 + ft*256))
            for ft in range(2):
                for mm in range(2):
                    mf.append(MF(acc(V_G, ft, mm), f0+ft, xfrag(ks, mm), '0' if ks == 0 else acc(V_G, ft, mm), [f0, f0+1] if (ft == 0 and mm == 0) else None))
        S.add(fr, mf)
        fr = []; mf = []
        for ft in (2, 3):
            for g in range(6):
                f0 = len(fr)
                for t in range(3):
                    ks = 3*g + t; kl = ks % 9
                    fr.append(Frag(V_RD if ks < 9 else V_RD2, (4*kl)*1024 + ft*256, (4*kl+2)*1024 + ft*256))
                for mm in range(2):
                    for t in range(3):
                        ks = 3*g + t
                        mf.append(MF(acc(V_G, ft, mm), f0+t, xfrag(ks, mm), '0' if ks == 0 else acc(V_G, ft, mm), [f0, f0+1, f0+2] if (mm == 0 and t == 0) else None))
        S.add(fr, mf)
    fx = Fixed()
    G = 8 if P4 else 4
    for ks in range(18):
        g0 = G*ks if (not P4 or ks < 15) else 120 + 4*(ks-15)
        g1 = g0 + (G if (not P4 or ks < 15) else 4) - 1
        if ks + XLA < 18: fx.put(g0, 'X', (lambda P, k=ks+XLA: xload(P, k)), cost=4)
        if ks + 1 < 18: fx.put(g1, 'X', (lambda P, k=ks+1: P.wait_vm_tag('x%d' % k)))
    fx.put(100 if P4 else 61, 'X', stats_block, cost=8)
    ch = []
    late_q = []
    if LATE:
        put_dma(ch, 1, dma_G(S_WG, sr(S_GCOL), 1, 'Gb'), step=2)
        fx.put(30, 'X', stload, cost=9)
        late_q = [Queue([Op(x) for x in rest], 'rest').window(0, 0, 110),
                  Queue([Op((lambda P, x=x: [P.e(t) for t in x]), cost=1) if isinstance(x, list) else Op(x) for x in s_], 'srest').window(0, 0, 110)]
    if P4:
        put_dma(ch, 62, dma_G(S_WU, sr(S_GCOL), 0, 'Ua'), step=3)
        put_dma(ch, 100, dma_G(S_WU, sr(S_GCOL), 1, 'Ub'), step=3)
        ch.append((136, 'S', 's_add_u32 %s, %s, 128' % (sr(S_GCOL), sr(S_GCOL)), None)); ch.append((137, 'S', 's_add_u32 %s, %s, 128' % (sr(S_GCOL2), sr(S_GCOL2)), None))
        gbw = 9*8 - LAR - 2
    else:
        put_dma(ch, 57, dma_G(S_WU, sr(S_GCOL), 0, 'Ua'), step=2)
        put_dma(ch, 78, dma_G(S_WU, sr(S_GCOL), 1, 'Ub'), step=5)
        ch.append((126, 'S', 's_add_u32 %s, %s, 128' % (sr(S_GCOL), sr(S_GCOL)), None)); ch.append((127, 'S', 's_add_u32 %s, %s, 128' % (sr(S_GCOL2), sr(S_GCOL2)), None))
        gbw = 22
    fx.chain(ch)
    if dbg and OPT.get('pro_stamps'):
        for g in ((39, 79, 119) if P4 else (23, 47, 71)): fx.put(g, 'X', (lambda P, g=g: stamp('p%d' % g)), cost=0)
    fx.put(gbw, 'L', '@waitvm', 'Gb'); fx.put(gbw, 'B', 's_barrier', 'Gb')
    if P4: qa = gelu_q(0, 'g0', V_T).window(134, 134, 140); qb = gelu_q(1, 'g1', V_T+4).window(135, 135, 141)
    else: qa = gelu_q(0, 'g0', V_T).window(75, 75, 108); qb = gelu_q(1, 'g1', V_T+4).window(92, 100, 142)
    if late_q: qa.after([late_q[0]]); qb.after([late_q[0]])
    put_bar(fx, 144, 'Ua', PAT_G)
    ua = st_GU(V_U, 0, True)
    info['peel'] = emit_stream(P, S, ua[0][:LAR//2], fx, late_q + [qa, qb], A_W, NF, LAR, 0, maxslots=9, opt=OPT, first_reads=True, drain_ok=True, drain_interleave=True)
    if OPT.get('code_pf'):
        P.raw('s_getpc_b64 s[4:5]'); P.raw('L_%s_pc:' % name)
        P.raw('s_add_u32 s4, s4, L_%s_tail - L_%s_pc' % (name, name)); P.raw('s_addc_u32 s5, s5, 0')
        P.raw('s_mov_b32 s6, L_text_end - L_%s_tail' % name); e('s_mov_b32 s7, 0x%x' % SRD3)
        e('s_lshl_b32 %s, %s, 13' % (sr(S_CPF), sr(S_W)))
    stamp('peel')
    P.raw('.p2align 6'); P.raw('L_%s_loop:' % name)
    body_start = len(P.ins)
    def flagstore(tag, val):
        def f(P):
            if not OPT.get('no_flagwait'): P.wait_vm_tag(tag)
            P.e('v_mov_b32 %s, %s' % (vr(V_FL), val))
            P.e('buffer_store_dword %s, off, %s, %s sc1' % (vr(V_FL), sr(S_WS,4), sr(S_FLO)), tag='fl')
        f.cost = 3
        return f
    def front(fx, ch, tail):
        S = Stream().add(*st_GU(V_U, 0, True)).add(*st_GU(V_U, 1, False))
        G0 = OPT.get('dma_g0', 2)
        if not tail:
            put_dma(ch, G0, dma_G(S_WG, sr(S_GCOL), 0, 'Ga')); put_dma(ch, 72+G0, dma_G(S_WG, sr(S_GCOL), 1, 'Gb'))
            put_bar(fx, 72, 'Ub', PAT_G); put_bar(fx, 144, 'Ga', PAT_G)
        else:
            put_dma(ch, G0, dma_G(S_WG, sr(S_HCOL), 0, 'Gh', 16)); put_dma(ch, 72+G0, dma_D(sr(S_DROW), 'D'))
            put_bar(fx, 72, 'Ub', PAT_G); put_bar(fx, 144, 'Gh', PAT_H)
        W = OPT.get('win', dict())
        def win(k, kind): return W.get(k + ('T' if tail else ''), W.get(k, kind))
        g2 = gelu_q(2, 'g2', V_T).window(0, *win('g2', (18, 85))); g3 = gelu_q(3, 'g3', V_T+4).window(0, *win('g3', (51, 148)))
        p0 = prod_q(0, V_H, 'p0').window(92, *win('p0', (130, 143)))
        p1 = prod_q(1, V_H, 'p1', (sr(S_HXO), 0, 'h0')).window(110, *win('p1', (135, 149))).after([p0])
        p2 = prod_q(2, V_H+8, 'p2').window(128, *win('p2', (165, 178))).after([g2, p1])
        p3 = prod_q(3, V_H+8, 'p3', (sr(S_HXO), 2048, 'h1')).window(146, *win('p3', (172, 188))).after([g3, p2])
        return S, [p0, p1, p2, p3, g2, g3]
    G0 = OPT.get('dma_g0', 2)
    Hf = [[vr(V_H + 8*kq + 4*mm, 4) for mm in range(2)] for kq in range(2)]
    fx = Fixed(); ch = []
    S, qs = front(fx, ch, False)
    S.add(*st_GU(V_G, 0, True)).add(*st_GU(V_G, 1, False)).add(*st_D(Hf))
    put_dma(ch, 144+G0, dma_D(sr(S_DROW), 'D')); put_dma(ch, 216+G0, dma_G(S_WU, sr(S_GCOL), 0, 'Ua')); put_dma(ch, 288+G0, dma_G(S_WU, sr(S_GCOL), 1, 'Ub'))
    fx.chain(ch)
    put_bar(fx, 216, 'Gb', PAT_G); put_bar(fx, 288, 'D', PAT_D); put_bar(fx, 360, 'Ua', PAT_G)
    p3 = qs[3]
    W = OPT.get('win', dict())
    n0 = gelu_q(0, 'g0n', V_T).window(237, *W.get('n0', (252, 318))).after([p3]); n1 = gelu_q(1, 'g1n', V_T+4).window(255, *W.get('n1', (295, 359))).after([p3])
    if OPT.get('code_pf'):
        def cpf(P):
            P.e('v_lshlrev_b32 v2, 7, v0')
            P.e('buffer_load_dword v2, v2, s[4:7], %s offen' % sr(S_CPF), tag='cpf')
        fx.put(OPT.get('cpf_gap', 132), 'X', cpf, cost=3)
    fx.put(277, 'X', flagstore('h1', sr(S_FVAL)), cost=3)
    fx.chain([(285, 'S', 's_add_u32 %s, %s, 1' % (sr(S_FVAL), sr(S_FVAL)), None), (286, 'S', 's_add_u32 %s, %s, 4096' % (sr(S_HXO), sr(S_HXO)), None),
              (287, 'S', 's_add_u32 %s, %s, %d' % (sr(S_DROW), sr(S_DROW), 64*1152), None)])
    info['body'] = emit_stream(P, S, ua[0][:LAR//2], fx, qs + [n0, n1], A_W, NF, LAR, 0, maxslots=OPT['cap'], opt=OPT)
    dl = {q.name: q.finish for q in qs + [n0, n1]}
    assert dl['p0'] <= 143 and dl['p1'] <= 161 and dl['p2'] <= 179 and dl['p3'] <= 197, dl
    info['fb'] = dl
    e('s_add_u32 %s, %s, 128' % (sr(S_GCOL), sr(S_GCOL))); e('s_add_u32 %s, %s, 128' % (sr(S_GCOL2), sr(S_GCOL2)))
    e('s_sub_u32 %s, %s, 1' % (sr(S_CNT), sr(S_CNT))); e('s_cmp_lg_u32 %s, 0' % sr(S_CNT))
    e('s_cbranch_scc1 L_%s_loop' % name)
    body_end = len(P.ins)
    P.raw('L_%s_tail:' % name)
    stamp('loop')
    fx = Fixed(); ch = []
    S, qs = front(fx, ch, True)
    S.add(*st_half(V_G)).add(*st_D(Hf)).add(*st_half(V_U))
    HHf = [vr(V_HH + 4*mm, 4) for mm in range(2)]
    hp = [[hpfrag(th, mm) for mm in range(2)] for th in range(9)]
    FIN = OPT.get('final', 3)
    F2 = FIN in (2, 3)
    RA = (V_RD, V_RD2); RB = (V_T, V_T+1)
    put_dma(ch, 144+G0, dma_G(S_WU, sr(S_HCOL), 0, 'Uh', 16))
    if FIN == 1:
        for pair in ([hp[0], hp[1]], [hp[2], hp[3]], [hp[4], hp[5]], [HHf, hp[6]], [hp[7], hp[8]]): S.add(*st_D(pair))
        for k in range(5): put_dma(ch, 216+72*k+G0, dma_D(sr(S_E+k), 'E%d' % k))
        fx.chain(ch)
        put_bar(fx, 216, 'D', PAT_D); put_bar(fx, 288, 'Uh', PAT_H)
        for k in range(5): put_bar(fx, 360+72*k, 'E%d' % k, PAT_D)
    elif FIN == 3:
        for pair in ([hp[0], hp[1]], [hp[2], hp[3]], [hp[4], hp[5]]): S.add(*st_D(pair))
        last = [HHf, hp[6], hp[7], hp[8]]
        S.add(*st_F(last, 0)).add(*st_F(last, 1))
        for k in range(3): put_dma(ch, 216+72*k+G0, dma_D(sr(S_E+k), 'E%d' % k))
        put_dma(ch, 432+G0, dma_F(sr(S_E+3), 'F0')); put_dma(ch, 504+G0, dma_F(sr(S_E+4), 'F1'))
        fx.chain(ch)
        put_bar(fx, 216, 'D', PAT_D); put_bar(fx, 288, 'Uh', PAT_H)
        for k in range(3): put_bar(fx, 360+72*k, 'E%d' % k, PAT_D)
        put_bar(fx, 576, 'F0', [(V_RD, V_PF)]); put_bar(fx, 648, 'F1', [(V_RD, V_PF)])
        qf = Queue([Op(x) for x in f_setup_ops()], 'fset').window(362, 362, 425)
    else:
        for pair in ([hp[0], hp[1]], [hp[2], hp[3]], [hp[4], hp[5]]): S.add(*st_D(pair))
        S.add(*st_final([HHf, hp[6], hp[7], hp[8]], RA, RB))
        for k in range(3): put_dma(ch, 216+72*k+G0, dma_D(sr(S_E+k), 'E%d' % k))
        put_dma(ch, 421, dma_D(sr(S_E+3), 'E3'), step=6); put_dma(ch, 475, dma_D(sr(S_E+4), 'E4'), step=6)
        fx.chain(ch)
        put_bar(fx, 216, 'D', PAT_D); put_bar(fx, 288, 'Uh', PAT_H)
        for k in range(3): put_bar(fx, 360+72*k, 'E%d' % k, PAT_D)
        fx.put(436, 'B', 's_barrier', None)
        put_bar(fx, 576, ['E3', 'E4'], PAT_D)
        def second_base(P):
            P.e('s_add_u32 %s, %s, 1' % (sr(S_A), sr(S_CR))); P.e('s_and_b32 %s, %s, 3' % (sr(S_A), sr(S_A))); P.e('s_mul_i32 %s, %s, %d' % (sr(S_A), sr(S_A), SLOT))
            P.e('v_add_u32 %s, %s, %s' % (vr(RB[0]), sr(S_A), vr(V_PDE))); P.e('v_add_u32 %s, %s, %s' % (vr(RB[1]), sr(S_A), vr(V_PDO)))
        fx.put(576-LAR-3, 'X', second_base, cost=5)
    p3 = qs[3]
    h0 = gelu_q(0, 'gh0', V_T).window(183, 195, 265).after([p3]); h1 = gelu_q(1, 'gh1', V_T+4).window(219, 255, 330).after([p3])
    fx.chain([(340, 'S', 's_add_u32 %s, %s, 4096' % (sr(S_T1), sr(S_HXO)), None)])
    ph0 = prod_q(0, V_HH, 'ph0').window(327, 330, 350).after([h0])
    ph1 = prod_q(1, V_HH, 'ph1', (sr(S_T1), 0, 'hh')).window(363, 364, 384).after([h1, ph0])
    def poll_issue(P): P.e('buffer_load_dword %s, off, %s, %s sc1' % (vr(V_PO), sr(S_WS,4), sr(S_FLP)), tag='poll')
    slow = []
    def poll_check(val, lab):
        def f(P):
            P.wait_vm_tag('poll')
            P.e('v_readfirstlane_b32 %s, %s' % (sr(S_A), vr(V_PO)))
            P.e('s_nop 0')
            P.e('s_cmp_ge_u32 %s, %d' % (sr(S_A), val))
            P.e('s_cbranch_scc0 L_%s_slow%s' % (name, lab))
            P.raw('L_%s_back%s:' % (name, lab))
            slow.append((val, lab))
        f.cost = 5
        return f
    def hp_load(x):
        def f(P):
            if x % 4 == 0: P.e('s_add_u32 %s, %s, %d' % (sr(S_B), sr(S_HXP), (x//4)*4096))
            th, mm = divmod(x, 2)
            P.e('buffer_load_dwordx4 %s, %s, %s, %s offen offset:%d sc1' % (hpfrag(th, mm), vr(V_L16), sr(S_WS,4), sr(S_B), (x % 4)*1024), tag='hp%d' % x)
        return f
    if dbg and OPT.get('tail_stamps'):
        for g in OPT['tail_stamps']: fx.put(g, 'X', (lambda P, g=g: stamp('t%d' % g)), cost=0)
    fx.put(144, 'X', poll_issue, cost=2); fx.put(277, 'X', poll_check(3, 'a'), cost=5)
    for x in range(4): fx.put(279 + 2*x, 'X', hp_load(x), cost=2)
    for x in range(4, 8): fx.put(350 + 2*(x-4), 'X', hp_load(x), cost=2)
    for x in range(8, 12): fx.put(422 + 2*(x-8), 'X', hp_load(x), cost=2)
    fx.put(279, 'X', flagstore('h1', '4'), cost=3)
    fx.put(440, 'X', flagstore('hh', '5'), cost=3)
    if not F2:
        fx.put(360, 'X', poll_issue, cost=2); fx.put(493, 'X', poll_check(4, 'b'), cost=5)
        for x in range(12, 16): fx.put(495 + 2*(x-12), 'X', hp_load(x), cost=2)
        fx.put(504, 'X', poll_issue, cost=2); fx.put(565, 'X', poll_check(5, 'c'), cost=5)
        for x in range(16, 18): fx.put(567 + 2*(x-16), 'X', hp_load(x), cost=2)
    else:
        fx.put(478, 'X', poll_issue, cost=2); fx.put(513, 'X', poll_check(5, 'b'), cost=5)
        for x in range(12, 18): fx.put(515 + 2*(x-12), 'X', hp_load(x), cost=2)
    def hp_wait(xs):
        def f(P): P.wait_vm(lambda i: i.tag in ['hp%d' % t for t in xs])
        return f
    fx.put(360-4, 'X', hp_wait(range(4)))
    fx.put(432-4, 'X', hp_wait(range(4, 8)))
    fx.put(504-4, 'X', hp_wait(range(8, 12)))
    if not F2:
        fx.put(576-4, 'X', hp_wait(range(12, 14)))
        fx.put(648-4, 'X', hp_wait(range(14, 18)))
    else: fx.put(576-2, 'X', hp_wait(range(12, 18)))
    ep = []
    for np_ in range(9):
        ear = (576 + 16*(np_+1) + 2) if F2 else (648 + 8*(np_+1) + 2)
        for mm in range(2):
            tb = V_G + 16*((2*np_+mm) % 4); hb = V_H + 4*((2*np_+mm) % 4)
            for k in range(2):
                for r in range(4): ep.append(Op('v_accvgpr_read_b32 %s, a%d' % (vr(tb+4*k+r), A_OUT + 8*(2*np_+k) + 4*mm + r), ear))
            for d in range(4): ep.append(Op('v_cvt_pk_bf16_f32 %s, %s, %s' % (vr(hb+d), vr(tb+2*d), vr(tb+2*d+1)), ear))
            fr_ = mm*9 + np_
            def st(P, fr_=fr_, hb=hb):
                P.e('s_add_u32 %s, %s, %d' % (sr(S_T0), sr(S_P), fr_*1024))
                P.e('buffer_store_dwordx4 %s, %s, %s, %s offen sc1' % (vr(hb,4), vr(V_L16), sr(S_WS,4), sr(S_T0)), tag='pA' if (fr_ % 9) < 4 else 'pB')
            ep.append(Op(st, ear, cost=2))
    qe = Queue(ep, 'ep', prio=True)
    RSPLIT = OPT.get('fuse4') and OPT.get('rsplit', True)
    if RSPLIT:
        def sigA(P):
            assert sum(1 for i_ in P.ins if i_.tag == 'pA') == 8
            P.wait_vm_tag('pA')
            P.e('s_lshl_b32 %s, %s, 1' % (sr(S_A), sr(S_I))); P.e('s_add_u32 %s, %s, %s' % (sr(S_A), sr(S_A), sr(S_S)))
            P.e('s_lshl_b32 %s, %s, 8' % (sr(S_A), sr(S_A))); P.e('s_add_u32 %s, %s, 0x%x' % (sr(S_A), sr(S_A), WS_CNT4A))
            P.e('v_mov_b32 v2, 1'); P.e('s_mov_b64 exec, 1')
            P.raw('buffer_atomic_add v2, off, %s, %s' % (sr(S_WS,4), sr(S_A))); P.vmq.append(Ins('buffer_atomic_add v2, off, s[20:23], s50'))
            P.e('s_mov_b64 exec, -1'); P.e('s_nop 3')
        fx.put(OPT.get('sigA_gap', 708), 'X', sigA, cost=9)
    allq = qs + [ph0, ph1, h0, h1, qe] + ([qf] if FIN == 3 else [])
    info['tail'] = emit_stream(P, S, [], fx, allq, A_W, NF, LAR, 0, maxslots=OPT['cap'], opt=OPT, drain_ok=True, drain_pre='s_nop 7')
    dl = {q.name: q.finish for q in allq}
    assert dl['p0'] <= 143 and dl['p1'] <= 179 and dl['p3'] < 212 and dl['ph1'] < 420 and dl['gh0'] < 326, dl
    if FIN == 3: assert dl['fset'] < 430, dl
    info['ft'] = dl
    stamp('tail')
    if OPT.get('fuse4'):
        P.raw('s_load_dwordx2 s[4:5], s[0:1], %d' % KA_OUT)
        S_TL, S_MT, S_PB, S_KS, S_HB2 = 28, 29, 30, 31, 32
        e('s_lshl_b32 %s, %s, 1' % (sr(S_TL), sr(S_I))); e('s_add_u32 %s, %s, %s' % (sr(S_TL), sr(S_TL), sr(S_S)))
        e('s_lshl_b32 %s, %s, 3' % (sr(S_MT), sr(S_I))); e('s_add_u32 %s, %s, %s' % (sr(S_MT), sr(S_MT), sr(S_JP)))
        e('s_lshl_b32 %s, %s, 6' % (sr(S_PB), sr(S_TL))); e('s_add_u32 %s, %s, %s' % (sr(S_PB), sr(S_PB), sr(S_JP)))
        e('s_mul_i32 %s, %s, 9' % (sr(S_PB), sr(S_PB))); e('s_add_u32 %s, %s, %s' % (sr(S_PB), sr(S_PB), sr(S_W)))
        e('s_lshl_b32 %s, %s, 10' % (sr(S_PB), sr(S_PB))); e('s_add_u32 %s, %s, 0x%x' % (sr(S_PB), sr(S_PB), WS_P))
        e('s_mul_i32 %s, %s, 9' % (sr(S_KS), sr(S_S))); e('s_add_u32 %s, %s, %s' % (sr(S_KS), sr(S_KS), sr(S_W)))
        e('s_mul_i32 %s, %s, 18' % (sr(S_HB2), sr(S_MT))); e('s_add_u32 %s, %s, %s' % (sr(S_HB2), sr(S_HB2), sr(S_KS)))
        e('s_lshl_b32 %s, %s, 10' % (sr(S_HB2), sr(S_HB2))); e('s_add_u32 %s, %s, 0x%x' % (sr(S_HB2), sr(S_HB2), WS_HC))
        e('v_and_b32 v2, 15, v0'); e('v_lshlrev_b32 v3, 3, v2')
        e('s_lshl_b32 %s, %s, 7' % (sr(S_T0), sr(S_MT))); e('s_add_u32 %s, %s, 0x%x' % (sr(S_T0), sr(S_T0), WS_ST))
        e('buffer_load_dword v4, v3, %s, %s offen sc1' % (sr(S_WS,4), sr(S_T0)), tag='mu')
        e('s_lshl_b32 %s, %s, 4' % (sr(S_T1), sr(S_MT))); e('v_add_u32 v5, %s, v2' % sr(S_T1)); e('v_mul_u32_u24 v5, 1152, v5')
        e('v_bfe_u32 v3, v0, 4, 1'); e('v_lshl_add_u32 v5, v3, 5, v5'); e('v_bfe_u32 v3, v0, 5, 1'); e('v_lshl_add_u32 v5, v3, 4, v5')
        P.raw('s_waitcnt lgkmcnt(0)'); P.lgq = []
        e('s_mov_b32 s6, %d' % (S_*D_*2)); e('s_mov_b32 s7, 0x%x' % SRD3)
        def spin(lab, base, need, add):
            e('s_cmp_lg_u32 %s, 0' % sr(S_W)); e('s_cbranch_scc1 L_%s_%sgo' % (name, lab))
            e('s_lshl_b32 %s, %s, 8' % (sr(S_B), sr(S_TL))); e('s_add_u32 %s, %s, 0x%x' % (sr(S_B), sr(S_B), base))
            e('s_mov_b32 %s, 0x4000' % sr(S_C))
            P.raw('L_%s_%swait:' % (name, lab))
            P.raw('buffer_load_dword v6, off, %s, %s sc1' % (sr(S_WS,4), sr(S_B)))
            P.raw('s_waitcnt vmcnt(0)')
            P.raw('v_readfirstlane_b32 %s, v6' % sr(S_D)); P.raw('s_sub_u32 %s, %s, 1' % (sr(S_C), sr(S_C)))
            P.raw('s_cmp_eq_u32 %s, 0' % sr(S_C)); P.raw('s_cbranch_scc1 L_%s_%sgo' % (name, lab))
            P.raw('s_cmp_ge_u32 %s, %d' % (sr(S_D), need)); P.raw('s_cbranch_scc1 L_%s_%sgo' % (name, lab))
            P.raw('s_sleep %d' % OPT.get('rpoll_sleep', 2)); P.raw('s_branch L_%s_%swait' % (name, lab))
            P.raw('L_%s_%sgo:' % (name, lab))
            e('s_barrier')
        def arrive():
            e('s_cmp_lg_u32 %s, 0' % sr(S_W)); e('s_cbranch_scc1 L_%s_rarr' % name)
            e('s_lshl_b32 %s, %s, 8' % (sr(S_B), sr(S_TL))); e('s_add_u32 %s, %s, 0x%x' % (sr(S_B), sr(S_B), WS_CNT4))
            e('v_mov_b32 v2, 1'); e('s_mov_b64 exec, 1')
            P.raw('buffer_atomic_add v2, off, %s, %s' % (sr(S_WS,4), sr(S_B)))
            e('s_mov_b64 exec, -1')
            P.raw('L_%s_rarr:' % name)
        RB = 64
        def rloads(slot, k):
            e('s_add_u32 %s, %s, %d' % (sr(S_T0), sr(S_HB2), 4096*k))
            e('buffer_load_dwordx4 %s, %s, %s, %s offen sc1' % (vr(RB+36*slot, 4), vr(V_L16), sr(S_WS,4), sr(S_T0)), tag='r%d' % k)
            for jp in range(8):
                e('s_add_u32 %s, %s, %d' % (sr(S_T0), sr(S_PB), 4096*k + 73728*jp))
                e('buffer_load_dwordx4 %s, %s, %s, %s offen sc1' % (vr(RB+36*slot+4*(jp+1), 4), vr(V_L16), sr(S_WS,4), sr(S_T0)), tag='r%d_%d' % (k, jp))
        def rsum(k):
            acc_ = 176 + 8*k; o = 200 + 4*k
            for src in range(9):
                P.wait_vm_tag('r%d' % k if src == 0 else 'r%d_%d' % (k, src-1))
                b_ = RB + 36*k + 4*src
                for d in range(4):
                    for hi in range(2):
                        e('v_dot2_f32_bf16 %s, %s, %s, %s' % (vr(acc_+2*d+hi), vr(b_+d), sr(S_LO if hi == 0 else S_HI), 'v4' if src == 0 else vr(acc_+2*d+hi)))
            e('s_nop 2')
            for d in range(4): e('v_cvt_pk_bf16_f32 %s, %s, %s' % (vr(o+d), vr(acc_+2*d), vr(acc_+2*d+1)))
            e('s_nop 1')
            e('v_permlane16_swap_b32 %s, %s' % (vr(o), vr(o+2))); e('v_permlane16_swap_b32 %s, %s' % (vr(o+1), vr(o+3)))
            e('s_add_u32 %s, %s, %d' % (sr(S_T0), sr(S_KS), 4*k)); e('s_lshl_b32 %s, %s, 6' % (sr(S_T0), sr(S_T0)))
            e('buffer_store_dwordx4 %s, v5, s[4:7], %s offen %s' % (vr(o, 4), sr(S_T0), OPT.get('out_flags', '')))
        if RSPLIT:
            spin('ra', WS_CNT4A, 32, False)
            rloads(0, 0)
            P.wait_vm_tag('pB')
            e('s_barrier'); arrive()
            rsum(0)
            spin('rb', WS_CNT4, 8, False)
            stamp('rgo')
            rloads(1, 1)
        else:
            P.raw('s_waitcnt vmcnt(0)'); P.vmq = []
            e('s_barrier'); arrive()
            spin('rb', WS_CNT4, 8, False)
            stamp('rgo')
            rloads(0, 0); rloads(1, 1)
        r2a = len(P.ins)
        e('s_cmp_lg_u32 %s, 0' % sr(S_W)); e('s_cbranch_scc1 L_%s_r2' % name)
        rloads(2, 2)
        saved = list(P.vmq)
        if not RSPLIT: rsum(0)
        rsum(1); rsum(2)
        e('s_branch L_%s_rend' % name)
        r2b = len(P.ins)
        P.raw('L_%s_r2:' % name)
        P.vmq = [x for x in saved if not (x.tag or '').startswith('r2')]
        if not RSPLIT: rsum(0)
        rsum(1)
        P.raw('L_%s_rend:' % name)
        info['rsplit'] = (r2a, r2b, len(P.ins))
    if dbg:
        e('s_waitcnt vmcnt(0)')
        stamp('end')
        e('s_mov_b32 s4, s94'); e('s_mov_b32 s5, s95'); e('s_mov_b32 s6, 0x100000'); e('s_mov_b32 s7, 0x20000')
        e('s_lshl_b32 s41, s2, 2'); e('s_add_u32 s41, s41, %s' % sr(S_W)); e('s_lshl_b32 s41, s41, 7')
        for k in range(len(stamps)):
            e('s_sub_u32 s42, s%d, s64' % (64+k)); e('v_mov_b32 v1, s42')
            e('buffer_store_dword v1, off, s[4:7], s41 offset:%d' % (4*k))
            e('s_sub_u32 s42, s%d, s77' % (77+k)); e('v_mov_b32 v1, s42')
            e('buffer_store_dword v1, off, s[4:7], s41 offset:%d' % (64+4*k))
        e('v_mov_b32 v1, s77'); e('buffer_store_dword v1, off, s[4:7], s41 offset:60')
    P.raw('L_%s_end:' % name)
    e('s_endpgm')
    main_end = len(P.ins)
    for val, lab in slow:
        P.raw('L_%s_slow%s:' % (name, lab))
        P.raw('s_mov_b32 %s, 0x8000' % sr(S_C))
        P.raw('L_%s_spin%s:' % (name, lab))
        P.raw('s_sleep 2')
        P.raw('buffer_load_dword %s, off, %s, %s sc1' % (vr(V_PO), sr(S_WS,4), sr(S_FLP)))
        P.raw('s_waitcnt vmcnt(0)')
        P.raw('v_readfirstlane_b32 %s, %s' % (sr(S_A), vr(V_PO)))
        P.raw('s_sub_u32 %s, %s, 1' % (sr(S_C), sr(S_C)))
        P.raw('s_cmp_eq_u32 %s, 0' % sr(S_C))
        P.raw('s_cbranch_scc1 L_%s_back%s' % (name, lab))
        P.raw('s_cmp_ge_u32 %s, %d' % (sr(S_A), val))
        P.raw('s_cbranch_scc0 L_%s_spin%s' % (name, lab))
        P.raw('s_branch L_%s_back%s' % (name, lab))
    ins = P.ins
    path = ins[:body_start] + ins[body_start:body_end]*3 + ins[body_end:main_end]
    if OPT.get('fuse4'):
        ra, rb, rc = info['rsplit']
        tail0 = ins[body_end:rb] + ins[rc:main_end]; tail1 = ins[body_end:ra] + ins[rb:main_end]
        path = ins[:body_start] + ins[body_start:body_end]*3 + tail0
        info['paths4'] = [ins[:body_start] + ins[body_start:body_end]*3 + tail1]
    if FUSE:
        a, (h0, h1), w3, en = segs['start'], segs['skip'], segs['w3'], segs['end']
        rest_ = ins[en:body_start] + ins[body_start:body_end]*3 + (tail0 if OPT.get('fuse4') else ins[body_end:main_end])
        if FUSE1:
            path = k1paths[0] + ins[k2s:h0] + ins[h1:w3] + rest_
            info['paths'] = [k1paths[0] + ins[k2s:h1] + rest_, k1paths[1] + ins[k2s:h0] + ins[h1:segs['w3br']] + ins[w3:en] + rest_]
        else:
            path = ins[:h0] + ins[h1:w3] + rest_
            info['paths'] = [ins[:h1] + rest_, ins[w3:en] + rest_]
    info['stamps'] = stamps
    return P, path, info

if __name__ == '__main__':
    import collections
    P, path, info = build()
    check(path, 'k3b')
    print('barrier problems', verify_barriers(path))
    for k in ('peel', 'body', 'tail'):
        print(k, 'slots/gap hist', sorted(collections.Counter(info[k]).items()), 'est cyc/unit %.2f' % (est_cycles(info[k])/len(info[k])*2))
    print(info['fb']); print(info['ft'])
    print('instrs', len(P.ins))
```
